```python
import torch

def _softmax(x, axis=-1):
    return torch.softmax(x, dim=axis)
def _gelu(x):
    return torch.nn.functional.gelu(x, approximate="tanh")
def _silu(x):
    return torch.nn.functional.silu(x)
def _sigmoid(x):
    return torch.sigmoid(x)
def _layernorm(x, axis=-1, eps=1e-5):
    m = x.mean(dim=axis, keepdim=True)
    v = x.var(dim=axis, keepdim=True, unbiased=False)
    return (x - m) / torch.sqrt(v + eps)
def _scatter_add(tgt, idx, src, axis=0):
    return tgt.clone().index_add_(axis, idx, src)
def _segment_sum(src, seg, n):
    out = torch.zeros((n,) + src.shape[1:], dtype=src.dtype)
    return out.index_add_(0, seg, src)
def _pad(x, pw):
    flat = tuple(v for pair in reversed(pw) for v in pair)
    return torch.nn.functional.pad(x, flat)

kernel_name = 'gated_mix__spectral_fnet__dense_activation_relu__prompt'

def setup_inputs():

    _w = (lambda a: (lambda t: t.to(torch.bfloat16) if t.is_floating_point() else t)(torch.as_tensor(a)))
    def _A_setup():
        B, S, D = 1, 2048, 576
        ns = torch.arange(S)[:, None] * torch.arange(S)[None, :]
        nd = torch.arange(D)[:, None] * torch.arange(D)[None, :]
        Ws_re = torch.cos(-2.0 * torch.pi * ns / S).to(float)
        Ws_im = torch.sin(-2.0 * torch.pi * ns / S).to(float)
        Wd_re = torch.cos(-2.0 * torch.pi * nd / D).to(float)
        Wd_im = torch.sin(-2.0 * torch.pi * nd / D).to(float)
        return {
            "x": _w((lambda *s: torch.randn(*s, dtype=torch.bfloat16) * 0.05)(B, S, D)),
            "dft_seq_re": _w(Ws_re),
            "dft_seq_im": _w(Ws_im),
            "dft_hid_re": _w(Wd_re),
            "dft_hid_im": _w(Wd_im),
        }
    _A_in = _A_setup()

    def _B_setup():
        B, S, D, Dff = 1, 2048, 576, 4608
        return {
            "x": _w((lambda *s: torch.randn(*s, dtype=torch.bfloat16) * 0.05)(B, S, D)),
            "w1": _w((lambda *s: torch.randn(*s, dtype=torch.bfloat16) * 0.4)(D, Dff)),
            "w2": _w((lambda *s: torch.randn(*s, dtype=torch.bfloat16) * 0.4)(Dff, D)),
        }
    _B_in = _B_setup()

    return {
        "A_x": _A_in["x"],
        "A_dft_seq_re": _A_in["dft_seq_re"],
        "A_dft_seq_im": _A_in["dft_seq_im"],
        "A_dft_hid_re": _A_in["dft_hid_re"],
        "A_dft_hid_im": _A_in["dft_hid_im"],
        "B_x": _B_in["x"],
        "B_w1": _B_in["w1"],
        "B_w2": _B_in["w2"],
        "gate_w": _w((lambda *s: torch.randn(*s, dtype=torch.bfloat16) * 0.05)(576) * 16.0),
    }

def reference(A_x, A_dft_seq_re, A_dft_seq_im, A_dft_hid_re, A_dft_hid_im, B_x, B_w1, B_w2, gate_w):
    def _A_ref(x, dft_seq_re, dft_seq_im, dft_hid_re, dft_hid_im):
        a = torch.einsum("bsd,ed->bse", x, dft_hid_re)
        b = torch.einsum("bsd,ed->bse", x, dft_hid_im)
        y = torch.einsum("ts,bse->bte", dft_seq_re, a) - torch.einsum("ts,bse->bte", dft_seq_im, b)
        return y

    def _B_ref(x, w1, w2):
        h = torch.einsum("bsd,df->bsf", x, w1)
        zero = torch.zeros_like(h)
        h = torch.maximum(h, zero)
        return torch.einsum("bsf,fd->bsd", h, w2)

    x = A_x
    g = _sigmoid((x * gate_w).sum(-1, keepdims=True))
    a = _A_ref(x, A_dft_seq_re, A_dft_seq_im, A_dft_hid_re, A_dft_hid_im)
    b = _B_ref(x, B_w1, B_w2)
    return g * a + (1 - g) * b
```

```python
import re
class Item:
    __slots__ = ("text", "kind", "tag", "need_vm", "need_lg", "site", "rd", "wr", "emit")
    def __init__(s, text, kind="other", tag=None, need_vm=None, need_lg=None, site=None, rd=None, wr=None):
        s.text = text; s.kind = kind; s.tag = tag; s.need_vm = need_vm; s.need_lg = need_lg; s.site = site
        s.rd = rd; s.wr = wr
def I(text): return Item(text)
def VM(text, tag, wr=None): return Item(text, "vm", tag, wr=wr)
def LG(text, tag, rd=None, wr=None): return Item(text, "lg", tag, rd=rd, wr=wr)
def WAIT(site, vm=None, lg=None): return Item(None, "wait", None, vm, lg, site)
def BAR(): return Item("s_barrier", "bar")

def resolve(dyn):
    vm = []; lg = []; pos_vm = {}; pos_lg = {}; res = {}
    for it in dyn:
        if it.kind == "vm": pos_vm[it.tag] = len(vm); vm.append(it.tag)
        elif it.kind == "lg": pos_lg[it.tag] = len(lg); lg.append(it.tag)
        elif it.kind == "wait":
            a = b = None
            if it.need_vm == "all": a = 0
            elif it.need_vm:
                ps = [pos_vm[t] for t in it.need_vm]; a = len(vm) - 1 - max(ps)
            if it.need_lg == "all": b = 0
            elif it.need_lg:
                ps = [pos_lg[t] for t in it.need_lg]; b = len(lg) - 1 - max(ps)
            o = res.get(it.site, (None, None))
            a = a if o[0] is None else (o[0] if a is None else min(a, o[0]))
            b = b if o[1] is None else (o[1] if b is None else min(b, o[1]))
            res[it.site] = (a, b)
    return res
def wait_text(res, site):
    a, b = res[site]
    parts = []
    if a is not None: parts.append(f"vmcnt({min(a, 63)})")
    if b is not None: parts.append(f"lgkmcnt({min(b, 15)})")
    return "s_waitcnt " + " ".join(parts) if parts else "s_nop 0"

def check_lds(dyn, res):
    nvm = nlg = 0; done_vm = done_lg = 0; pub_vm = pub_lg = 0
    writes = []; reads = []
    for k, it in enumerate(dyn):
        if it.kind in ("vm", "lg"):
            idx = nvm if it.kind == "vm" else nlg
            if it.rd:
                for (rng, kind, i, tag) in writes:
                    if rng[0] < it.rd[1] and it.rd[0] < rng[1]:
                        priv = isinstance(tag, tuple) and tag[0] == "WAB"
                        lim = (done_vm if priv else pub_vm) if kind == "vm" else pub_lg
                        assert i < lim, f"RAW LDS race: read {it.tag} {it.rd} vs write {tag} {rng}"
                reads.append((it.rd, idx, it.tag))
            if it.wr:
                for (rng, i, tag) in reads:
                    if rng[0] < it.wr[1] and it.wr[0] < rng[1]:
                        assert i < pub_lg, f"WAR LDS race: write {it.tag} {it.wr} vs read {tag} {rng}"
                reads = [r for r in reads if not (it.wr[0] <= r[0][0] and r[0][1] <= it.wr[1])]
                writes = [w for w in writes if not (it.wr[0] <= w[0][0] and w[0][1] <= it.wr[1] and (w[2] < (pub_vm if w[1] == "vm" else pub_lg)))]
                writes.append((it.wr, it.kind, idx, it.tag))
            if it.kind == "vm": nvm += 1
            else: nlg += 1
        elif it.kind == "wait":
            a, b = res[it.site]
            if a is not None: done_vm = max(done_vm, nvm - min(a, 63))
            if b is not None: done_lg = max(done_lg, nlg - min(b, 15))
        elif it.kind == "bar":
            pub_vm = done_vm; pub_lg = done_lg

_reg = re.compile(r"^(-?)(abs\()?([vas])(?:\[(\d+):(\d+)\]|(\d+))\)?$")
def regs(op):
    op = op.strip()
    if op == "vcc": return {"s106", "s107"}
    if op == "m0": return {"m0"}
    if op == "exec": return {"exec"}
    m = _reg.match(op)
    if not m: return set()
    if m.group(6) is not None: return {m.group(3) + m.group(6)}
    return {m.group(3) + str(i) for i in range(int(m.group(4)), int(m.group(5)) + 1)}
def parse(text):
    t = text.split(";")[0].strip()
    if not t or t.endswith(":") or t.startswith("."): return None
    sp = t.split(None, 1); op = sp[0]; rest = sp[1] if len(sp) > 1 else ""
    ops = [o.strip().split(" ")[0] for o in rest.split(",")] if rest else []
    U = lambda l: set().union(*[regs(o) for o in l]) if l else set()
    if op.startswith("v_mfma"): return ("mfma", regs(ops[0]), U(ops[1:3]), regs(ops[3]))
    if op.startswith("buffer_load") or op.startswith("global_load"):
        if rest.rstrip().endswith(" lds"): return ("dma", set(), U(ops) | {"m0"}, set())
        return ("vmem", regs(ops[0]), U(ops[1:]), set())
    if op.startswith("buffer_store"): return ("vst3" if ("x4" in op or "x3" in op) else "vst", set(), U(ops), regs(ops[0]))
    if op.startswith("buffer_"): return ("vmem", set(), set(), set())
    if op.startswith("ds_read"): return ("ds", regs(ops[0]), U(ops[1:]), set())
    if op.startswith("ds_"): return ("ds", set(), U(ops), set())
    if op.startswith("v_"):
        cls = "valu"
        if "_dpp" in op: cls = "dpp"
        if op.startswith("v_permlane"): return ("perml", U(ops), U(ops), set())
        if op.startswith("v_readfirstlane") or op.startswith("v_readlane"): cls = "rfl"
        if re.match(r"v_(exp|log|rcp|rsq|sqrt|sin|cos)_", op): cls = "trans"
        d = regs(ops[0]); s = U(ops[1:])
        if op.startswith("v_fmac") or op.startswith("v_dot2c") or "_dpp" in op: s |= d
        if op.startswith("v_cndmask") and len(ops) == 3: s |= regs("vcc")
        return (cls, d, s, set())
    if op == "s_nop": return ("nop", set(), set(), int(ops[0]) + 1)
    if op.startswith("s_"):
        if op.startswith(("s_cmp", "s_cbranch", "s_branch", "s_waitcnt", "s_barrier", "s_endpgm", "s_sleep", "s_setprio")): return ("salu", set(), U(ops), set())
        d = regs(ops[0]) if ops else set()
        if "saveexec" in op: d |= {"exec"}
        return ("salu", d, U(ops[1:]), set())
    raise ValueError("cannot parse " + text)
VAL = ("valu", "dpp", "perml", "rfl", "trans")
def check_hazards(lines):
    hist = []
    for text in lines:
        p = parse(text)
        if p is None: continue
        cls, d, s, c = p
        if cls == "nop":
            hist.append(("nop", set(), set(), set(), text, c)); continue
        dist = 0
        for (pc, pd, ps, pcc, pt, st) in reversed(hist[-24:]):
            need = 0
            if pc == "mfma":
                if cls == "mfma":
                    if pd & s: need = 8
                    elif (pd & c) and pd != c: need = 6
                elif cls in VAL:
                    if pd & (s | d): need = 8
                    elif pcc & d: need = 3
                elif cls in ("vmem", "vst", "vst3", "ds", "dma") and pd & (s | d): need = 8
            if pc in VAL:
                vd = {x for x in pd if x[0] in "va"}; sd = {x for x in pd if x[0] == "s"}
                if cls == "mfma" and vd & (s | c): need = max(need, 2)
                if cls in ("dpp", "perml") and vd & s: need = max(need, 2)
                if cls == "rfl" and vd & s: need = max(need, 1)
                if pc == "trans" and cls in VAL and cls != "trans" and vd & s: need = max(need, 1)
                if sd & s:
                    if cls in ("vmem", "vst", "vst3", "dma"): need = max(need, 5)
                    elif cls in VAL: need = max(need, 2)
            if pc == "salu" and "m0" in pd and cls == "dma": need = max(need, 1)
            if pc == "vst3" and pcc & d: need = max(need, 2)
            assert dist >= need, f"hazard: '{pt}' -> '{text}' dist {dist} need {need}"
            dist += st
        hist.append((cls, d, s, c, text, 1))

_NOSCC = ("s_mov", "s_movk", "s_mul_i32", "s_mul_hi", "s_cselect", "s_cbranch", "s_branch", "s_waitcnt", "s_barrier", "s_nop", "s_load", "s_mem", "s_getreg", "s_endpgm", "s_sleep", "s_setprio")
def check_scc(lines):
    last = None
    for t in lines:
        op = t.split()[0]
        if not op.startswith("s_"): continue
        if op.startswith(("s_cselect", "s_cbranch_scc")):
            assert last is not None and last.startswith(("s_cmp", "s_bitcmp")), f"SCC consumer '{t}' after '{last}'"
        if not op.startswith(_NOSCC): last = t
```

```python
from asmlib import *
def fnet_code(g):
    T, TS, srd = g.T, g.TS, g.srd
    V_L, V_C, V_Q, OOB = g.V_L, g.V_C, g.V_Q, g.OOB
    MF = lambda d, a, b, c: I(f"v_mfma_f32_16x16x32_bf16 {d}, {a}, {b}, {c}")
    o = T(f"""
    L_spare:
    s_sub_u32 s62, s62, s63
    s_mul_i32 s64, s61, 11
    s_mul_i32 s65, s60, 3
    s_add_u32 s64, s64, s65
    s_add_u32 s64, s64, s62
    s_cmp_ge_u32 s64, 20
    s_cbranch_scc1 L_end
    s_cmp_ge_u32 s64, 10
    s_cselect_b32 s4, 1, 0
    s_cselect_b32 s65, 10, 0
    s_sub_u32 s65, s64, s65
    s_cmp_ge_u32 s65, 5
    s_cselect_b32 s5, 1, 0
    s_cselect_b32 s66, 5, 0
    s_sub_u32 s6, s65, s66
    s_waitcnt lgkmcnt(0)
    s_load_dword s7, s[58:59], 0
    """)
    o += srd(8, 38, 8388608) + srd(12, 40, 8388608) + srd(16, 58, g.WS_SIZE) + srd(20, 36, 2359296) + srd(24, 52, 1152)
    o += T(f"""
    s_lshl_b32 s66, s5, 7
    s_lshl_b32 s67, s3, 5
    s_add_u32 s66, s66, s67
    s_lshl_b32 s66, s66, 1
    s_add_u32 s66, s66, s4
    v_lshl_add_u32 v4, v{V_C}, 1, s66
    v_lshlrev_b32 v5, 5, v{V_Q}
    v_lshl_add_u32 v10, v4, 12, v5
    v_add_u32 v11, 131072, v10
    v_cmp_eq_u32 vcc, 0, v4
    v_add_u32 v6, {512*4096}, v10
    s_mov_b32 s68, 0x05040100
    s_mov_b32 s69, 0x07060302
    v_cndmask_b32 v12, v10, v6, vcc
    """)
    def aloads(vc, vs):
        r = []
        for mat in range(2):
            for j in range(8):
                for h in range(2):
                    b = 128 + (mat * 8 + j) * 8 + 4 * h
                    r.append(I(f"buffer_load_dwordx4 v[{b}:{b+3}], v{vs if mat else vc}, s[{12 if mat else 8}:{15 if mat else 11}], 0 offen offset:{128*j+16*h}"))
        return r
    o += aloads(11, 11)
    o += T(f"""
    s_cmp_ge_u32 s64, 16
    s_cbranch_scc1 L_nogate
    s_lshl_b32 s70, s64, 5
    s_lshl_b32 s71, s3, 3
    s_add_u32 s70, s70, s71
    v_lshrrev_b32 v4, 2, v{V_C}
    v_add_u32 v4, s70, v4
    v_and_b32 v5, 3, v{V_C}
    v_lshlrev_b32 v6, 4, v{V_Q}
    s_movk_i32 s67, 1152
    """) + g.rowcalc(4, 5, 7, 16) + T(f"""
    v_mad_u32_u24 v13, v7, s67, v6
    v_add_u32 v4, 4, v4
    """) + g.rowcalc(4, 5, 7, 16) + T(f"""
    v_mad_u32_u24 v14, v7, s67, v6
    """)
    for j in range(18): o.append(I(f"buffer_load_dwordx4 a[{144+4*j}:{147+4*j}], v6, s[24:27], 0 offen offset:{64*j}"))
    o.append(I("s_waitcnt vmcnt(24)"))
    for j in range(18):
        for tl in range(2): o.append(I(f"buffer_load_dwordx4 a[{(2*j+tl)*4}:{(2*j+tl)*4+3}], v{13+tl}, s[20:23], 0 offen offset:{64*j}"))
    o.append(I("s_waitcnt vmcnt(0)"))
    for j in range(18):
        for tl in range(2):
            d = f"v[{16+4*tl}:{19+4*tl}]"
            o.append(MF(d, f"a[{(2*j+tl)*4}:{(2*j+tl)*4+3}]", f"a[{144+4*j}:{147+4*j}]", d if j else "0"))
    o += T(f"""
    v_add_u32 v4, s70, v{V_Q}
    v_lshlrev_b32 v4, 4, v4
    v_add_u32 v4, {g.WS_GT}, v4
    v_mov_b32 v5, {OOB}
    v_cmp_eq_u32 vcc, 0, v{V_C}
    s_nop 4
    v_cndmask_b32 v4, v5, v4, vcc
    """)
    for i in range(8): o.append(I(f"v_mul_f32 v{16+i}, 0xbfb8aa3b, v{16+i}"))
    for i in range(8): o.append(I(f"v_exp_f32 v{16+i}, v{16+i}"))
    for i in range(8): o.append(I(f"v_add_f32 v{16+i}, 1.0, v{16+i}"))
    for i in range(8): o.append(I(f"v_rcp_f32 v{16+i}, v{16+i}"))
    o += T(f"""
    s_nop 0
    buffer_store_dwordx4 v[16:19], v4, s[16:19], 0 offen sc1
    buffer_store_dwordx4 v[20:23], v4, s[16:19], 0 offen offset:64 sc1
    L_nogate:
    s_waitcnt vmcnt(0)
    """)
    o += T(f"""
    s_mul_i32 s70, s4, 0xffff
    v_mov_b32 v8, s70
    v_cmp_eq_u32 vcc, 0, v{V_Q}
    v_and_b32 v9, 1, v{V_C}
    v_lshlrev_b32 v9, 15, v9
    v_cndmask_b32 v8, 0, v8, vcc
    v_xor_b32 v9, 0xbf80, v9
    """)
    for blk in range(16):
        b = 128 + blk * 8
        for i in range(4): o.append(I(f"v_perm_b32 v{24+i}, v{b+2*i+1}, v{b+2*i}, s68"))
        for i in range(4): o.append(I(f"v_perm_b32 v{28+i}, v{b+2*i+1}, v{b+2*i}, s69"))
        if blk == 8: o.append(I("v_bfi_b32 v24, v8, v9, v24"))
        for i in range(8): o.append(I(f"v_accvgpr_write_b32 a{blk*8+i}, v{24+i}"))
    o += aloads(10, 12)
    o += T(f"""
    v_lshrrev_b32 v4, 3, v{V_L}
    s_lshl_b32 s70, s3, 4
    v_add_u32 v4, s70, v4
    v_and_b32 v5, 1, v{V_Q}
    v_lshlrev_b32 v5, 1, v5
    v_and_b32 v6, 7, v{V_L}
    v_xor_b32 v5, v5, v6
    v_lshlrev_b32 v5, 4, v5
    v_xor_b32 v6, 64, v5
    s_mul_i32 s70, s4, 5
    s_add_u32 s70, s70, s6
    s_lshl_b32 s70, s70, 17
    s_add_u32 s70, s70, {g.WS_ABF}
    s_cmp_eq_u32 s6, 4
    s_cselect_b32 s71, {4*131072 - 65536 + 64}, 0
    v_lshl_add_u32 v13, v4, 7, v5
    v_lshl_add_u32 v14, v4, 7, v6
    v_add_u32 v13, s70, v13
    v_add_u32 v14, s70, v14
    v_cmp_lt_u32 vcc, 63, v5
    v_subrev_u32 v7, s71, v13
    v_subrev_u32 v16, s71, v14
    v_cndmask_b32 v13, v13, v7, vcc
    v_cndmask_b32 v14, v16, v14, vcc
    v_bfe_u32 v4, v{V_L}, 2, 2
    v_and_b32 v5, 3, v{V_L}
    v_and_b32 v6, 1, v{V_Q}
    v_lshlrev_b32 v6, 1, v6
    v_lshrrev_b32 v7, 1, v4
    v_add_u32 v6, v6, v7
    v_lshlrev_b32 v6, 5, v6
    v_lshl_add_u32 v6, v{V_Q}, 10, v6
    v_lshl_add_u32 v6, v4, 7, v6
    v_lshl_add_u32 v15, v5, 3, v6
    s_lshl_b32 s72, s6, 6
    v_add_u32 v116, s72, v{V_C}
    v_lshl_add_u32 v4, v{V_Q}, 3, s66
    s_movk_i32 s70, 2560
    v_lshlrev_b32 v5, 3, v116
    v_mad_u32_u24 v117, v4, s70, v5
    v_add_u32 v117, {g.WS_YT}, v117
    v_cmp_eq_u32 s[76:77], 0, v4
    v_add_u32 v5, {512*2560}, v117
    v_mov_b32 v6, {OOB}
    v_cndmask_b32 v118, v6, v5, s[76:77]
    v_cmp_eq_u32 vcc, 0, v{V_C}
    v_mov_b32 v5, 0xbf803f80
    s_mul_i32 s73, s4, 0x80008000
    v_cndmask_b32 v60, 0, v5, vcc
    s_sub_u32 s74, s4, 1
    v_mov_b32 v61, v60
    v_mov_b32 v62, v60
    v_mov_b32 v63, v60
    s_lshl_b32 s70, s6, 1
    s_add_u32 s71, s70, 1
    s_cmp_eq_u32 s71, 9
    s_cselect_b32 s71, 0, s71
    s_bitcmp1_b32 s3, 1
    s_cselect_b32 s70, s71, s70
    s_mul_i32 s70, s70, 416
    s_and_b32 s71, s3, 1
    s_mul_i32 s71, s71, 208
    s_add_u32 s70, s70, s71
    s_add_u32 s70, s70, {g.WS_ABFLAG}
    v_lshlrev_b32 v5, 2, v{V_L}
    v_add_u32 v119, s70, v5
    s_lshl_b32 s60, s3, 11
    s_waitcnt vmcnt(0) lgkmcnt(0)
    s_add_u32 s7, s7, 0x9e3779b9
    """)
    for blk in range(16):
        b = 128 + blk * 8
        for i in range(4): o.append(I(f"v_perm_b32 v{b-8+i}, v{b+2*i+1}, v{b+2*i}, s68"))
        for i in range(4): o.append(I(f"v_perm_b32 v{b-4+i}, v{b+2*i+1}, v{b+2*i}, s69"))
        if blk == 8: o.append(I(f"v_bfi_b32 v{b-8}, v8, v9, v{b-8}"))
    A = lambda tl, mat, sp, j: (f"a[{(mat*8+j)*8+4*sp}:{(mat*8+j)*8+4*sp+3}]" if tl else f"v[{120+(mat*8+j)*8+4*sp}:{120+(mat*8+j)*8+4*sp+3}]")
    o += TS(1) + g.poll("L_pollAB", 119, 52) + T("s_barrier\nbuffer_inv sc1\ns_waitcnt vmcnt(0)") + TS(2)
    for P in range(16):
        o += T(f"""
        s_add_u32 m0, s60, {P*8192}
        s_mov_b32 s61, {P*8192}
        buffer_load_dwordx4 v13, s[16:19], s61 offen sc1 lds
        buffer_load_dwordx4 v14, s[16:19], s61 offen offset:1024 sc1 lds
        """)
    for ct in range(4):
        o += T(f"""
        v_add_u32 v4, {16*ct}, v116
        v_cmp_eq_u32 vcc, 288, v4
        v_mov_b32 v5, 512
        s_mov_b32 s61, {g.WS_XS}
        v_cndmask_b32 v4, v4, v5, vcc
        v_lshlrev_b32 v4, 1, v4
        buffer_load_ushort v{248+ct}, v4, s[16:19], s61 offen sc1
        """)
    o += T("s_waitcnt vmcnt(0)\ns_barrier") + TS(3)
    for ct in range(4): o += T(f"v_lshlrev_b32 v{248+ct}, 16, v{248+ct}\nv_and_b32 v{248+ct}, s74, v{248+ct}")
    AC = lambda tl, gr: f"v[{64+(tl*4+gr)*4}:{67+(tl*4+gr)*4}]"
    o += T(f"""
    s_mov_b32 s63, 0
    L_ct:
    s_lshl_b32 s70, s63, 5
    v_xor_b32 v16, s70, v15
    v_add_u32 v17, 0x10000, v16
    v_xor_b32 v18, 0x80000000, v248
    """)
    def rd(ks):
        b = 100 + 4 * (ks % 4); off = ks * 4096; vr = 16
        if off >= 65536: off -= 65536; vr = 17
        return [I(f"ds_read_b64_tr_b16 v[{b}:{b+1}], v{vr} offset:{off}"), I(f"ds_read_b64_tr_b16 v[{b+2}:{b+3}], v{vr} offset:{off+512}")]
    o += rd(0) + rd(1) + rd(2)
    for tl in range(2):
        for r in range(4): o.append(I(f"v_mov_b32 v{64+tl*16+r}, v{18 if r & 1 else 248}"))
    for r in range(4): o.append(I(f"v_mov_b32 v{96+r}, v248"))
    for ks in range(32):
        gr, j = ks // 8, ks % 8; b = 100 + 4 * (ks % 4); B = f"v[{b}:{b+3}]"
        o.append(I(f"s_waitcnt lgkmcnt({min(4, 2*(31-ks))})"))
        nx = rd(ks + 3) if ks + 3 < 32 else [None, None]
        for tl in range(2):
            o.append(MF(AC(tl, gr), A(tl, gr >> 1, gr & 1, j), B, AC(tl, gr) if (j or gr == 0) else "0"))
            if nx[tl]: o.append(nx[tl])
        if gr == 0: o.append(MF("v[96:99]", "v[60:63]", B, "v[96:99]"))
    o += T(f"""
    v_cmp_eq_u32 vcc, 0, v116
    v_mov_b32 v4, 288
    v_cmp_eq_u32 s[80:81], v4, v116
    v_mov_b32 v248, v249
    v_mov_b32 v249, v250
    v_mov_b32 v250, v251
    s_or_b64 vcc, vcc, s[80:81]
    s_nop 1
    """)
    for tl in range(2):
        for r in range(4):
            pe, po, qe, qo = (64 + (tl * 4 + k) * 4 + r for k in range(4))
            d = 32 + 2 * (tl * 4 + r)
            o += T(f"""
            v_cndmask_b32 v{qe}, v{qe}, 0, vcc
            v_cndmask_b32 v{qo}, v{qo}, 0, vcc
            v_add_f32 v20, v{pe}, v{po}
            v_sub_f32 v21, v{pe}, v{po}
            v_add_f32 v22, v{qe}, v{qo}
            v_sub_f32 v23, v{qo}, v{qe}
            v_sub_f32 v24, v20, v22
            v_add_f32 v25, v21, v23
            v_sub_f32 v26, v21, v23
            v_add_f32 v27, v20, v22
            """)
            if tl == 0 and r == 0:
                o += T(f"""
                v_sub_f32 v28, v96, v{qo}
                v_add_f32 v29, v96, v{qo}
                v_cndmask_b32 v24, v24, v20, s[76:77]
                v_cndmask_b32 v25, v25, v21, s[76:77]
                v_cndmask_b32 v26, v26, v28, s[76:77]
                v_cndmask_b32 v27, v27, v29, s[76:77]
                v_cvt_pk_bf16_f32 v30, v26, v27
                v_cvt_pk_bf16_f32 v31, v25, v24
                buffer_store_dwordx2 v[30:31], v118, s[16:19], 0 offen sc1
                """)
            o += T(f"""
            v_cvt_pk_bf16_f32 v{d}, v24, v25
            v_cvt_pk_bf16_f32 v{d+1}, v26, v27
            s_mov_b32 s70, {tl*81920 + r*5120}
            v_xor_b32 v{d}, s73, v{d}
            v_xor_b32 v{d+1}, s73, v{d+1}
            buffer_store_dwordx2 v[{d}:{d+1}], v117, s[16:19], s70 offen sc1
            """)
    o += T(f"""
    v_add_u32 v116, 16, v116
    v_add_u32 v117, 128, v117
    v_add_u32 v118, 128, v118
    s_add_u32 s63, s63, 1
    s_cmp_lt_u32 s63, 4
    s_cbranch_scc1 L_ct
    """) + TS(4) + T(f"""
    s_waitcnt vmcnt(0)
    s_barrier
    s_lshl_b32 s70, s64, 2
    s_add_u32 s70, s70, {g.WS_YFLAG}
    v_cmp_eq_u32 vcc, 0, v0
    v_mov_b32 v4, {OOB}
    v_mov_b32 v5, s7
    v_cndmask_b32 v4, v4, 0, vcc
    buffer_store_dword v5, v4, s[16:19], s70 offen sc1
    """) + TS(5) + TS(6) + TS(7)
    return o
```

```python
import sys
from asmlib import *
NAME = "gated_mix__spectral_fnet__dense_activation_relu__prompt_kernel"
WS_PF, WS_ABFLAG, WS_YFLAG, WS_GT, WS_XS = 0x1000, 0x9000, 0xA000, 0x10000, 0x13000
WS_ABF, WS_YT, WS_PART, WS_TS, WS_SIZE = 0x100000, 0x280000, 0x400000, 0x2000000, 0x3000000
OOB = 0x40000000
XB, HB = 71680, 81920
SPIN = 1 << 20

class Cfg:
    ts = False
    L2 = 12
    rot1 = True
cfg = Cfg()

ACC = lambda t: f"v[{16+4*t}:{19+4*t}]"
EE = lambda t: f"v[{36+4*t}:{39+4*t}]"
E0 = 36
FB = lambda b: 56 + 4 * b
PK = 88
def act(i):
    return f"a[{4*i}:{4*i+3}]" if i < 64 else f"v[{152+4*(i-64)}:{155+4*(i-64)}]"
V_A, V_B = 10, 11
V_W2A, V_W2B = 12, 13
V_TR, V_TR2 = 14, 15
V_XO = 100
V_ABA, V_ABB = 105, 106
V_XR0, V_XR1 = 107, 108
V_WR0, V_WR1 = 109, 110
V_PATCH = 111
V_HW = 112
V_HR, V_HR2 = 113, 114
V_SIG, V_SIG0, V_SIGT0, V_SIG0T0, V_TAU = 115, 116, 117, 118, 119
V_ABS, V_ABS0 = 120, 121
V_ABFL = 122
V_TAG = 123
V_P16, V_P8 = 124, 125
V_FL = 126
V_POLL = 127
V_L, V_C, V_Q = 1, 2, 3

def mfma(d, a, b, c): return I(f"v_mfma_f32_16x16x32_bf16 {d}, {a}, {b}, {c}")
def place(ms, side):
    gaps = [[] for _ in ms]
    for g, it in side:
        gaps[g] += it if isinstance(it, list) else [it]
    out = []
    for m, g in zip(ms, gaps):
        out.append(m); out += g
    return out
def spread(items, gaps):
    n = len(items); k = len(gaps)
    return [(gaps[i * k // n], it) for i, it in enumerate(items)]

tsn = [0]
def TS(k):
    if not cfg.ts: return []
    return [I(f"s_memrealtime s[{84+2*k}:{85+2*k}]")]

def wslot(ph, p, s):
    if ph == 2: return ((p & 1) * 16 + s) * 4096
    return s * 4096
def wdma(ph, p, s):
    P, b = s >> 1, s & 1
    pre = []
    if b == 0:
        pre.append(I(f"s_add_u32 m0, s60, {P*8192}"))
        pre.append(I(f"s_add_u32 s61, s62, " + (f"s{64+P}" if P < 8 else f"{8*64*9216}")))
    lo = wslot(ph, p, 2 * P)
    return pre, VM(f"buffer_load_dwordx4 v{V_A+b}, s[8:11], s61 offen offset:{1024*b} lds", ("W", ph, p, s), wr=(lo, lo + 8192))
def cover(ph, p, lo, hi): return [("W", ph, p, s) for s in range(lo, hi)]
def nf(ph): return 8 if ph == 2 else 6
def trr(ph, p, s):
    b = FB(s % nf(ph)); o = s * 4096; vr = V_TR
    if o >= 65536: o -= 65536; vr = V_TR2
    lo = wslot(ph, p, s)
    return [LG(f"ds_read_b64_tr_b16 v[{b+2*h}:{b+2*h+1}], v{vr} offset:{o+512*h}", ("R", ph, p, s, h), rd=(lo, lo + 4096)) for h in range(2)]
def group_mfmas(ph, steps, last):
    ms = []
    for t in range(5):
        for s in steps:
            d = EE(t) if s == last else ACC(t)
            c = "0" if s == 0 else ACC(t)
            b = FB(s % nf(ph)); w = f"v[{b}:{b+3}]"
            ms.append(mfma(d, act(s * 5 + t), w, c) if ph == 2 else mfma(d, w, act(s * 5 + t), c))
    return ms

def xdma(n):
    return [I(f"s_add_u32 m0, s82, {n*4096}"), I(f"s_movk_i32 s61, {256*(n//5)}") if n % 5 == 0 else I("s_nop 0"),
            VM(f"buffer_load_dwordx4 v{V_XO+n%5}, s[12:15], s61 offen lds", ("X", n), wr=(XB + (n // 5) * 20480, min(XB + (n // 5 + 1) * 20480, 163840)))]
def abdma(P):
    lo = P * 8192
    return [I(f"s_add_u32 m0, s60, {lo}"), I(f"s_movk_i32 s83, {128*P}"),
            VM(f"buffer_load_dwordx4 v{V_ABA}, s[20:23], s83 offen lds", ("WAB", P, 0), wr=(lo, lo + 8192)),
            VM(f"buffer_load_dwordx4 v{V_ABB}, s[20:23], s83 offen offset:1024 lds", ("WAB", P, 1), wr=(lo, lo + 8192))]
def abreads(P):
    out = []
    if P == 4: out += [I(f"v_add_u32 v{V_XR0}, 40960, v{V_XR0}"), I(f"v_add_u32 v{V_XR1}, 40960, v{V_XR1}"),
                       I(f"v_add_u32 v{V_WR0}, 32768, v{V_WR0}"), I(f"v_add_u32 v{V_WR1}, 32768, v{V_WR1}")]
    Pp = P - 4 if P >= 4 else P
    for h in range(2):
        s = 2 * P + h; b = FB(s % 6)
        out.append(LG(f"ds_read_b128 v[{b}:{b+3}], v{V_WR0+h} offset:{Pp*8192}", ("RAB", s)))
    for t in range(5):
        for h in range(2):
            s = 2 * P + h; lo = XB + (P * 10 + 2 * t) * 1024
            out.append(LG(f"ds_read_b128 {act(s*5+t)}, v{V_XR0+h} offset:{(Pp*10+2*t)*1024}", ("RX", s, t), rd=(lo, lo + 2048)))
    return out
def patch(P):
    return [I(f"v_cndmask_b32 v{FB(s%6)+e}, v{FB(s%6)+e}, v{V_PATCH}, s[76:77]") for s in (2 * P, 2 * P + 1) for e in range(4)]
def xg(g, lastx): return [("X", n) for n in range(5 * g, min(5 * g + 5, lastx + 1))]

def ab_pass(hasx22):
    lastx = 22 if hasx22 else 21
    o = []
    for g in range(3):
        for n in range(5 * g, 5 * g + 5): o += xdma(n)
        o += abdma(2 * g) + abdma(2 * g + 1)
    o.append(Item("@SETUP2", "other"))
    o += TS(1)
    o.append(WAIT("ab_b0", vm=xg(0, lastx) + [("WAB", 0, 1)])); o.append(BAR())
    o += TS(2)
    o += abreads(0)
    o.append(WAIT("ab_r0", lg="all")); o += patch(0); o.append(I("s_nop 1"))
    for g in range(9):
        ms = group_mfmas(0, (2 * g, 2 * g + 1), 17)
        side = []
        if g < 8:
            need = [("WAB", g + 1, 1)]
            if g % 2 == 1:
                side.append((0, [WAIT(f"ab_b{g}", vm=need + xg((g + 1) // 2, lastx)), BAR()]))
            else:
                side.append((0, WAIT(f"ab_w{g}", vm=need)))
            side += spread(abreads(g + 1), [0, 1, 2, 3, 4, 5])
        else:
            side.append((0, [WAIT("ab_b8", vm=cover(1, 0, 0, 6)), BAR()]))
            side += spread(trr(1, 0, 0) + trr(1, 0, 1) + trr(1, 0, 2), [1, 2, 3, 4, 5, 6])
        d = []
        if g == 0:
            for n in range(15, 20): d.append(xdma(n))
            d += [abdma(6), abdma(7)]
        elif g == 1:
            d += [xdma(20), xdma(21)]
            d.append([I("s_cmp_lt_u32 s3, 2"), I("s_cbranch_scc0 L_nox22")] + (xdma(22) if hasx22 else []) + [I("L_nox22:")])
            d.append(abdma(8))
        else:
            sl = {2: range(0, 4), 3: range(4, 8), 4: (8, 9), 5: (10, 11), 6: (12, 13), 7: (14,), 8: ()}[g]
            for s in sl:
                pre, dm = wdma(1, 0, s); dm.wr = None
                d.append(pre + ([I("s_nop 0")] if False else []) + [dm])
        if d: side += spread(d, [2, 3, 4, 5, 6, 7, 8])
        if g < 8:
            side.append((7, WAIT(f"ab_rw{g}", lg=[("RAB", 2 * g + 3)])))
            side += spread(patch(g + 1), [7, 8])
        side.append((9, WAIT(f"ab_r{g+1}", lg="all")))
        o += place(ms, side)
    return o

def ab_epilogue():
    o = []
    for t in range(5):
        r = E0 + 4 * t
        sg = (V_SIG0T0, V_SIGT0) if t == 0 else (V_SIG0, V_SIG)
        for e in range(4): o.append(I(f"v_fmac_f32_dpp v{r+e}, v{r+e}, v{sg[0] if e == 0 else sg[1]} quad_perm:[3,2,1,0] row_mask:0xf bank_mask:0xf"))
        for e in range(4): o.append(I(f"v_fmac_f32_dpp v{r+e}, v{r+e}, v{V_TAU} quad_perm:[1,0,3,2] row_mask:0xf bank_mask:0xf"))
        if t == 0:
            o.append(I(f"v_mov_b32_dpp v{PK+10}, v{r} quad_perm:[0,1,2,1] row_mask:0xf bank_mask:0xf"))
            o.append(I(f"v_cndmask_b32 v{r}, v{r}, v{PK+10}, s[80:81]"))
        o.append(I(f"v_cvt_pk_bf16_f32 v{PK+2*t}, v{r}, v{r+1}"))
        o.append(I(f"v_cvt_pk_bf16_f32 v{PK+2*t+1}, v{r+2}, v{r+3}"))
        so = "s75" if t >= 3 else "0"
        o.append(VM(f"buffer_store_dwordx2 v[{PK+2*t}:{PK+2*t+1}], v{V_ABS0 if t == 0 else V_ABS}, s[16:19], {so} offen offset:{256*t} sc1", ("ABST", t)))
    return o
def h_epilogue(p):
    o = []
    for t in range(5):
        r = E0 + 4 * t
        o.append(I(f"v_cvt_pk_bf16_f32 v{PK+2*t}, v{r}, v{r+1}"))
        o.append(I(f"v_cvt_pk_bf16_f32 v{PK+2*t+1}, v{r+2}, v{r+3}"))
        o.append(I(f"v_pk_max_i16 v{PK+2*t}, v{PK+2*t}, 0"))
        o.append(I(f"v_pk_max_i16 v{PK+2*t+1}, v{PK+2*t+1}, 0"))
        o.append(LG(f"ds_write_b64 v{V_HW}, v[{PK+2*t}:{PK+2*t+1}] offset:{1024*t}", ("HW", p, t), wr=(HB + p * 10240, HB + (p + 1) * 10240)))
    o.append(I(f"v_add_u32 v{V_HW}, 10240, v{V_HW}"))
    return o
def p_epilogue(p):
    o = [I(f"v_cvt_pk_bf16_f32 v{PK+i}, v{E0+2*i}, v{E0+2*i+1}") for i in range(10)]
    st = [VM(f"buffer_store_dwordx4 v[{PK}:{PK+3}], v{V_P16}, s[16:19], s78 offen sc1", ("PST", p, 0)),
          VM(f"buffer_store_dwordx4 v[{PK+4}:{PK+7}], v{V_P16}, s[16:19], s78 offen offset:1024 sc1", ("PST", p, 1)),
          VM(f"buffer_store_dwordx2 v[{PK+8}:{PK+9}], v{V_P8}, s[16:19], s78 offen offset:2048 sc1", ("PST", p, 2))]
    return o[:4] + st[:1] + o[4:8] + st[1:2] + o[8:] + st[2:]

def g1_group(p, g, peeled):
    ms = group_mfmas(1, range(3 * g, 3 * g + 3), 17)
    side = []
    nph, npp = (1, p + 1) if p < 7 else (2, 0)
    sfx = "p" if peeled else ""
    if g % 2 == 1:
        need = cover(1, p, 3 * g + 3, 3 * g + 9) if g < 5 else cover(nph, npp, 0, 6)
        if g == 5 and p == 0: need = need + [("ABST", 4)]
        side.append((0, [WAIT(f"g1_b{g}{sfx}", vm=need), BAR()]))
    rd = []
    for s in range(3 * g + 3, 3 * g + 6):
        rd += trr(1, p, s) if s < 18 else trr(nph, npp, s - 18)
    side += list(zip([1, 2, 4, 5, 7, 8], rd))
    for k, s in enumerate(range(3 * g + 15, 3 * g + 18)):
        pre, dm = wdma(1, p, s) if s < 18 else wdma(nph, npp, s - 18)
        gp = [3, 8, 13][k]
        if s == 18:
            sw = [I("s_add_u32 s73, s73, 1"), I("s_and_b32 s73, s73, 7"), I("s_lshl_b32 s62, s73, 7"), I("s_add_u32 s62, s62, s74")]
            side.append((0, sw[:1])); side.append((1, sw[1:2])); side.append((1, sw[2:3])); side.append((2, sw[3:]))
            if not peeled:
                side.append((2, [I("s_cmp_eq_u32 s63, 1"), I("s_cbranch_scc1 L_switch"), I("L_switched:")]))
            gp = 4
        side.append((gp - 1, pre)); side.append((gp, dm))
    if g == 5:
        side.append((10, VM(f"buffer_store_dword v{V_TAG}, v{V_ABFL}, s[16:19], 0 offen sc1", ("ABFL", p))))
        side.append((11, I(f"v_mov_b32 v{V_ABFL}, {OOB}")))
    if g < 2:
        ep = ab_epilogue() if p == 0 else h_epilogue(p - 1)
        allg = [(0, x) for x in range(3, 15)] + [(1, x) for x in range(3, 15)]
        n = len(ep)
        for i, it in enumerate(ep):
            gg, gp = allg[i * len(allg) // n]
            if gg == g: side.append((gp, it))
    if g == 5: side.append((13, [I("s_sub_u32 s63, s63, 1"), I("s_cmp_lg_u32 s63, 0")]))
    side.append((14, WAIT(f"g1_r{g}{sfx}", lg="all")))
    return place(ms, side)

def hreads(s):
    o = []
    for t in range(5):
        off = (s * 5 + t) * 1024; vr = V_HR
        if off >= 40960: off -= 40960; vr = V_HR2
        lo = HB + (s * 5 + t) * 1024
        o.append(LG(f"ds_read_b128 {act(s*5+t)}, v{vr} offset:{off}", ("RH", s, t), rd=(lo, lo + 1024)))
    return o
def nextcol():
    return [[I("s_add_u32 s62, s62, 128"), I("s_cmp_eq_u32 s62, 1152"), I("s_cselect_b32 s62, 0, s62")],
            [I("s_cmp_eq_u32 s62, s74"), I(f"s_cselect_b32 s62, {OOB}, s62"), I("s_xor_b32 s60, s60, 0x10000")]]
def g2_dmas(p, lst):
    out = []
    for s in lst:
        pp, ss = p + s // 16, s % 16
        pre, dm = wdma(2, pp, ss)
        if ss == 0: pre = nextcol() + [pre]
        out.append((pre, dm))
    return out
def put_dmas(side, dm, n):
    k = len(dm)
    for i, (pre, d) in enumerate(dm):
        gp = min(n - 1, 3 + i * n // k) if k * 4 <= n + 4 else min(n - 1, 2 + i * (n - 2) // k)
        if len(pre) > 2:
            side += spread(pre, list(range(max(0, gp - 3), gp)))
        elif pre: side.append((gp - 1, pre))
        side.append((gp, d))
def g2_pass0():
    o = []
    for s in range(3): o += hreads(s)
    o.append(WAIT("g20_r", lg="all"))
    groups = [(0, 1, 2), (3, 4, 5), (6, 7), (8, 9, 10, 11), (12, 13, 14, 15)]
    last = cfg.L2 + 20
    cuts = [15, 19, 22, 25, 29, 32] if cfg.L2 == 12 else [15, 19, 23, 26, 31, 36]
    ep = h_epilogue(7)[:-1]
    for gi, st in enumerate(groups):
        ms = group_mfmas(2, st, 15); n = len(ms); side = []
        if gi == 1: side.append((0, [WAIT("g20_b1", vm=cover(2, 0, 6, 12)), BAR()]))
        if gi == 3: side.append((0, [WAIT("g20_b3", vm=cover(2, 0, 12, 16)), BAR()]))
        if gi == 4: side.append((0, [WAIT("g20_b4", vm=cover(2, 1, 0, 8)), BAR(), I(f"v_xor_b32 v{V_TR}, 0x10000, v{V_TR}")]))
        rd = []
        if gi < 4:
            for s in groups[gi + 1]: rd += trr(2, 0, s) + hreads(s)
            side += spread(rd, list(range(1 if gi in (1, 3) else 0, n - 2)))
        else:
            for s in range(4): rd += trr(2, 1, s)
            side += list(zip([1, 2, 4, 5, 7, 8, 10, 11], rd))
        put_dmas(side, g2_dmas(0, range(cuts[gi], cuts[gi + 1])), n)
        if gi < 2:
            h = len(ep) // 2 + 3
            side += spread(ep[:h] if gi == 0 else ep[h:], list(range(2, n - 1)))
        side.append((n - 1, WAIT(f"g20_r{gi}", lg="all")))
        o += place(ms, side)
    return o
def g2_group(p, g):
    ms = group_mfmas(2, range(4 * g, 4 * g + 4), 15); side = []
    if g == 1: side.append((0, [WAIT("g2_b1", vm=cover(2, p, 8, 16)), BAR()]))
    if g == 3:
        side.append((0, [WAIT("g2_b3", vm=cover(2, p + 1, 0, 8) + [("PST", p - 1, 2)]), BAR(), I(f"v_xor_b32 v{V_TR}, 0x10000, v{V_TR}")]))
        side.append((6, VM(f"buffer_store_dword v{V_TAG}, v{V_FL}, s[16:19], s79 offen sc1", ("PFL", p - 1))))
        side.append((14, [I("s_add_u32 s78, s78, 10240"), I("s_add_u32 s79, s79, 4")]))
    rd = []
    for s in range(4 * g + 4, 4 * g + 8): rd += trr(2, p, s) if s < 16 else trr(2, p + 1, s - 16)
    side += list(zip([1, 2, 4, 5, 7, 9, 10, 11], rd))
    put_dmas(side, g2_dmas(p, range(4 * g + 4 + cfg.L2, 4 * g + 8 + cfg.L2)), 20)
    if g == 0: side += spread(p_epilogue(p - 1), [4, 5, 6, 7, 9, 10, 11, 12, 14, 15, 16, 17, 19])
    if g == 3: side.append((18, [I("s_sub_u32 s63, s63, 1"), I("s_cmp_lg_u32 s63, 0")]))
    side.append((19, WAIT(f"g2_r{g}", lg="all")))
    return place(ms, side)

def T(s): return [I(x.strip()) for x in s.strip().split("\n") if x.strip()]
def rowcalc(o, rho, d, tmp):
    return T(f"""
    v_cmp_eq_u32 vcc, 0, v{o}
    v_mov_b32 v{tmp}, 512
    v_add_u32 v{tmp+1}, 1, v{rho}
    v_cndmask_b32 v{tmp}, v{o}, v{tmp}, vcc
    v_cmp_lt_u32 vcc, 1, v{rho}
    v_sub_u32 v{tmp}, 0, v{tmp}
    v_lshrrev_b32 v{tmp+1}, 1, v{tmp+1}
    v_cndmask_b32 v{tmp}, v{o}, v{tmp}, vcc
    v_lshl_add_u32 v{d}, v{tmp+1}, 10, v{tmp}
    """)

def srd(b, p, n): return T(f"s_mov_b32 s{b}, s{p}\ns_mov_b32 s{b+1}, s{p+1}\ns_mov_b32 s{b+2}, {n}\ns_mov_b32 s{b+3}, 0x20000")

def prologue():
    o = T(f"""
    s_cmp_ge_u32 s2, 256
    s_cbranch_scc1 L_end
    s_load_dwordx16 s[36:51], s[0:1], 0
    s_load_dwordx8 s[52:59], s[0:1], 64
    """) + TS(0) + T(f"""
    v_lshrrev_b32 v4, 6, v0
    v_and_b32 v{V_L}, 63, v0
    v_readfirstlane_b32 s3, v4
    v_and_b32 v{V_C}, 15, v0
    v_bfe_u32 v{V_Q}, v0, 4, 2
    s_and_b32 s60, s2, 3
    s_bfe_u32 s61, s2, 0x10002
    s_lshr_b32 s62, s2, 3
    s_cmp_eq_u32 s60, 3
    s_cselect_b32 s63, 30, 29
    s_cmp_ge_u32 s62, s63
    s_cbranch_scc1 L_spare
    s_mul_i32 s64, s60, 29
    s_add_u32 s64, s64, s62
    s_mul_i32 s5, s64, 5042
    s_lshr_b32 s5, s5, 16
    s_mul_i32 s65, s5, 13
    s_sub_u32 s64, s64, s65
    s_mul_i32 s4, s61, 13
    s_add_u32 s4, s4, s64
    """)
    o += T(f"""
    v_lshrrev_b32 v4, 3, v{V_L}
    v_and_b32 v5, 3, v4
    v_lshrrev_b32 v6, 5, v{V_L}
    s_mul_i32 s65, s4, 20
    v_add_u32 v6, s65, v6
    s_and_b32 s66, s3, 1
    s_lshl_b32 s66, s66, 2
    v_lshrrev_b32 v7, 4, v{V_L}
    v_add_u32 v7, s66, v7
    v_and_b32 v8, 7, v{V_L}
    v_xor_b32 v7, v7, v8
    v_lshlrev_b32 v7, 4, v7
    s_movk_i32 s67, 1152
    v_mov_b32 v20, {OOB}
    """)
    for n in range(5):
        o += T(f"""
        s_add_u32 s68, s3, {4*n}
        s_cmp_ge_u32 s68, 10
        s_cselect_b32 s69, 10, 0
        s_cselect_b32 s70, 128, 0
        s_sub_u32 s68, s68, s69
        s_lshl_b32 s68, s68, 1
        v_add_u32 v9, s68, v6
        """) + rowcalc(9, 5, 16, 17) + T(f"""
        v_cmp_gt_u32 vcc, 512, v9
        v_mad_u32_u24 v16, v16, s67, v7
        v_add_u32 v16, s70, v16
        v_cndmask_b32 v{V_XO+n}, v20, v16, vcc
        """)
    o += T(f"""
    s_lshl_b32 s68, s5, 5
    s_lshl_b32 s69, s66, 2
    s_add_u32 s68, s68, s69
    v_add_u32 v9, s68, v4
    v_lshrrev_b32 v7, 4, v{V_L}
    v_xor_b32 v7, v7, v8
    v_lshlrev_b32 v7, 4, v7
    v_mad_u32_u24 v{V_ABA}, v9, s67, v7
    v_xor_b32 v7, 64, v7
    v_mad_u32_u24 v{V_ABB}, v9, s67, v7
    v_add_u32 v{V_ABB}, {8*1152-1024}, v{V_ABB}
    s_lshl_b32 s60, s3, 11
    s_lshl_b32 s82, s3, 10
    s_add_u32 s82, s82, {XB}
    s_waitcnt lgkmcnt(0)
    s_load_dword s7, s[58:59], 0
    """) + srd(12, 36, 2359296) + T(f"""
    s_cmp_lt_u32 s3, 2
    s_cselect_b32 s20, s42, s44
    s_cselect_b32 s21, s43, s45
    s_mov_b32 s22, 663552
    s_mov_b32 s23, 0x20000
    """)
    return o

def setup2():
    o = srd(8, 48, 5308416) + srd(16, 58, WS_SIZE) + srd(24, 54, 2359296)
    o += T(f"""
    v_lshrrev_b32 v4, 3, v{V_L}
    s_lshl_b32 s68, s3, 4
    v_add_u32 v4, s68, v4
    v_and_b32 v5, 1, v{V_Q}
    v_lshlrev_b32 v5, 1, v5
    v_and_b32 v8, 7, v{V_L}
    v_xor_b32 v5, v5, v8
    v_lshlrev_b32 v5, 4, v5
    v_xor_b32 v6, 64, v5
    s_movk_i32 s68, 9216
    v_mad_u32_u24 v{V_A}, v4, s68, v5
    v_mad_u32_u24 v{V_B}, v4, s68, v6
    v_add_u32 v{V_B}, {8*9216-1024}, v{V_B}
    v_mad_u32_u24 v{V_W2A}, v4, s67, v5
    v_mad_u32_u24 v{V_W2B}, v4, s67, v6
    v_add_u32 v{V_W2B}, {8*1152-1024}, v{V_W2B}
    v_bfe_u32 v4, v{V_L}, 2, 2
    v_and_b32 v5, 3, v{V_L}
    v_and_b32 v6, 1, v{V_Q}
    v_lshlrev_b32 v6, 1, v6
    v_lshrrev_b32 v7, 1, v4
    v_add_u32 v6, v6, v7
    v_xor_b32 v6, s3, v6
    v_lshlrev_b32 v6, 5, v6
    v_lshl_add_u32 v6, v{V_Q}, 10, v6
    v_lshl_add_u32 v6, v4, 7, v6
    v_lshl_add_u32 v{V_TR}, v5, 3, v6
    v_add_u32 v{V_TR2}, 0x10000, v{V_TR}
    v_lshrrev_b32 v4, 1, v{V_C}
    v_xor_b32 v4, v4, v{V_Q}
    v_lshlrev_b32 v4, 4, v4
    v_lshl_add_u32 v4, v{V_C}, 7, v4
    v_add_u32 v{V_XR0}, {XB}, v4
    v_xor_b32 v{V_XR1}, 64, v{V_XR0}
    v_add_u32 v{V_WR0}, s60, v4
    v_xor_b32 v{V_WR1}, 64, v{V_WR0}
    v_mov_b32 v{V_PATCH}, 0xbf803f80
    s_lshl_b32 s68, s5, 2
    s_or_b32 s68, s68, s3
    s_cmp_eq_u32 s68, 2
    s_cselect_b32 s76, 0x00010001, 0
    s_mov_b32 s77, s76
    s_cselect_b32 s69, 1, 0
    s_and_b32 s68, s3, 1
    s_lshl_b32 s68, s68, 9
    s_lshr_b32 s70, s3, 1
    s_mul_i32 s71, s70, 5120
    s_add_u32 s68, s68, s71
    s_add_u32 s68, s68, {HB}
    v_lshrrev_b32 v4, 1, v{V_Q}
    v_lshl_add_u32 v4, v4, 4, v{V_C}
    v_lshlrev_b32 v4, 4, v4
    v_and_b32 v5, 1, v{V_Q}
    v_lshl_add_u32 v4, v5, 3, v4
    v_add_u32 v{V_HW}, s68, v4
    v_lshlrev_b32 v{V_P16}, 4, v{V_L}
    v_lshlrev_b32 v{V_P8}, 3, v{V_L}
    v_add_u32 v{V_HR}, {HB}, v{V_P16}
    v_add_u32 v{V_HR2}, {HB+40960}, v{V_P16}
    """)
    o += T(f"""
    s_cmp_eq_u32 s70, 0
    s_cselect_b32 s71, 1.0, -1.0
    v_mov_b32 v{V_SIG}, s71
    s_cmp_eq_u32 s69, 1
    s_cselect_b32 s72, 16, 0
    v_cmp_gt_u32 vcc, s72, v{V_L}
    v_mov_b32 v4, 1.0
    v_and_b32 v5, 1, v{V_L}
    v_cndmask_b32 v{V_SIG0}, v{V_SIG}, v4, vcc
    s_cmp_eq_u32 s4, 0
    s_cselect_b32 s72, 4, 0
    v_cmp_gt_u32 vcc, s72, v{V_C}
    s_cselect_b32 s80, 8, 0
    v_lshlrev_b32 v5, 31, v5
    v_cndmask_b32 v{V_SIGT0}, v{V_SIG}, 0, vcc
    v_cndmask_b32 v{V_SIG0T0}, v{V_SIG0}, 0, vcc
    v_or_b32 v{V_TAU}, v4, v5
    s_cmp_eq_u32 s69, 1
    s_cselect_b32 s80, s80, 0
    s_mov_b32 s81, 0
    """)
    o += T(f"""
    v_lshrrev_b32 v4, 2, v{V_C}
    v_and_b32 v5, 3, v{V_C}
    s_lshr_b32 s68, s5, 1
    s_lshl_b32 s68, s68, 17
    s_lshl_b32 s71, s70, 16
    s_add_u32 s68, s68, s71
    s_mul_i32 s71, s4, 1280
    s_add_u32 s68, s68, s71
    s_and_b32 s71, s5, 1
    s_lshl_b32 s71, s71, 6
    s_add_u32 s68, s68, s71
    s_and_b32 s71, s3, 1
    s_lshl_b32 s71, s71, 5
    s_add_u32 s68, s68, s71
    s_add_u32 s68, s68, {WS_ABF}
    v_and_b32 v6, 1, v4
    v_lshlrev_b32 v6, 15, v6
    v_lshrrev_b32 v7, 1, v4
    v_lshl_add_u32 v6, v7, 7, v6
    v_lshl_add_u32 v6, v{V_Q}, 3, v6
    v_add_u32 v6, s68, v6
    v_add_u32 v7, {5*131072}, v6
    v_mov_b32 v8, {OOB}
    v_cmp_eq_u32 vcc, 1, v5
    s_lshl_b32 s68, s5, 6
    s_add_u32 s68, s68, s71
    v_cndmask_b32 v{V_ABS}, v8, v7, vcc
    v_cmp_eq_u32 vcc, 0, v5
    s_lshl_b32 s71, s70, 10
    s_add_u32 s68, s68, s71
    v_cndmask_b32 v{V_ABS}, v{V_ABS}, v6, vcc
    s_add_u32 s68, s68, {WS_XS}
    v_lshlrev_b32 v9, 3, v{V_Q}
    v_add_u32 v9, s68, v9
    s_lshl_b32 s71, s70, 1
    s_add_u32 s71, s71, 1
    v_cmp_eq_u32 vcc, s71, v5
    s_nop 1
    v_cndmask_b32 v8, v8, v7, vcc
    v_cmp_eq_u32 vcc, 0, v5
    s_nop 1
    v_cndmask_b32 v8, v8, v6, vcc
    v_cmp_eq_u32 vcc, 2, v5
    s_nop 1
    v_cndmask_b32 v8, v8, v9, vcc
    v_cmp_gt_u32 vcc, s72, v{V_C}
    s_cmp_eq_u32 s4, 25
    s_cselect_b32 s75, {OOB}, 0
    v_cndmask_b32 v{V_ABS0}, v{V_ABS}, v8, vcc
    s_mul_i32 s68, s5, 26
    s_add_u32 s68, s68, s4
    s_lshl_b32 s68, s68, 2
    s_add_u32 s68, s68, s3
    s_lshl_b32 s68, s68, 2
    s_add_u32 s68, s68, {WS_ABFLAG}
    v_cmp_eq_u32 vcc, 0, v{V_L}
    v_mov_b32 v8, {OOB}
    v_mov_b32 v9, s68
    v_cndmask_b32 v{V_ABFL}, v8, v9, vcc
    v_cndmask_b32 v{V_FL}, v8, 0, vcc
    """)
    for i in range(8): o.append(I(f"s_mov_b32 s{64+i}, {i*64*9216}"))
    o += T(f"""
    s_and_b32 s73, s4, {7 if cfg.rot1 else 0}
    s_lshl_b32 s74, s5, 10
    s_lshl_b32 s62, s73, 7
    s_add_u32 s62, s62, s74
    s_mov_b32 s63, 8
    s_waitcnt lgkmcnt(0)
    s_add_u32 s7, s7, 0x9e3779b9
    v_mov_b32 v{V_TAG}, s7
    """)
    return o

def switch_block():
    o = T(f"""
    L_switch:
    s_mov_b32 s8, s50
    s_mov_b32 s9, s51
    v_mov_b32 v{V_A}, v{V_W2A}
    v_mov_b32 v{V_B}, v{V_W2B}
    s_lshl_b32 s72, s5, 3
    """)
    for i in range(8):
        o += T(f"""
        s_add_u32 s{64+i}, s73, {i}
        s_and_b32 s{64+i}, s{64+i}, 7
        s_add_u32 s{64+i}, s{64+i}, s72
        s_mul_i32 s{64+i}, s{64+i}, {64*1152}
        """)
    o += T(f"""
    s_add_u32 s6, s4, s5
    s_mul_i32 s72, s6, 7282
    s_lshr_b32 s72, s72, 16
    s_mul_i32 s72, s72, 9
    s_sub_u32 s6, s6, s72
    s_add_u32 s73, s6, 1
    s_cmp_eq_u32 s73, 9
    s_cselect_b32 s73, 0, s73
    s_lshl_b32 s62, s73, 7
    s_mov_b32 s74, s62
    s_mul_i32 s72, s4, 9
    s_add_u32 s72, s72, s73
    s_mul_i32 s78, s72, 81920
    s_mul_i32 s79, s3, 2560
    s_add_u32 s78, s78, s79
    s_add_u32 s78, s78, {WS_PART}
    s_lshl_b32 s79, s72, 7
    s_lshl_b32 s72, s3, 5
    s_add_u32 s79, s79, s72
    s_add_u32 s79, s79, {WS_PF}
    s_branch L_switched
    """)
    return o

def poll(lab, vaddr, nl):
    return T(f"""
    s_mov_b32 s63, {SPIN}
    v_cmp_le_u32 s[80:81], {nl}, v{V_L}
    {lab}:
    buffer_load_dword v4, v{vaddr}, s[16:19], 0 offen sc1
    s_sub_u32 s63, s63, 1
    s_waitcnt vmcnt(0)
    v_cmp_eq_u32 vcc, s7, v4
    s_cmp_eq_u32 s63, 0
    s_cbranch_scc1 {lab}_out
    s_or_b64 vcc, vcc, s[80:81]
    s_cmp_eq_u64 vcc, -1
    s_cbranch_scc0 {lab}
    {lab}_out:
    """)

def final():
    PR, YR, GR, SEL, OA = 152, 232, 100, 128, 56
    o = T(f"""
    v_sub_u32 v5, s6, v{V_L}
    v_lshlrev_b32 v4, 2, v{V_L}
    v_add_u32 v6, 9, v5
    v_min_u32 v5, v5, v6
    s_mul_i32 s72, s4, 9
    s_lshl_b32 s79, s72, 7
    s_lshl_b32 s68, s3, 5
    s_add_u32 s79, s79, s68
    s_add_u32 s79, s79, {WS_PF}
    v_lshl_add_u32 v5, v5, 7, v4
    v_add_u32 v5, s79, v5
    s_add_u32 s72, s72, s6
    s_mul_i32 s78, s72, 81920
    s_mul_i32 s79, s3, 2560
    s_add_u32 s78, s78, s79
    s_add_u32 s78, s78, {WS_PART}
    v_add_u32 v6, {WS_YFLAG - 32}, v4
    v_cmp_gt_u32 vcc, 8, v{V_L}
    s_lshl_b32 s68, s6, 6
    s_lshl_b32 s69, s3, 4
    v_cndmask_b32 v{V_POLL}, v6, v5, vcc
    s_add_u32 s68, s68, s69
    v_add_u32 v5, s68, v{V_C}
    v_sub_u32 v6, 576, v5
    v_cmp_lt_u32 s[76:77], v6, v5
    v_min_u32 v6, v5, v6
    s_mul_i32 s69, s4, 20
    v_add_u32 v7, s69, v{V_Q}
    s_movk_i32 s70, 2560
    v_lshlrev_b32 v6, 3, v6
    v_mad_u32_u24 v8, v7, s70, v6
    v_add_u32 v8, {WS_YT}, v8
    v_cmp_eq_u32 vcc, 0, v7
    v_add_u32 v9, {512*2560}, v8
    s_and_b64 vcc, vcc, s[76:77]
    v_lshlrev_b32 v16, 4, v7
    v_add_u32 v16, {WS_GT}, v16
    v_cndmask_b32 v9, v8, v9, vcc
    """)
    for rho in range(4):
        d = 0x0c0c | ((2 * rho) << 16) | ((2 * rho + 1) << 24); m = 0x0c0c | ((6 - 2 * rho) << 16) | ((7 - 2 * rho) << 24)
        o += T(f"v_mov_b32 v17, {d}\nv_mov_b32 v18, {m}\nv_cndmask_b32 v{SEL+rho}, v17, v18, s[76:77]")
    o += T(f"""
    v_lshlrev_b32 v5, 1, v5
    s_movk_i32 s67, 1152
    v_mad_u32_u24 v{OA}, v7, s67, v5
    v_add_u32 v{OA+1}, {1024*1152}, v{OA}
    v_sub_u32 v17, {1024-16}, v7
    v_mad_u32_u24 v{OA+2}, v17, s67, v5
    v_add_u32 v{OA+3}, {1024*1152}, v{OA+2}
    v_cmp_eq_u32 vcc, 0, v7
    v_sub_u32 v17, 1024, v7
    v_mov_b32 v18, 512
    v_cndmask_b32 v17, v17, v18, vcc
    v_mad_u32_u24 v{OA+4}, v17, s67, v5
    v_add_u32 v{OA+5}, {1024*1152}, v{OA+4}
    v_mov_b32 v20, 0x00003f80
    v_mov_b32 v21, 0x3f800000
    """)
    o += TS(5) + poll("L_pollP", V_POLL, 28) + TS(6)
    for t in range(5):
        o += T(f"s_mov_b32 s68, {t*4*2560}\nbuffer_load_dwordx2 v[{YR+2*t}:{YR+2*t+1}], v{9 if t == 0 else 8}, s[16:19], s68 offen sc1")
        o.append(I(f"buffer_load_dwordx4 v[{GR+4*t}:{GR+4*t+3}], v16, s[16:19], 0 offen offset:{64*t} sc1"))
    for p in range(8):
        b = PR + 10 * p
        o += T(f"""
        buffer_load_dwordx4 v[{b}:{b+3}], v{V_P16}, s[16:19], s78 offen sc1
        buffer_load_dwordx4 v[{b+4}:{b+7}], v{V_P16}, s[16:19], s78 offen offset:1024 sc1
        buffer_load_dwordx2 v[{b+8}:{b+9}], v{V_P8}, s[16:19], s78 offen offset:2048 sc1
        s_cmp_eq_u32 s6, {p}
        s_cselect_b32 s68, {9*81920}, 0
        s_add_u32 s78, s78, s68
        s_sub_u32 s78, s78, {81920-10240}
        """)
    for p in range(8):
        o.append(I(f"s_waitcnt vmcnt({3*(7-p)})"))
        for i in range(10):
            o.append(I(f"v_dot2_f32_bf16 v{E0+2*i}, v{PR+10*p+i}, v20, v{E0+2*i}"))
            o.append(I(f"v_dot2_f32_bf16 v{E0+2*i+1}, v{PR+10*p+i}, v21, v{E0+2*i+1}"))
    o += TS(7)
    for t in range(5):
        for rho in range(4): o.append(I(f"v_perm_b32 v{64+rho}, v{YR+2*t+1}, v{YR+2*t}, v{SEL+rho}"))
        for rho in range(4): o.append(I(f"v_sub_f32 v{64+rho}, v{64+rho}, v{E0+4*t+rho}"))
        for rho in range(4): o.append(I(f"v_fmac_f32 v{E0+4*t+rho}, v{64+rho}, v{GR+4*t+rho}"))
        o += T(f"""
        v_cvt_pk_bf16_f32 v{PK+2*t}, v{E0+4*t}, v{E0+4*t+1}
        v_cvt_pk_bf16_f32 v{PK+2*t+1}, v{E0+4*t+2}, v{E0+4*t+3}
        s_add_u32 s68, {"s75" if t >= 3 else "0"}, {t*4608}
        s_add_u32 s69, {"s75" if t >= 3 else "0"}, {(4-t)*4608 if t else 0}
        buffer_store_short v{PK+2*t}, v{OA}, s[24:27], s68 offen
        buffer_store_short_d16_hi v{PK+2*t}, v{OA+1}, s[24:27], s68 offen
        buffer_store_short v{PK+2*t+1}, v{OA+2 if t else OA+4}, s[24:27], s69 offen
        buffer_store_short_d16_hi v{PK+2*t+1}, v{OA+3 if t else OA+5}, s[24:27], s69 offen
        """)
    o += T(f"""
    s_or_b32 s68, s2, s3
    s_cmp_eq_u32 s68, 0
    s_cbranch_scc0 L_noepoch
    buffer_store_dword v{V_TAG}, v{V_FL}, s[16:19], 0 offen sc1
    L_noepoch:
    """)
    return o

def ts_dump():
    if not cfg.ts: return []
    o = T("s_waitcnt vmcnt(0)\ns_memrealtime s[100:101]\ns_waitcnt lgkmcnt(0)")
    for k in range(9): o.append(I(f"v_mov_b32 v{16+k}, s{84+2*k}"))
    o += T(f"""
    s_getreg_b32 s68, hwreg(HW_REG_XCC_ID)
    v_mov_b32 v25, s68
    v_mov_b32 v26, 0
    v_mov_b32 v27, 0
    s_lshl_b32 s68, s2, 2
    s_add_u32 s68, s68, s3
    s_lshl_b32 s68, s68, 6
    s_add_u32 s68, s68, {WS_TS}
    v_cmp_eq_u32 vcc, 0, v{V_L}
    v_mov_b32 v4, {OOB}
    s_nop 0
    v_cndmask_b32 v4, v4, 0, vcc
    buffer_store_dwordx4 v[16:19], v4, s[16:19], s68 offen
    buffer_store_dwordx4 v[20:23], v4, s[16:19], s68 offen offset:16
    buffer_store_dwordx4 v[24:27], v4, s[16:19], s68 offen offset:32
    """)
    return o

from fnet import fnet_code

def build():
    def dyn(hasx22):
        d = prologue()
        for it in ab_pass(hasx22):
            if it.text == "@SETUP2": d += setup2()
            else: d.append(it)
        d += TS(3)
        for p in range(8):
            for g in range(6):
                for it in g1_group(p, g, p == 0 and g < 2):
                    d.append(it)
                    if p == 7 and it.text == "s_cbranch_scc1 L_switch": d += switch_block()
        d += TS(4)
        d += g2_pass0()
        d.append(I("s_mov_b32 s63, 8"))
        for p in range(1, 9):
            for g in range(4): d += g2_group(p, g)
        d += final()
        return d
    d1, d0 = dyn(True), dyn(False)
    r1, r0 = resolve(d1), resolve(d0)
    mn = lambda a, b: a if b is None else (b if a is None else min(a, b))
    res = {k: (mn(r1[k][0], r0[k][0]), mn(r1[k][1], r0[k][1])) for k in r1}
    txt = lambda l: [wait_text(res, it.site) if it.kind == "wait" else it.text for it in l]
    for d in (d1, d0):
        check_lds(d, res); check_hazards(txt(d)); check_scc(txt(d))
    st = prologue()
    for it in ab_pass(True):
        if it.text == "@SETUP2": st += setup2()
        else: st.append(it)
    st += TS(3)
    st += g1_group(0, 0, True) + g1_group(0, 1, True) + [I("s_branch L_g1mid"), I(".p2align 6"), I("L_g1:")]
    st += g1_group(1, 0, False) + g1_group(1, 1, False) + [I("L_g1mid:")]
    for g in range(2, 6): st += g1_group(1, g, False)
    st.append(I("s_cbranch_scc1 L_g1"))
    st += TS(4)
    st += g2_pass0() + [I("s_mov_b32 s63, 8"), I("L_g2:")]
    for g in range(4): st += g2_group(1, g)
    st.append(I("s_cbranch_scc1 L_g2"))
    st += final() + ts_dump() + [I("s_endpgm")] + switch_block()
    fn = fnet_code(sys.modules[__name__])
    check_hazards([it.text for it in fn]); check_scc([it.text for it in fn])
    st += fn + ts_dump() + [I("L_end:"), I("s_endpgm")]
    head = open("gated_mix__spectral_fnet__dense_activation_relu__prompt.s.ref").read().split("; Override launch")[0]
    out = head + "; @launch grid=(256,1,1) block=(256,1,1) lds=163840\n"
    out += f'.amdgcn_target "amdgcn-amd-amdhsa--gfx950"\n.text\n.globl {NAME}\n.p2align 8\n.type {NAME},@function\n{NAME}:\n'
    out += "\n".join(("" if (x.endswith(":") or x.startswith(".")) else "    ") + x for x in txt(st)) + "\n"
    out += f""".section .rodata,"a"
.p2align 6
.amdhsa_kernel {NAME}
  .amdhsa_next_free_vgpr 512
  .amdhsa_next_free_sgpr 102
  .amdhsa_accum_offset 256
  .amdhsa_group_segment_fixed_size 0
  .amdhsa_kernarg_size 96
  .amdhsa_user_sgpr_count 2
  .amdhsa_user_sgpr_kernarg_segment_ptr 1
  .amdhsa_system_sgpr_workgroup_id_x 1
.end_amdhsa_kernel
"""
    return out, res

if __name__ == "__main__":
    sys.modules["gen"] = sys.modules[__name__]
    outp = sys.argv[1]
    for a in sys.argv[2:]:
        k, v = a.split("="); setattr(cfg, k, int(v))
    out, res = build()
    open(outp, "w").write(out)
    print(res)
```

```python
import sys
from asmlib import *
NAME = "gated_mix__spectral_fnet__dense_activation_relu__prompt_kernel"
WS_PF, WS_ABFLAG, WS_YFLAG, WS_GT, WS_XS = 0x1000, 0x9000, 0xA000, 0x10000, 0x13000
WS_ABF, WS_YT, WS_PART, WS_TS, WS_SIZE = 0x100000, 0x280000, 0x400000, 0x2000000, 0x3000000
OOB = 0x40000000
XB, HB = 71680, 81920
SPIN = 1 << 20

class Cfg:
    ts = False
    L2 = 12
    rot1 = True
cfg = Cfg()

ACC = lambda t: f"v[{16+4*t}:{19+4*t}]"
EE = lambda t: f"v[{36+4*t}:{39+4*t}]"
E0 = 36
FB = lambda b: 56 + 4 * b
PK = 88
def act(i):
    return f"a[{4*i}:{4*i+3}]" if i < 64 else f"v[{152+4*(i-64)}:{155+4*(i-64)}]"
V_A, V_B = 10, 11
V_W2A, V_W2B = 12, 13
V_TR, V_TR2 = 14, 15
V_XO = 100
V_ABA, V_ABB = 105, 106
V_XR0, V_XR1 = 107, 108
V_WR0, V_WR1 = 109, 110
V_PATCH = 111
V_HW = 112
V_HR, V_HR2 = 113, 114
V_SIG, V_SIG0, V_SIGT0, V_SIG0T0, V_TAU = 115, 116, 117, 118, 119
V_ABS, V_ABS0 = 120, 121
V_ABFL = 122
V_TAG = 123
V_P16, V_P8 = 124, 125
V_FL = 126
V_POLL = 127
V_L, V_C, V_Q = 1, 2, 3

def mfma(d, a, b, c): return I(f"v_mfma_f32_16x16x32_bf16 {d}, {a}, {b}, {c}")
def place(ms, side):
    gaps = [[] for _ in ms]
    for g, it in side:
        gaps[g] += it if isinstance(it, list) else [it]
    out = []
    for m, g in zip(ms, gaps):
        out.append(m); out += g
    return out
def spread(items, gaps):
    n = len(items); k = len(gaps)
    return [(gaps[i * k // n], it) for i, it in enumerate(items)]

tsn = [0]
def TS(k):
    if not cfg.ts: return []
    return [I(f"{'s_memtime' if cfg.ts == 2 else 's_memrealtime'} s[{84+2*k}:{85+2*k}]")]

def wslot(ph, p, s):
    if ph == 2: return ((p & 1) * 16 + s) * 4096
    return s * 4096
def wdma(ph, p, s):
    P, b = s >> 1, s & 1
    pre = []
    if b == 0:
        pre.append(I(f"s_add_u32 m0, s60, {P*8192}"))
        pre.append(I(f"s_add_u32 s61, s62, " + (f"s{64+P}" if P < 8 else f"{8*64*9216}")))
    lo = wslot(ph, p, 2 * P)
    return pre, VM(f"buffer_load_dwordx4 v{V_A+b}, s[8:11], s61 offen offset:{1024*b} lds", ("W", ph, p, s), wr=(lo, lo + 8192))
def cover(ph, p, lo, hi): return [("W", ph, p, s) for s in range(lo, hi)]
def nf(ph): return 8 if ph == 2 else 6
def trr(ph, p, s):
    b = FB(s % nf(ph)); o = s * 4096; vr = V_TR
    if o >= 65536: o -= 65536; vr = V_TR2
    lo = wslot(ph, p, s)
    return [LG(f"ds_read_b64_tr_b16 v[{b+2*h}:{b+2*h+1}], v{vr} offset:{o+512*h}", ("R", ph, p, s, h), rd=(lo, lo + 4096)) for h in range(2)]
def group_mfmas(ph, steps, last):
    ms = []
    for t in range(5):
        for s in steps:
            d = EE(t) if s == last else ACC(t)
            c = "0" if s == 0 else ACC(t)
            b = FB(s % nf(ph)); w = f"v[{b}:{b+3}]"
            ms.append(mfma(d, act(s * 5 + t), w, c) if ph == 2 else mfma(d, w, act(s * 5 + t), c))
    return ms

def xdma(n):
    return [I(f"s_add_u32 m0, s82, {n*4096}"), I(f"s_movk_i32 s61, {256*(n//5)}") if n % 5 == 0 else I("s_nop 0"),
            VM(f"buffer_load_dwordx4 v{V_XO+n%5}, s[12:15], s61 offen lds", ("X", n), wr=(XB + (n // 5) * 20480, min(XB + (n // 5 + 1) * 20480, 163840)))]
def abdma(P):
    lo = P * 8192
    return [I(f"s_add_u32 m0, s60, {lo}"), I(f"s_movk_i32 s83, {128*P}"),
            VM(f"buffer_load_dwordx4 v{V_ABA}, s[20:23], s83 offen lds", ("WAB", P, 0), wr=(lo, lo + 8192)),
            VM(f"buffer_load_dwordx4 v{V_ABB}, s[20:23], s83 offen offset:1024 lds", ("WAB", P, 1), wr=(lo, lo + 8192))]
def abreads(P):
    out = []
    if P == 4: out += [I(f"v_add_u32 v{V_XR0}, 40960, v{V_XR0}"), I(f"v_add_u32 v{V_XR1}, 40960, v{V_XR1}"),
                       I(f"v_add_u32 v{V_WR0}, 32768, v{V_WR0}"), I(f"v_add_u32 v{V_WR1}, 32768, v{V_WR1}")]
    Pp = P - 4 if P >= 4 else P
    for h in range(2):
        s = 2 * P + h; b = FB(s % 6)
        out.append(LG(f"ds_read_b128 v[{b}:{b+3}], v{V_WR0+h} offset:{Pp*8192}", ("RAB", s)))
    for t in range(5):
        for h in range(2):
            s = 2 * P + h; lo = XB + (P * 10 + 2 * t) * 1024
            out.append(LG(f"ds_read_b128 {act(s*5+t)}, v{V_XR0+h} offset:{(Pp*10+2*t)*1024}", ("RX", s, t), rd=(lo, lo + 2048)))
    return out
def patch(P):
    return [I(f"v_cndmask_b32 v{FB(s%6)+e}, v{FB(s%6)+e}, v{V_PATCH}, s[76:77]") for s in (2 * P, 2 * P + 1) for e in range(4)]
def xg(g, lastx): return [("X", n) for n in range(5 * g, min(5 * g + 5, lastx + 1))]

def ab_pass(hasx22):
    lastx = 22 if hasx22 else 21
    o = []
    for g in range(3):
        for n in range(5 * g, 5 * g + 5): o += xdma(n)
        o += abdma(2 * g) + abdma(2 * g + 1)
    o.append(Item("@SETUP2", "other"))
    o += TS(1)
    o.append(WAIT("ab_b0", vm=xg(0, lastx) + [("WAB", 0, 1)])); o.append(BAR())
    o += TS(2)
    o += abreads(0)
    o.append(WAIT("ab_r0", lg="all")); o += patch(0); o.append(I("s_nop 1"))
    for g in range(9):
        ms = group_mfmas(0, (2 * g, 2 * g + 1), 17)
        side = []
        if g < 8:
            need = [("WAB", g + 1, 1)]
            if g % 2 == 1:
                side.append((0, [WAIT(f"ab_b{g}", vm=need + xg((g + 1) // 2, lastx)), BAR()]))
            else:
                side.append((0, WAIT(f"ab_w{g}", vm=need)))
            side += spread(abreads(g + 1), [0, 1, 2, 3, 4, 5])
        else:
            side.append((0, [WAIT("ab_b8", vm=cover(1, 0, 0, 6)), BAR()]))
            side += spread(trr(1, 0, 0) + trr(1, 0, 1) + trr(1, 0, 2), [1, 2, 3, 4, 5, 6])
        d = []
        if g == 0:
            for n in range(15, 20): d.append(xdma(n))
            d += [abdma(6), abdma(7)]
        elif g == 1:
            d += [xdma(20), xdma(21)]
            d.append([I("s_cmp_lt_u32 s3, 2"), I("s_cbranch_scc0 L_nox22")] + (xdma(22) if hasx22 else []) + [I("L_nox22:")])
            d.append(abdma(8))
        else:
            sl = {2: range(0, 4), 3: range(4, 8), 4: (8, 9), 5: (10, 11), 6: (12, 13), 7: (14,), 8: ()}[g]
            for s in sl:
                pre, dm = wdma(1, 0, s); dm.wr = None
                d.append(pre + ([I("s_nop 0")] if False else []) + [dm])
        if d: side += spread(d, [2, 3, 4, 5, 6, 7, 8])
        if g < 8:
            side.append((7, WAIT(f"ab_rw{g}", lg=[("RAB", 2 * g + 3)])))
            side += spread(patch(g + 1), [7, 8])
        side.append((9, WAIT(f"ab_r{g+1}", lg="all")))
        o += place(ms, side)
    return o

def ab_epilogue():
    o = []
    for t in range(5):
        r = E0 + 4 * t
        sg = (V_SIG0T0, V_SIGT0) if t == 0 else (V_SIG0, V_SIG)
        for e in range(4): o.append(I(f"v_fmac_f32_dpp v{r+e}, v{r+e}, v{sg[0] if e == 0 else sg[1]} quad_perm:[3,2,1,0] row_mask:0xf bank_mask:0xf"))
        for e in range(4): o.append(I(f"v_fmac_f32_dpp v{r+e}, v{r+e}, v{V_TAU} quad_perm:[1,0,3,2] row_mask:0xf bank_mask:0xf"))
        if t == 0:
            o.append(I(f"v_mov_b32_dpp v{PK+10}, v{r} quad_perm:[0,1,2,1] row_mask:0xf bank_mask:0xf"))
            o.append(I(f"v_cndmask_b32 v{r}, v{r}, v{PK+10}, s[80:81]"))
        o.append(I(f"v_cvt_pk_bf16_f32 v{PK+2*t}, v{r}, v{r+1}"))
        o.append(I(f"v_cvt_pk_bf16_f32 v{PK+2*t+1}, v{r+2}, v{r+3}"))
        so = "s75" if t >= 3 else "0"
        o.append(VM(f"buffer_store_dwordx2 v[{PK+2*t}:{PK+2*t+1}], v{V_ABS0 if t == 0 else V_ABS}, s[16:19], {so} offen offset:{256*t} sc1", ("ABST", t)))
    return o
def h_epilogue(p):
    o = []
    for t in range(5):
        r = E0 + 4 * t
        o.append(I(f"v_cvt_pk_bf16_f32 v{PK+2*t}, v{r}, v{r+1}"))
        o.append(I(f"v_cvt_pk_bf16_f32 v{PK+2*t+1}, v{r+2}, v{r+3}"))
        o.append(I(f"v_pk_max_i16 v{PK+2*t}, v{PK+2*t}, 0"))
        o.append(I(f"v_pk_max_i16 v{PK+2*t+1}, v{PK+2*t+1}, 0"))
        o.append(LG(f"ds_write_b64 v{V_HW}, v[{PK+2*t}:{PK+2*t+1}] offset:{1024*t}", ("HW", p, t), wr=(HB + p * 10240, HB + (p + 1) * 10240)))
    o.append(I(f"v_add_u32 v{V_HW}, 10240, v{V_HW}"))
    return o
def p_epilogue(p):
    o = [I(f"v_cvt_pk_bf16_f32 v{PK+i}, v{E0+2*i}, v{E0+2*i+1}") for i in range(10)]
    st = [VM(f"buffer_store_dwordx4 v[{PK}:{PK+3}], v{V_P16}, s[16:19], s78 offen sc1", ("PST", p, 0)),
          VM(f"buffer_store_dwordx4 v[{PK+4}:{PK+7}], v{V_P16}, s[16:19], s78 offen offset:1024 sc1", ("PST", p, 1)),
          VM(f"buffer_store_dwordx2 v[{PK+8}:{PK+9}], v{V_P8}, s[16:19], s78 offen offset:2048 sc1", ("PST", p, 2))]
    return o[:4] + st[:1] + o[4:8] + st[1:2] + o[8:] + st[2:]

def g1_group(p, g, peeled):
    ms = group_mfmas(1, range(3 * g, 3 * g + 3), 17)
    side = []
    nph, npp = (1, p + 1) if p < 7 else (2, 0)
    sfx = "p" if peeled else ""
    if g % 2 == 1:
        need = cover(1, p, 3 * g + 3, 3 * g + 9) if g < 5 else cover(nph, npp, 0, 6)
        if g == 5 and p == 0: need = need + [("ABST", 4)]
        side.append((0, [WAIT(f"g1_b{g}{sfx}", vm=need), BAR()]))
    rd = []
    for s in range(3 * g + 3, 3 * g + 6):
        rd += trr(1, p, s) if s < 18 else trr(nph, npp, s - 18)
    side += list(zip([1, 2, 4, 5, 7, 8], rd))
    for k, s in enumerate(range(3 * g + 15, 3 * g + 18)):
        pre, dm = wdma(1, p, s) if s < 18 else wdma(nph, npp, s - 18)
        gp = [3, 8, 13][k]
        if s == 18:
            sw = [I("s_add_u32 s73, s73, 1"), I("s_and_b32 s73, s73, 7"), I("s_lshl_b32 s62, s73, 7"), I("s_add_u32 s62, s62, s74")]
            side.append((0, sw[:1])); side.append((1, sw[1:2])); side.append((1, sw[2:3])); side.append((2, sw[3:]))
            if not peeled:
                side.append((2, [I("s_cmp_eq_u32 s63, 1"), I("s_cbranch_scc1 L_switch"), I("L_switched:")]))
            gp = 4
        side.append((gp - 1, pre)); side.append((gp, dm))
    if g == 5:
        side.append((10, VM(f"buffer_store_dword v{V_TAG}, v{V_ABFL}, s[16:19], 0 offen sc1", ("ABFL", p))))
        side.append((11, I(f"v_mov_b32 v{V_ABFL}, {OOB}")))
    if g < 2:
        ep = ab_epilogue() if p == 0 else h_epilogue(p - 1)
        allg = [(0, x) for x in range(3, 15)] + [(1, x) for x in range(3, 15)]
        n = len(ep)
        for i, it in enumerate(ep):
            gg, gp = allg[i * len(allg) // n]
            if gg == g: side.append((gp, it))
    if g == 5: side.append((13, [I("s_sub_u32 s63, s63, 1"), I("s_cmp_lg_u32 s63, 0")]))
    side.append((14, WAIT(f"g1_r{g}{sfx}", lg="all")))
    return place(ms, side)

def hreads(s):
    o = []
    for t in range(5):
        off = (s * 5 + t) * 1024; vr = V_HR
        if off >= 40960: off -= 40960; vr = V_HR2
        lo = HB + (s * 5 + t) * 1024
        o.append(LG(f"ds_read_b128 {act(s*5+t)}, v{vr} offset:{off}", ("RH", s, t), rd=(lo, lo + 1024)))
    return o
def nextcol():
    return [[I("s_add_u32 s62, s62, 128"), I("s_cmp_eq_u32 s62, 1152"), I("s_cselect_b32 s62, 0, s62")],
            [I("s_cmp_eq_u32 s62, s74"), I(f"s_cselect_b32 s62, {OOB}, s62"), I("s_xor_b32 s60, s60, 0x10000")]]
def g2_dmas(p, lst):
    out = []
    for s in lst:
        pp, ss = p + s // 16, s % 16
        pre, dm = wdma(2, pp, ss)
        if ss == 0: pre = nextcol() + [pre]
        out.append((pre, dm))
    return out
def put_dmas(side, dm, n):
    k = len(dm)
    for i, (pre, d) in enumerate(dm):
        gp = min(n - 1, 3 + i * n // k) if k * 4 <= n + 4 else min(n - 1, 2 + i * (n - 2) // k)
        if len(pre) > 2:
            side += spread(pre, list(range(max(0, gp - 3), gp)))
        elif pre: side.append((gp - 1, pre))
        side.append((gp, d))
def g2_pass0():
    o = []
    for s in range(3): o += hreads(s)
    o.append(WAIT("g20_r", lg="all"))
    groups = [(0, 1, 2), (3, 4, 5), (6, 7), (8, 9, 10, 11), (12, 13, 14, 15)]
    last = cfg.L2 + 20
    cuts = [15, 19, 22, 25, 29, 32] if cfg.L2 == 12 else [15, 19, 23, 26, 31, 36]
    ep = h_epilogue(7)[:-1]
    for gi, st in enumerate(groups):
        ms = group_mfmas(2, st, 15); n = len(ms); side = []
        if gi == 1: side.append((0, [WAIT("g20_b1", vm=cover(2, 0, 6, 12)), BAR()]))
        if gi == 3: side.append((0, [WAIT("g20_b3", vm=cover(2, 0, 12, 16)), BAR()]))
        if gi == 4: side.append((0, [WAIT("g20_b4", vm=cover(2, 1, 0, 8)), BAR(), I(f"v_xor_b32 v{V_TR}, 0x10000, v{V_TR}")]))
        rd = []
        if gi < 4:
            for s in groups[gi + 1]: rd += trr(2, 0, s) + hreads(s)
            side += spread(rd, list(range(1 if gi in (1, 3) else 0, n - 2)))
        else:
            for s in range(4): rd += trr(2, 1, s)
            side += list(zip([1, 2, 4, 5, 7, 8, 10, 11], rd))
        put_dmas(side, g2_dmas(0, range(cuts[gi], cuts[gi + 1])), n)
        if gi < 2:
            h = len(ep) // 2 + 3
            side += spread(ep[:h] if gi == 0 else ep[h:], list(range(2, n - 1)))
        side.append((n - 1, WAIT(f"g20_r{gi}", lg="all")))
        o += place(ms, side)
    return o
def g2_group(p, g):
    ms = group_mfmas(2, range(4 * g, 4 * g + 4), 15); side = []
    if g == 1: side.append((0, [WAIT("g2_b1", vm=cover(2, p, 8, 16)), BAR()]))
    if g == 3:
        side.append((0, [WAIT("g2_b3", vm=cover(2, p + 1, 0, 8) + [("PST", p - 1, 2)]), BAR(), I(f"v_xor_b32 v{V_TR}, 0x10000, v{V_TR}")]))
        side.append((6, VM(f"buffer_store_dword v{V_TAG}, v{V_FL}, s[16:19], s79 offen sc1", ("PFL", p - 1))))
        side.append((14, [I("s_add_u32 s78, s78, 10240"), I("s_add_u32 s79, s79, 4")]))
    rd = []
    for s in range(4 * g + 4, 4 * g + 8): rd += trr(2, p, s) if s < 16 else trr(2, p + 1, s - 16)
    side += list(zip([1, 2, 4, 5, 7, 9, 10, 11], rd))
    put_dmas(side, g2_dmas(p, range(4 * g + 4 + cfg.L2, 4 * g + 8 + cfg.L2)), 20)
    if g == 0: side += spread(p_epilogue(p - 1), [4, 5, 6, 7, 9, 10, 11, 12, 14, 15, 16, 17, 19])
    if g == 3: side.append((18, [I("s_sub_u32 s63, s63, 1"), I("s_cmp_lg_u32 s63, 0")]))
    side.append((19, WAIT(f"g2_r{g}", lg="all")))
    return place(ms, side)

def T(s): return [I(x.strip()) for x in s.strip().split("\n") if x.strip()]
def rowcalc(o, rho, d, tmp):
    return T(f"""
    v_cmp_eq_u32 vcc, 0, v{o}
    v_mov_b32 v{tmp}, 512
    v_add_u32 v{tmp+1}, 1, v{rho}
    v_cndmask_b32 v{tmp}, v{o}, v{tmp}, vcc
    v_cmp_lt_u32 vcc, 1, v{rho}
    v_sub_u32 v{tmp}, 0, v{tmp}
    v_lshrrev_b32 v{tmp+1}, 1, v{tmp+1}
    v_cndmask_b32 v{tmp}, v{o}, v{tmp}, vcc
    v_lshl_add_u32 v{d}, v{tmp+1}, 10, v{tmp}
    """)

def srd(b, p, n): return T(f"s_mov_b32 s{b}, s{p}\ns_mov_b32 s{b+1}, s{p+1}\ns_mov_b32 s{b+2}, {n}\ns_mov_b32 s{b+3}, 0x20000")

def prologue():
    o = T(f"""
    s_cmp_ge_u32 s2, 256
    s_cbranch_scc1 L_end
    s_load_dwordx16 s[36:51], s[0:1], 0
    s_load_dwordx8 s[52:59], s[0:1], 64
    """) + TS(0) + T(f"""
    v_lshrrev_b32 v4, 6, v0
    v_and_b32 v{V_L}, 63, v0
    v_readfirstlane_b32 s3, v4
    v_and_b32 v{V_C}, 15, v0
    v_bfe_u32 v{V_Q}, v0, 4, 2
    s_and_b32 s60, s2, 3
    s_bfe_u32 s61, s2, 0x10002
    s_lshr_b32 s62, s2, 3
    s_cmp_eq_u32 s60, 3
    s_cselect_b32 s63, 30, 29
    s_cmp_ge_u32 s62, s63
    s_cbranch_scc1 L_spare
    s_mul_i32 s64, s60, 29
    s_add_u32 s64, s64, s62
    s_mul_i32 s5, s64, 5042
    s_lshr_b32 s5, s5, 16
    s_mul_i32 s65, s5, 13
    s_sub_u32 s64, s64, s65
    s_mul_i32 s4, s61, 13
    s_add_u32 s4, s4, s64
    """)
    o += T(f"""
    v_lshrrev_b32 v4, 3, v{V_L}
    v_and_b32 v5, 3, v4
    v_lshrrev_b32 v6, 5, v{V_L}
    s_mul_i32 s65, s4, 20
    v_add_u32 v6, s65, v6
    s_and_b32 s66, s3, 1
    s_lshl_b32 s66, s66, 2
    v_lshrrev_b32 v7, 4, v{V_L}
    v_add_u32 v7, s66, v7
    v_and_b32 v8, 7, v{V_L}
    v_xor_b32 v7, v7, v8
    v_lshlrev_b32 v7, 4, v7
    s_movk_i32 s67, 1152
    v_mov_b32 v20, {OOB}
    """)
    for n in range(5):
        o += T(f"""
        s_add_u32 s68, s3, {4*n}
        s_cmp_ge_u32 s68, 10
        s_cselect_b32 s69, 10, 0
        s_cselect_b32 s70, 128, 0
        s_sub_u32 s68, s68, s69
        s_lshl_b32 s68, s68, 1
        v_add_u32 v9, s68, v6
        """) + rowcalc(9, 5, 16, 17) + T(f"""
        v_cmp_gt_u32 vcc, 512, v9
        v_mad_u32_u24 v16, v16, s67, v7
        v_add_u32 v16, s70, v16
        v_cndmask_b32 v{V_XO+n}, v20, v16, vcc
        """)
    o += T(f"""
    s_lshl_b32 s68, s5, 5
    s_lshl_b32 s69, s66, 2
    s_add_u32 s68, s68, s69
    v_add_u32 v9, s68, v4
    v_lshrrev_b32 v7, 4, v{V_L}
    v_xor_b32 v7, v7, v8
    v_lshlrev_b32 v7, 4, v7
    v_mad_u32_u24 v{V_ABA}, v9, s67, v7
    v_xor_b32 v7, 64, v7
    v_mad_u32_u24 v{V_ABB}, v9, s67, v7
    v_add_u32 v{V_ABB}, {8*1152-1024}, v{V_ABB}
    s_lshl_b32 s60, s3, 11
    s_lshl_b32 s82, s3, 10
    s_add_u32 s82, s82, {XB}
    s_waitcnt lgkmcnt(0)
    s_load_dword s7, s[58:59], 0
    """) + srd(12, 36, 2359296) + T(f"""
    s_cmp_lt_u32 s3, 2
    s_cselect_b32 s20, s42, s44
    s_cselect_b32 s21, s43, s45
    s_mov_b32 s22, 663552
    s_mov_b32 s23, 0x20000
    """)
    return o

def setup2():
    o = srd(8, 48, 5308416) + srd(16, 58, WS_SIZE) + srd(24, 54, 2359296)
    o += T(f"""
    v_lshrrev_b32 v4, 3, v{V_L}
    s_lshl_b32 s68, s3, 4
    v_add_u32 v4, s68, v4
    v_and_b32 v5, 1, v{V_Q}
    v_lshlrev_b32 v5, 1, v5
    v_and_b32 v8, 7, v{V_L}
    v_xor_b32 v5, v5, v8
    v_lshlrev_b32 v5, 4, v5
    v_xor_b32 v6, 64, v5
    s_movk_i32 s68, 9216
    v_mad_u32_u24 v{V_A}, v4, s68, v5
    v_mad_u32_u24 v{V_B}, v4, s68, v6
    v_add_u32 v{V_B}, {8*9216-1024}, v{V_B}
    v_mad_u32_u24 v{V_W2A}, v4, s67, v5
    v_mad_u32_u24 v{V_W2B}, v4, s67, v6
    v_add_u32 v{V_W2B}, {8*1152-1024}, v{V_W2B}
    v_bfe_u32 v4, v{V_L}, 2, 2
    v_and_b32 v5, 3, v{V_L}
    v_and_b32 v6, 1, v{V_Q}
    v_lshlrev_b32 v6, 1, v6
    v_lshrrev_b32 v7, 1, v4
    v_add_u32 v6, v6, v7
    v_xor_b32 v6, s3, v6
    v_lshlrev_b32 v6, 5, v6
    v_lshl_add_u32 v6, v{V_Q}, 10, v6
    v_lshl_add_u32 v6, v4, 7, v6
    v_lshl_add_u32 v{V_TR}, v5, 3, v6
    v_add_u32 v{V_TR2}, 0x10000, v{V_TR}
    v_lshrrev_b32 v4, 1, v{V_C}
    v_xor_b32 v4, v4, v{V_Q}
    v_lshlrev_b32 v4, 4, v4
    v_lshl_add_u32 v4, v{V_C}, 7, v4
    v_add_u32 v{V_XR0}, {XB}, v4
    v_xor_b32 v{V_XR1}, 64, v{V_XR0}
    v_add_u32 v{V_WR0}, s60, v4
    v_xor_b32 v{V_WR1}, 64, v{V_WR0}
    v_mov_b32 v{V_PATCH}, 0xbf803f80
    s_lshl_b32 s68, s5, 2
    s_or_b32 s68, s68, s3
    s_cmp_eq_u32 s68, 2
    s_cselect_b32 s76, 0x00010001, 0
    s_mov_b32 s77, s76
    s_cselect_b32 s69, 1, 0
    s_and_b32 s68, s3, 1
    s_lshl_b32 s68, s68, 9
    s_lshr_b32 s70, s3, 1
    s_mul_i32 s71, s70, 5120
    s_add_u32 s68, s68, s71
    s_add_u32 s68, s68, {HB}
    v_lshrrev_b32 v4, 1, v{V_Q}
    v_lshl_add_u32 v4, v4, 4, v{V_C}
    v_lshlrev_b32 v4, 4, v4
    v_and_b32 v5, 1, v{V_Q}
    v_lshl_add_u32 v4, v5, 3, v4
    v_add_u32 v{V_HW}, s68, v4
    v_lshlrev_b32 v{V_P16}, 4, v{V_L}
    v_lshlrev_b32 v{V_P8}, 3, v{V_L}
    v_add_u32 v{V_HR}, {HB}, v{V_P16}
    v_add_u32 v{V_HR2}, {HB+40960}, v{V_P16}
    """)
    o += T(f"""
    s_cmp_eq_u32 s70, 0
    s_cselect_b32 s71, 1.0, -1.0
    v_mov_b32 v{V_SIG}, s71
    s_cmp_eq_u32 s69, 1
    s_cselect_b32 s72, 16, 0
    v_cmp_gt_u32 vcc, s72, v{V_L}
    v_mov_b32 v4, 1.0
    v_and_b32 v5, 1, v{V_L}
    v_cndmask_b32 v{V_SIG0}, v{V_SIG}, v4, vcc
    s_cmp_eq_u32 s4, 0
    s_cselect_b32 s72, 4, 0
    v_cmp_gt_u32 vcc, s72, v{V_C}
    s_cselect_b32 s80, 8, 0
    v_lshlrev_b32 v5, 31, v5
    v_cndmask_b32 v{V_SIGT0}, v{V_SIG}, 0, vcc
    v_cndmask_b32 v{V_SIG0T0}, v{V_SIG0}, 0, vcc
    v_or_b32 v{V_TAU}, v4, v5
    s_cmp_eq_u32 s69, 1
    s_cselect_b32 s80, s80, 0
    s_mov_b32 s81, 0
    """)
    o += T(f"""
    v_lshrrev_b32 v4, 2, v{V_C}
    v_and_b32 v5, 3, v{V_C}
    s_lshr_b32 s68, s5, 1
    s_lshl_b32 s68, s68, 17
    s_lshl_b32 s71, s70, 16
    s_add_u32 s68, s68, s71
    s_mul_i32 s71, s4, 1280
    s_add_u32 s68, s68, s71
    s_and_b32 s71, s5, 1
    s_lshl_b32 s71, s71, 6
    s_add_u32 s68, s68, s71
    s_and_b32 s71, s3, 1
    s_lshl_b32 s71, s71, 5
    s_add_u32 s68, s68, s71
    s_add_u32 s68, s68, {WS_ABF}
    v_and_b32 v6, 1, v4
    v_lshlrev_b32 v6, 15, v6
    v_lshrrev_b32 v7, 1, v4
    v_lshl_add_u32 v6, v7, 7, v6
    v_lshl_add_u32 v6, v{V_Q}, 3, v6
    v_add_u32 v6, s68, v6
    v_add_u32 v7, {5*131072}, v6
    v_mov_b32 v8, {OOB}
    v_cmp_eq_u32 vcc, 1, v5
    s_lshl_b32 s68, s5, 6
    s_add_u32 s68, s68, s71
    v_cndmask_b32 v{V_ABS}, v8, v7, vcc
    v_cmp_eq_u32 vcc, 0, v5
    s_lshl_b32 s71, s70, 10
    s_add_u32 s68, s68, s71
    v_cndmask_b32 v{V_ABS}, v{V_ABS}, v6, vcc
    s_add_u32 s68, s68, {WS_XS}
    v_lshlrev_b32 v9, 3, v{V_Q}
    v_add_u32 v9, s68, v9
    s_lshl_b32 s71, s70, 1
    s_add_u32 s71, s71, 1
    v_cmp_eq_u32 vcc, s71, v5
    s_nop 1
    v_cndmask_b32 v8, v8, v7, vcc
    v_cmp_eq_u32 vcc, 0, v5
    s_nop 1
    v_cndmask_b32 v8, v8, v6, vcc
    v_cmp_eq_u32 vcc, 2, v5
    s_nop 1
    v_cndmask_b32 v8, v8, v9, vcc
    v_cmp_gt_u32 vcc, s72, v{V_C}
    s_cmp_eq_u32 s4, 25
    s_cselect_b32 s75, {OOB}, 0
    v_cndmask_b32 v{V_ABS0}, v{V_ABS}, v8, vcc
    s_mul_i32 s68, s5, 26
    s_add_u32 s68, s68, s4
    s_lshl_b32 s68, s68, 2
    s_add_u32 s68, s68, s3
    s_lshl_b32 s68, s68, 2
    s_add_u32 s68, s68, {WS_ABFLAG}
    v_cmp_eq_u32 vcc, 0, v{V_L}
    v_mov_b32 v8, {OOB}
    v_mov_b32 v9, s68
    v_cndmask_b32 v{V_ABFL}, v8, v9, vcc
    v_cndmask_b32 v{V_FL}, v8, 0, vcc
    """)
    for i in range(8): o.append(I(f"s_mov_b32 s{64+i}, {i*64*9216}"))
    o += T(f"""
    s_and_b32 s73, s4, {7 if cfg.rot1 else 0}
    s_lshl_b32 s74, s5, 10
    s_lshl_b32 s62, s73, 7
    s_add_u32 s62, s62, s74
    s_mov_b32 s63, 8
    s_waitcnt lgkmcnt(0)
    s_add_u32 s7, s7, 0x9e3779b9
    v_mov_b32 v{V_TAG}, s7
    """)
    return o

def switch_block():
    o = T(f"""
    L_switch:
    s_mov_b32 s8, s50
    s_mov_b32 s9, s51
    v_mov_b32 v{V_A}, v{V_W2A}
    v_mov_b32 v{V_B}, v{V_W2B}
    s_lshl_b32 s72, s5, 3
    """)
    for i in range(8):
        o += T(f"""
        s_add_u32 s{64+i}, s73, {i}
        s_and_b32 s{64+i}, s{64+i}, 7
        s_add_u32 s{64+i}, s{64+i}, s72
        s_mul_i32 s{64+i}, s{64+i}, {64*1152}
        """)
    o += T(f"""
    s_add_u32 s6, s4, s5
    s_mul_i32 s72, s6, 7282
    s_lshr_b32 s72, s72, 16
    s_mul_i32 s72, s72, 9
    s_sub_u32 s6, s6, s72
    s_add_u32 s73, s6, 1
    s_cmp_eq_u32 s73, 9
    s_cselect_b32 s73, 0, s73
    s_lshl_b32 s62, s73, 7
    s_mov_b32 s74, s62
    s_mul_i32 s72, s4, 9
    s_add_u32 s72, s72, s73
    s_mul_i32 s78, s72, 81920
    s_mul_i32 s79, s3, 2560
    s_add_u32 s78, s78, s79
    s_add_u32 s78, s78, {WS_PART}
    s_lshl_b32 s79, s72, 7
    s_lshl_b32 s72, s3, 5
    s_add_u32 s79, s79, s72
    s_add_u32 s79, s79, {WS_PF}
    s_branch L_switched
    """)
    return o

def poll(lab, vaddr, nl):
    return T(f"""
    s_mov_b32 s63, {SPIN}
    v_cmp_le_u32 s[80:81], {nl}, v{V_L}
    {lab}:
    buffer_load_dword v4, v{vaddr}, s[16:19], 0 offen sc1
    s_sub_u32 s63, s63, 1
    s_waitcnt vmcnt(0)
    v_cmp_eq_u32 vcc, s7, v4
    s_cmp_eq_u32 s63, 0
    s_cbranch_scc1 {lab}_out
    s_or_b64 vcc, vcc, s[80:81]
    s_cmp_eq_u64 vcc, -1
    s_cbranch_scc0 {lab}
    {lab}_out:
    """)

def final():
    PR, YR, GR, SEL, OA = 152, 232, 100, 128, 56
    o = T(f"""
    v_sub_u32 v5, s6, v{V_L}
    v_lshlrev_b32 v4, 2, v{V_L}
    v_add_u32 v6, 9, v5
    v_min_u32 v5, v5, v6
    s_mul_i32 s72, s4, 9
    s_lshl_b32 s79, s72, 7
    s_lshl_b32 s68, s3, 5
    s_add_u32 s79, s79, s68
    s_add_u32 s79, s79, {WS_PF}
    v_lshl_add_u32 v5, v5, 7, v4
    v_add_u32 v5, s79, v5
    s_add_u32 s72, s72, s6
    s_mul_i32 s78, s72, 81920
    s_mul_i32 s79, s3, 2560
    s_add_u32 s78, s78, s79
    s_add_u32 s78, s78, {WS_PART}
    v_add_u32 v6, {WS_YFLAG - 32}, v4
    v_cmp_gt_u32 vcc, 8, v{V_L}
    s_lshl_b32 s68, s6, 6
    s_lshl_b32 s69, s3, 4
    v_cndmask_b32 v{V_POLL}, v6, v5, vcc
    s_add_u32 s68, s68, s69
    v_add_u32 v5, s68, v{V_C}
    v_sub_u32 v6, 576, v5
    v_cmp_lt_u32 s[76:77], v6, v5
    v_min_u32 v6, v5, v6
    s_mul_i32 s69, s4, 20
    v_add_u32 v7, s69, v{V_Q}
    s_movk_i32 s70, 2560
    v_lshlrev_b32 v6, 3, v6
    v_mad_u32_u24 v8, v7, s70, v6
    v_add_u32 v8, {WS_YT}, v8
    v_cmp_eq_u32 vcc, 0, v7
    v_add_u32 v9, {512*2560}, v8
    s_and_b64 vcc, vcc, s[76:77]
    v_lshlrev_b32 v16, 4, v7
    v_add_u32 v16, {WS_GT}, v16
    v_cndmask_b32 v9, v8, v9, vcc
    """)
    for rho in range(4):
        d = 0x0c0c | ((2 * rho) << 16) | ((2 * rho + 1) << 24); m = 0x0c0c | ((6 - 2 * rho) << 16) | ((7 - 2 * rho) << 24)
        o += T(f"v_mov_b32 v17, {d}\nv_mov_b32 v18, {m}\nv_cndmask_b32 v{SEL+rho}, v17, v18, s[76:77]")
    o += T(f"""
    v_lshlrev_b32 v5, 1, v5
    s_movk_i32 s67, 1152
    v_mad_u32_u24 v{OA}, v7, s67, v5
    v_add_u32 v{OA+1}, {1024*1152}, v{OA}
    v_sub_u32 v17, {1024-16}, v7
    v_mad_u32_u24 v{OA+2}, v17, s67, v5
    v_add_u32 v{OA+3}, {1024*1152}, v{OA+2}
    v_cmp_eq_u32 vcc, 0, v7
    v_sub_u32 v17, 1024, v7
    v_mov_b32 v18, 512
    v_cndmask_b32 v17, v17, v18, vcc
    v_mad_u32_u24 v{OA+4}, v17, s67, v5
    v_add_u32 v{OA+5}, {1024*1152}, v{OA+4}
    v_mov_b32 v20, 0x00003f80
    v_mov_b32 v21, 0x3f800000
    """)
    o += TS(5) + poll("L_pollP", V_POLL, 28) + TS(6)
    for t in range(5):
        o += T(f"s_mov_b32 s68, {t*4*2560}\nbuffer_load_dwordx2 v[{YR+2*t}:{YR+2*t+1}], v{9 if t == 0 else 8}, s[16:19], s68 offen sc1")
        o.append(I(f"buffer_load_dwordx4 v[{GR+4*t}:{GR+4*t+3}], v16, s[16:19], 0 offen offset:{64*t} sc1"))
    for p in range(8):
        b = PR + 10 * p
        o += T(f"""
        buffer_load_dwordx4 v[{b}:{b+3}], v{V_P16}, s[16:19], s78 offen sc1
        buffer_load_dwordx4 v[{b+4}:{b+7}], v{V_P16}, s[16:19], s78 offen offset:1024 sc1
        buffer_load_dwordx2 v[{b+8}:{b+9}], v{V_P8}, s[16:19], s78 offen offset:2048 sc1
        s_cmp_eq_u32 s6, {p}
        s_cselect_b32 s68, {9*81920}, 0
        s_add_u32 s78, s78, s68
        s_sub_u32 s78, s78, {81920-10240}
        """)
    for p in range(8):
        o.append(I(f"s_waitcnt vmcnt({3*(7-p)})"))
        for i in range(10):
            o.append(I(f"v_dot2_f32_bf16 v{E0+2*i}, v{PR+10*p+i}, v20, v{E0+2*i}"))
            o.append(I(f"v_dot2_f32_bf16 v{E0+2*i+1}, v{PR+10*p+i}, v21, v{E0+2*i+1}"))
    o += TS(7)
    for t in range(5):
        for rho in range(4): o.append(I(f"v_perm_b32 v{64+rho}, v{YR+2*t+1}, v{YR+2*t}, v{SEL+rho}"))
        for rho in range(4): o.append(I(f"v_sub_f32 v{64+rho}, v{64+rho}, v{E0+4*t+rho}"))
        for rho in range(4): o.append(I(f"v_fmac_f32 v{E0+4*t+rho}, v{64+rho}, v{GR+4*t+rho}"))
        o += T(f"""
        v_cvt_pk_bf16_f32 v{PK+2*t}, v{E0+4*t}, v{E0+4*t+1}
        v_cvt_pk_bf16_f32 v{PK+2*t+1}, v{E0+4*t+2}, v{E0+4*t+3}
        s_add_u32 s68, {"s75" if t >= 3 else "0"}, {t*4608}
        s_add_u32 s69, {"s75" if t >= 3 else "0"}, {(4-t)*4608 if t else 0}
        buffer_store_short v{PK+2*t}, v{OA}, s[24:27], s68 offen
        buffer_store_short_d16_hi v{PK+2*t}, v{OA+1}, s[24:27], s68 offen
        buffer_store_short v{PK+2*t+1}, v{OA+2 if t else OA+4}, s[24:27], s69 offen
        buffer_store_short_d16_hi v{PK+2*t+1}, v{OA+3 if t else OA+5}, s[24:27], s69 offen
        """)
    o += T(f"""
    s_or_b32 s68, s2, s3
    s_cmp_eq_u32 s68, 0
    s_cbranch_scc0 L_noepoch
    buffer_store_dword v{V_TAG}, v{V_FL}, s[16:19], 0 offen sc1
    L_noepoch:
    """)
    return o

def ts_dump(fn=0):
    if not cfg.ts: return []
    o = T("s_waitcnt vmcnt(0)") + TS(8) + T("s_waitcnt lgkmcnt(0)")
    for k in range(9): o.append(I(f"v_mov_b32 v{16+k}, s{84+2*k}"))
    o += T(f"""
    s_getreg_b32 s68, hwreg(HW_REG_XCC_ID)
    v_mov_b32 v25, s68
    v_mov_b32 v26, 0
    v_mov_b32 v27, 0
    s_lshl_b32 s68, s2, 2
    s_add_u32 s68, s68, s3
    s_lshl_b32 s68, s68, 6
    s_add_u32 s68, s68, {WS_TS}
    v_cmp_eq_u32 vcc, 0, v{V_L}
    v_mov_b32 v4, {OOB}
    s_nop 0
    v_cndmask_b32 v4, v4, 0, vcc
    buffer_store_dwordx4 v[16:19], v4, s[16:19], s68 offen
    buffer_store_dwordx4 v[20:23], v4, s[16:19], s68 offen offset:16
    buffer_store_dwordx4 v[24:27], v4, s[16:19], s68 offen offset:32
    s_waitcnt vmcnt(0)
    v_not_b32 v16, v16
    """) + srd(28, 56, 256)
    o.append(I("buffer_atomic_umax v16, v4, s[28:31], 0 offen"))
    for k in range(1, 9 if not fn else 8): o.append(I(f"buffer_atomic_umax v{16+k}, v4, s[28:31], 0 offen offset:{4*(k+8*fn)}"))
    return o

from fnet import fnet_code

def build():
    def dyn(hasx22):
        d = prologue()
        for it in ab_pass(hasx22):
            if it.text == "@SETUP2": d += setup2()
            else: d.append(it)
        d += TS(3)
        for p in range(8):
            for g in range(6):
                for it in g1_group(p, g, p == 0 and g < 2):
                    d.append(it)
                    if p == 7 and it.text == "s_cbranch_scc1 L_switch": d += switch_block()
        d += TS(4)
        d += g2_pass0()
        d.append(I("s_mov_b32 s63, 8"))
        for p in range(1, 9):
            for g in range(4): d += g2_group(p, g)
        d += final()
        return d
    d1, d0 = dyn(True), dyn(False)
    r1, r0 = resolve(d1), resolve(d0)
    mn = lambda a, b: a if b is None else (b if a is None else min(a, b))
    res = {k: (mn(r1[k][0], r0[k][0]), mn(r1[k][1], r0[k][1])) for k in r1}
    txt = lambda l: [wait_text(res, it.site) if it.kind == "wait" else it.text for it in l]
    for d in (d1, d0):
        check_lds(d, res); check_hazards(txt(d)); check_scc(txt(d))
    st = prologue()
    for it in ab_pass(True):
        if it.text == "@SETUP2": st += setup2()
        else: st.append(it)
    st += TS(3)
    st += g1_group(0, 0, True) + g1_group(0, 1, True) + [I("s_branch L_g1mid"), I(".p2align 6"), I("L_g1:")]
    st += g1_group(1, 0, False) + g1_group(1, 1, False) + [I("L_g1mid:")]
    for g in range(2, 6): st += g1_group(1, g, False)
    st.append(I("s_cbranch_scc1 L_g1"))
    st += TS(4)
    st += g2_pass0() + [I("s_mov_b32 s63, 8"), I("L_g2:")]
    for g in range(4): st += g2_group(1, g)
    st.append(I("s_cbranch_scc1 L_g2"))
    st += final() + ts_dump() + [I("s_endpgm")] + switch_block()
    fn = fnet_code(sys.modules[__name__])
    check_hazards([it.text for it in fn]); check_scc([it.text for it in fn])
    st += fn + ts_dump(1) + [I("L_end:"), I("s_endpgm")]
    head = open("gated_mix__spectral_fnet__dense_activation_relu__prompt.s.ref").read().split("; Override launch")[0]
    out = head + "; @launch grid=(256,1,1) block=(256,1,1) lds=163840\n"
    out += f'.amdgcn_target "amdgcn-amd-amdhsa--gfx950"\n.text\n.globl {NAME}\n.p2align 8\n.type {NAME},@function\n{NAME}:\n'
    out += "\n".join(("" if (x.endswith(":") or x.startswith(".")) else "    ") + x for x in txt(st)) + "\n"
    out += f""".section .rodata,"a"
.p2align 6
.amdhsa_kernel {NAME}
  .amdhsa_next_free_vgpr 512
  .amdhsa_next_free_sgpr 102
  .amdhsa_accum_offset 256
  .amdhsa_group_segment_fixed_size 0
  .amdhsa_kernarg_size 96
  .amdhsa_user_sgpr_count 2
  .amdhsa_user_sgpr_kernarg_segment_ptr 1
  .amdhsa_system_sgpr_workgroup_id_x 1
.end_amdhsa_kernel
"""
    return out, res

if __name__ == "__main__":
    sys.modules["gen"] = sys.modules[__name__]
    outp = sys.argv[1]
    for a in sys.argv[2:]:
        k, v = a.split("="); setattr(cfg, k, int(v))
    out, res = build()
    open(outp, "w").write(out)
    print(res)
```

```python
import re
class Item:
    __slots__ = ("text", "kind", "tag", "need_vm", "need_lg", "site", "rd", "wr", "emit")
    def __init__(s, text, kind="other", tag=None, need_vm=None, need_lg=None, site=None, rd=None, wr=None):
        s.text = text; s.kind = kind; s.tag = tag; s.need_vm = need_vm; s.need_lg = need_lg; s.site = site
        s.rd = rd; s.wr = wr
def I(text): return Item(text)
def VM(text, tag, wr=None): return Item(text, "vm", tag, wr=wr)
def LG(text, tag, rd=None, wr=None): return Item(text, "lg", tag, rd=rd, wr=wr)
def WAIT(site, vm=None, lg=None): return Item(None, "wait", None, vm, lg, site)
def BAR(): return Item("s_barrier", "bar")

def resolve(dyn):
    vm = []; lg = []; pos_vm = {}; pos_lg = {}; res = {}
    for it in dyn:
        if it.kind == "vm": pos_vm[it.tag] = len(vm); vm.append(it.tag)
        elif it.kind == "lg": pos_lg[it.tag] = len(lg); lg.append(it.tag)
        elif it.kind == "wait":
            a = b = None
            if it.need_vm == "all": a = 0
            elif it.need_vm:
                ps = [pos_vm[t] for t in it.need_vm]; a = len(vm) - 1 - max(ps)
            if it.need_lg == "all": b = 0
            elif it.need_lg:
                ps = [pos_lg[t] for t in it.need_lg]; b = len(lg) - 1 - max(ps)
            o = res.get(it.site, (None, None))
            a = a if o[0] is None else (o[0] if a is None else min(a, o[0]))
            b = b if o[1] is None else (o[1] if b is None else min(b, o[1]))
            res[it.site] = (a, b)
    return res
def wait_text(res, site):
    a, b = res[site]
    parts = []
    if a is not None: parts.append(f"vmcnt({min(a, 63)})")
    if b is not None: parts.append(f"lgkmcnt({min(b, 15)})")
    return "s_waitcnt " + " ".join(parts) if parts else "s_nop 0"

def check_lds(dyn, res):
    nvm = nlg = 0; done_vm = done_lg = 0; pub_vm = pub_lg = 0
    writes = []; reads = []
    for k, it in enumerate(dyn):
        if it.kind in ("vm", "lg"):
            idx = nvm if it.kind == "vm" else nlg
            if it.rd:
                for (rng, kind, i, tag) in writes:
                    if rng[0] < it.rd[1] and it.rd[0] < rng[1]:
                        priv = isinstance(tag, tuple) and tag[0] == "WAB"
                        lim = (done_vm if priv else pub_vm) if kind == "vm" else pub_lg
                        assert i < lim, f"RAW LDS race: read {it.tag} {it.rd} vs write {tag} {rng}"
                reads.append((it.rd, idx, it.tag))
            if it.wr:
                for (rng, i, tag) in reads:
                    if rng[0] < it.wr[1] and it.wr[0] < rng[1]:
                        assert i < pub_lg, f"WAR LDS race: write {it.tag} {it.wr} vs read {tag} {rng}"
                reads = [r for r in reads if not (it.wr[0] <= r[0][0] and r[0][1] <= it.wr[1])]
                writes = [w for w in writes if not (it.wr[0] <= w[0][0] and w[0][1] <= it.wr[1] and (w[2] < (pub_vm if w[1] == "vm" else pub_lg)))]
                writes.append((it.wr, it.kind, idx, it.tag))
            if it.kind == "vm": nvm += 1
            else: nlg += 1
        elif it.kind == "wait":
            a, b = res[it.site]
            if a is not None: done_vm = max(done_vm, nvm - min(a, 63))
            if b is not None: done_lg = max(done_lg, nlg - min(b, 15))
        elif it.kind == "bar":
            pub_vm = done_vm; pub_lg = done_lg

_reg = re.compile(r"^(-?)(abs\()?([vas])(?:\[(\d+):(\d+)\]|(\d+))\)?$")
def regs(op):
    op = op.strip()
    if op == "vcc": return {"s106", "s107"}
    if op == "m0": return {"m0"}
    if op == "exec": return {"exec"}
    m = _reg.match(op)
    if not m: return set()
    if m.group(6) is not None: return {m.group(3) + m.group(6)}
    return {m.group(3) + str(i) for i in range(int(m.group(4)), int(m.group(5)) + 1)}
def parse(text):
    t = text.split(";")[0].strip()
    if not t or t.endswith(":") or t.startswith("."): return None
    sp = t.split(None, 1); op = sp[0]; rest = sp[1] if len(sp) > 1 else ""
    ops = [o.strip().split(" ")[0] for o in rest.split(",")] if rest else []
    U = lambda l: set().union(*[regs(o) for o in l]) if l else set()
    if op.startswith("v_mfma"): return ("mfma", regs(ops[0]), U(ops[1:3]), regs(ops[3]))
    if op.startswith("buffer_load") or op.startswith("global_load"):
        if rest.rstrip().endswith(" lds"): return ("dma", set(), U(ops) | {"m0"}, set())
        return ("vmem", regs(ops[0]), U(ops[1:]), set())
    if op.startswith("buffer_store"): return ("vst3" if ("x4" in op or "x3" in op) else "vst", set(), U(ops), regs(ops[0]))
    if op.startswith("buffer_"): return ("vmem", set(), set(), set())
    if op.startswith("ds_read"): return ("ds", regs(ops[0]), U(ops[1:]), set())
    if op.startswith("ds_"): return ("ds", set(), U(ops), set())
    if op.startswith("v_"):
        cls = "valu"
        if "_dpp" in op: cls = "dpp"
        if op.startswith("v_permlane"): return ("perml", U(ops), U(ops), set())
        if op.startswith("v_readfirstlane") or op.startswith("v_readlane"): cls = "rfl"
        if re.match(r"v_(exp|log|rcp|rsq|sqrt|sin|cos)_", op): cls = "trans"
        d = regs(ops[0]); s = U(ops[1:])
        if op.startswith("v_fmac") or op.startswith("v_dot2c") or "_dpp" in op: s |= d
        if op.startswith("v_cndmask") and len(ops) == 3: s |= regs("vcc")
        return (cls, d, s, set())
    if op == "s_nop": return ("nop", set(), set(), int(ops[0]) + 1)
    if op.startswith("s_"):
        if op.startswith(("s_cmp", "s_cbranch", "s_branch", "s_waitcnt", "s_barrier", "s_endpgm", "s_sleep", "s_setprio")): return ("salu", set(), U(ops), set())
        d = regs(ops[0]) if ops else set()
        if "saveexec" in op: d |= {"exec"}
        return ("salu", d, U(ops[1:]), set())
    raise ValueError("cannot parse " + text)
VAL = ("valu", "dpp", "perml", "rfl", "trans")
def check_hazards(lines):
    hist = []
    for text in lines:
        p = parse(text)
        if p is None: continue
        cls, d, s, c = p
        if cls == "nop":
            hist.append(("nop", set(), set(), set(), text, c)); continue
        dist = 0
        for (pc, pd, ps, pcc, pt, st) in reversed(hist[-24:]):
            need = 0
            if pc == "mfma":
                if cls == "mfma":
                    if pd & s: need = 8
                    elif (pd & c) and pd != c: need = 6
                elif cls in VAL:
                    if pd & (s | d): need = 8
                    elif pcc & d: need = 3
                elif cls in ("vmem", "vst", "vst3", "ds", "dma") and pd & (s | d): need = 8
            if pc in VAL:
                vd = {x for x in pd if x[0] in "va"}; sd = {x for x in pd if x[0] == "s"}
                if cls == "mfma" and vd & (s | c): need = max(need, 2)
                if cls in ("dpp", "perml") and vd & s: need = max(need, 2)
                if cls == "rfl" and vd & s: need = max(need, 1)
                if pc == "trans" and cls in VAL and cls != "trans" and vd & s: need = max(need, 1)
                if sd & s:
                    if cls in ("vmem", "vst", "vst3", "dma"): need = max(need, 5)
                    elif cls in VAL: need = max(need, 2)
            if pc == "salu" and "m0" in pd and cls == "dma": need = max(need, 1)
            if pc == "vst3" and pcc & d: need = max(need, 2)
            assert dist >= need, f"hazard: '{pt}' -> '{text}' dist {dist} need {need}"
            dist += st
        hist.append((cls, d, s, c, text, 1))

_NOSCC = ("s_mov", "s_movk", "s_mul_i32", "s_mul_hi", "s_cselect", "s_cbranch", "s_branch", "s_waitcnt", "s_barrier", "s_nop", "s_load", "s_mem", "s_getreg", "s_endpgm", "s_sleep", "s_setprio")
def check_scc(lines):
    last = None
    for t in lines:
        op = t.split()[0]
        if not op.startswith("s_"): continue
        if op.startswith(("s_cselect", "s_cbranch_scc")):
            assert last is not None and last.startswith(("s_cmp", "s_bitcmp")), f"SCC consumer '{t}' after '{last}'"
        if not op.startswith(_NOSCC): last = t

def check_loads(lines):
    q = {"vm": [], "lg": []}
    for t in lines:
        p = parse(t)
        if p is None: continue
        cls, d, s, c = p
        if cls == "nop": continue
        if t.startswith("s_waitcnt"):
            m = re.search(r"vmcnt\((\d+)\)", t)
            if m: n = int(m.group(1)); q["vm"] = q["vm"][len(q["vm"]) - n:] if n < len(q["vm"]) else q["vm"]
            if m and int(m.group(1)) == 0: q["vm"] = []
            m = re.search(r"lgkmcnt\((\d+)\)", t)
            if m: n = int(m.group(1)); q["lg"] = q["lg"][len(q["lg"]) - n:] if n < len(q["lg"]) else q["lg"]
            if m and int(m.group(1)) == 0: q["lg"] = []
            continue
        use = (d | s | c) - ({'v135', 'v254'} if t.startswith(('buffer_load_dword ', 'global_load_dword ')) else set())
        for k in q:
            for (dd, tt) in q[k]:
                assert not (dd & use), f"use before wait: '{tt}' -> '{t}'"
        if cls == "ds": q["lg"].append((d, t))
        elif cls in ("vmem", "vst", "vst3", "dma"): q["vm"].append((d, t))
```

```python
from asmlib import *
def fnet_code(g):
    T, TS, srd = g.T, g.TS, g.srd
    V_L, V_C, V_Q, OOB = g.V_L, g.V_C, g.V_Q, g.OOB
    MF = lambda d, a, b, c: I(f"v_mfma_f32_16x16x32_bf16 {d}, {a}, {b}, {c}")
    o = T(f"""
    L_spare:
    s_sub_u32 s62, s62, s63
    s_mul_i32 s64, s61, 11
    s_mul_i32 s65, s60, 3
    s_add_u32 s64, s64, s65
    s_add_u32 s64, s64, s62
    s_cmp_ge_u32 s64, 20
    s_cbranch_scc1 L_end
    s_cmp_ge_u32 s64, 10
    s_cselect_b32 s4, 1, 0
    s_cselect_b32 s65, 10, 0
    s_sub_u32 s65, s64, s65
    s_cmp_ge_u32 s65, 5
    s_cselect_b32 s5, 1, 0
    s_cselect_b32 s66, 5, 0
    s_sub_u32 s6, s65, s66
    s_waitcnt lgkmcnt(0)
    s_load_dword s7, s[58:59], 0
    """)
    o += srd(16, 58, g.WS_SIZE) + srd(20, 36, 2359296) + srd(24, 52, 1152)
    o += gate_code(g) + gate_finish(g)
    o += T(f"""
    s_lshl_b32 s66, s5, 7
    s_lshl_b32 s67, s3, 5
    s_add_u32 s66, s66, s67
    s_lshl_b32 s66, s66, 1
    s_add_u32 s66, s66, s4
    v_lshl_add_u32 v4, v{V_C}, 1, s66
    v_cmp_eq_u32 vcc, 0, v4
    v_mov_b32 v5, 512
    v_add_u32 v6, 32, v4
    v_cndmask_b32 v5, v4, v5, vcc
    v_cvt_f32_u32 v10, v4
    v_cvt_f32_u32 v11, v6
    v_cvt_f32_u32 v12, v5
    v_lshlrev_b32 v7, 4, v{V_Q}
    v_cvt_f32_u32 v7, v7
    v_mul_f32 v10, 0xba000000, v10
    v_mul_f32 v11, 0xba000000, v11
    v_mul_f32 v12, 0xba000000, v12
    s_mul_i32 s70, s4, 0xffff
    v_mov_b32 v8, s70
    v_cmp_eq_u32 vcc, 0, v{V_Q}
    v_and_b32 v9, 1, v{V_C}
    v_lshlrev_b32 v9, 15, v9
    v_cndmask_b32 v8, 0, v8, vcc
    v_xor_b32 v9, 0xbf80, v9
    v_mul_f32 v16, v7, v11
    v_mul_f32 v17, 0x42400000, v11
    s_mov_b32 s63, 0
    L_trig:
    """)
    o += T("""
    s_cmp_eq_u32 s63, 0
    s_cselect_b64 vcc, -1, 0
    v_cndmask_b32 v19, v12, v11, vcc
    v_mul_f32 v18, v7, v19
    v_mul_f32 v20, 0x42400000, v19
    """)
    for j in range(8):
        for i in range(4):
            for e in range(4):
                o += T(f"v_cos_f32 v{24+e}, v16\nv_sin_f32 v{28+e}, v18\nv_add_f32 v16, v16, v11\nv_add_f32 v18, v18, v19")
            c0 = 120 + j * 8; s0 = 120 + (8 + j) * 8
            o += T(f"""
            v_cvt_pk_bf16_f32 v{c0+i}, v24, v26
            v_cvt_pk_bf16_f32 v{c0+4+i}, v25, v27
            v_cvt_pk_bf16_f32 v{s0+i}, v28, v30
            v_cvt_pk_bf16_f32 v{s0+4+i}, v29, v31
            """)
        o += T("v_add_f32 v16, v16, v17\nv_add_f32 v18, v18, v20")
    o += T("""
    v_bfi_b32 v184, v8, v9, v184
    s_cmp_eq_u32 s63, 1
    s_cbranch_scc1 L_trigdone
    """)
    for i in range(128): o.append(I(f"v_accvgpr_write_b32 a{i}, v{120+i}"))
    o += T("""
    v_mov_b32 v11, v10
    v_mul_f32 v16, v7, v10
    v_mul_f32 v17, 0x42400000, v10
    s_mov_b32 s63, 1
    s_branch L_trig
    L_trigdone:
    """)
    o += T(f"""
    v_lshrrev_b32 v4, 3, v{V_L}
    s_lshl_b32 s70, s3, 4
    v_add_u32 v4, s70, v4
    v_and_b32 v5, 1, v{V_Q}
    v_lshlrev_b32 v5, 1, v5
    v_and_b32 v6, 7, v{V_L}
    v_xor_b32 v5, v5, v6
    v_lshlrev_b32 v5, 4, v5
    v_xor_b32 v6, 64, v5
    s_mul_i32 s70, s4, 5
    s_add_u32 s70, s70, s6
    s_lshl_b32 s70, s70, 17
    s_add_u32 s70, s70, {g.WS_ABF}
    s_cmp_eq_u32 s6, 4
    s_cselect_b32 s71, {4*131072 - 65536 + 64}, 0
    v_lshl_add_u32 v13, v4, 7, v5
    v_lshl_add_u32 v14, v4, 7, v6
    v_add_u32 v13, s70, v13
    v_add_u32 v14, s70, v14
    v_cmp_lt_u32 vcc, 63, v5
    v_subrev_u32 v7, s71, v13
    v_subrev_u32 v16, s71, v14
    v_cndmask_b32 v13, v13, v7, vcc
    v_cndmask_b32 v14, v16, v14, vcc
    v_bfe_u32 v4, v{V_L}, 2, 2
    v_and_b32 v5, 3, v{V_L}
    v_and_b32 v6, 1, v{V_Q}
    v_lshlrev_b32 v6, 1, v6
    v_lshrrev_b32 v7, 1, v4
    v_add_u32 v6, v6, v7
    v_lshlrev_b32 v6, 5, v6
    v_lshl_add_u32 v6, v{V_Q}, 10, v6
    v_lshl_add_u32 v6, v4, 7, v6
    v_lshl_add_u32 v15, v5, 3, v6
    s_lshl_b32 s72, s6, 6
    v_add_u32 v116, s72, v{V_C}
    v_lshl_add_u32 v4, v{V_Q}, 3, s66
    s_movk_i32 s70, 2560
    v_lshlrev_b32 v5, 3, v116
    v_mad_u32_u24 v117, v4, s70, v5
    v_add_u32 v117, {g.WS_YT}, v117
    v_cmp_eq_u32 s[76:77], 0, v4
    v_add_u32 v5, {512*2560}, v117
    v_mov_b32 v6, {OOB}
    v_cndmask_b32 v118, v6, v5, s[76:77]
    v_cmp_eq_u32 vcc, 0, v{V_C}
    v_mov_b32 v5, 0xbf803f80
    s_mul_i32 s73, s4, 0x80008000
    v_cndmask_b32 v60, 0, v5, vcc
    s_sub_u32 s74, s4, 1
    v_mov_b32 v61, v60
    v_mov_b32 v62, v60
    v_mov_b32 v63, v60
    s_lshl_b32 s70, s6, 1
    s_add_u32 s71, s70, 1
    s_cmp_eq_u32 s71, 9
    s_cselect_b32 s71, 0, s71
    s_bitcmp1_b32 s3, 1
    s_cselect_b32 s70, s71, s70
    s_mul_i32 s70, s70, 416
    s_and_b32 s71, s3, 1
    s_mul_i32 s71, s71, 208
    s_add_u32 s70, s70, s71
    s_add_u32 s70, s70, {g.WS_ABFLAG}
    v_lshlrev_b32 v5, 2, v{V_L}
    v_add_u32 v119, s70, v5
    s_lshl_b32 s60, s3, 11
    s_waitcnt vmcnt(0) lgkmcnt(0)
    s_add_u32 s7, s7, 0x9e3779b9
    """)
    A = lambda tl, mat, sp, j: (f"a[{(mat*8+j)*8+4*sp}:{(mat*8+j)*8+4*sp+3}]" if tl else f"v[{120+(mat*8+j)*8+4*sp}:{120+(mat*8+j)*8+4*sp+3}]")
    o += TS(1) + g.poll("L_pollAB", 119, 52) + T("s_barrier") + TS(2)
    for P in range(16):
        o += T(f"""
        s_add_u32 m0, s60, {P*8192}
        s_mov_b32 s61, {P*8192}
        buffer_load_dwordx4 v13, s[16:19], s61 offen sc1 lds
        buffer_load_dwordx4 v14, s[16:19], s61 offen offset:1024 sc1 lds
        """)
    for ct in range(4):
        o += T(f"""
        v_add_u32 v4, {16*ct}, v116
        v_cmp_eq_u32 vcc, 288, v4
        v_mov_b32 v5, 512
        s_mov_b32 s61, {g.WS_XS}
        v_cndmask_b32 v4, v4, v5, vcc
        v_lshlrev_b32 v4, 1, v4
        buffer_load_ushort v{248+ct}, v4, s[16:19], s61 offen sc1
        """)
    o += T("s_waitcnt vmcnt(0)\ns_barrier") + TS(3)
    for ct in range(4): o += T(f"v_lshlrev_b32 v{248+ct}, 16, v{248+ct}\nv_and_b32 v{248+ct}, s74, v{248+ct}")
    AC = lambda tl, gr: f"v[{64+(tl*4+gr)*4}:{67+(tl*4+gr)*4}]"
    o += T(f"""
    s_mov_b32 s63, 0
    L_ct:
    s_lshl_b32 s70, s63, 5
    v_xor_b32 v16, s70, v15
    v_add_u32 v17, 0x10000, v16
    v_xor_b32 v18, 0x80000000, v248
    """)
    def rd(ks):
        b = 100 + 4 * (ks % 4); off = ks * 4096; vr = 16
        if off >= 65536: off -= 65536; vr = 17
        return [I(f"ds_read_b64_tr_b16 v[{b}:{b+1}], v{vr} offset:{off}"), I(f"ds_read_b64_tr_b16 v[{b+2}:{b+3}], v{vr} offset:{off+512}")]
    o += rd(0) + rd(1) + rd(2)
    for tl in range(2):
        for r in range(4): o.append(I(f"v_mov_b32 v{64+tl*16+r}, v{18 if r & 1 else 248}"))
    for r in range(4): o.append(I(f"v_mov_b32 v{96+r}, v248"))
    for ks in range(32):
        gr, j = ks // 8, ks % 8; b = 100 + 4 * (ks % 4); B = f"v[{b}:{b+3}]"
        o.append(I(f"s_waitcnt lgkmcnt({min(4, 2*(31-ks))})"))
        nx = rd(ks + 3) if ks + 3 < 32 else [None, None]
        for tl in range(2):
            o.append(MF(AC(tl, gr), A(tl, gr >> 1, gr & 1, j), B, AC(tl, gr) if (j or gr == 0) else "0"))
            if nx[tl]: o.append(nx[tl])
        if gr == 0: o.append(MF("v[96:99]", "v[60:63]", B, "v[96:99]"))
    o += T(f"""
    v_cmp_eq_u32 vcc, 0, v116
    v_mov_b32 v4, 288
    v_cmp_eq_u32 s[80:81], v4, v116
    v_mov_b32 v248, v249
    v_mov_b32 v249, v250
    v_mov_b32 v250, v251
    s_or_b64 vcc, vcc, s[80:81]
    s_nop 1
    """)
    for tl in range(2):
        for r in range(4):
            pe, po, qe, qo = (64 + (tl * 4 + k) * 4 + r for k in range(4))
            d = 32 + 2 * (tl * 4 + r)
            o += T(f"""
            v_cndmask_b32 v{qe}, v{qe}, 0, vcc
            v_cndmask_b32 v{qo}, v{qo}, 0, vcc
            v_add_f32 v20, v{pe}, v{po}
            v_sub_f32 v21, v{pe}, v{po}
            v_add_f32 v22, v{qe}, v{qo}
            v_sub_f32 v23, v{qo}, v{qe}
            v_sub_f32 v24, v20, v22
            v_add_f32 v25, v21, v23
            v_sub_f32 v26, v21, v23
            v_add_f32 v27, v20, v22
            """)
            if tl == 0 and r == 0:
                o += T(f"""
                v_sub_f32 v28, v96, v{qo}
                v_add_f32 v29, v96, v{qo}
                v_cndmask_b32 v24, v24, v20, s[76:77]
                v_cndmask_b32 v25, v25, v21, s[76:77]
                v_cndmask_b32 v26, v26, v28, s[76:77]
                v_cndmask_b32 v27, v27, v29, s[76:77]
                v_cvt_pk_bf16_f32 v30, v26, v27
                v_cvt_pk_bf16_f32 v31, v25, v24
                buffer_store_dwordx2 v[30:31], v118, s[16:19], 0 offen sc1
                """)
            o += T(f"""
            v_cvt_pk_bf16_f32 v{d}, v24, v25
            v_cvt_pk_bf16_f32 v{d+1}, v26, v27
            s_mov_b32 s70, {tl*81920 + r*5120}
            v_xor_b32 v{d}, s73, v{d}
            v_xor_b32 v{d+1}, s73, v{d+1}
            buffer_store_dwordx2 v[{d}:{d+1}], v117, s[16:19], s70 offen sc1
            """)
    o += T(f"""
    v_add_u32 v116, 16, v116
    v_add_u32 v117, 128, v117
    v_add_u32 v118, 128, v118
    s_add_u32 s63, s63, 1
    s_cmp_lt_u32 s63, 4
    s_cbranch_scc1 L_ct
    """) + TS(4)
    o += T(f"""
    s_waitcnt vmcnt(0)
    s_barrier
    s_lshl_b32 s70, s64, 2
    s_add_u32 s70, s70, {g.WS_YFLAG}
    v_cmp_eq_u32 vcc, 0, v0
    v_mov_b32 v4, {OOB}
    v_mov_b32 v5, s7
    v_cndmask_b32 v4, v4, 0, vcc
    buffer_store_dword v5, v4, s[16:19], s70 offen sc1
    """) + TS(5) + TS(6) + TS(7)
    return o

def gate_code(g):
    T = g.T; V_L, OOB = g.V_L, g.OOB
    o = T(f"""
    v_and_b32 v4, 7, v{V_L}
    v_lshlrev_b32 v32, 4, v4
    v_bfe_u32 v33, v{V_L}, 3, 2
    v_lshrrev_b32 v34, 5, v{V_L}
    s_lshl_b32 s70, s64, 2
    s_add_u32 s70, s70, s3
    s_lshl_b32 s70, s70, 1
    v_add_u32 v34, s70, v34
    s_movk_i32 s67, 1152
    v_mov_b32 v35, {OOB}
    """)
    for j in range(9): o.append(I(f"buffer_load_dwordx4 v[{64+4*j}:{67+4*j}], v32, s[24:27], 0 offen offset:{128*j}"))
    for it in range(4):
        o += g.rowcalc(34, 33, 36, 37) + T(f"""
        v_cmp_gt_u32 vcc, 512, v34
        v_mad_u32_u24 v36, v36, s67, v32
        v_lshl_add_u32 v37, v34, 2, v33
        v_cndmask_b32 v36, v35, v36, vcc
        v_lshlrev_b32 v37, 2, v37
        v_cndmask_b32 v{40+it}, v35, v37, vcc
        v_add_u32 v34, 160, v34
        """)
        for j in range(9): o.append(I(f"buffer_load_dwordx4 v[{104+36*it+4*j}:{107+36*it+4*j}], v36, s[20:23], 0 offen offset:{128*j}"))
    return o
def gate_finish(g):
    T = g.T; V_L, OOB = g.V_L, g.OOB
    o = T("s_waitcnt vmcnt(0)")
    for it in range(4): o.append(I(f"v_mov_b32 v{44+it}, 0"))
    for k in range(36):
        for it in range(4): o.append(I(f"v_dot2_f32_bf16 v{44+it}, v{104+36*it+k}, v{64+k}, v{44+it}"))
    o.append(I("s_nop 2"))
    for perm in ("quad_perm:[1,0,3,2]", "quad_perm:[2,3,0,1]", "row_half_mirror"):
        for it in range(4): o.append(I(f"v_add_f32_dpp v{44+it}, v{44+it}, v{44+it} {perm} row_mask:0xf bank_mask:0xf"))
    for it in range(4): o.append(I(f"v_mul_f32 v{44+it}, 0xbfb8aa3b, v{44+it}"))
    for it in range(4): o.append(I(f"v_exp_f32 v{44+it}, v{44+it}"))
    for it in range(4): o.append(I(f"v_add_f32 v{44+it}, 1.0, v{44+it}"))
    for it in range(4): o.append(I(f"v_rcp_f32 v{44+it}, v{44+it}"))
    o += T(f"""
    v_cmp_eq_u32 vcc, 0, v32
    s_mov_b32 s70, {g.WS_GT}
    s_nop 0
    """)
    for it in range(4): o.append(I(f"v_cndmask_b32 v{40+it}, v35, v{40+it}, vcc"))
    for it in range(4): o.append(I(f"buffer_store_dword v{44+it}, v{40+it}, s[16:19], s70 offen sc1"))
    return o
```

```python
import sys
from asmlib import *
NAME = "gated_mix__spectral_fnet__dense_activation_relu__prompt_kernel"
WS_PF, WS_ABFLAG, WS_YFLAG, WS_GT, WS_XS = 0x20000, 0x9000, 0xA000, 0x10000, 0x13000
WS_ABF, WS_YT, WS_PART, WS_TS, WS_SIZE = 0x100000, 0x280000, 0x400000, 0x2000000, 0x3000000
OOB = 0x40000000
XB, HB = 71680, 81920
SPIN = 1 << 20

class Cfg:
    ts = False
    L2 = 12
    rot1 = True
    chain = 0
    strip = 0
    stspread = 1
    fake = 0
cfg = Cfg()

ACC = lambda t: f"v[{16+4*t}:{19+4*t}]"
EE = lambda t: f"v[{36+4*t}:{39+4*t}]"
E0 = 36
FB = lambda b: 56 + 4 * b
PK = 88
def act(i):
    return f"a[{4*i}:{4*i+3}]" if i < 64 else f"v[{152+4*(i-64)}:{155+4*(i-64)}]"
V_A, V_B = 10, 11
V_W2A, V_W2B = 12, 13
V_TR, V_TR2 = 14, 15
V_XO = 100
V_ABA, V_ABB = 105, 106
V_XR0, V_XR1 = 107, 108
V_WR0, V_WR1 = 109, 110
V_PATCH = 111
V_HW = 112
V_HR, V_HR2 = 113, 114
V_SIG, V_SIG0, V_SIGT0, V_SIG0T0, V_TAU = 115, 116, 117, 118, 119
V_ABS, V_ABS0 = 120, 121
V_ABFL = 122
V_TAG = 123
V_P16, V_P8 = 124, 125
V_FL = 126
V_POLL = 127
V_L, V_C, V_Q = 1, 2, 3

def mfma(d, a, b, c): return I(f"v_mfma_f32_16x16x32_bf16 {d}, {a}, {b}, {c}")
def place(ms, side):
    gaps = [[] for _ in ms]
    for g, it in side:
        gaps[g] += it if isinstance(it, list) else [it]
    out = []
    for m, g in zip(ms, gaps):
        out.append(m); out += g
    return out
def spread(items, gaps):
    n = len(items); k = len(gaps)
    return [(gaps[i * k // n], it) for i, it in enumerate(items)]

tsn = [0]
def TS(k):
    if not cfg.ts: return []
    return [I(f"{'s_memtime' if cfg.ts == 2 else 's_memrealtime'} s[{84+2*k}:{85+2*k}]")]

def wslot(ph, p, s):
    if ph == 2: return ((p & 1) * 16 + s) * 4096
    return s * 4096
def wdma(ph, p, s):
    P, b = s >> 1, s & 1
    pre = []
    if b == 0:
        pre.append(I(f"s_add_u32 m0, s60, {P*8192}"))
        pre.append(I(f"s_add_u32 s61, s62, " + (f"s{64+P}" if ph == 2 else f"{P*64*9216}")))
    lo = wslot(ph, p, 2 * P)
    v, sr = (V_W2A, "s[28:31]") if ph == 2 else (V_A, "s[8:11]")
    return pre, VM(f"buffer_load_dwordx4 v{v+b}, {sr}, s61 offen offset:{1024*b} lds", ("W", ph, p, s), wr=(lo, lo + 8192))
def cover(ph, p, lo, hi): return [("W", ph, p, s) for s in range(lo, hi)]
def nf(ph): return 8 if ph == 2 else 6
def trr(ph, p, s):
    b = FB(s % nf(ph)); o = s * 4096; vr = V_TR
    if o >= 65536: o -= 65536; vr = V_TR2
    lo = wslot(ph, p, s)
    return [LG(f"ds_read_b64_tr_b16 v[{b+2*h}:{b+2*h+1}], v{vr} offset:{o+512*h}", ("R", ph, p, s, h), rd=(lo, lo + 4096)) for h in range(2)]
def group_mfmas(ph, steps, last):
    ms = []
    order = [(t, s) for t in range(5) for s in steps] if cfg.chain else [(t, s) for s in steps for t in range(5)]
    for t, s in order:
        if True:
            d = EE(t) if s == last else ACC(t)
            c = "0" if s == 0 else ACC(t)
            b = FB(s % nf(ph)); w = f"v[{b}:{b+3}]"
            ms.append(mfma(d, act(s * 5 + t), w, c) if ph == 2 else mfma(d, w, act(s * 5 + t), c))
    return ms

def xdma(n):
    return [I(f"s_add_u32 m0, s82, {n*4096}"), I(f"s_movk_i32 s61, {256*(n//5)}") if n % 5 == 0 else I("s_nop 0"),
            VM(f"buffer_load_dwordx4 v{V_XO+n%5}, s[12:15], s61 offen lds", ("X", n), wr=(XB + (n // 5) * 20480, min(XB + (n // 5 + 1) * 20480, 163840)))]
def abdma(P):
    lo = P * 8192
    return [I(f"s_add_u32 m0, s60, {lo}"), I(f"s_movk_i32 s83, {128*P}"),
            VM(f"buffer_load_dwordx4 v{V_ABA}, s[20:23], s83 offen lds", ("WAB", P, 0), wr=(lo, lo + 8192)),
            VM(f"buffer_load_dwordx4 v{V_ABB}, s[20:23], s83 offen offset:1024 lds", ("WAB", P, 1), wr=(lo, lo + 8192))]
def abreads(P):
    out = []
    if P == 4: out += [I(f"v_add_u32 v{V_XR0}, 40960, v{V_XR0}"), I(f"v_add_u32 v{V_XR1}, 40960, v{V_XR1}"),
                       I(f"v_add_u32 v{V_WR0}, 32768, v{V_WR0}"), I(f"v_add_u32 v{V_WR1}, 32768, v{V_WR1}")]
    Pp = P - 4 if P >= 4 else P
    for h in range(2):
        s = 2 * P + h; b = FB(s % 6)
        out.append(LG(f"ds_read_b128 v[{b}:{b+3}], v{V_WR0+h} offset:{Pp*8192}", ("RAB", s)))
    for t in range(5):
        for h in range(2):
            s = 2 * P + h; lo = XB + (P * 10 + 2 * t) * 1024
            out.append(LG(f"ds_read_b128 {act(s*5+t)}, v{V_XR0+h} offset:{(Pp*10+2*t)*1024}", ("RX", s, t), rd=(lo, lo + 2048)))
    return out
def patch(P):
    return [I(f"v_cndmask_b32 v{FB(s%6)+e}, v{FB(s%6)+e}, v{V_PATCH}, s[76:77]") for s in (2 * P, 2 * P + 1) for e in range(4)]
def xg(g, lastx): return [("X", n) for n in range(5 * g, min(5 * g + 5, lastx + 1))]

def ab_pass(hasx22):
    lastx = 22 if hasx22 else 21
    o = []
    for g in range(3):
        for n in range(5 * g, 5 * g + 5): o += xdma(n)
        o += abdma(2 * g) + abdma(2 * g + 1)
    o.append(Item("@SETUP2", "other"))
    o += TS(1)
    o.append(WAIT("ab_b0", vm=xg(0, lastx) + [("WAB", 0, 1)])); o.append(BAR())
    o += TS(2)
    o += abreads(0)
    o.append(WAIT("ab_r0", lg="all")); o += patch(0); o.append(I("s_nop 1"))
    for g in range(9):
        ms = group_mfmas(0, (2 * g, 2 * g + 1), 17)
        side = []
        if g < 8:
            need = [("WAB", g + 1, 1)]
            if g % 2 == 1:
                side.append((0, [WAIT(f"ab_b{g}", vm=need + xg((g + 1) // 2, lastx)), BAR()]))
            else:
                side.append((0, WAIT(f"ab_w{g}", vm=need)))
            side += spread(abreads(g + 1), [0, 1, 2, 3, 4, 5])
        else:
            side.append((0, [WAIT("ab_b8", vm=cover(1, 0, 0, 6)), BAR()]))
            side += spread(trr(1, 0, 0) + trr(1, 0, 1) + trr(1, 0, 2), [1, 2, 3, 4, 5, 6])
        d = []
        if g == 0:
            for n in range(15, 20): d.append(xdma(n))
            d += [abdma(6), abdma(7)]
        elif g == 1:
            d += [xdma(20), xdma(21)]
            d.append([I("s_cmp_lt_u32 s3, 2"), I("s_cbranch_scc0 L_nox22")] + (xdma(22) if hasx22 else []) + [I("L_nox22:")])
            d.append(abdma(8))
        else:
            sl = {2: range(0, 4), 3: range(4, 8), 4: (8, 9), 5: (10, 11), 6: (12, 13), 7: (14,), 8: ()}[g]
            for s in sl:
                pre, dm = wdma(1, 0, s); dm.wr = None
                d.append(pre + ([I("s_nop 0")] if False else []) + [dm])
        if d: side += spread(d, [2, 3, 4, 5, 6, 7, 8])
        if g < 8:
            side.append((7, WAIT(f"ab_rw{g}", lg=[("RAB", 2 * g + 3)])))
            side += spread(patch(g + 1), [7, 8])
        side.append((9, WAIT(f"ab_r{g+1}", lg="all")))
        o += place(ms, side)
    return o

def ab_epilogue():
    o = []
    for t in range(5):
        r = E0 + 4 * t
        sg = (V_SIG0T0, V_SIGT0) if t == 0 else (V_SIG0, V_SIG)
        for e in range(4): o.append(I(f"v_fmac_f32_dpp v{r+e}, v{r+e}, v{sg[0] if e == 0 else sg[1]} quad_perm:[3,2,1,0] row_mask:0xf bank_mask:0xf"))
        for e in range(4): o.append(I(f"v_fmac_f32_dpp v{r+e}, v{r+e}, v{V_TAU} quad_perm:[1,0,3,2] row_mask:0xf bank_mask:0xf"))
        if t == 0:
            o.append(I(f"v_mov_b32_dpp v{PK+10}, v{r} quad_perm:[0,1,2,1] row_mask:0xf bank_mask:0xf"))
            o.append(I(f"v_cndmask_b32 v{r}, v{r}, v{PK+10}, s[80:81]"))
        o.append(I(f"v_cvt_pk_bf16_f32 v{PK+2*t}, v{r}, v{r+1}"))
        o.append(I(f"v_cvt_pk_bf16_f32 v{PK+2*t+1}, v{r+2}, v{r+3}"))
        so = "s75" if t >= 3 else "0"
        o.append(VM(f"buffer_store_dwordx2 v[{PK+2*t}:{PK+2*t+1}], v{V_ABS0 if t == 0 else V_ABS}, s[16:19], {so} offen offset:{256*t} sc1", ("ABST", t)))
    return o
def h_tile(p, t):
    r = E0 + 4 * t; d = PK + 2 * t
    lo = HB + p * 10240
    return ([I(f"v_cvt_pk_bf16_f32 v{d}, v{r}, v{r+1}"), I(f"v_cvt_pk_bf16_f32 v{d+1}, v{r+2}, v{r+3}")],
            [I(f"v_pk_max_i16 v{d}, v{d}, 0"), I(f"v_pk_max_i16 v{d+1}, v{d+1}, 0")],
            LG(f"ds_write_b64 v{V_HW}, v[{d}:{d+1}] offset:{1024*t}", ("HW", p, t), wr=(lo + (2048 if p < 0 else 0), lo + 10240)))
def p_parts(p):
    cv = [I(f"v_cvt_pk_bf16_f32 v{PK+i}, v{E0+2*i}, v{E0+2*i+1}") for i in range(10)]
    st = [VM(f"buffer_store_dwordx4 v[{PK}:{PK+3}], v{V_P16}, s[16:19], s78 offen sc1", ("PST", p, 0)),
          VM(f"buffer_store_dwordx4 v[{PK+4}:{PK+7}], v{V_P16}, s[16:19], s78 offen offset:1024 sc1", ("PST", p, 1)),
          VM(f"buffer_store_dwordx2 v[{PK+8}:{PK+9}], v{V_P8}, s[16:19], s78 offen offset:2048 sc1", ("PST", p, 2))]
    return [(cv[:4], st[0]), (cv[4:8], st[1]), (cv[8:], st[2])]
def hreads(s):
    o = []
    for t in range(5):
        off = (s * 5 + t) * 1024; vr = V_HR
        if off >= 40960: off -= 40960; vr = V_HR2
        lo = HB + (s * 5 + t) * 1024
        o.append(LG(f"ds_read_b128 {act(s*5+t)}, v{vr} offset:{off}", ("RH", s, t), rd=(lo, lo + 1024)))
    return o
def tags(items): return [it.tag for it in items if it.kind == "lg"]
def cyc_stamp(side, g, g0, gap, v):
    if cfg.ts == 2 and g == g0: side.append((gap, [I("s_memtime s[32:33]")]))
    if cfg.ts == 2 and g == g0 + 1: side.append((gap, [I("s_waitcnt lgkmcnt(0)"), I("v_cmp_eq_u32 vcc, s63, v1"), I("v_mov_b32 v149, s32"), I("s_nop 0"), I(f"v_cndmask_b32 v{v}, v{v}, v149, vcc")]))

def g1_group(p, g):
    kind = "a" if (p == 0 and g < 2) else ("z" if p == 7 else "")
    ms = group_mfmas(1, range(3 * g, 3 * g + 3), 17)
    side = []
    nph, npp = (1, p + 1) if p < 7 else (2, 0)
    if g % 2 == 1:
        need = cover(1, p, 3 * g + 3, 3 * g + 9) if g < 5 else cover(nph, npp, 0, 6)
        if g == 5 and p == 0: need = need + [("ABST", 4)]
        side.append((0, [WAIT(f"g1_b{g}{kind}", vm=need), BAR()]))
    rd = []
    for s in range(3 * g + 3, 3 * g + 6):
        rd += trr(1, p, s) if s < 18 else trr(nph, npp, s - 18)
    side += list(zip([1, 2, 4, 5, 6, 7], rd))
    for k, s in enumerate(range(3 * g + 15, 3 * g + 18)):
        pre, dm = wdma(1, p, s) if s < 18 else wdma(nph, npp, s - 18)
        gp = [3, 8, 13][k]
        if pre: side.append((gp - 2, pre[0])); side.append((gp - 1, pre[1]))
        side.append((gp, dm))
    if g == 0:
        if p < 7:
            side.append((11, [I("s_add_u32 s73, s73, 128"), I("s_and_b32 s73, s73, 0x380")])); side.append((12, I("s_add_u32 s62, s73, s74")))
        else:
            side.append((11, I("s_mov_b32 s62, s72")))
    if g == 5 and p < 7:
        side.append((9, VM(f"buffer_store_dword v{V_TAG}, v{V_ABFL}, s[16:19], 0 offen sc1", ("ABFL", p))))
    if g == 5 and p < 7:
        side.append((10, I(f"v_mov_b32 v{V_ABFL}, {OOB}")))
    hr = []
    if kind == "z" and g >= 1:
        hr = hreads(2 * g - 2) + hreads(2 * g - 1)
        side += list(zip([0 if g % 2 == 0 else 1, 2, 4, 5, 6, 7, 9, 9, 11, 12], hr))
    if kind == "a":
        ep = ab_epilogue()
        allg = [(0, x) for x in range(3, 15)] + [(1, x) for x in range(1, 15)]
        for i, it in enumerate(ep):
            gg, gp = allg[i * len(allg) // len(ep)]
            if gg == g: side.append((gp, it))
    elif g < 5:
        cv, mx, w = h_tile(p - 1, g)
        if kind == "z" and g >= 1:
            side += [(3, cv[0]), (8, cv[1]), (10, mx), (13, w)]
        else:
            side += [(4, cv[0]), (5, cv[1]), (9, mx), (10, w)]
    else:
        side.append((10, I(f"v_add_u32 v{V_HW}, 10240, v{V_HW}")))
    if p < 7: cyc_stamp(side, g, 2, 12, 150)
    if g == 5 and p < 7: side.append((13, [I("s_sub_u32 s63, s63, 1"), I("s_cmp_lg_u32 s63, 0")]))
    side.append((14, WAIT(f"g1_r{g}{kind}", lg=tags(rd))))
    return place(ms, side)

def nextcol():
    return [[I("s_add_u32 s62, s62, 128"), I("s_cmp_eq_u32 s62, 1152"), I("s_cselect_b32 s62, 0, s62")],
            [I("s_cmp_eq_u32 s62, s72"), I(f"s_cselect_b32 s62, {OOB}, s62"), I("s_xor_b32 s60, s60, 0x10000")]]
def g2_pass0():
    o = []
    groups = [(0, 1, 2), (3, 4, 5), (6, 7), (8, 9, 10, 11), (12, 13, 14, 15)]
    cuts = [15, 19, 23, 26, 31, 36]
    hsteps = [(10,), (11, 12), (13,), (14, 15), ()]
    htl = [(0, 1), (2, 3), (4,), (), ()]
    for gi, st in enumerate(groups):
        ms = group_mfmas(2, st, 15); n = len(ms); side = []
        if gi == 1: side.append((0, [WAIT("g20_b1", vm=cover(2, 0, 6, 12)), BAR()]))
        if gi == 3: side.append((0, [WAIT("g20_b3", vm=cover(2, 0, 12, 16), lg=[("HW", 7, 4)]), BAR()]))
        if gi == 4: side.append((0, [WAIT("g20_b4", vm=cover(2, 1, 0, 8)), BAR(), I(f"v_xor_b32 v{V_TR}, 0x10000, v{V_TR}")]))
        dl = list(range(cuts[gi], cuts[gi + 1]))
        dg = [min(n - 1, 2 + (i * (n - 1)) // len(dl)) for i in range(len(dl))]
        for s, gp in zip(dl, dg):
            pre, dm = wdma(2, s // 16, s % 16)
            if s % 16 == 0:
                nc = nextcol(); side.append((gp - 2, nc[0] + nc[1]))
            if pre: side.append((gp - 1, pre))
            side.append((gp, dm))
        free = [x for x in range(1 if gi in (1, 3, 4) else 0, n - 3) if x not in dg]
        rd = []
        for s in (groups[gi + 1] if gi < 4 else range(16, 20)): rd += trr(2, s // 16, s % 16)
        for s in hsteps[gi]: rd += hreads(s)
        side += spread(rd, free)
        for k, t in enumerate(htl[gi]):
            cv, mx, w = h_tile(7, t)
            b = 3 + 4 * k
            side += [(b, cv[0]), (b + 1, cv[1]), (b + 2, mx[0]), (b + 3, mx[1]), (n - 3 + k, w)]
        side.append((n - 1, WAIT(f"g20_r{gi}", lg=tags(rd))))
        o += place(ms, side)
    return o
def g2_group(p, g):
    ms = group_mfmas(2, range(4 * g, 4 * g + 4), 15); side = []
    sp = cfg.stspread
    fp = p - 2 if sp else p - 1
    fg = 1 if sp else 3
    if g in (1, 3):
        need = cover(2, p, 8, 16) if g == 1 else cover(2, p + 1, 0, 8)
        if g == fg and fp >= 0: need = need + [("PST", fp, 2)]
        side.append((0, [WAIT(f"g2_b{g}", vm=need), BAR()] + ([I(f"v_xor_b32 v{V_TR}, 0x10000, v{V_TR}")] if g == 3 else [])))
    if g == fg:
        side.append((16, VM(f"buffer_store_dword v{V_TAG}, v{V_FL}, s[16:19], s79 offen sc1", ("PFL", fp))))
        side.append((17, I("s_add_u32 s79, s79, 4")))
    rd = []
    for s in range(4 * g + 4, 4 * g + 8): rd += trr(2, p + s // 16, s % 16)
    side += list(zip([1, 2, 4, 5, 6, 7, 9, 10], rd))
    for k, s in enumerate(range(4 * g + 20, 4 * g + 24)):
        pre, dm = wdma(2, p + s // 16, s % 16)
        gp = [3, 8, 13, 18][k]
        if pre: side.append((gp - 2, pre[0])); side.append((gp - 1, pre[1]))
        side.append((gp, dm))
    if g == 2:
        nc = nextcol(); side += [(16, nc[0]), (17, nc[1])]
    pp = p_parts(p - 1)
    if sp:
        if g < 3:
            side += list(zip([4, 5, 6, 7], pp[g][0])); side.append((15, pp[g][1]))
    elif g == 0:
        side += list(zip([4, 5, 6, 7, 9, 10, 11, 12, 14, 14], pp[0][0] + pp[1][0] + pp[2][0]))
        side += [(15, pp[0][1]), (16, pp[1][1]), (17, pp[2][1])]
    fk = lambda i: VM(f"buffer_load_dwordx4 v[{128+4*i}:{131+4*i}], v{V_P16}, s[16:19], s34 offen offset:{1024*(i%3)} sc1", ("FK", p, i))
    if cfg.fake == 1 and g < 3: side.append((14, fk(g)))
    if cfg.fake == 2 and g == 0: side += [(11, fk(0)), (12, fk(1)), (14, fk(2))]
    if cfg.fake == 3 and g == 2: side += [(11, fk(0)), (12, fk(1)), (14, fk(2))]
    if cfg.fake and g == 3: side.append((14, I("s_add_u32 s34, s34, 10240")))
    cyc_stamp(side, g, 1, 14, 151)
    if g == 3:
        side.append((14, I("s_add_u32 s78, s78, 10240")))
        side.append((17, [I("s_sub_u32 s63, s63, 1"), I("s_cmp_lg_u32 s63, 0")]))
    side.append((19, WAIT(f"g2_r{g}", lg=tags(rd))))
    return place(ms, side)

def T(s): return [I(x.strip()) for x in s.strip().split("\n") if x.strip()]
def rowcalc(o, rho, d, tmp):
    return T(f"""
    v_cmp_eq_u32 vcc, 0, v{o}
    v_mov_b32 v{tmp}, 512
    v_add_u32 v{tmp+1}, 1, v{rho}
    v_cndmask_b32 v{tmp}, v{o}, v{tmp}, vcc
    v_cmp_lt_u32 vcc, 1, v{rho}
    v_sub_u32 v{tmp}, 0, v{tmp}
    v_lshrrev_b32 v{tmp+1}, 1, v{tmp+1}
    v_cndmask_b32 v{tmp}, v{o}, v{tmp}, vcc
    v_lshl_add_u32 v{d}, v{tmp+1}, 10, v{tmp}
    """)

def srd(b, p, n): return T(f"s_mov_b32 s{b}, s{p}\ns_mov_b32 s{b+1}, s{p+1}\ns_mov_b32 s{b+2}, {n}\ns_mov_b32 s{b+3}, 0x20000")

def prologue():
    o = T(f"""
    s_cmp_ge_u32 s2, 256
    s_cbranch_scc1 L_end
    s_load_dwordx16 s[36:51], s[0:1], 0
    s_load_dwordx8 s[52:59], s[0:1], 64
    """) + TS(0) + T(f"""
    v_lshrrev_b32 v4, 6, v0
    v_and_b32 v{V_L}, 63, v0
    v_readfirstlane_b32 s3, v4
    v_and_b32 v{V_C}, 15, v0
    v_bfe_u32 v{V_Q}, v0, 4, 2
    s_and_b32 s60, s2, 3
    s_bfe_u32 s61, s2, 0x10002
    s_lshr_b32 s62, s2, 3
    s_cmp_eq_u32 s60, 3
    s_cselect_b32 s63, 30, 29
    s_cmp_ge_u32 s62, s63
    s_cbranch_scc1 L_spare
    s_mul_i32 s64, s60, 29
    s_add_u32 s64, s64, s62
    s_mul_i32 s5, s64, 5042
    s_lshr_b32 s5, s5, 16
    s_mul_i32 s65, s5, 13
    s_sub_u32 s64, s64, s65
    s_mul_i32 s4, s61, 13
    s_add_u32 s4, s4, s64
    """)
    o += T(f"""
    v_lshrrev_b32 v4, 3, v{V_L}
    v_and_b32 v5, 3, v4
    v_lshrrev_b32 v6, 5, v{V_L}
    s_mul_i32 s65, s4, 20
    v_add_u32 v6, s65, v6
    s_and_b32 s66, s3, 1
    s_lshl_b32 s66, s66, 2
    v_lshrrev_b32 v7, 4, v{V_L}
    v_add_u32 v7, s66, v7
    v_and_b32 v8, 7, v{V_L}
    v_xor_b32 v7, v7, v8
    v_lshlrev_b32 v7, 4, v7
    s_movk_i32 s67, 1152
    v_mov_b32 v20, {OOB}
    """)
    for n in range(5):
        o += T(f"""
        s_add_u32 s68, s3, {4*n}
        s_cmp_ge_u32 s68, 10
        s_cselect_b32 s69, 10, 0
        s_cselect_b32 s70, 128, 0
        s_sub_u32 s68, s68, s69
        s_lshl_b32 s68, s68, 1
        v_add_u32 v9, s68, v6
        """) + rowcalc(9, 5, 16, 17) + T(f"""
        v_cmp_gt_u32 vcc, 512, v9
        v_mad_u32_u24 v16, v16, s67, v7
        v_add_u32 v16, s70, v16
        v_cndmask_b32 v{V_XO+n}, v20, v16, vcc
        """)
    o += T(f"""
    s_lshl_b32 s68, s5, 5
    s_lshl_b32 s69, s66, 2
    s_add_u32 s68, s68, s69
    v_add_u32 v9, s68, v4
    v_lshrrev_b32 v7, 4, v{V_L}
    v_xor_b32 v7, v7, v8
    v_lshlrev_b32 v7, 4, v7
    v_mad_u32_u24 v{V_ABA}, v9, s67, v7
    v_xor_b32 v7, 64, v7
    v_mad_u32_u24 v{V_ABB}, v9, s67, v7
    v_add_u32 v{V_ABB}, {8*1152-1024}, v{V_ABB}
    s_lshl_b32 s60, s3, 11
    s_lshl_b32 s82, s3, 10
    s_add_u32 s82, s82, {XB}
    s_waitcnt lgkmcnt(0)
    s_load_dword s7, s[58:59], 0
    """) + srd(12, 36, 2359296) + T(f"""
    s_cmp_lt_u32 s3, 2
    s_cselect_b32 s20, s42, s44
    s_cselect_b32 s21, s43, s45
    s_mov_b32 s22, 663552
    s_mov_b32 s23, 0x20000
    """)
    return o

def setup2():
    o = srd(8, 48, 5308416) + srd(16, 58, WS_SIZE) + srd(24, 54, 2359296)
    o += T(f"""
    v_lshrrev_b32 v4, 3, v{V_L}
    s_lshl_b32 s68, s3, 4
    v_add_u32 v4, s68, v4
    v_and_b32 v5, 1, v{V_Q}
    v_lshlrev_b32 v5, 1, v5
    v_and_b32 v8, 7, v{V_L}
    v_xor_b32 v5, v5, v8
    v_lshlrev_b32 v5, 4, v5
    v_xor_b32 v6, 64, v5
    s_movk_i32 s68, 9216
    v_mad_u32_u24 v{V_A}, v4, s68, v5
    v_mad_u32_u24 v{V_B}, v4, s68, v6
    v_add_u32 v{V_B}, {8*9216-1024}, v{V_B}
    v_mad_u32_u24 v{V_W2A}, v4, s67, v5
    v_mad_u32_u24 v{V_W2B}, v4, s67, v6
    v_add_u32 v{V_W2B}, {8*1152-1024}, v{V_W2B}
    v_bfe_u32 v4, v{V_L}, 2, 2
    v_and_b32 v5, 3, v{V_L}
    v_and_b32 v6, 1, v{V_Q}
    v_lshlrev_b32 v6, 1, v6
    v_lshrrev_b32 v7, 1, v4
    v_add_u32 v6, v6, v7
    v_xor_b32 v6, s3, v6
    v_lshlrev_b32 v6, 5, v6
    v_lshl_add_u32 v6, v{V_Q}, 10, v6
    v_lshl_add_u32 v6, v4, 7, v6
    v_lshl_add_u32 v{V_TR}, v5, 3, v6
    v_add_u32 v{V_TR2}, 0x10000, v{V_TR}
    v_lshrrev_b32 v4, 1, v{V_C}
    v_xor_b32 v4, v4, v{V_Q}
    v_lshlrev_b32 v4, 4, v4
    v_lshl_add_u32 v4, v{V_C}, 7, v4
    v_add_u32 v{V_XR0}, {XB}, v4
    v_xor_b32 v{V_XR1}, 64, v{V_XR0}
    v_add_u32 v{V_WR0}, s60, v4
    v_xor_b32 v{V_WR1}, 64, v{V_WR0}
    v_mov_b32 v{V_PATCH}, 0xbf803f80
    s_lshl_b32 s68, s5, 2
    s_or_b32 s68, s68, s3
    s_cmp_eq_u32 s68, 2
    s_cselect_b32 s76, 0x00010001, 0
    s_mov_b32 s77, s76
    s_cselect_b32 s69, 1, 0
    s_and_b32 s68, s3, 1
    s_lshl_b32 s68, s68, 9
    s_lshr_b32 s70, s3, 1
    s_mul_i32 s71, s70, 5120
    s_add_u32 s68, s68, s71
    s_add_u32 s68, s68, {HB-10240}
    v_lshrrev_b32 v4, 1, v{V_Q}
    v_lshl_add_u32 v4, v4, 4, v{V_C}
    v_lshlrev_b32 v4, 4, v4
    v_and_b32 v5, 1, v{V_Q}
    v_lshl_add_u32 v4, v5, 3, v4
    v_add_u32 v{V_HW}, s68, v4
    v_lshlrev_b32 v{V_P16}, 4, v{V_L}
    v_lshlrev_b32 v{V_P8}, 3, v{V_L}
    v_add_u32 v{V_HR}, {HB}, v{V_P16}
    v_add_u32 v{V_HR2}, {HB+40960}, v{V_P16}
    """)
    o += T(f"""
    s_cmp_eq_u32 s70, 0
    s_cselect_b32 s71, 1.0, -1.0
    v_mov_b32 v{V_SIG}, s71
    s_cmp_eq_u32 s69, 1
    s_cselect_b32 s72, 16, 0
    v_cmp_gt_u32 vcc, s72, v{V_L}
    v_mov_b32 v4, 1.0
    v_and_b32 v5, 1, v{V_L}
    v_cndmask_b32 v{V_SIG0}, v{V_SIG}, v4, vcc
    s_cmp_eq_u32 s4, 0
    s_cselect_b32 s72, 4, 0
    v_cmp_gt_u32 vcc, s72, v{V_C}
    s_cselect_b32 s80, 8, 0
    v_lshlrev_b32 v5, 31, v5
    v_cndmask_b32 v{V_SIGT0}, v{V_SIG}, 0, vcc
    v_cndmask_b32 v{V_SIG0T0}, v{V_SIG0}, 0, vcc
    v_or_b32 v{V_TAU}, v4, v5
    s_cmp_eq_u32 s69, 1
    s_cselect_b32 s80, s80, 0
    s_mov_b32 s81, 0
    """)
    o += T(f"""
    v_lshrrev_b32 v4, 2, v{V_C}
    v_and_b32 v5, 3, v{V_C}
    s_lshr_b32 s68, s5, 1
    s_lshl_b32 s68, s68, 17
    s_lshl_b32 s71, s70, 16
    s_add_u32 s68, s68, s71
    s_mul_i32 s71, s4, 1280
    s_add_u32 s68, s68, s71
    s_and_b32 s71, s5, 1
    s_lshl_b32 s71, s71, 6
    s_add_u32 s68, s68, s71
    s_and_b32 s71, s3, 1
    s_lshl_b32 s71, s71, 5
    s_add_u32 s68, s68, s71
    s_add_u32 s68, s68, {WS_ABF}
    v_and_b32 v6, 1, v4
    v_lshlrev_b32 v6, 15, v6
    v_lshrrev_b32 v7, 1, v4
    v_lshl_add_u32 v6, v7, 7, v6
    v_lshl_add_u32 v6, v{V_Q}, 3, v6
    v_add_u32 v6, s68, v6
    v_add_u32 v7, {5*131072}, v6
    v_mov_b32 v8, {OOB}
    v_cmp_eq_u32 vcc, 1, v5
    s_lshl_b32 s68, s5, 6
    s_add_u32 s68, s68, s71
    v_cndmask_b32 v{V_ABS}, v8, v7, vcc
    v_cmp_eq_u32 vcc, 0, v5
    s_lshl_b32 s71, s70, 10
    s_add_u32 s68, s68, s71
    v_cndmask_b32 v{V_ABS}, v{V_ABS}, v6, vcc
    s_add_u32 s68, s68, {WS_XS}
    v_lshlrev_b32 v9, 3, v{V_Q}
    v_add_u32 v9, s68, v9
    s_lshl_b32 s71, s70, 1
    s_add_u32 s71, s71, 1
    v_cmp_eq_u32 vcc, s71, v5
    s_nop 1
    v_cndmask_b32 v8, v8, v7, vcc
    v_cmp_eq_u32 vcc, 0, v5
    s_nop 1
    v_cndmask_b32 v8, v8, v6, vcc
    v_cmp_eq_u32 vcc, 2, v5
    s_nop 1
    v_cndmask_b32 v8, v8, v9, vcc
    v_cmp_gt_u32 vcc, s72, v{V_C}
    s_cmp_eq_u32 s4, 25
    s_cselect_b32 s75, {OOB}, 0
    v_cndmask_b32 v{V_ABS0}, v{V_ABS}, v8, vcc
    s_mul_i32 s68, s5, 26
    s_add_u32 s68, s68, s4
    s_lshl_b32 s68, s68, 2
    s_add_u32 s68, s68, s3
    s_lshl_b32 s68, s68, 2
    s_add_u32 s68, s68, {WS_ABFLAG}
    v_cmp_eq_u32 vcc, 0, v{V_L}
    v_mov_b32 v8, {OOB}
    v_mov_b32 v9, s68
    v_cndmask_b32 v{V_ABFL}, v8, v9, vcc
    v_cndmask_b32 v{V_FL}, v8, 0, vcc
    """)
    o += srd(28, 50, 5308416) + T(f"""
    s_and_b32 s73, s4, {7 if cfg.rot1 else 0}
    s_lshl_b32 s72, s5, 3
    """)
    for i in range(8):
        o += T(f"""
        s_add_u32 s{64+i}, s73, {i}
        s_and_b32 s{64+i}, s{64+i}, 7
        s_add_u32 s{64+i}, s{64+i}, s72
        s_mul_i32 s{64+i}, s{64+i}, {64*1152}
        """)
    o += T(f"""
    s_lshl_b32 s73, s73, 7
    s_lshl_b32 s74, s5, 10
    s_add_u32 s62, s73, s74
    s_add_u32 s6, s4, s5
    s_mul_i32 s72, s6, 7282
    s_lshr_b32 s72, s72, 16
    s_mul_i32 s72, s72, 9
    s_sub_u32 s6, s6, s72
    s_add_u32 s72, s6, 1
    s_cmp_eq_u32 s72, 9
    s_cselect_b32 s72, 0, s72
    s_mul_i32 s63, s4, 9
    s_add_u32 s63, s63, s72
    s_lshl_b32 s72, s72, 7
    s_mul_i32 s78, s63, 81920
    s_mul_i32 s79, s3, 2560
    s_add_u32 s78, s78, s79
    s_add_u32 s78, s78, {WS_PART}
    s_lshl_b32 s79, s63, 8
    s_lshl_b32 s63, s3, 6
    s_add_u32 s79, s79, s63
    s_add_u32 s79, s79, {WS_PF + (0 if cfg.stspread else 4)}
    s_mov_b32 s63, 7
    s_waitcnt lgkmcnt(0)
    s_add_u32 s7, s7, 0x9e3779b9
    v_mov_b32 v{V_TAG}, s7
    """)
    return o

def poll(lab, vaddr, nl):
    return T(f"""
    s_mov_b32 s63, {SPIN}
    v_cmp_le_u32 s[80:81], {nl}, v{V_L}
    {lab}:
    buffer_load_dword v4, v{vaddr}, s[16:19], 0 offen sc1
    s_sub_u32 s63, s63, 1
    s_waitcnt vmcnt(0)
    v_cmp_eq_u32 vcc, s7, v4
    s_cmp_eq_u32 s63, 0
    s_cbranch_scc1 {lab}_out
    s_or_b64 vcc, vcc, s[80:81]
    s_cmp_eq_u64 vcc, -1
    s_cbranch_scc0 {lab}
    {lab}_out:
    """)

def final():
    PR, YR, GR, SEL, OA = 152, 232, 100, 128, 56
    o = []
    if cfg.stspread:
        o += [WAIT("fin_st", vm=[("PST", 7, 2)]), VM(f"buffer_store_dword v{V_TAG}, v{V_FL}, s[16:19], s79 offen sc1", ("PFL", 7))]
    o += T(f"""
    v_sub_u32 v5, s6, v{V_L}
    v_lshlrev_b32 v4, 2, v{V_L}
    v_add_u32 v6, 9, v5
    v_min_u32 v5, v5, v6
    s_mul_i32 s72, s4, 9
    s_lshl_b32 s79, s72, 8
    s_lshl_b32 s68, s3, 6
    s_add_u32 s79, s79, s68
    s_add_u32 s79, s79, {WS_PF + 4}
    v_lshl_add_u32 v5, v5, 8, v4
    v_add_u32 v5, s79, v5
    s_add_u32 s72, s72, s6
    s_mul_i32 s78, s72, 81920
    s_mul_i32 s79, s3, 2560
    s_add_u32 s78, s78, s79
    s_add_u32 s78, s78, {WS_PART}
    v_add_u32 v6, {WS_YFLAG - 32}, v4
    v_cmp_gt_u32 vcc, 8, v{V_L}
    s_lshl_b32 s68, s6, 6
    s_lshl_b32 s69, s3, 4
    v_cndmask_b32 v{V_POLL}, v6, v5, vcc
    s_add_u32 s68, s68, s69
    v_add_u32 v5, s68, v{V_C}
    v_sub_u32 v6, 576, v5
    v_cmp_lt_u32 s[76:77], v6, v5
    v_min_u32 v6, v5, v6
    s_mul_i32 s69, s4, 20
    v_add_u32 v7, s69, v{V_Q}
    s_movk_i32 s70, 2560
    v_lshlrev_b32 v6, 3, v6
    v_mad_u32_u24 v8, v7, s70, v6
    v_add_u32 v8, {WS_YT}, v8
    v_cmp_eq_u32 vcc, 0, v7
    v_add_u32 v9, {512*2560}, v8
    s_and_b64 vcc, vcc, s[76:77]
    v_lshlrev_b32 v16, 4, v7
    v_add_u32 v16, {WS_GT}, v16
    v_cndmask_b32 v9, v8, v9, vcc
    """)
    for rho in range(4):
        d = 0x0c0c | ((2 * rho) << 16) | ((2 * rho + 1) << 24); m = 0x0c0c | ((6 - 2 * rho) << 16) | ((7 - 2 * rho) << 24)
        o += T(f"v_mov_b32 v17, {d}\nv_mov_b32 v18, {m}\nv_cndmask_b32 v{SEL+rho}, v17, v18, s[76:77]")
    o += T(f"""
    v_lshlrev_b32 v5, 1, v5
    s_movk_i32 s67, 1152
    v_mad_u32_u24 v{OA}, v7, s67, v5
    v_add_u32 v{OA+1}, {1024*1152}, v{OA}
    v_sub_u32 v17, {1024-16}, v7
    v_mad_u32_u24 v{OA+2}, v17, s67, v5
    v_add_u32 v{OA+3}, {1024*1152}, v{OA+2}
    v_cmp_eq_u32 vcc, 0, v7
    v_sub_u32 v17, 1024, v7
    v_mov_b32 v18, 512
    v_cndmask_b32 v17, v17, v18, vcc
    v_mad_u32_u24 v{OA+4}, v17, s67, v5
    v_add_u32 v{OA+5}, {1024*1152}, v{OA+4}
    v_mov_b32 v20, 0x00003f80
    v_mov_b32 v21, 0x3f800000
    """)
    o += TS(5) + poll("L_pollP", V_POLL, 28) + TS(6)
    for t in range(5):
        o += T(f"s_mov_b32 s68, {t*4*2560}\nbuffer_load_dwordx2 v[{YR+2*t}:{YR+2*t+1}], v{9 if t == 0 else 8}, s[16:19], s68 offen sc1")
        o.append(I(f"buffer_load_dwordx4 v[{GR+4*t}:{GR+4*t+3}], v16, s[16:19], 0 offen offset:{64*t} sc1"))
    for p in range(8):
        b = PR + 10 * p
        o += T(f"""
        buffer_load_dwordx4 v[{b}:{b+3}], v{V_P16}, s[16:19], s78 offen sc1
        buffer_load_dwordx4 v[{b+4}:{b+7}], v{V_P16}, s[16:19], s78 offen offset:1024 sc1
        buffer_load_dwordx2 v[{b+8}:{b+9}], v{V_P8}, s[16:19], s78 offen offset:2048 sc1
        s_cmp_eq_u32 s6, {p}
        s_cselect_b32 s68, {9*81920}, 0
        s_add_u32 s78, s78, s68
        s_sub_u32 s78, s78, {81920-10240}
        """)
    for p in range(8):
        o.append(I(f"s_waitcnt vmcnt({3*(7-p)})"))
        for i in range(10):
            o.append(I(f"v_dot2_f32_bf16 v{E0+2*i}, v{PR+10*p+i}, v20, v{E0+2*i}"))
            o.append(I(f"v_dot2_f32_bf16 v{E0+2*i+1}, v{PR+10*p+i}, v21, v{E0+2*i+1}"))
    o += TS(7)
    for t in range(5):
        for rho in range(4): o.append(I(f"v_perm_b32 v{64+rho}, v{YR+2*t+1}, v{YR+2*t}, v{SEL+rho}"))
        for rho in range(4): o.append(I(f"v_sub_f32 v{64+rho}, v{64+rho}, v{E0+4*t+rho}"))
        for rho in range(4): o.append(I(f"v_fmac_f32 v{E0+4*t+rho}, v{64+rho}, v{GR+4*t+rho}"))
        o += T(f"""
        v_cvt_pk_bf16_f32 v{PK+2*t}, v{E0+4*t}, v{E0+4*t+1}
        v_cvt_pk_bf16_f32 v{PK+2*t+1}, v{E0+4*t+2}, v{E0+4*t+3}
        s_add_u32 s68, {"s75" if t >= 3 else "0"}, {t*4608}
        s_add_u32 s69, {"s75" if t >= 3 else "0"}, {(4-t)*4608 if t else 0}
        buffer_store_short v{PK+2*t}, v{OA}, s[24:27], s68 offen
        buffer_store_short_d16_hi v{PK+2*t}, v{OA+1}, s[24:27], s68 offen
        buffer_store_short v{PK+2*t+1}, v{OA+2 if t else OA+4}, s[24:27], s69 offen
        buffer_store_short_d16_hi v{PK+2*t+1}, v{OA+3 if t else OA+5}, s[24:27], s69 offen
        """)
    o += T(f"""
    s_or_b32 s68, s2, s3
    s_cmp_eq_u32 s68, 0
    s_cbranch_scc0 L_noepoch
    buffer_store_dword v{V_TAG}, v{V_FL}, s[16:19], 0 offen sc1
    L_noepoch:
    """)
    return o

def ts_dump(fn=0):
    if not cfg.ts: return []
    o = T("s_waitcnt vmcnt(0)") + TS(8) + T("s_waitcnt lgkmcnt(0)")
    for k in range(9): o.append(I(f"v_mov_b32 v{16+k}, s{84+2*k}"))
    o += T(f"""
    s_getreg_b32 s68, hwreg(HW_REG_XCC_ID)
    v_mov_b32 v25, s68
    v_mov_b32 v26, 0
    v_mov_b32 v27, 0
    s_lshl_b32 s68, s2, 2
    s_add_u32 s68, s68, s3
    s_lshl_b32 s68, s68, 6
    s_add_u32 s68, s68, {WS_TS}
    v_cmp_eq_u32 vcc, 0, v{V_L}
    v_mov_b32 v4, {OOB}
    s_nop 0
    v_cndmask_b32 v4, v4, 0, vcc
    buffer_store_dwordx4 v[16:19], v4, s[16:19], s68 offen
    buffer_store_dwordx4 v[20:23], v4, s[16:19], s68 offen offset:16
    buffer_store_dwordx4 v[24:27], v4, s[16:19], s68 offen offset:32
    """)
    if cfg.ts == 2 and not fn:
        o += T(f"""
        v_lshlrev_b32 v5, 2, v{V_L}
        v_cmp_gt_u32 vcc, 16, v{V_L}
        v_mov_b32 v4, {OOB}
        s_add_u32 s68, s68, 0x100000
        v_cndmask_b32 v4, v4, v5, vcc
        buffer_store_dword v150, v4, s[16:19], s68 offen
        s_add_u32 s68, s68, 0x100000
        buffer_store_dword v151, v4, s[16:19], s68 offen
        """)
    if cfg.ts != 3: return o
    o += T(f"""
    s_waitcnt vmcnt(0)
    v_not_b32 v16, v16
    v_cmp_eq_u32 vcc, 0, v0
    v_mov_b32 v4, {OOB}
    s_sleep 127
    s_sleep 127
    v_cndmask_b32 v4, v4, 0, vcc
    """) + srd(28, 56, 256)
    o.append(I("buffer_atomic_umax v16, v4, s[28:31], 0 offen"))
    for k in range(1, 9 if not fn else 8): o.append(I(f"buffer_atomic_umax v{16+k}, v4, s[28:31], 0 offen offset:{4*(k+8*fn)}"))
    return o

from fnet import fnet_code

def build():
    def dyn(hasx22):
        d = prologue()
        for it in ab_pass(hasx22):
            if it.text == "@SETUP2": d += setup2()
            else: d.append(it)
        d += TS(3)
        for p in range(8):
            for g in range(6): d += g1_group(p, g)
        d += TS(4)
        d += g2_pass0()
        d += T("s_mov_b32 s63, 8\ns_sub_u32 s34, s78, 112640")
        for p in range(1, 9):
            for g in range(4): d += g2_group(p, g)
        d += final()
        return d
    d1, d0 = dyn(True), dyn(False)
    r1, r0 = resolve(d1), resolve(d0)
    mn = lambda a, b: a if b is None else (b if a is None else min(a, b))
    res = {k: (mn(r1[k][0], r0[k][0]), mn(r1[k][1], r0[k][1])) for k in r1}
    txt = lambda l: [wait_text(res, it.site) if it.kind == "wait" else it.text for it in l]
    for d in (d1, d0):
        check_lds(d, res); check_loads(txt(d)); check_hazards(txt(d)); check_scc(txt(d))
    st = prologue()
    for it in ab_pass(True):
        if it.text == "@SETUP2": st += setup2()
        else: st.append(it)
    st += TS(3)
    st += g1_group(0, 0) + g1_group(0, 1) + [I("s_branch L_g1mid"), I(".p2align 6"), I("L_g1:")]
    st += g1_group(1, 0) + g1_group(1, 1) + [I("L_g1mid:")]
    for g in range(2, 6): st += g1_group(1, g)
    st.append(I("s_cbranch_scc1 L_g1"))
    for g in range(6): st += g1_group(7, g)
    st += TS(4)
    st += g2_pass0() + T("s_mov_b32 s63, 8\ns_sub_u32 s34, s78, 112640") + [I("L_g2:")]
    for g in range(4): st += g2_group(1, g)
    st.append(I("s_cbranch_scc1 L_g2"))
    st += final() + ts_dump() + [I("s_endpgm")]
    fn = fnet_code(sys.modules[__name__])
    check_loads([it.text for it in fn]); check_hazards([it.text for it in fn]); check_scc([it.text for it in fn])
    st += fn + ts_dump(1) + [I("L_end:"), I("s_endpgm")]
    if cfg.strip:
        a = [i for i, it in enumerate(st) if it.text == "L_g1:"][0]; b = [i for i, it in enumerate(st) if it.text == "s_cbranch_scc1 L_g2"][0]
        def drop(it):
            t = it.text or ""
            if cfg.strip & 1 and t.endswith(" lds"): return True
            if cfg.strip & 2 and (t.startswith(("v_cvt_pk", "v_pk_max", "ds_write")) or "s78 offen" in t): return True
            if cfg.strip & 4 and t == "s_barrier": return True
            if cfg.strip & 8 and it.kind == "wait" and it.need_vm: return True
            if cfg.strip & 16 and t.startswith("ds_read_b64_tr"): return True
            if cfg.strip & 32 and (t.startswith("ds_write") or "s78 offen" in t): return True
            if cfg.strip & 64 and t.startswith(("v_cvt_pk", "v_pk_max")): return True
            if cfg.strip & 128 and t.startswith("buffer_store_dword "): return True
            if cfg.strip & 1024 and it.kind == "wait" and it.need_lg and it.site not in ("g1_r2", "g2_r1"): return True
            if cfg.strip & 256 and "s78 offen" in t: it.text = t.replace(" sc1", "")
            if cfg.strip & 512 and "s78 offen" in t: it.text = t.replace(" sc1", " sc1 nt")
            return False
        st = st[:a] + [it for it in st[a:b] if not drop(it)] + st[b:]
    head = open("gated_mix__spectral_fnet__dense_activation_relu__prompt.s.ref").read().split("; Override launch")[0]
    out = head + "; @launch grid=(256,1,1) block=(256,1,1) lds=163840\n"
    out += f'.amdgcn_target "amdgcn-amd-amdhsa--gfx950"\n.text\n.globl {NAME}\n.p2align 8\n.type {NAME},@function\n{NAME}:\n'
    out += "\n".join(("" if (x.endswith(":") or x.startswith(".")) else "    ") + x for x in txt(st)) + "\n"
    out += f""".section .rodata,"a"
.p2align 6
.amdhsa_kernel {NAME}
  .amdhsa_next_free_vgpr 512
  .amdhsa_next_free_sgpr 102
  .amdhsa_accum_offset 256
  .amdhsa_group_segment_fixed_size 0
  .amdhsa_kernarg_size 96
  .amdhsa_user_sgpr_count 2
  .amdhsa_user_sgpr_kernarg_segment_ptr 1
  .amdhsa_system_sgpr_workgroup_id_x 1
.end_amdhsa_kernel
"""
    return out, res

if __name__ == "__main__":
    sys.modules["gen"] = sys.modules[__name__]
    outp = sys.argv[1]
    for a in sys.argv[2:]:
        k, v = a.split("="); setattr(cfg, k, int(v))
    out, res = build()
    open(outp, "w").write(out)
    print(res)
```

```python
from asmlib import *
def fnet_code(g):
    T, TS, srd = g.T, g.TS, g.srd
    V_L, V_C, V_Q, OOB = g.V_L, g.V_C, g.V_Q, g.OOB
    MF = lambda d, a, b, c: I(f"v_mfma_f32_16x16x32_bf16 {d}, {a}, {b}, {c}")
    def pf1():
        return T("buffer_load_dword v254, v253, s[12:15], s76 offen\ns_add_u32 s76, s76, 128") if g.cfg.pfs & 1 else []
    def pf2():
        return T(f"buffer_load_dword v254, v255, s[8:11], s75 offen\ns_add_u32 s75, s75, {22*256*128}") if g.cfg.pfs & 2 else []
    o = T(f"""
    L_spare:
    s_sub_u32 s62, s62, s63
    s_mul_i32 s64, s61, 11
    s_mul_i32 s65, s60, 3
    s_add_u32 s64, s64, s65
    s_add_u32 s64, s64, s62
    s_waitcnt lgkmcnt(0)
    """) + srd(8, 50, 5308416) + srd(12, 48, 5308416) + T(f"""
    s_lshl_b32 s65, s64, 8
    v_add_u32 v4, s65, v0
    v_lshlrev_b32 v255, 7, v4
    v_lshlrev_b32 v253, 10, v4
    s_mov_b32 s75, 0
    s_mov_b32 s76, 0
    """) + pf1() + pf1() + T(f"""
    s_cmp_ge_u32 s64, 20
    s_cbranch_scc1 L_idle
    s_cmp_ge_u32 s64, 10
    s_cselect_b32 s4, 1, 0
    s_cselect_b32 s65, 10, 0
    s_sub_u32 s65, s64, s65
    s_cmp_ge_u32 s65, 5
    s_cselect_b32 s5, 1, 0
    s_cselect_b32 s66, 5, 0
    s_sub_u32 s6, s65, s66
    s_waitcnt lgkmcnt(0)
    s_load_dword s7, s[58:59], 0
    """)
    o += srd(16, 58, g.WS_SIZE) + srd(20, 36, 2359296) + srd(24, 52, 1152)
    o += T(f"""
    s_lshl_b32 s66, s5, 7
    s_lshl_b32 s67, s3, 5
    s_add_u32 s66, s66, s67
    s_lshl_b32 s66, s66, 1
    s_add_u32 s66, s66, s4
    v_lshl_add_u32 v4, v{V_C}, 1, s66
    v_cmp_eq_u32 vcc, 0, v4
    v_mov_b32 v5, 512
    v_add_u32 v6, 32, v4
    v_cndmask_b32 v5, v4, v5, vcc
    v_cvt_f32_u32 v10, v4
    v_cvt_f32_u32 v11, v6
    v_cvt_f32_u32 v12, v5
    v_lshlrev_b32 v7, 4, v{V_Q}
    v_cvt_f32_u32 v7, v7
    v_mul_f32 v10, 0xba000000, v10
    v_mul_f32 v11, 0xba000000, v11
    v_mul_f32 v12, 0xba000000, v12
    s_mul_i32 s70, s4, 0xffff
    v_mov_b32 v8, s70
    v_cmp_eq_u32 vcc, 0, v{V_Q}
    v_and_b32 v9, 1, v{V_C}
    v_lshlrev_b32 v9, 15, v9
    v_cndmask_b32 v8, 0, v8, vcc
    v_xor_b32 v9, 0xbf80, v9
    v_mul_f32 v16, v7, v11
    v_mul_f32 v17, 0x42400000, v11
    s_mov_b32 s63, 0
    L_trig:
    """)
    o += T("""
    s_cmp_eq_u32 s63, 0
    s_cselect_b64 vcc, -1, 0
    v_cndmask_b32 v19, v12, v11, vcc
    v_mul_f32 v18, v7, v19
    v_mul_f32 v20, 0x42400000, v19
    """)
    for j in range(8):
        for i in range(4):
            for e in range(4):
                o += T(f"v_cos_f32 v{24+e}, v16\nv_sin_f32 v{28+e}, v18\nv_add_f32 v16, v16, v11\nv_add_f32 v18, v18, v19")
            c0 = 120 + j * 8; s0 = 120 + (8 + j) * 8
            o += T(f"""
            v_cvt_pk_bf16_f32 v{c0+i}, v24, v26
            v_cvt_pk_bf16_f32 v{c0+4+i}, v25, v27
            v_cvt_pk_bf16_f32 v{s0+i}, v28, v30
            v_cvt_pk_bf16_f32 v{s0+4+i}, v29, v31
            """)
        o += T("v_add_f32 v16, v16, v17\nv_add_f32 v18, v18, v20")
        if j in (1, 4, 7): o += pf1()
    o += T("""
    v_bfi_b32 v184, v8, v9, v184
    s_cmp_eq_u32 s63, 1
    s_cbranch_scc1 L_trigdone
    """)
    for i in range(128): o.append(I(f"v_accvgpr_write_b32 a{i}, v{120+i}"))
    o += T("""
    v_mov_b32 v11, v10
    v_mul_f32 v16, v7, v10
    v_mul_f32 v17, 0x42400000, v10
    s_mov_b32 s63, 1
    s_branch L_trig
    L_trigdone:
    """)
    o += T(f"""
    v_and_b32 v5, 1, v{V_Q}
    v_lshlrev_b32 v5, 7, v5
    v_lshlrev_b32 v4, 4, v{V_L}
    v_xor_b32 v4, v4, v5
    s_mul_i32 s70, s4, 5
    s_add_u32 s70, s70, s6
    s_lshl_b32 s70, s70, 17
    s_add_u32 s70, s70, {g.WS_ABF}
    s_lshl_b32 s71, s3, 13
    s_add_u32 s70, s70, s71
    s_lshl_b32 s71, s6, 2
    s_add_u32 s71, s71, s3
    s_cmp_ge_u32 s71, 18
    s_cselect_b32 s71, {4*131072 - 65536 + 16384}, 0
    s_sub_u32 s70, s70, s71
    v_add_u32 v13, s70, v4
    v_lshlrev_b32 v4, 3, v{V_C}
    v_lshl_add_u32 v4, v{V_Q}, 8, v4
    v_add_u32 v15, v4, v5
    s_lshl_b32 s72, s6, 6
    v_add_u32 v116, s72, v{V_C}
    v_lshl_add_u32 v4, v{V_Q}, 3, s66
    s_movk_i32 s70, 2560
    v_lshlrev_b32 v5, 3, v116
    v_mad_u32_u24 v117, v4, s70, v5
    v_add_u32 v117, {g.WS_YT}, v117
    v_cmp_eq_u32 s[82:83], 0, v4
    v_add_u32 v5, {512*2560}, v117
    v_mov_b32 v6, {OOB}
    v_cndmask_b32 v118, v6, v5, s[82:83]
    v_cmp_eq_u32 vcc, 0, v{V_C}
    v_mov_b32 v5, 0xbf803f80
    s_mul_i32 s73, s4, 0x80008000
    v_cndmask_b32 v60, 0, v5, vcc
    s_sub_u32 s74, s4, 1
    v_mov_b32 v61, v60
    v_mov_b32 v62, v60
    v_mov_b32 v63, v60
    s_lshl_b32 s70, s6, 1
    s_add_u32 s71, s70, 1
    s_cmp_eq_u32 s71, 9
    s_cselect_b32 s71, 0, s71
    s_bitcmp1_b32 s3, 1
    s_cselect_b32 s70, s71, s70
    s_lshl_b32 s70, s70, 1
    s_and_b32 s71, s3, 1
    s_add_u32 s70, s70, s71
    s_mul_i32 s70, s70, {13*128}
    s_add_u32 s70, s70, {g.WS_ABFLAG}
    v_lshl_add_u32 v5, v{V_L}, 7, s70
    v_cmp_gt_u32 vcc, 13, v{V_L}
    s_nop 1
    v_cndmask_b32 v119, v6, v5, vcc
    s_lshl_b32 s60, s3, 15
    s_waitcnt vmcnt(0) lgkmcnt(0)
    s_add_u32 s7, s7, 0x9e3779b9
    """)
    A = lambda tl, mat, sp, j: (f"a[{(mat*8+j)*8+4*sp}:{(mat*8+j)*8+4*sp+3}]" if tl else f"v[{120+(mat*8+j)*8+4*sp}:{120+(mat*8+j)*8+4*sp+3}]")
    o += pf2() * 4
    o += TS(1) + g.poll("L_pollAB", 119, 13) + T("s_barrier") + TS(2)
    for P in range(8):
        o += T(f"s_add_u32 m0, s60, {P*4096}\ns_mov_b32 s61, {(P//2)*32768 + (P%2)*4096}")
        for i in range(4): o.append(I(f"buffer_load_dwordx4 v13, s[16:19], s61 offen offset:{1024*i} sc1 lds"))
    for ct in range(4):
        o += T(f"""
        v_add_u32 v4, {16*ct}, v116
        v_cmp_eq_u32 vcc, 288, v4
        v_mov_b32 v5, 512
        s_mov_b32 s61, {g.WS_XS}
        v_cndmask_b32 v4, v4, v5, vcc
        v_lshlrev_b32 v4, 1, v4
        buffer_load_ushort v{248+ct}, v4, s[16:19], s61 offen sc1
        """)
    o += T("s_waitcnt vmcnt(0)\ns_barrier") + TS(3)
    for ct in range(4): o += T(f"v_lshlrev_b32 v{248+ct}, 16, v{248+ct}\nv_and_b32 v{248+ct}, s74, v{248+ct}")
    AC = lambda tl, gr: f"v[{64+(tl*4+gr)*4}:{67+(tl*4+gr)*4}]"
    o += T(f"""
    s_mov_b32 s63, 0
    L_ct:
    s_lshl_b32 s70, s63, 15
    v_add_u32 v16, s70, v15
    v_xor_b32 v17, 128, v16
    v_xor_b32 v18, 0x80000000, v248
    """)
    def rd(ks):
        b = 100 + 4 * (ks % 4)
        return [I(f"ds_read_b64_tr_b16 v[{b}:{b+1}], v16 offset:{ks*1024}"), I(f"ds_read_b64_tr_b16 v[{b+2}:{b+3}], v17 offset:{ks*1024}")]
    o += rd(0) + rd(1) + rd(2) + pf2()
    for tl in range(2):
        for r in range(4): o.append(I(f"v_mov_b32 v{64+tl*16+r}, v{18 if r & 1 else 248}"))
    for r in range(4): o.append(I(f"v_mov_b32 v{96+r}, v248"))
    for ks in range(32):
        gr, j = ks // 8, ks % 8; b = 100 + 4 * (ks % 4); B = f"v[{b}:{b+3}]"
        o.append(I(f"s_waitcnt lgkmcnt({min(4, 2*(31-ks))})"))
        nx = rd(ks + 3) if ks + 3 < 32 else [None, None]
        for tl in range(2):
            o.append(MF(AC(tl, gr), A(tl, gr >> 1, gr & 1, j), B, AC(tl, gr) if (j or gr == 0) else "0"))
            if nx[tl]: o.append(nx[tl])
        if gr == 0: o.append(MF("v[96:99]", "v[60:63]", B, "v[96:99]"))
    o += T(f"""
    v_cmp_eq_u32 vcc, 0, v116
    v_mov_b32 v4, 288
    v_cmp_eq_u32 s[80:81], v4, v116
    v_mov_b32 v248, v249
    v_mov_b32 v249, v250
    v_mov_b32 v250, v251
    s_or_b64 vcc, vcc, s[80:81]
    s_nop 1
    """)
    for tl in range(2):
        for r in range(4):
            pe, po, qe, qo = (64 + (tl * 4 + k) * 4 + r for k in range(4))
            d = 32 + 2 * (tl * 4 + r)
            o += T(f"""
            v_cndmask_b32 v{qe}, v{qe}, 0, vcc
            v_cndmask_b32 v{qo}, v{qo}, 0, vcc
            v_add_f32 v20, v{pe}, v{po}
            v_sub_f32 v21, v{pe}, v{po}
            v_add_f32 v22, v{qe}, v{qo}
            v_sub_f32 v23, v{qo}, v{qe}
            v_sub_f32 v24, v20, v22
            v_add_f32 v25, v21, v23
            v_sub_f32 v26, v21, v23
            v_add_f32 v27, v20, v22
            """)
            if tl == 0 and r == 0:
                o += T(f"""
                v_sub_f32 v28, v96, v{qo}
                v_add_f32 v29, v96, v{qo}
                v_cndmask_b32 v24, v24, v20, s[82:83]
                v_cndmask_b32 v25, v25, v21, s[82:83]
                v_cndmask_b32 v26, v26, v28, s[82:83]
                v_cndmask_b32 v27, v27, v29, s[82:83]
                v_cvt_pk_bf16_f32 v30, v26, v27
                v_cvt_pk_bf16_f32 v31, v25, v24
                buffer_store_dwordx2 v[30:31], v118, s[16:19], 0 offen sc1
                """)
            o += T(f"""
            v_cvt_pk_bf16_f32 v{d}, v24, v25
            v_cvt_pk_bf16_f32 v{d+1}, v26, v27
            s_mov_b32 s70, {tl*81920 + r*5120}
            v_xor_b32 v{d}, s73, v{d}
            v_xor_b32 v{d+1}, s73, v{d+1}
            buffer_store_dwordx2 v[{d}:{d+1}], v117, s[16:19], s70 offen sc1
            """)
    o += T(f"""
    v_add_u32 v116, 16, v116
    v_add_u32 v117, 128, v117
    v_add_u32 v118, 128, v118
    s_add_u32 s63, s63, 1
    s_cmp_lt_u32 s63, 4
    s_cbranch_scc1 L_ct
    """) + TS(4)
    o += gate_code(g) + TS(5)
    o += T(f"""
    s_waitcnt vmcnt(0)
    s_barrier
    s_lshl_b32 s70, s64, 2
    s_add_u32 s70, s70, {g.WS_YFLAG}
    v_cmp_gt_u32 vcc, 26, v0
    v_mov_b32 v4, {OOB}
    v_lshlrev_b32 v6, 7, v0
    v_mov_b32 v5, s7
    v_cndmask_b32 v4, v4, v6, vcc
    buffer_store_dword v5, v4, s[16:19], s70 offen sc1
    """) + TS(6) + TS(7)
    idle = [I("L_idle:")] + pf1() * 6 + pf2() * 8 + [I("s_endpgm")]
    return o, idle

def gate_code(g):
    T = g.T; V_L, OOB = g.V_L, g.OOB
    o = T(f"""
    v_and_b32 v4, 7, v{V_L}
    v_lshlrev_b32 v52, 4, v4
    v_bfe_u32 v53, v{V_L}, 3, 2
    v_lshrrev_b32 v54, 5, v{V_L}
    s_lshl_b32 s70, s64, 2
    s_add_u32 s70, s70, s3
    s_lshl_b32 s70, s70, 1
    v_add_u32 v54, s70, v54
    s_movk_i32 s67, 1152
    v_mov_b32 v55, {OOB}
    """)
    for j in range(9): o.append(I(f"buffer_load_dwordx4 v[{64+4*j}:{67+4*j}], v52, s[24:27], 0 offen offset:{128*j}"))
    for it in range(4):
        o += g.rowcalc(54, 53, 56, 57) + T(f"""
        v_cmp_gt_u32 vcc, 512, v54
        v_mad_u32_u24 v56, v56, s67, v52
        v_lshl_add_u32 v57, v54, 2, v53
        v_cndmask_b32 v56, v55, v56, vcc
        v_lshlrev_b32 v57, 2, v57
        v_cndmask_b32 v{20+it}, v55, v57, vcc
        v_add_u32 v54, 160, v54
        """)
        for j in range(9): o.append(I(f"buffer_load_dwordx4 v[{104+36*it+4*j}:{107+36*it+4*j}], v56, s[20:23], 0 offen offset:{128*j}"))
    for it in range(4):
        o += T(f"v_mov_b32 v{24+it}, 0\nv_mov_b32 v28, 0\ns_waitcnt vmcnt({9*(3-it)})")
        for k in range(36):
            d = 28 if k & 1 else 24 + it
            o.append(I(f"v_dot2_f32_bf16 v{d}, v{104+36*it+k}, v{64+k}, v{d}"))
        o += T(f"s_nop 2\nv_add_f32 v{24+it}, v{24+it}, v28")
    o.append(I("s_nop 1"))
    for perm in ("quad_perm:[1,0,3,2]", "quad_perm:[2,3,0,1]", "row_half_mirror"):
        for it in range(4): o.append(I(f"v_add_f32_dpp v{24+it}, v{24+it}, v{24+it} {perm} row_mask:0xf bank_mask:0xf"))
    for it in range(4): o.append(I(f"v_mul_f32 v{24+it}, 0xbfb8aa3b, v{24+it}"))
    for it in range(4): o.append(I(f"v_exp_f32 v{24+it}, v{24+it}"))
    for it in range(4): o.append(I(f"v_add_f32 v{24+it}, 1.0, v{24+it}"))
    for it in range(4): o.append(I(f"v_rcp_f32 v{24+it}, v{24+it}"))
    o += T(f"""
    v_cmp_eq_u32 vcc, 0, v52
    s_mov_b32 s70, {g.WS_GT}
    s_nop 0
    """)
    for it in range(4): o.append(I(f"v_cndmask_b32 v{20+it}, v55, v{20+it}, vcc"))
    for it in range(4): o.append(I(f"buffer_store_dword v{24+it}, v{20+it}, s[16:19], s70 offen sc1"))
    return o
```

```python
import sys
from asmlib import *
NAME = "gated_mix__spectral_fnet__dense_activation_relu__prompt_kernel"
WS_PF, WS_ABFLAG, WS_YFLAG, WS_GT, WS_XS = 0x20000, 0x20000, 0xA000, 0x10000, 0x13000
WS_ABF, WS_YT, WS_PART, WS_TS, WS_SIZE = 0x100000, 0x280000, 0x400000, 0x2000000, 0x3000000
OOB = 0x40000000
WSL, SL = 2688, 10752
XB, HB = 71680, 81920
SPIN = 1 << 20

class Cfg:
    ts = False
    L2 = 12
    rot1 = 1
    chain = 0
    strip = 0
    pp = 0
    pt = 1
    trace = 0
    slp = 16
    map = 2
    pf1 = 1
    rev = 1
    pf2 = 0
    noab = 0
    pfs = 3
    warmfl = 1
    stspread = 1
    fake = 0
cfg = Cfg()

ACC = lambda t: f"v[{16+4*t}:{19+4*t}]"
EE = lambda t: f"v[{36+4*t}:{39+4*t}]"
E0 = 36
FB = lambda b: 56 + 4 * b
PK = 88
def act(i):
    return f"a[{4*i}:{4*i+3}]" if i < 64 else f"v[{152+4*(i-64)}:{155+4*(i-64)}]"
V_A, V_B = 10, 11
V_W2A, V_W2B = 12, 13
V_TR, V_TR2 = 14, 15
V_XO = 100
V_ABA, V_ABB = 105, 106
V_XR0, V_XR1 = 107, 108
V_WR0, V_WR1 = 109, 110
V_PATCH = 111
V_HW = 112
V_HR, V_HR2 = 113, 114
V_SIG, V_SIG0, V_SIGT0, V_SIG0T0, V_TAU = 115, 116, 117, 118, 119
V_ABS, V_ABS0 = 120, 121
V_ABFL = 122
V_TAG = 123
V_P16, V_P8 = 124, 125
V_FL = 126
V_POLL = 127
V_PFD, V_PF1, V_PF2, V_DUM = 132, 133, 134, 135
XH = 94
V_L, V_C, V_Q = 1, 2, 3

def mfma(d, a, b, c): return I(f"v_mfma_f32_16x16x32_bf16 {d}, {a}, {b}, {c}")
def place(ms, side):
    gaps = [[] for _ in ms]
    for g, it in side:
        gaps[g] += it if isinstance(it, list) else [it]
    out = []
    for m, g in zip(ms, gaps):
        out.append(m); out += g
    return out
def spread(items, gaps):
    n = len(items); k = len(gaps)
    return [(gaps[i * k // n], it) for i, it in enumerate(items)]

tsn = [0]
def tsr(k): return 84 + 2 * k if k < 4 else 36 + 2 * (k - 4)
def TS(k):
    if not cfg.ts: return []
    return [I(f"{'s_memtime' if cfg.ts == 2 else 's_memrealtime'} s[{tsr(k)}:{tsr(k)+1}]")]

def wslot(ph, p, s):
    if ph == 2: return ((p & 1) * 16 + s) * 4096
    return s * 4096
def wdma(ph, p, s):
    P, b = s >> 1, s & 1
    pre = []
    if b == 0:
        pre.append(I(f"s_add_u32 m0, s60, {P*8192}"))
        pre.append(I(f"s_add_u32 s61, s62, s{64+P}" if ph == 2 else ("s_add_u32 s61, s61, s35" if P else "s_mov_b32 s61, s62")))
    lo = wslot(ph, p, 2 * P)
    v, sr = (V_W2A, "s[28:31]") if ph == 2 else (V_A, "s[8:11]")
    return pre, VM(f"buffer_load_dwordx4 v{v+b}, {sr}, s61 offen offset:{1024*b} lds", ("W", ph, p, s), wr=(lo, lo + 8192))
def cover(ph, p, lo, hi): return [("W", ph, p, s) for s in range(lo, hi)]
def nf(ph): return 8 if ph == 2 else 6
def trr(ph, p, s):
    b = FB(s % nf(ph)); o = s * 4096; vr = V_TR
    if o >= 65536: o -= 65536; vr = V_TR2
    lo = wslot(ph, p, s)
    return [LG(f"ds_read_b64_tr_b16 v[{b+2*h}:{b+2*h+1}], v{vr} offset:{o+512*h}", ("R", ph, p, s, h), rd=(lo, lo + 4096)) for h in range(2)]
def group_mfmas(ph, steps, last):
    ms = []
    order = [(t, s) for t in range(5) for s in steps] if cfg.chain else [(t, s) for s in steps for t in range(5)]
    for t, s in order:
        if True:
            d = EE(t) if s == last else ACC(t)
            c = "0" if s == 0 else ACC(t)
            b = FB(s % nf(ph)); w = f"v[{b}:{b+3}]"
            ms.append(mfma(d, act(s * 5 + t), w, c) if ph == 2 else mfma(d, w, act(s * 5 + t), c))
    return ms

def xdma(n):
    pre = [I("s_add_u32 s79, s79, s93")] if (n % 5 == 0 and n) else []
    return pre + [I(f"s_add_u32 m0, s82, {n*4096}"), I(f"s_add_u32 s61, s79, s{XH+n%5}"),
            VM(f"buffer_load_dwordx4 v{V_XO+n%5}, s[12:15], s61 offen lds", ("X", n), wr=(XB + (n // 5) * 20480, min(XB + (n // 5 + 1) * 20480, 163840)))]
def abdma(P):
    lo = P * 8192
    return [I(f"s_add_u32 m0, s60, {lo}"), I("s_add_u32 s83, s83, s92"),
            VM(f"buffer_load_dwordx4 v{V_ABA}, s[20:23], s83 offen lds", ("WAB", P, 0), wr=(lo, lo + 8192)),
            VM(f"buffer_load_dwordx4 v{V_ABB}, s[20:23], s83 offen offset:1024 lds", ("WAB", P, 1), wr=(lo, lo + 8192))]
def wreads(P):
    out = []
    if P == 4: out += [I(f"v_add_u32 v{V_WR0}, 32768, v{V_WR0}"), I(f"v_add_u32 v{V_WR1}, 32768, v{V_WR1}")]
    Pp = P - 4 if P >= 4 else P
    for h in range(2):
        s = 2 * P + h; b = FB(s % 6)
        out.append(LG(f"ds_read_b128 v[{b}:{b+3}], v{V_WR0+h} offset:{Pp*8192}", ("RAB", s)))
    return out
def xreads(P):
    out = []
    if P == 4: out += [I(f"v_add_u32 v{V_XR0}, 40960, v{V_XR0}"), I(f"v_add_u32 v{V_XR1}, 40960, v{V_XR1}")]
    Pp = P - 4 if P >= 4 else P
    for t in range(5):
        for h in range(2):
            s = 2 * P + h; lo = XB + (P * 10 + 2 * t) * 1024
            out.append(LG(f"ds_read_b128 {act(s*5+t)}, v{V_XR0+h} offset:{(Pp*10+2*t)*1024}", ("RX", s, t), rd=(lo, lo + 2048)))
    return out
def patch(P):
    return [I(f"v_cndmask_b32 v{FB(s%6)+e}, v{FB(s%6)+e}, v{V_PATCH}, s[76:77]") for s in (2 * P, 2 * P + 1) for e in range(4)]
def xg(g, lastx): return [("X", n) for n in range(5 * g, min(5 * g + 5, lastx + 1))]

def cut(su, n):
    while su[n].text.startswith(("s_cselect", "v_c")) or su[n - 1].text.startswith(("s_cmp", "s_cselect", "v_c")): n += 1
    return n
def ab_pass(hasx22):
    lastx = 22 if hasx22 else 21
    o = []
    pf = lambda v, sr, off, tag: [VM(f"buffer_load_dword v{V_DUM}, v{v}, {sr}, 0 offen offset:{off}", tag)]
    Xr = lambda a, b: sum((xdma(n) for n in range(a, b)), [])
    if cfg.pf1 & 1: o += pf(V_PFD, "s[20:23]", 0, "PFD")
    o += Xr(0, 8) + setup2()
    if cfg.pf1 & 2: o += pf(V_PF1, "s[8:11]", 0, "PFA")
    if cfg.pt & 1: o.append(VM(f"buffer_load_dword v{V_DUM}, v{V_ABFL}, s[16:19], 0 offen sc1", "PT0"))
    if cfg.pt & 2: o.append(VM(f"buffer_store_dword v{ABP+10}, v{V_ABFL}, s[16:19], 0 offen sc1", "PT1"))
    if cfg.pt & 4: o.append(VM(f"buffer_store_dwordx4 v[{ABP+10}:{ABP+13}], v{ABP+14}, s[16:19], s78 offen offset:2560 sc1", "WARMFL"))
    o += Xr(8, 17)
    o += [WAIT("ab_b0", vm=xg(0, lastx)), BAR()] + TS(1) + xreads(0) + Xr(17, 20) + xreads(1)
    o += xdma(20) + xdma(21) + [I("s_cmp_lt_u32 s3, 2"), I("s_cbranch_scc0 L_nox22")] + (xdma(22) if hasx22 else []) + [I("L_nox22:")]
    o += [WAIT("ab_x1", vm=xg(1, lastx)), BAR()] + abdma(0) + xreads(2) + abdma(1) + abdma(2) + xreads(3) + abdma(3) + abdma(4)
    o += [WAIT("ab_x4", vm=xg(4, lastx) + [("WAB", 0, 1)], lg=[("RX", 1, 0)]), BAR()] + wreads(0) + abdma(5)
    o.append(WAIT("ab_r0", lg=[("RAB", 1)])); o += patch(0); o.append(I("s_nop 1"))
    for g in range(9):
        ms = group_mfmas(0, (2 * g, 2 * g + 1), 17)
        side = []
        if g < 8:
            side.append((0, WAIT(f"ab_w{g}", vm=[("WAB", g + 1, 1)])))
            side += spread(wreads(g + 1), [0, 1])
            if g < 5: side += spread(xreads(g + 4), [1, 2, 3, 4, 5, 7, 8, 9])
        else:
            side.append((0, [WAIT("ab_b8", vm=cover(1, 0, 0, 6)), BAR()]))
            side += spread(trr(1, 0, 0) + trr(1, 0, 1) + trr(1, 0, 2), [1, 2, 3, 4, 5, 6])
        d = []
        if g == 0: d = [abdma(6)[:3], abdma(6)[3:], abdma(7)[:3], abdma(7)[3:]]
        if g == 1: d = [abdma(8)[:3], abdma(8)[3:]]
        sl = {0: (), 1: (0, 1), 2: (2, 3, 4), 3: (5, 6, 7), 4: (8, 9), 5: (10, 11), 6: (12, 13), 7: (14,), 8: ()}[g]
        for s in sl:
            pre, dm = wdma(1, 0, s); dm.wr = None
            d.append(pre + [dm])
        if d: side += spread(d, [2, 3, 4, 5])
        if g in (5, 6, 7): side += list(zip([1, 3, 5, 9, 9], ab_gaddr()[(g - 5) * 5:(g - 4) * 5]))
        if g < 8:
            side.append((6, WAIT(f"ab_rw{g}", lg=[("RAB", 2 * g + 3)])))
            side += spread(patch(g + 1), [6, 7, 8])
            side.append((9, I("s_nop 0")))
        else: side.append((9, WAIT(f"ab_r9", lg="all")))
        o += place(ms, side)
    return o

ABP = 136
ABL = 73728
V_ABR, V_ABG0, V_ABG1 = 100, 101, 102
def ab_epilogue():
    o = []
    for t in range(5):
        r = E0 + 4 * t
        sg = (V_SIG0T0, V_SIGT0) if t == 0 else (V_SIG0, V_SIG)
        for e in range(4): o.append(I(f"v_fmac_f32_dpp v{r+e}, v{r+e}, v{sg[0] if e == 0 else sg[1]} quad_perm:[3,2,1,0] row_mask:0xf bank_mask:0xf"))
        for e in range(4): o.append(I(f"v_fmac_f32_dpp v{r+e}, v{r+e}, v{V_TAU} quad_perm:[1,0,3,2] row_mask:0xf bank_mask:0xf"))
        if t == 0:
            o.append(I(f"v_mov_b32_dpp v{PK+10}, v{r} quad_perm:[0,1,2,1] row_mask:0xf bank_mask:0xf"))
            o.append(I(f"v_cndmask_b32 v{r}, v{r}, v{PK+10}, s[80:81]"))
        o.append(I(f"v_cvt_pk_bf16_f32 v{ABP+2*t}, v{r}, v{r+1}"))
        o.append(I(f"v_cvt_pk_bf16_f32 v{ABP+2*t+1}, v{r+2}, v{r+3}"))
    return o
def ab_gaddr():
    A = lambda x: T(x)
    return [A(f"s_lshr_b32 s68, s5, 1\ns_lshl_b32 s68, s68, 17\ns_lshr_b32 s70, s3, 1"),
            A(f"s_lshl_b32 s71, s70, 16\ns_add_u32 s68, s68, s71\ns_mul_i32 s71, s4, 320"),
            A(f"s_add_u32 s68, s68, s71\ns_and_b32 s71, s5, 1\ns_lshl_b32 s71, s71, 14"),
            A(f"s_add_u32 s68, s68, s71\ns_and_b32 s71, s3, 1\ns_lshl_b32 s69, s71, 13"),
            A(f"s_add_u32 s68, s68, s69\ns_add_u32 s68, s68, {WS_ABF}\ns_lshl_b32 s71, s71, 5"),
            A(f"s_lshl_b32 s69, s5, 6\ns_add_u32 s69, s69, s71\ns_lshl_b32 s70, s70, 10"),
            A(f"s_add_u32 s69, s69, s70\ns_add_u32 s69, s69, {WS_XS - 320}\nv_mul_u32_u24 v4, 13, v{V_L}"),
            A(f"v_lshrrev_b32 v4, 8, v4\nv_mul_u32_u24 v5, 20, v4\nv_sub_u32 v5, v{V_L}, v5"),
            A(f"v_and_b32 v6, 1, v4\nv_lshlrev_b32 v6, 15, v6\nv_lshrrev_b32 v7, 1, v4\nv_mul_u32_u24 v7, {5*131072}, v7"),
            A(f"v_lshl_add_u32 v6, v5, 4, v6\nv_add3_u32 v6, v6, v7, s68\ns_cmp_eq_u32 s4, 25\ns_cselect_b32 s70, 12, 20"),
            A(f"v_cmp_gt_u32 vcc, s70, v5\nv_mov_b32 v8, {OOB}\nv_lshlrev_b32 v7, 4, v{V_L}\nv_cndmask_b32 v6, v8, v6, vcc"),
            A(f"v_cmp_gt_u32 vcc, 60, v{V_L}\ns_add_u32 s68, s68, {5*131072 + 32768}\nv_add_u32 v9, s68, v7\nv_cndmask_b32 v{V_ABG0}, v8, v6, vcc"),
            A(f"v_cmp_gt_u32 vcc, s70, v{V_L}\nv_add_u32 v6, s69, v7\nv_lshrrev_b32 v5, 1, v{V_L}\nv_cndmask_b32 v9, v8, v9, vcc"),
            A(f"s_cmp_eq_u32 s4, 0\ns_cselect_b32 s70, 10, -1\nv_cmp_eq_u32 vcc, s70, v5\ns_mul_i32 s68, s3, 1792"),
            A(f"s_add_u32 s68, s68, {ABL}\nv_add_u32 v{V_ABR}, s68, v7\nv_cndmask_b32 v{V_ABG1}, v9, v6, vcc")]
def ab_once(which):
    if which == 2:
        return [LG(f"ds_write_b64 v{V_ABS0 if t == 0 else V_ABS}, v[{ABP+2*t}:{ABP+2*t+1}] offset:{64*t}", ("ABW", t)) for t in range(5)]
    if which == 3:
        return [LG(f"ds_read_b128 v[{PK}:{PK+3}], v{V_ABR}", ("ABR", 0)), LG(f"ds_read_b128 v[{PK+4}:{PK+7}], v{V_ABR} offset:960", ("ABR", 1))]
    if which == 0:
        o = [VM(f"buffer_store_dwordx4 v[{PK}:{PK+3}], v{V_ABG0}, s[16:19], 0 offen sc1", ("ABST", 0)),
             VM(f"buffer_store_dwordx4 v[{PK+4}:{PK+7}], v{V_ABG1}, s[16:19], 0 offen sc1", ("ABST", 4))]
        if cfg.warmfl:
            o += [VM(f"buffer_store_dwordx4 v[{ABP+10}:{ABP+13}], v{ABP+14}, s[16:19], s78 offen offset:2560 sc1", "WARMFL")]
        return o
    return [VM(f"buffer_store_dword v{V_TAG}, v{V_ABFL}, s[16:19], 0 offen sc1", "ABFL")]
def h_tile(p, t):
    r = E0 + 4 * t; d = PK + 2 * t
    lo = HB + p * 10240
    return ([I(f"v_cvt_pk_bf16_f32 v{d}, v{r}, v{r+1}"), I(f"v_cvt_pk_bf16_f32 v{d+1}, v{r+2}, v{r+3}")],
            [I(f"v_pk_max_i16 v{d}, v{d}, 0"), I(f"v_pk_max_i16 v{d+1}, v{d+1}, 0")],
            LG(f"ds_write_b64 v{V_HW}, v[{d}:{d+1}] offset:{1024*t}", ("HW", p, t), wr=(lo + (2048 if p < 0 else 0), lo + 10240)))
def p_parts(p):
    cv = [I(f"v_cvt_pk_bf16_f32 v{PK+i}, v{E0+2*i}, v{E0+2*i+1}") for i in range(10)]
    st = [VM(f"buffer_store_dwordx4 v[{PK}:{PK+3}], v{V_P16}, s[16:19], s78 offen sc1", ("PST", p, 0)),
          VM(f"buffer_store_dwordx4 v[{PK+4}:{PK+7}], v{V_P16}, s[16:19], s78 offen offset:1024 sc1", ("PST", p, 1)),
          VM(f"buffer_store_dwordx2 v[{PK+8}:{PK+9}], v{V_P8}, s[16:19], s78 offen offset:2048 sc1", ("PST", p, 2))]
    return [(cv[:4], st[0]), (cv[4:8], st[1]), (cv[8:], st[2])]
def hreads(s):
    o = []
    for t in range(5):
        off = (s * 5 + t) * 1024; vr = V_HR
        if off >= 40960: off -= 40960; vr = V_HR2
        lo = HB + (s * 5 + t) * 1024
        o.append(LG(f"ds_read_b128 {act(s*5+t)}, v{vr} offset:{off}", ("RH", s, t), rd=(lo, lo + 1024)))
    return o
def tags(items): return [it.tag for it in items if it.kind == "lg"]
def cyc_stamp(side, g, g0, gap, v):
    if cfg.ts == 2 and cfg.pp and g == g0: side.append((gap, [I("s_memtime s[32:33]")]))
    if cfg.ts == 2 and cfg.pp and g == g0 + 1: side.append((gap, [I("s_waitcnt lgkmcnt(0)"), I("v_cmp_eq_u32 vcc, s63, v1"), I("v_mov_b32 v9, s32"), I("s_nop 0"), I(f"v_cndmask_b32 v{v}, v{v}, v9, vcc")]))

def g1_group(p, g, dyn=False):
    kind = "a" if p == 0 else ("z" if p == 7 else "")
    ms = group_mfmas(1, range(3 * g, 3 * g + 3), 17)
    side = []
    nph, npp = (1, p + 1) if p < 7 else (2, 0)
    if g % 2 == 1:
        need = cover(1, p, 3 * g + 3, 3 * g + 9) if g < 5 else cover(nph, npp, 0, 6)
        if g == 1 and p == 1: need = need + [("ABST", 4)]
        side.append((0, [WAIT(f"g1_b{g}{kind}", vm=need), BAR()]))
    rd = []
    for s in range(3 * g + 3, 3 * g + 6):
        rd += trr(1, p, s) if s < 18 else trr(nph, npp, s - 18)
    side += list(zip([1, 2, 4, 5, 6, 7], rd))
    for k, s in enumerate(range(3 * g + 15, 3 * g + 18)):
        pre, dm = wdma(1, p, s) if s < 18 else wdma(nph, npp, s - 18)
        gp = [3, 8, 13][k]
        if pre: side.append((gp - 2, pre[0])); side.append((gp - 1, pre[1]))
        side.append((gp, dm))
    if g == 0:
        if p < 7:
            side.append((11, [I("s_add_u32 s73, s73, 128"), I("s_and_b32 s73, s73, 0x380")])); side.append((12, I("s_add_u32 s62, s73, s74")))
        else:
            side.append((11, I("s_mov_b32 s62, s72")))
    hr = []
    if kind == "z" and g >= 1:
        hr = hreads(2 * g - 2) + hreads(2 * g - 1)
        side += list(zip([0 if g % 2 == 0 else 1, 2, 4, 5, 6, 7, 9, 9, 11, 12], hr))
    if kind == "a":
        ep = ab_epilogue(); st = ab_once(0); wr = ab_once(2); ag = ab_gaddr()
        if g == 0: side += spread(ep[:26], [3, 4, 5, 6, 7, 9, 9, 10, 10, 11, 12, 13, 14])
        if g == 1:
            side += spread(ep[26:], [1, 2, 3, 4, 5, 6, 7, 9, 11, 12, 13]) + [(9, wr[0]), (10, wr[1]), (12, wr[2]), (14, wr[3])]
        if g == 2:
            r2 = ab_once(3); rd = rd + r2
            side += [(0, wr[4]), (9, r2[0]), (10, r2[1])]
        if g == 3: side += list(zip([0, 1, 2], st))
        if g in (3, 4, 5):
            s3_ = setup3(); n3 = (len(s3_) + 2) // 3
            side += spread(s3_[(g - 3) * n3:(g - 2) * n3], [3, 4, 5, 6, 7, 9, 9, 10, 10, 11, 12, 14])
    if kind == "" and g == 1:
        side.append((9, [I("s_cmp_eq_u32 s63, 6"), I("s_cbranch_scc1 L_once1")] + (ab_once(1) if (dyn and p == 1) else []) + [I("L_once1_ret:")]))
    if kind == "a": pass
    elif g < 5:
        cv, mx, w = h_tile(p - 1, g)
        if kind == "z" and g >= 1:
            side += [(3, cv[0]), (8, cv[1]), (10, mx), (13, w)]
        else:
            side += [(4, cv[0]), (5, cv[1]), (9, mx), (10, w)]
    else:
        side.append((10, I(f"v_add_u32 v{V_HW}, 10240, v{V_HW}")))
    if kind == "": cyc_stamp(side, g, 2, 12, 130)
    if g == 5 and kind == "": side.append((13, [I("s_sub_u32 s63, s63, 1"), I("s_cmp_lg_u32 s63, 0")]))
    side.append((14, WAIT(f"g1_r{g}{kind}", lg=tags(rd))))
    return place(ms, side)

def nextcol():
    return [[I("s_add_u32 s62, s62, 128"), I("s_cmp_eq_u32 s62, 1152"), I("s_cselect_b32 s62, 0, s62")],
            [I("s_cmp_eq_u32 s62, s72"), I(f"s_cselect_b32 s62, {OOB}, s62"), I("s_xor_b32 s60, s60, 0x10000")]]
def g2_pass0():
    o = []
    groups = [(0, 1, 2), (3, 4, 5), (6, 7), (8, 9, 10, 11), (12, 13, 14, 15)]
    cuts = [15, 19, 23, 26, 31, 36]
    hsteps = [(10,), (11, 12), (13,), (14, 15), ()]
    htl = [(0, 1), (2, 3), (4,), (), ()]
    for gi, st in enumerate(groups):
        ms = group_mfmas(2, st, 15); n = len(ms); side = []
        if gi == 1: side.append((0, [WAIT("g20_b1", vm=cover(2, 0, 6, 12)), BAR()]))
        if gi == 3: side.append((0, [WAIT("g20_b3", vm=cover(2, 0, 12, 16), lg=[("HW", 7, 4)]), BAR()]))
        if gi == 4: side.append((0, [WAIT("g20_b4", vm=cover(2, 1, 0, 8)), BAR(), I(f"v_xor_b32 v{V_TR}, 0x10000, v{V_TR}")]))
        dl = list(range(cuts[gi], cuts[gi + 1]))
        dg = [min(n - 1, 2 + (i * (n - 1)) // len(dl)) for i in range(len(dl))]
        for s, gp in zip(dl, dg):
            pre, dm = wdma(2, s // 16, s % 16)
            if s % 16 == 0:
                nc = nextcol(); side.append((gp - 2, nc[0] + nc[1]))
            if pre: side.append((gp - 1, pre))
            side.append((gp, dm))
        free = [x for x in range(1 if gi in (1, 3, 4) else 0, n - 3) if x not in dg]
        rd = []
        for s in (groups[gi + 1] if gi < 4 else range(16, 20)): rd += trr(2, s // 16, s % 16)
        for s in hsteps[gi]: rd += hreads(s)
        side += spread(rd, free)
        for k, t in enumerate(htl[gi]):
            cv, mx, w = h_tile(7, t)
            b = 3 + 4 * k
            side += [(b, cv[0]), (b + 1, cv[1]), (b + 2, mx[0]), (b + 3, mx[1]), (n - 3 + k, w)]
        gp_ = g2_pre()
        if gi == 3: side += spread(gp_[:30], list(range(1, n - 1)))
        if gi == 4: side += spread(gp_[30:], list(range(1, n - 1)))
        side.append((n - 1, WAIT(f"g20_r{gi}", lg=tags(rd))))
        o += place(ms, side)
    return o
SUM, PBUF, PB2 = 216, 236, 76
V_SELA = 248
V_FLW = 254
V_FLG = 128
V_K0, V_K1 = 129, 130
YR, GR, SEL, OA, V_YA, V_YA0, V_GA = 100, 132, 110, 114, 120, 121, 122
def slot_loads(b, tag, so="s34"):
    return [VM(f"buffer_load_dwordx4 v[{b}:{b+3}], v{V_P16}, s[16:19], {so} offen sc1", (tag, 0)),
            VM(f"buffer_load_dwordx4 v[{b+4}:{b+7}], v{V_P16}, s[16:19], {so} offen offset:1024 sc1", (tag, 1)),
            VM(f"buffer_load_dwordx2 v[{b+8}:{b+9}], v{V_P8}, s[16:19], {so} offen offset:2048 sc1", (tag, 2))]
def slot_add(d, b, first=False):
    o = []
    for t in range(5):
        a = V_SELA + (0 if t & 1 else 2); bb = b + 4 * (t >> 1); D = f"v[{d+4*t}:{d+4*t+3}]"
        o.append(mfma(D, f"v[{a}:{a+3}]", f"v[{bb}:{bb+3}]", "0" if first else D))
    return o
def slot_next():
    return [[I("s_cmp_eq_u32 s96, 0"), I(f"s_cselect_b32 s97, {72*SL}, 0"), I("s_add_u32 s95, s95, s97")],
            [I(f"s_sub_u32 s95, s95, {7*SL}"), I("s_sub_u32 s96, s96, 1")]]
def sample(tag, so=None):
    if so: return VM(f"buffer_load_dword v{V_FLG}, v{V_FL}, s[16:19], {so} offen offset:2560 sc1", tag)
    return VM(f"buffer_load_dword v{V_FLG}, v{V_POLL}, s[16:19], 0 offen sc1", tag)
def check(lab):
    return [I(f"v_cmp_eq_u32 vcc, s7, v{V_FLG}"), I("s_and_b32 s97, vcc_lo, s35"), I("s_cmp_eq_u32 s97, s35"), I(f"s_cbranch_scc0 {lab}"), I(f"{lab}_ret:")]
def spin(lab, so=None):
    return T(f"""
    {lab}:
    s_mov_b32 s98, {SPIN}
    {lab}_l:
    {sample(None, so).text}
    s_sub_u32 s98, s98, 1
    s_cmp_eq_u32 s98, 0
    s_cbranch_scc1 {lab}_ret
    s_waitcnt vmcnt(0)
    v_cmp_eq_u32 vcc, s7, v{V_FLG}
    s_and_b32 s97, vcc_lo, s35
    s_cmp_eq_u32 s97, s35
    s_cbranch_scc0 {lab}_l
    s_branch {lab}_ret
    """)
def g2_group(p, g):
    ms = group_mfmas(2, range(4 * g, 4 * g + 4), 15); side = []
    if g in (1, 3):
        need = cover(2, p, 8, 16) if g == 1 else cover(2, p + 1, 0, 8) + [("PST", p - 1, 2), ("SMP", p)] + ([(("SL", p - 1), 2)] if p > 1 else [])
        side.append((0, [WAIT(f"g2_b{g}", vm=need), BAR()] + ([I(f"v_xor_b32 v{V_TR}, 0x10000, v{V_TR}")] if g == 3 else [])))
    rd = []
    for s in range(4 * g + 4, 4 * g + 8): rd += trr(2, p + s // 16, s % 16)
    side += list(zip([1, 2, 4, 5, 6, 7, 9, 10], rd))
    for k, s in enumerate(range(4 * g + 20, 4 * g + 24)):
        pre, dm = wdma(2, p + s // 16, s % 16)
        gp = [3, 8, 13, 18][k]
        if pre: side.append((gp - 2, pre[0])); side.append((gp - 1, pre[1]))
        side.append((gp, dm))
    if g == 0:
        pp = p_parts(p - 1)
        side.append((0, sample(("SMP", p), "s34")))
        side += list(zip([4, 5, 6, 7, 9, 10, 11, 12, 14, 14], pp[0][0] + pp[1][0] + pp[2][0]))
        side += [(15, pp[0][1]), (16, pp[1][1]), (17, pp[2][1])]
    if g == 2:
        nc = nextcol(); side += [(16, nc[0]), (17, nc[1])]
        sn = slot_next(); side += [(14, sn[0]), (15, sn[1])]
    if g == 3:
        ad = slot_add(SUM, PBUF); ld = slot_loads(PBUF, ("SL", p)); ck = check("L_sp1")
        side.append((0, [ad[0], VM(f"buffer_store_dword v{V_TAG}, v{V_FLW}, s[16:19], s78 offen offset:2560 sc1", ("PFL", p - 1)),
                         ad[1], ck[0], ad[2]] + ck[1:] + [ad[3], I(f"s_add_u32 s78, s78, {SL}"), ad[4]]))
        side += list(zip([14, 15, 16], ld))
        side.append((17, [I("s_cmp_gt_u32 s63, 6"), I(f"s_cselect_b32 s34, {OOB}, s95"), I("s_cselect_b32 s35, 0, 1")]))
        side.append((18, [I("s_sub_u32 s63, s63, 1"), I("s_cmp_lg_u32 s63, 0")]))
    cyc_stamp(side, g, 1, 19, 152-1 if False else 131)
    side.append((19, WAIT(f"g2_r{g}", lg=tags(rd))))
    return place(ms, side)

def g2_pre():
    o = T(f"""
    v_sub_u32 v5, s6, v{V_L}
    v_add_u32 v6, 9, v5
    v_min_u32 v5, v5, v6
    v_lshl_add_u32 v5, v5, 3, v{V_L}
    s_mul_i32 s95, s4, {72*SL}
    s_mul_i32 s96, s3, {WSL}
    s_add_u32 s95, s95, s96
    s_add_u32 s95, s95, {WS_PART}
    v_mul_u32_u24 v5, {SL}, v5
    s_add_u32 s97, s95, 2560
    v_add_u32 v5, s97, v5
    s_lshl_b32 s97, s4, 7
    s_add_u32 s97, s97, {WS_YFLAG - 32}
    v_lshl_add_u32 v6, v{V_L}, 2, s97
    v_cmp_gt_u32 vcc, 8, v{V_L}
    v_subrev_u32 v4, 5, v{V_L}
    s_mul_i32 s97, s6, {8*SL}
    v_cndmask_b32 v5, v6, v5, vcc
    v_cmp_gt_u32 vcc, 23, v4
    v_mov_b32 v6, {OOB}
    s_add_u32 s95, s95, s97
    v_cndmask_b32 v{V_POLL}, v6, v5, vcc
    v_cmp_eq_u32 vcc, 7, v{V_L}
    s_add_u32 s95, s95, {14*SL}
    s_nop 0
    v_cndmask_b32 v{V_POLL}, v{V_POLL}, v6, vcc
    s_add_u32 s96, s6, 2
    s_mov_b32 s63, 7
    s_mov_b32 s34, {OOB}
    s_mov_b32 s35, 0
    v_lshlrev_b32 v4, 2, v{V_L}
    v_cmp_gt_u32 vcc, 32, v{V_L}
    v_lshlrev_b32 v5, 2, v{V_Q}
    v_sub_u32 v5, v{V_C}, v5
    v_cndmask_b32 v{V_FLW}, v6, v4, vcc
    v_and_b32 v4, 1, v5
    v_lshlrev_b32 v4, 4, v4
    v_mov_b32 v6, 0x3f80
    v_lshlrev_b32 v4, v4, v6
    v_lshrrev_b32 v5, 1, v5
    v_cmp_eq_u32 vcc, 0, v5
    v_mov_b32 v{V_SELA}, 0
    v_mov_b32 v{V_SELA+1}, 0
    v_cndmask_b32 v{V_SELA+2}, 0, v4, vcc
    v_cmp_eq_u32 vcc, 1, v5
    v_mov_b32 v{V_SELA+4}, 0
    v_mov_b32 v{V_SELA+5}, 0
    v_cndmask_b32 v{V_SELA+3}, 0, v4, vcc
    """)
    for i in range(20): o.append(I(f"v_mov_b32 v{SUM+i}, 0"))
    for i in range(12): o.append(I(f"v_mov_b32 v{PBUF+i}, 0"))
    return o

def fin_setup():
    o = T(f"""
    s_lshl_b32 s68, s6, 6
    s_lshl_b32 s69, s3, 4
    s_add_u32 s68, s68, s69
    v_add_u32 v5, s68, v{V_C}
    v_sub_u32 v6, 576, v5
    v_cmp_lt_u32 s[76:77], v6, v5
    v_min_u32 v6, v5, v6
    s_mul_i32 s69, s4, 20
    v_add_u32 v7, s69, v{V_Q}
    s_movk_i32 s70, 2560
    v_lshlrev_b32 v6, 3, v6
    v_mad_u32_u24 v{V_YA}, v7, s70, v6
    v_add_u32 v{V_YA}, {WS_YT}, v{V_YA}
    v_cmp_eq_u32 s[80:81], 0, v7
    v_add_u32 v9, {512*2560}, v{V_YA}
    s_and_b64 s[82:83], s[80:81], s[76:77]
    v_lshlrev_b32 v{V_GA}, 4, v7
    v_add_u32 v{V_GA}, {WS_GT}, v{V_GA}
    v_cndmask_b32 v{V_YA0}, v{V_YA}, v9, s[82:83]
    """)
    for rho in range(4):
        d = 0x0c0c | ((2 * rho) << 16) | ((2 * rho + 1) << 24); m = 0x0c0c | ((6 - 2 * rho) << 16) | ((7 - 2 * rho) << 24)
        o += T(f"v_mov_b32 v8, {d}\nv_mov_b32 v9, {m}\nv_cndmask_b32 v{SEL+rho}, v8, v9, s[76:77]")
    o += T(f"""
    v_lshlrev_b32 v5, 1, v5
    s_movk_i32 s67, 1152
    v_mad_u32_u24 v{OA}, v7, s67, v5
    v_add_u32 v{OA+1}, {1024*1152}, v{OA}
    v_sub_u32 v8, {1024-16}, v7
    v_mad_u32_u24 v{OA+2}, v8, s67, v5
    v_add_u32 v{OA+3}, {1024*1152}, v{OA+2}
    v_sub_u32 v8, 1024, v7
    v_mov_b32 v9, 512
    v_cndmask_b32 v8, v8, v9, s[80:81]
    v_mad_u32_u24 v{OA+4}, v8, s67, v5
    v_add_u32 v{OA+5}, {1024*1152}, v{OA+4}
    """)
    return o

def g2_last():
    o = []; p = 8
    fs = fin_setup()
    for g in range(4):
        ms = group_mfmas(2, range(4 * g, 4 * g + 4), 15); side = []
        if g == 0:
            for t in range(5): ms[t].text = ms[t].text[:-1] + f"v[{SUM+4*t}:{SUM+4*t+3}]"
        rd = []
        if g < 3:
            for s in range(4 * g + 4, 4 * g + 8): rd += trr(2, p, s)
            side += list(zip([1, 2, 4, 5, 6, 7, 9, 10] if g else [9, 10, 11, 12, 13, 14, 15, 16], rd))
        if g == 0:
            pp = p_parts(7)
            side += list(zip([1, 1, 2, 2, 4, 4, 5, 5, 7, 7], pp[0][0] + pp[1][0] + pp[2][0]))
            side += [(3, pp[0][1]), (6, pp[1][1]), (8, pp[2][1])]
            side += spread(fs[:16], list(range(9, 19)))
            side.append((19, I(f"s_mov_b32 s35, {(3 << 5) | (0xfffff << 8)}")))
        if g == 1:
            side.append((0, [WAIT("g2z_b1", vm=cover(2, p, 8, 16) + [(("SL", 7), 2)]), BAR()]))
            side.append((3, sample("S0")))
            side += spread(fs[16:], list(range(1, 12)))
            side.append((12, slot_add(SUM, PBUF, True)))
            sn = slot_next(); side += [(13, I("s_mov_b32 s34, s95")), (14, sn[0]), (15, sn[1]), (16, I("s_mov_b32 s94, s95"))]
            sn = slot_next(); side += [(17, sn[0]), (18, sn[1])]
        if g == 2:
            side.append((0, [WAIT("g2z_st", vm=[("PST", 7, 2)]), VM(f"buffer_store_dword v{V_TAG}, v{V_FLW}, s[16:19], s78 offen offset:2560 sc1", ("PFL", 7))]))
            side.append((3, [I(f"v_mov_b32 v{PK+10}, 0"), I(f"v_mov_b32 v{PK+11}, 0")]))
            side.append((12, [WAIT("g2z_s0", vm=["S0"])] + check("L_sp2")))
            side += list(zip([13, 14, 15, 16, 17, 18], slot_loads(PBUF, "SL5", "s34") + slot_loads(PK, "SL6", "s94")))
        if g == 3:
            ld = []
            for t in range(5):
                ld.append([I(f"s_mov_b32 s68, {t*4*2560}"), VM(f"buffer_load_dwordx2 v[{YR+2*t}:{YR+2*t+1}], v{V_YA0 if t == 0 else V_YA}, s[16:19], s68 offen sc1", ("YL", t))])
                ld.append(VM(f"buffer_load_dwordx4 v[{GR+4*t}:{GR+4*t+3}], v{V_GA}, s[16:19], 0 offen offset:{64*t} sc1", ("GL", t)))
            side += list(zip(range(10), ld))
            side.append((10, [I("s_mov_b32 s35, 1"), sample("S1", "s95")]))
        if g < 3: side.append((19, WAIT(f"g2z_r{g}", lg=tags(rd))))
        o += place(ms, side)
    o += TS(7)
    o += T(f"v_mov_b32 v{PB2+10}, 0\nv_mov_b32 v{PB2+11}, 0")
    o.append(WAIT("fin_s1", vm=["S1"])); o += check("L_sp3")
    o += slot_loads(PB2, "SL7", "s95")
    o += slot_add(SUM, PBUF) + slot_add(E0, PK)
    for t in range(5):
        for rho in range(4): o.append(I(f"v_perm_b32 v{56+4*t+rho}, v{YR+2*t+1}, v{YR+2*t}, v{SEL+rho}"))
    for i in range(20): o.append(I(f"v_add_f32 v{E0+i}, v{E0+i}, v{SUM+i}"))
    for i in range(20): o.append(I(f"v_mul_f32 v{56+i}, v{56+i}, v{GR+i}"))
    for i in range(20): o.append(I(f"v_sub_f32 v{GR+i}, 1.0, v{GR+i}"))
    o.append(WAIT("fin_7", vm=[("SL7", 2)])); o += slot_add(E0, PB2)
    o.append(I("s_nop 3"))
    for t in range(5):
        for rho in range(4): o.append(I(f"v_fmac_f32 v{56+4*t+rho}, v{E0+4*t+rho}, v{GR+4*t+rho}"))
        o += T(f"""
        v_cvt_pk_bf16_f32 v{PK+2*t}, v{56+4*t}, v{56+4*t+1}
        v_cvt_pk_bf16_f32 v{PK+2*t+1}, v{56+4*t+2}, v{56+4*t+3}
        s_add_u32 s68, {"s75" if t >= 3 else "0"}, {t*4608}
        s_add_u32 s69, {"s75" if t >= 3 else "0"}, {(4-t)*4608 if t else 0}
        buffer_store_short v{PK+2*t}, v{OA}, s[24:27], s68 offen
        buffer_store_short_d16_hi v{PK+2*t}, v{OA+1}, s[24:27], s68 offen
        buffer_store_short v{PK+2*t+1}, v{OA+2 if t else OA+4}, s[24:27], s69 offen
        buffer_store_short_d16_hi v{PK+2*t+1}, v{OA+3 if t else OA+5}, s[24:27], s69 offen
        """)
    o += T(f"""
    s_or_b32 s68, s2, s3
    s_cmp_eq_u32 s68, 0
    s_cbranch_scc0 L_noepoch
    buffer_store_dword v{V_TAG}, v{V_FL}, s[16:19], 0 offen sc1
    L_noepoch:
    """)
    return o

def T(s): return [I(x.strip()) for x in s.strip().split("\n") if x.strip()]
def rowcalc(o, rho, d, tmp):
    return T(f"""
    v_cmp_eq_u32 vcc, 0, v{o}
    v_mov_b32 v{tmp}, 512
    v_add_u32 v{tmp+1}, 1, v{rho}
    v_cndmask_b32 v{tmp}, v{o}, v{tmp}, vcc
    v_cmp_lt_u32 vcc, 1, v{rho}
    v_sub_u32 v{tmp}, 0, v{tmp}
    v_lshrrev_b32 v{tmp+1}, 1, v{tmp+1}
    v_cndmask_b32 v{tmp}, v{o}, v{tmp}, vcc
    v_lshl_add_u32 v{d}, v{tmp+1}, 10, v{tmp}
    """)

def srd(b, p, n): return T(f"s_mov_b32 s{b}, s{p}\ns_mov_b32 s{b+1}, s{p+1}\ns_mov_b32 s{b+2}, {n}\ns_mov_b32 s{b+3}, 0x20000")

def prologue():
    o = T(f"""
    s_cmp_ge_u32 s2, 256
    s_cbranch_scc1 L_end
    s_load_dwordx16 s[36:51], s[0:1], 0
    s_load_dwordx8 s[52:59], s[0:1], 64
    """) + TS(0) + T(f"""
    v_lshrrev_b32 v4, 6, v0
    v_and_b32 v{V_L}, 63, v0
    v_readfirstlane_b32 s3, v4
    v_and_b32 v{V_C}, 15, v0
    v_bfe_u32 v{V_Q}, v0, 4, 2
    s_and_b32 s60, s2, 3
    s_bfe_u32 s61, s2, 0x10002
    s_lshr_b32 s62, s2, 3
    s_cmp_eq_u32 s60, 3
    s_cselect_b32 s63, 30, 29
    s_cmp_ge_u32 s62, s63
    s_cbranch_scc1 L_spare
    """)
    if cfg.map == 0:
        o += T("""
    s_mul_i32 s64, s60, 29
    s_add_u32 s64, s64, s62
    s_mul_i32 s5, s64, 5042
    s_lshr_b32 s5, s5, 16
    s_mul_i32 s65, s5, 13
    s_sub_u32 s64, s64, s65
    s_mul_i32 s4, s61, 13
    s_add_u32 s4, s4, s64
    """)
    elif cfg.map == 1:
        o += T("""
    s_mul_i32 s64, s61, 13
    s_mul_i32 s65, s60, 3
    s_add_u32 s64, s64, s65
    s_add_u32 s64, s64, s62
    s_sub_u32 s64, s64, 26
    s_and_b32 s65, s2, 7
    s_cmp_lt_u32 s62, 26
    s_cselect_b32 s4, s62, s64
    s_cselect_b32 s5, s65, 8
    """)
    else:
        o += T("""
    s_mul_i32 s65, s60, 3
    s_add_u32 s64, s65, s62
    s_sub_u32 s64, s64, 26
    s_lshl_b32 s5, s60, 1
    s_cmp_ge_u32 s62, 13
    s_cselect_b32 s65, 13, 0
    s_cselect_b32 s66, 1, 0
    s_add_u32 s5, s5, s66
    s_sub_u32 s4, s62, s65
    s_cmp_lt_u32 s62, 26
    s_cselect_b32 s4, s4, s64
    s_cselect_b32 s5, s5, 8
    s_mul_i32 s65, s61, 13
    s_add_u32 s4, s4, s65
    """)
    o += T(f"""
    s_and_b32 s66, s3, 1
    s_lshl_b32 s64, s62, 1
    s_add_u32 s64, s64, s66
    s_mul_i32 s64, s64, 15
    v_add_u32 v4, s64, v{V_L}
    s_mul_i32 s64, s60, {64*1152}
    v_lshlrev_b32 v5, 7, v4
    v_add_u32 v6, s64, v5
    v_add_u32 v5, {256*1152 - 576*128}, v5
    v_cmp_gt_u32 vcc, 576, v4
    v_mov_b32 v7, {OOB}
    s_mov_b32 s100, s60
    v_cndmask_b32 v5, v5, v6, vcc
    v_cmp_gt_u32 vcc, 15, v{V_L}
    s_mov_b32 s99, s62
    s_nop 0
    v_cndmask_b32 v{V_PFD}, v7, v5, vcc
    """)
    o += T(f"""
    v_lshrrev_b32 v4, 3, v{V_L}
    v_and_b32 v5, 3, v4
    v_lshrrev_b32 v6, 5, v{V_L}
    s_mul_i32 s65, s4, 20
    v_add_u32 v6, s65, v6
    s_and_b32 s66, s3, 1
    s_lshl_b32 s66, s66, 2
    v_lshrrev_b32 v7, 4, v{V_L}
    v_add_u32 v7, s66, v7
    v_and_b32 v8, 7, v{V_L}
    v_xor_b32 v7, v7, v8
    v_lshlrev_b32 v7, 4, v7
    s_movk_i32 s67, 1152
    v_mov_b32 v20, {OOB}
    s_bitcmp1_b32 s5, {0 if cfg.rev else 31}
    s_cselect_b32 s92, -1, 1
    s_cselect_b32 s79, 1024, 0
    s_cselect_b32 s34, {8*64*9216}, 0
    s_lshl_b32 s92, s92, 7
    s_lshl_b32 s93, s92, 1
    s_sub_u32 s83, s79, s92
    s_mul_i32 s35, s92, {64*72}
    """)
    for n in range(5):
        o += T(f"""
        s_add_u32 s68, s3, {4*n}
        s_cmp_ge_u32 s68, 10
        s_cselect_b32 s69, 10, 0
        s_cselect_b32 s{XH+n}, s92, 0
        s_sub_u32 s68, s68, s69
        s_lshl_b32 s68, s68, 1
        v_add_u32 v9, s68, v6
        """) + rowcalc(9, 5, 16, 17) + T(f"""
        v_cmp_gt_u32 vcc, 512, v9
        v_mad_u32_u24 v16, v16, s67, v7
        s_nop 0
        v_cndmask_b32 v{V_XO+n}, v20, v16, vcc
        """)
    o += T(f"""
    s_lshl_b32 s68, s5, 5
    s_lshl_b32 s69, s66, 2
    s_add_u32 s68, s68, s69
    v_add_u32 v9, s68, v4
    v_lshrrev_b32 v7, 4, v{V_L}
    v_xor_b32 v7, v7, v8
    v_lshlrev_b32 v7, 4, v7
    v_mad_u32_u24 v{V_ABA}, v9, s67, v7
    v_xor_b32 v7, 64, v7
    v_mad_u32_u24 v{V_ABB}, v9, s67, v7
    v_add_u32 v{V_ABB}, {8*1152-1024}, v{V_ABB}
    s_lshl_b32 s60, s3, 11
    s_lshl_b32 s82, s3, 10
    s_add_u32 s82, s82, {XB}
    s_waitcnt lgkmcnt(0)
    s_load_dword s7, s[58:59], 0
    """) + srd(12, 36, 2359296) + T(f"""
    s_cmp_lt_u32 s3, 2
    s_cselect_b32 s20, s42, s44
    s_cselect_b32 s21, s43, s45
    s_mov_b32 s22, 663552
    s_mov_b32 s23, 0x20000
    """)
    return o

def setup2():
    o = srd(8, 48, 5308416) + (lambda x: x if cfg.pf1 & 2 else [])(T(f"""
    s_lshl_b32 s68, s99, 2
    s_add_u32 s68, s68, s3
    s_mul_i32 s68, s68, 5
    v_mul_u32_u24 v5, 43, v{V_L}
    v_lshrrev_b32 v5, 8, v5
    v_mul_u32_u24 v6, 6, v5
    v_sub_u32 v6, v{V_L}, v6
    v_add_u32 v5, s68, v5
    v_lshrrev_b32 v7, 1, v6
    v_and_b32 v6, 1, v6
    s_lshl_b32 s68, s100, 1
    v_cmp_eq_u32 vcc, 2, v7
    v_add_u32 v7, s68, v7
    v_mul_u32_u24 v5, 9216, v5
    v_cndmask_b32 v7, v7, 8, vcc
    v_lshl_add_u32 v5, v6, 7, v5
    v_cmp_gt_u32 vcc, 30, v{V_L}
    v_lshl_add_u32 v5, v7, 10, v5
    v_mov_b32 v6, {OOB}
    v_cndmask_b32 v{V_PF1}, v6, v5, vcc
    """)) + srd(16, 58, WS_SIZE)
    o += T(f"""
    v_lshrrev_b32 v4, 3, v{V_L}
    s_lshl_b32 s68, s3, 4
    v_add_u32 v4, s68, v4
    v_and_b32 v5, 1, v{V_Q}
    v_lshlrev_b32 v5, 1, v5
    v_and_b32 v8, 7, v{V_L}
    v_xor_b32 v5, v5, v8
    v_lshlrev_b32 v5, 4, v5
    v_xor_b32 v6, 64, v5
    s_movk_i32 s68, 9216
    v_mad_u32_u24 v{V_A}, v4, s68, v5
    v_mad_u32_u24 v{V_B}, v4, s68, v6
    v_add_u32 v{V_B}, {8*9216-1024}, v{V_B}
    v_mad_u32_u24 v{V_W2A}, v4, s67, v5
    v_mad_u32_u24 v{V_W2B}, v4, s67, v6
    v_bfe_u32 v4, v{V_L}, 2, 2
    v_and_b32 v5, 3, v{V_L}
    v_and_b32 v6, 1, v{V_Q}
    v_lshlrev_b32 v6, 1, v6
    v_lshrrev_b32 v7, 1, v4
    v_add_u32 v6, v6, v7
    v_xor_b32 v6, s3, v6
    v_lshlrev_b32 v6, 5, v6
    v_lshl_add_u32 v6, v{V_Q}, 10, v6
    v_lshl_add_u32 v6, v4, 7, v6
    v_lshl_add_u32 v{V_TR}, v5, 3, v6
    v_add_u32 v{V_TR2}, 0x10000, v{V_TR}
    v_lshrrev_b32 v4, 1, v{V_C}
    v_xor_b32 v4, v4, v{V_Q}
    v_lshlrev_b32 v4, 4, v4
    v_lshl_add_u32 v4, v{V_C}, 7, v4
    v_add_u32 v{V_XR0}, {XB}, v4
    v_xor_b32 v{V_XR1}, 64, v{V_XR0}
    v_add_u32 v{V_WR0}, s60, v4
    v_xor_b32 v{V_WR1}, 64, v{V_WR0}
    v_mov_b32 v{V_PATCH}, 0xbf803f80
    s_lshl_b32 s68, s5, 2
    s_or_b32 s68, s68, s3
    s_cmp_eq_u32 s68, 2
    s_cselect_b32 s76, 0x00010001, 0
    s_mov_b32 s77, s76
    s_cselect_b32 s69, 1, 0
    s_lshr_b32 s70, s3, 1
    """)
    o += T(f"""
    s_cmp_eq_u32 s70, 0
    s_cselect_b32 s71, 1.0, -1.0
    v_mov_b32 v{V_SIG}, s71
    s_cmp_eq_u32 s69, 1
    s_cselect_b32 s72, 16, 0
    v_cmp_gt_u32 vcc, s72, v{V_L}
    v_mov_b32 v4, 1.0
    v_and_b32 v5, 1, v{V_L}
    v_cndmask_b32 v{V_SIG0}, v{V_SIG}, v4, vcc
    s_cmp_eq_u32 s4, 0
    s_cselect_b32 s72, 4, 0
    v_cmp_gt_u32 vcc, s72, v{V_C}
    s_cselect_b32 s80, 8, 0
    v_lshlrev_b32 v5, 31, v5
    v_cndmask_b32 v{V_SIGT0}, v{V_SIG}, 0, vcc
    v_cndmask_b32 v{V_SIG0T0}, v{V_SIG0}, 0, vcc
    v_or_b32 v{V_TAU}, v4, v5
    s_cmp_eq_u32 s69, 1
    s_cselect_b32 s80, s80, 0
    s_mov_b32 s81, 0
    """)
    o += T(f"""
    v_lshrrev_b32 v4, 2, v{V_C}
    v_and_b32 v5, 3, v{V_C}
    s_mul_i32 s68, s3, 1792
    s_add_u32 s68, s68, {ABL}
    v_and_b32 v6, 1, v4
    v_mul_u32_u24 v6, 320, v6
    v_lshrrev_b32 v7, 1, v4
    v_lshl_add_u32 v6, v7, 5, v6
    v_lshl_add_u32 v9, v{V_Q}, 3, s68
    v_add_u32 v6, v6, v9
    v_add_u32 v7, 640, v6
    v_add_u32 v8, 1344, v9
    v_cmp_eq_u32 vcc, 1, v5
    v_add_u32 v9, 1280, v9
    s_lshl_b32 s71, s70, 1
    v_cndmask_b32 v{V_ABS}, v8, v7, vcc
    v_cmp_eq_u32 vcc, 0, v5
    s_add_u32 s71, s71, 1
    s_nop 0
    v_cndmask_b32 v{V_ABS}, v{V_ABS}, v6, vcc
    v_cndmask_b32 v8, v8, v6, vcc
    v_cmp_eq_u32 vcc, s71, v5
    s_nop 1
    v_cndmask_b32 v8, v8, v7, vcc
    v_cmp_eq_u32 vcc, 2, v5
    s_nop 1
    v_cndmask_b32 v8, v8, v9, vcc
    v_cmp_gt_u32 vcc, s72, v{V_C}
    s_cmp_eq_u32 s4, 25
    s_cselect_b32 s75, {OOB}, 0
    v_cndmask_b32 v{V_ABS0}, v{V_ABS}, v8, vcc
    s_mul_i32 s68, s5, 26
    s_add_u32 s68, s68, s4
    s_lshl_b32 s68, s68, 7
    s_add_u32 s68, s68, {WS_ABFLAG}
    v_cmp_gt_u32 vcc, 32, v0
    v_mov_b32 v8, {OOB}
    v_lshl_add_u32 v9, v0, 2, s68
    v_cndmask_b32 v{V_ABFL}, v8, v9, vcc
    v_cmp_eq_u32 vcc, 0, v{V_L}
    v_lshrrev_b32 v4, 3, v{V_L}
    v_mul_u32_u24 v4, {SL}, v4
    v_and_b32 v5, 7, v{V_L}
    v_lshl_add_u32 v{ABP+14}, v5, 4, v4
    v_cndmask_b32 v{V_FL}, v8, 0, vcc
    """)
    o += T(f"""
    s_mul_i32 s73, s4, {cfg.rot1}
    s_and_b32 s73, s73, 7
    s_mov_b32 s101, s73
    s_lshl_b32 s73, s73, 7
    s_lshl_b32 s74, s5, 10
    s_add_u32 s74, s74, s34
    s_add_u32 s62, s73, s74
    s_add_u32 s6, s4, s5
    s_mul_i32 s72, s6, 7282
    s_lshr_b32 s72, s72, 16
    s_mul_i32 s72, s72, 9
    s_sub_u32 s6, s6, s72
    s_add_u32 s72, s6, 1
    s_cmp_eq_u32 s72, 9
    s_cselect_b32 s72, 0, s72
    s_mul_i32 s63, s4, 9
    s_add_u32 s63, s63, s72
    s_lshl_b32 s72, s72, 7
    s_mul_i32 s78, s63, {8*SL}
    s_mul_i32 s63, s3, {WSL}
    s_add_u32 s78, s78, s63
    s_add_u32 s78, s78, {WS_PART}
    s_mov_b32 s63, 6
    s_waitcnt lgkmcnt(0)
    s_add_u32 s7, s7, 0x9e3779b9
    v_mov_b32 v{V_TAG}, s7
    v_not_b32 v{ABP+10}, s7
    v_not_b32 v{ABP+11}, s7
    v_not_b32 v{ABP+12}, s7
    v_not_b32 v{ABP+13}, s7
    """)
    return o

def setup3():
    o = srd(24, 54, 2359296) + srd(28, 50, 5308416) + T(f"""
    v_add_u32 v{V_W2B}, {8*1152-1024}, v{V_W2B}
    s_and_b32 s68, s3, 1
    s_lshl_b32 s68, s68, 9
    s_lshr_b32 s70, s3, 1
    s_mul_i32 s71, s70, 5120
    s_add_u32 s68, s68, s71
    s_add_u32 s68, s68, {HB}
    v_lshrrev_b32 v4, 1, v{V_Q}
    v_lshl_add_u32 v4, v4, 4, v{V_C}
    v_lshlrev_b32 v4, 4, v4
    v_and_b32 v5, 1, v{V_Q}
    v_lshl_add_u32 v4, v5, 3, v4
    v_add_u32 v{V_HW}, s68, v4
    v_lshlrev_b32 v{V_P16}, 4, v{V_L}
    v_lshlrev_b32 v{V_P8}, 3, v{V_L}
    v_add_u32 v{V_HR}, {HB}, v{V_P16}
    v_add_u32 v{V_HR2}, {HB+40960}, v{V_P16}
    """)
    o += T("s_lshl_b32 s99, s5, 3")
    for i in range(8):
        o += T(f"""
        s_add_u32 s{64+i}, s101, {i}
        s_and_b32 s{64+i}, s{64+i}, 7
        s_add_u32 s{64+i}, s{64+i}, s99
        s_mul_i32 s{64+i}, s{64+i}, {64*1152}
        """)
    return o

def poll(lab, vaddr, nl):
    return T(f"""
    s_mov_b32 s63, {SPIN}
    v_cmp_le_u32 s[80:81], {nl}, v{V_L}
    {lab}:
    s_sleep {cfg.slp}
    buffer_load_dword v4, v{vaddr}, s[16:19], 0 offen sc1
    s_sub_u32 s63, s63, 1
    s_waitcnt vmcnt(0)
    v_cmp_eq_u32 vcc, s7, v4
    s_cmp_eq_u32 s63, 0
    s_cbranch_scc1 {lab}_out
    s_or_b64 vcc, vcc, s[80:81]
    s_cmp_eq_u64 vcc, -1
    s_cbranch_scc0 {lab}
    {lab}_out:
    """)

def ts_dump(fn=0):
    if not cfg.ts: return []
    if cfg.ts >= 10:
        return T(f"""
        L_hold{fn}:
        s_memrealtime s[100:101]
        s_waitcnt lgkmcnt(0)
        s_sub_u32 s100, s100, s84
        s_cmp_lt_u32 s100, {cfg.ts*100}
        s_cbranch_scc1 L_hold{fn}
        """)
    o = T("s_waitcnt vmcnt(0)") + TS(8) + T("s_waitcnt lgkmcnt(0)")
    for k in range(9): o.append(I(f"v_mov_b32 v{16+k}, s{tsr(k)}"))
    o += T(f"""
    s_getreg_b32 s68, hwreg(HW_REG_XCC_ID)
    v_mov_b32 v25, s68
    v_mov_b32 v26, 0
    v_mov_b32 v27, 0
    s_lshl_b32 s68, s2, 2
    s_add_u32 s68, s68, s3
    s_lshl_b32 s68, s68, 6
    s_add_u32 s68, s68, {WS_TS}
    v_cmp_eq_u32 vcc, 0, v{V_L}
    v_mov_b32 v4, {OOB}
    s_nop 0
    v_cndmask_b32 v4, v4, 0, vcc
    buffer_store_dwordx4 v[16:19], v4, s[16:19], s68 offen
    buffer_store_dwordx4 v[20:23], v4, s[16:19], s68 offen offset:16
    buffer_store_dwordx4 v[24:27], v4, s[16:19], s68 offen offset:32
    """)
    if cfg.ts == 2 and not fn:
        o += T(f"""
        v_lshlrev_b32 v5, 2, v{V_L}
        v_cmp_gt_u32 vcc, 16, v{V_L}
        v_mov_b32 v4, {OOB}
        s_lshl_b32 s69, s68, 2
        s_sub_u32 s69, s69, {4*WS_TS - WS_TS - 0x300000}
        buffer_store_dword v131, v5, s[16:19], s69 offen
        s_add_u32 s68, s68, 0x100000
        v_cndmask_b32 v4, v4, v5, vcc
        buffer_store_dword v130, v4, s[16:19], s68 offen
        s_add_u32 s68, s68, 0x100000
        buffer_store_dword v131, v4, s[16:19], s68 offen
        """)
    if cfg.ts != 3: return o
    o += T(f"""
    s_waitcnt vmcnt(0)
    v_not_b32 v16, v16
    v_cmp_eq_u32 vcc, 0, v0
    v_mov_b32 v4, {OOB}
    s_sleep 127
    s_sleep 127
    v_cndmask_b32 v4, v4, 0, vcc
    """) + srd(28, 56, 256)
    o.append(I("buffer_atomic_umax v16, v4, s[28:31], 0 offen"))
    for k in range(1, 9 if not fn else 8): o.append(I(f"buffer_atomic_umax v{16+k}, v4, s[28:31], 0 offen offset:{4*(k+8*fn)}"))
    return o

from fnet import fnet_code

def build():
    def dyn(hasx22):
        d = prologue()
        d += ab_pass(hasx22)
        d += TS(2)
        for p in range(8):
            for g in range(6): d += g1_group(p, g, True)
        d += TS(4)
        d += g2_pass0()
        for p in range(1, 8):
            for g in range(4): d += g2_group(p, g)
        d += g2_last()
        return d
    d1, d0 = dyn(True), dyn(False)
    r1, r0 = resolve(d1), resolve(d0)
    mn = lambda a, b: a if b is None else (b if a is None else min(a, b))
    res = {k: (mn(r1[k][0], r0[k][0]), mn(r1[k][1], r0[k][1])) for k in r1}
    txt = lambda l: [wait_text(res, it.site) if it.kind == "wait" else it.text for it in l]
    for d in (d1, d0):
        check_lds(d, res); check_loads(txt(d)); check_hazards(txt(d)); check_scc(txt(d))
    st = prologue()
    st += ab_pass(True)
    st += TS(2)
    for g in range(6): st += g1_group(0, g)
    st += TS(3) + [I("L_g1:")]
    for g in range(6): st += g1_group(1, g)
    st.append(I("s_cbranch_scc1 L_g1"))
    for g in range(6): st += g1_group(7, g)
    st += TS(4)
    st += g2_pass0() + TS(5) + [I("L_g2:")]
    for g in range(4): st += g2_group(1, g)
    st.append(I("s_cbranch_scc1 L_g2"))
    st += TS(6)
    st += g2_last() + ts_dump() + [I("s_endpgm")] + [I("L_once1:")] + ab_once(1) + [I("s_branch L_once1_ret")] + spin("L_sp1", "s34") + spin("L_sp2") + spin("L_sp3", "s95")
    fn, idle = fnet_code(sys.modules[__name__])
    check_loads([it.text for it in fn]); check_hazards([it.text for it in fn]); check_scc([it.text for it in fn])
    st += fn + ts_dump(1) + [I("L_end:"), I("s_endpgm")] + idle
    if cfg.trace:
        ns = []; k = 0
        for it in st:
            ns.append(it)
            if it.kind == "wait" and it.site and re.match(r"(ab_rw\d|ab_r\d|ab_x\d|ab_b0|g1_r\d[az]|g20_r\d|g2z_r\d|g2z_st|g2z_s0|fin_)", it.site):
                ns += [I("s_waitcnt lgkmcnt(0)"), I(f"v_writelane_b32 v131, s32, {k}"), I("s_memtime s[32:33]")]; k += 1
                print(k, it.site, file=sys.stderr, end="; ")
            if it.text == "L_noepoch:": ns += [I("s_waitcnt lgkmcnt(0)"), I(f"v_writelane_b32 v131, s32, {k}")]
        st = ns
    if cfg.strip:
        a = [i for i, it in enumerate(st) if it.text == "L_g1:"][0]; b = [i for i, it in enumerate(st) if it.text == "s_cbranch_scc1 L_g2"][0]
        def drop(it):
            t = it.text or ""
            if cfg.strip & 1 and t.endswith(" lds"): return True
            if cfg.strip & 2 and (t.startswith(("v_cvt_pk", "v_pk_max", "ds_write")) or "s78 offen" in t): return True
            if cfg.strip & 4 and t == "s_barrier": return True
            if cfg.strip & 8 and it.kind == "wait" and it.need_vm: return True
            if cfg.strip & 16 and t.startswith("ds_read_b64_tr"): return True
            if cfg.strip & 32 and (t.startswith("ds_write") or "s78 offen" in t): return True
            if cfg.strip & 64 and t.startswith(("v_cvt_pk", "v_pk_max")): return True
            if cfg.strip & 128 and t.startswith("buffer_store_dword "): return True
            if cfg.strip & 1024 and it.kind == "wait" and it.need_lg and it.site not in ("g1_r2", "g2_r1"): return True
            if cfg.strip & 256 and "s78 offen" in t: it.text = t.replace(" sc1", "")
            if cfg.strip & 512 and "s78 offen" in t: it.text = t.replace(" sc1", " sc1 nt")
            return False
        st = st[:a] + [it for it in st[a:b] if not drop(it)] + st[b:]
    head = open("gated_mix__spectral_fnet__dense_activation_relu__prompt.s.ref").read().split("; Override launch")[0]
    out = head + "; @launch grid=(256,1,1) block=(256,1,1) lds=163840\n"
    out += f'.amdgcn_target "amdgcn-amd-amdhsa--gfx950"\n.text\n.globl {NAME}\n.p2align 8\n.type {NAME},@function\n{NAME}:\n'
    out += "\n".join(("" if (x.endswith(":") or x.startswith(".")) else "    ") + x for x in txt(st)) + "\n"
    out += f""".section .rodata,"a"
.p2align 6
.amdhsa_kernel {NAME}
  .amdhsa_next_free_vgpr 512
  .amdhsa_next_free_sgpr 102
  .amdhsa_accum_offset 256
  .amdhsa_group_segment_fixed_size 0
  .amdhsa_kernarg_size 96
  .amdhsa_user_sgpr_count 2
  .amdhsa_user_sgpr_kernarg_segment_ptr 1
  .amdhsa_system_sgpr_workgroup_id_x 1
.end_amdhsa_kernel
"""
    return out, res

if __name__ == "__main__":
    sys.modules["gen"] = sys.modules[__name__]
    outp = sys.argv[1]
    for a in sys.argv[2:]:
        k, v = a.split("="); setattr(cfg, k, int(v))
    out, res = build()
    open(outp, "w").write(out)
    print(res)
```

```python
import sys
from asmlib import *
NAME = "gated_mix__spectral_fnet__dense_activation_relu__prompt_kernel"
WS_PF, WS_ABFLAG, WS_YFLAG, WS_GT, WS_XS = 0x20000, 0x20000, 0xA000, 0x10000, 0x13000
WS_ABF, WS_YT, WS_PART, WS_TS, WS_SIZE = 0x100000, 0x280000, 0x400000, 0x2000000, 0x3000000
OOB = 0x40000000
WSL, SL = 2688, 10752
XB, HB = 71680, 81920
SPIN = 1 << 20

class Cfg:
    ts = False
    L2 = 12
    rot1 = 1
    chain = 0
    strip = 0
    pp = 0
    ne = 6
    inloop = 0
    osc = 1
    pt = 1
    trace = 0
    slp = 16
    map = 2
    pf1 = 1
    rev = 1
    pf2 = 0
    noab = 0
    pfs = 3
    warmfl = 1
    stspread = 1
    fake = 0
cfg = Cfg()

ACC = lambda t: f"v[{16+4*t}:{19+4*t}]"
EE = lambda t: f"v[{36+4*t}:{39+4*t}]"
E0 = 36
FB = lambda b: 56 + 4 * b
PK = 88
def act(i):
    return f"a[{4*i}:{4*i+3}]" if i < 64 else f"v[{152+4*(i-64)}:{155+4*(i-64)}]"
V_A, V_B = 10, 11
V_W2A, V_W2B = 12, 13
V_TR, V_TR2 = 14, 15
V_XO = 100
V_ABA, V_ABB = 105, 106
V_XR0, V_XR1 = 107, 108
V_WR0, V_WR1 = 109, 110
V_PATCH = 111
V_HW = 112
V_HR, V_HR2 = 113, 114
V_SIG, V_SIG0, V_SIGT0, V_SIG0T0, V_TAU = 115, 116, 117, 118, 119
V_ABS, V_ABS0 = 120, 121
V_ABFL = 122
V_TAG = 123
V_P16, V_P8 = 124, 125
V_FL = 126
V_POLL = 127
V_PFD, V_PF1, V_PF2, V_DUM = 132, 133, 134, 135
XH = 94
V_L, V_C, V_Q = 1, 2, 3

def mfma(d, a, b, c): return I(f"v_mfma_f32_16x16x32_bf16 {d}, {a}, {b}, {c}")
def place(ms, side):
    gaps = [[] for _ in ms]
    for g, it in side:
        gaps[g] += it if isinstance(it, list) else [it]
    out = []
    for m, g in zip(ms, gaps):
        out.append(m); out += g
    return out
def spread(items, gaps):
    n = len(items); k = len(gaps)
    return [(gaps[i * k // n], it) for i, it in enumerate(items)]

tsn = [0]
def tsr(k): return 84 + 2 * k if k < 4 else 36 + 2 * (k - 4)
def TS(k):
    if not cfg.ts: return []
    return [I(f"{'s_memtime' if cfg.ts == 2 else 's_memrealtime'} s[{tsr(k)}:{tsr(k)+1}]")]

def wslot(ph, p, s):
    if ph == 2: return ((p & 1) * 16 + s) * 4096
    return s * 4096
def wdma(ph, p, s):
    P, b = s >> 1, s & 1
    pre = []
    if b == 0:
        pre.append(I(f"s_add_u32 m0, s60, {P*8192}"))
        pre.append(I(f"s_add_u32 s61, s62, s{64+P}" if ph == 2 else ("s_add_u32 s61, s61, s35" if P else "s_mov_b32 s61, s62")))
    lo = wslot(ph, p, 2 * P)
    v, sr = (V_W2A, "s[28:31]") if ph == 2 else (V_A, "s[8:11]")
    return pre, VM(f"buffer_load_dwordx4 v{v+b}, {sr}, s61 offen offset:{1024*b} lds", ("W", ph, p, s), wr=(lo, lo + 8192))
def cover(ph, p, lo, hi): return [("W", ph, p, s) for s in range(lo, hi)]
def nf(ph): return 8 if ph == 2 else 6
def trr(ph, p, s):
    b = FB(s % nf(ph)); o = s * 4096; vr = V_TR
    if o >= 65536: o -= 65536; vr = V_TR2
    lo = wslot(ph, p, s)
    return [LG(f"ds_read_b64_tr_b16 v[{b+2*h}:{b+2*h+1}], v{vr} offset:{o+512*h}", ("R", ph, p, s, h), rd=(lo, lo + 4096)) for h in range(2)]
def group_mfmas(ph, steps, last):
    ms = []
    order = [(t, s) for t in range(5) for s in steps] if cfg.chain else [(t, s) for s in steps for t in range(5)]
    for t, s in order:
        if True:
            d = EE(t) if s == last else ACC(t)
            c = "0" if s == 0 else ACC(t)
            b = FB(s % nf(ph)); w = f"v[{b}:{b+3}]"
            ms.append(mfma(d, act(s * 5 + t), w, c) if ph == 2 else mfma(d, w, act(s * 5 + t), c))
    return ms

def xdma(n):
    pre = [I("s_add_u32 s79, s79, s93")] if (n % 5 == 0 and n) else []
    return pre + [I(f"s_add_u32 m0, s82, {n*4096}"), I(f"s_add_u32 s61, s79, s{XH+n%5}"),
            VM(f"buffer_load_dwordx4 v{V_XO+n%5}, s[12:15], s61 offen lds", ("X", n), wr=(XB + (n // 5) * 20480, min(XB + (n // 5 + 1) * 20480, 163840)))]
def abdma(P):
    lo = P * 8192
    return [I(f"s_add_u32 m0, s60, {lo}"), I("s_add_u32 s83, s83, s92"),
            VM(f"buffer_load_dwordx4 v{V_ABA}, s[20:23], s83 offen lds", ("WAB", P, 0), wr=(lo, lo + 8192)),
            VM(f"buffer_load_dwordx4 v{V_ABB}, s[20:23], s83 offen offset:1024 lds", ("WAB", P, 1), wr=(lo, lo + 8192))]
def wreads(P):
    out = []
    if P == 4: out += [I(f"v_add_u32 v{V_WR0}, 32768, v{V_WR0}"), I(f"v_add_u32 v{V_WR1}, 32768, v{V_WR1}")]
    Pp = P - 4 if P >= 4 else P
    for h in range(2):
        s = 2 * P + h; b = FB(s % 6)
        out.append(LG(f"ds_read_b128 v[{b}:{b+3}], v{V_WR0+h} offset:{Pp*8192}", ("RAB", s)))
    return out
def xreads(P):
    out = []
    if P == 4: out += [I(f"v_add_u32 v{V_XR0}, 40960, v{V_XR0}"), I(f"v_add_u32 v{V_XR1}, 40960, v{V_XR1}")]
    Pp = P - 4 if P >= 4 else P
    for t in range(5):
        for h in range(2):
            s = 2 * P + h; lo = XB + (P * 10 + 2 * t) * 1024
            out.append(LG(f"ds_read_b128 {act(s*5+t)}, v{V_XR0+h} offset:{(Pp*10+2*t)*1024}", ("RX", s, t), rd=(lo, lo + 2048)))
    return out
def patch(P):
    return [I(f"v_cndmask_b32 v{FB(s%6)+e}, v{FB(s%6)+e}, v{V_PATCH}, s[76:77]") for s in (2 * P, 2 * P + 1) for e in range(4)]
def xg(g, lastx): return [("X", n) for n in range(5 * g, min(5 * g + 5, lastx + 1))]

def cut(su, n):
    while su[n].text.startswith(("s_cselect", "v_c")) or su[n - 1].text.startswith(("s_cmp", "s_cselect", "v_c")): n += 1
    return n
def ab_pass(hasx22):
    lastx = 22 if hasx22 else 21
    o = []
    pf = lambda v, sr, off, tag: [VM(f"buffer_load_dword v{V_DUM}, v{v}, {sr}, 0 offen offset:{off}", tag)]
    Xr = lambda a, b: sum((xdma(n) for n in range(a, b)), [])
    if cfg.pf1 & 1: o += pf(V_PFD, "s[20:23]", 0, "PFD")
    o += Xr(0, 8) + setup2()
    if cfg.pf1 & 2: o += pf(V_PF1, "s[8:11]", 0, "PFA")
    if cfg.pt & 1: o.append(VM(f"buffer_load_dword v{V_DUM}, v{V_ABFL}, s[16:19], 0 offen sc1", "PT0"))
    if cfg.pt & 2: o.append(VM(f"buffer_store_dword v{ABP+10}, v{V_ABFL}, s[16:19], 0 offen sc1", "PT1"))
    if cfg.pt & 4: o.append(VM(f"buffer_store_dwordx4 v[{ABP+10}:{ABP+13}], v{ABP+14}, s[16:19], s78 offen offset:2560 sc1", "WARMFL"))
    o += Xr(8, 17)
    o += [WAIT("ab_b0", vm=xg(0, lastx)), BAR()] + TS(1) + xreads(0) + Xr(17, 20) + xreads(1)
    o += xdma(20) + xdma(21) + [I("s_cmp_lt_u32 s3, 2"), I("s_cbranch_scc0 L_nox22")] + (xdma(22) if hasx22 else []) + [I("L_nox22:")]
    o += [WAIT("ab_x1", vm=xg(1, lastx)), BAR()] + abdma(0) + xreads(2) + abdma(1) + abdma(2) + xreads(3) + abdma(3) + abdma(4)
    o += [WAIT("ab_x4", vm=xg(4, lastx) + [("WAB", 0, 1)], lg=[("RX", 1, 0)]), BAR()] + wreads(0) + abdma(5)
    o.append(WAIT("ab_r0", lg=[("RAB", 1)])); o += patch(0); o.append(I("s_nop 1"))
    for g in range(9):
        ms = group_mfmas(0, (2 * g, 2 * g + 1), 17)
        side = []
        if g < 8:
            side.append((0, WAIT(f"ab_w{g}", vm=[("WAB", g + 1, 1)])))
            side += spread(wreads(g + 1), [0, 1])
            if g < 5: side += spread(xreads(g + 4), [1, 2, 3, 4, 5, 7, 8, 9])
        else:
            side.append((0, [WAIT("ab_b8", vm=cover(1, 0, 0, 6)), BAR()]))
            side += spread(trr(1, 0, 0) + trr(1, 0, 1) + trr(1, 0, 2), [1, 2, 3, 4, 5, 6])
        d = []
        if g == 0: d = [abdma(6)[:3], abdma(6)[3:], abdma(7)[:3], abdma(7)[3:]]
        if g == 1: d = [abdma(8)[:3], abdma(8)[3:]]
        sl = {0: (), 1: (0, 1), 2: (2, 3, 4), 3: (5, 6, 7), 4: (8, 9), 5: (10, 11), 6: (12, 13), 7: (14,), 8: ()}[g]
        for s in sl:
            pre, dm = wdma(1, 0, s); dm.wr = None
            d.append(pre + [dm])
        if d: side += spread(d, [2, 3, 4, 5])
        if g in (5, 6, 7): side += list(zip([1, 3, 5, 9, 9], ab_gaddr()[(g - 5) * 5:(g - 4) * 5]))
        if g < 8:
            side.append((6, WAIT(f"ab_rw{g}", lg=[("RAB", 2 * g + 3)])))
            side += spread(patch(g + 1), [6, 7, 8])
            side.append((9, I("s_nop 0")))
        else: side.append((9, WAIT(f"ab_r9", lg="all")))
        o += place(ms, side)
    return o

ABP = 136
OUTL = 135168
ABL = 73728
V_ABR, V_ABG0, V_ABG1 = 100, 101, 102
def ab_epilogue():
    o = []
    for t in range(5):
        r = E0 + 4 * t
        sg = (V_SIG0T0, V_SIGT0) if t == 0 else (V_SIG0, V_SIG)
        for e in range(4): o.append(I(f"v_fmac_f32_dpp v{r+e}, v{r+e}, v{sg[0] if e == 0 else sg[1]} quad_perm:[3,2,1,0] row_mask:0xf bank_mask:0xf"))
        for e in range(4): o.append(I(f"v_fmac_f32_dpp v{r+e}, v{r+e}, v{V_TAU} quad_perm:[1,0,3,2] row_mask:0xf bank_mask:0xf"))
        if t == 0:
            o.append(I(f"v_mov_b32_dpp v{PK+10}, v{r} quad_perm:[0,1,2,1] row_mask:0xf bank_mask:0xf"))
            o.append(I(f"v_cndmask_b32 v{r}, v{r}, v{PK+10}, s[80:81]"))
        o.append(I(f"v_cvt_pk_bf16_f32 v{ABP+2*t}, v{r}, v{r+1}"))
        o.append(I(f"v_cvt_pk_bf16_f32 v{ABP+2*t+1}, v{r+2}, v{r+3}"))
    return o
def ab_gaddr():
    A = lambda x: T(x)
    return [A(f"s_lshr_b32 s68, s5, 1\ns_lshl_b32 s68, s68, 17\ns_lshr_b32 s70, s3, 1"),
            A(f"s_lshl_b32 s71, s70, 16\ns_add_u32 s68, s68, s71\ns_mul_i32 s71, s4, 320"),
            A(f"s_add_u32 s68, s68, s71\ns_and_b32 s71, s5, 1\ns_lshl_b32 s71, s71, 14"),
            A(f"s_add_u32 s68, s68, s71\ns_and_b32 s71, s3, 1\ns_lshl_b32 s69, s71, 13"),
            A(f"s_add_u32 s68, s68, s69\ns_add_u32 s68, s68, {WS_ABF}\ns_lshl_b32 s71, s71, 5"),
            A(f"s_lshl_b32 s69, s5, 6\ns_add_u32 s69, s69, s71\ns_lshl_b32 s70, s70, 10"),
            A(f"s_add_u32 s69, s69, s70\ns_add_u32 s69, s69, {WS_XS - 320}\nv_mul_u32_u24 v4, 13, v{V_L}"),
            A(f"v_lshrrev_b32 v4, 8, v4\nv_mul_u32_u24 v5, 20, v4\nv_sub_u32 v5, v{V_L}, v5"),
            A(f"v_and_b32 v6, 1, v4\nv_lshlrev_b32 v6, 15, v6\nv_lshrrev_b32 v7, 1, v4\nv_mul_u32_u24 v7, {5*131072}, v7"),
            A(f"v_lshl_add_u32 v6, v5, 4, v6\nv_add3_u32 v6, v6, v7, s68\ns_cmp_eq_u32 s4, 25\ns_cselect_b32 s70, 12, 20"),
            A(f"v_cmp_gt_u32 vcc, s70, v5\nv_mov_b32 v8, {OOB}\nv_lshlrev_b32 v7, 4, v{V_L}\nv_cndmask_b32 v6, v8, v6, vcc"),
            A(f"v_cmp_gt_u32 vcc, 60, v{V_L}\ns_add_u32 s68, s68, {5*131072 + 32768}\nv_add_u32 v9, s68, v7\nv_cndmask_b32 v{V_ABG0}, v8, v6, vcc"),
            A(f"v_cmp_gt_u32 vcc, s70, v{V_L}\nv_add_u32 v6, s69, v7\nv_lshrrev_b32 v5, 1, v{V_L}\nv_cndmask_b32 v9, v8, v9, vcc"),
            A(f"s_cmp_eq_u32 s4, 0\ns_cselect_b32 s70, 10, -1\nv_cmp_eq_u32 vcc, s70, v5\ns_mul_i32 s68, s3, 1792"),
            A(f"s_add_u32 s68, s68, {ABL}\nv_add_u32 v{V_ABR}, s68, v7\nv_cndmask_b32 v{V_ABG1}, v9, v6, vcc")]
def ab_once(which):
    if which == 2:
        return [LG(f"ds_write_b64 v{V_ABS0 if t == 0 else V_ABS}, v[{ABP+2*t}:{ABP+2*t+1}] offset:{64*t}", ("ABW", t)) for t in range(5)]
    if which == 3:
        return [LG(f"ds_read_b128 v[{PK}:{PK+3}], v{V_ABR}", ("ABR", 0)), LG(f"ds_read_b128 v[{PK+4}:{PK+7}], v{V_ABR} offset:960", ("ABR", 1))]
    if which == 0:
        o = [VM(f"buffer_store_dwordx4 v[{PK}:{PK+3}], v{V_ABG0}, s[16:19], 0 offen sc1", ("ABST", 0)),
             VM(f"buffer_store_dwordx4 v[{PK+4}:{PK+7}], v{V_ABG1}, s[16:19], 0 offen sc1", ("ABST", 4))]
        if cfg.warmfl:
            o += [VM(f"buffer_store_dwordx4 v[{ABP+10}:{ABP+13}], v{ABP+14}, s[16:19], s78 offen offset:2560 sc1", "WARMFL")]
        return o
    return [VM(f"buffer_store_dword v{V_TAG}, v{V_ABFL}, s[16:19], 0 offen sc1", "ABFL")]
def h_tile(p, t):
    r = E0 + 4 * t; d = PK + 2 * t
    lo = HB + p * 10240
    return ([I(f"v_cvt_pk_bf16_f32 v{d}, v{r}, v{r+1}"), I(f"v_cvt_pk_bf16_f32 v{d+1}, v{r+2}, v{r+3}")],
            [I(f"v_pk_max_i16 v{d}, v{d}, 0"), I(f"v_pk_max_i16 v{d+1}, v{d+1}, 0")],
            LG(f"ds_write_b64 v{V_HW}, v[{d}:{d+1}] offset:{1024*t}", ("HW", p, t), wr=(lo + (2048 if p < 0 else 0), lo + 10240)))
def p_parts(p):
    cv = [I(f"v_cvt_pk_bf16_f32 v{PK+i}, v{E0+2*i}, v{E0+2*i+1}") for i in range(10)]
    st = [VM(f"buffer_store_dwordx4 v[{PK}:{PK+3}], v{V_P16}, s[16:19], s78 offen sc1", ("PST", p, 0)),
          VM(f"buffer_store_dwordx4 v[{PK+4}:{PK+7}], v{V_P16}, s[16:19], s78 offen offset:1024 sc1", ("PST", p, 1)),
          VM(f"buffer_store_dwordx2 v[{PK+8}:{PK+9}], v{V_P8}, s[16:19], s78 offen offset:2048 sc1", ("PST", p, 2))]
    return [(cv[:4], st[0]), (cv[4:8], st[1]), (cv[8:], st[2])]
def hreads(s):
    o = []
    for t in range(5):
        off = (s * 5 + t) * 1024; vr = V_HR
        if off >= 40960: off -= 40960; vr = V_HR2
        lo = HB + (s * 5 + t) * 1024
        o.append(LG(f"ds_read_b128 {act(s*5+t)}, v{vr} offset:{off}", ("RH", s, t), rd=(lo, lo + 1024)))
    return o
def tags(items): return [it.tag for it in items if it.kind == "lg"]
def cyc_stamp(side, g, g0, gap, v):
    if cfg.ts == 2 and cfg.pp and g == g0: side.append((gap, [I("s_memtime s[32:33]")]))
    if cfg.ts == 2 and cfg.pp and g == g0 + 1: side.append((gap, [I("s_waitcnt lgkmcnt(0)"), I("v_cmp_eq_u32 vcc, s63, v1"), I("v_mov_b32 v9, s32"), I("s_nop 0"), I(f"v_cndmask_b32 v{v}, v{v}, v9, vcc")]))

def g1_group(p, g, dyn=False):
    kind = "a" if p == 0 else ("z" if p == 7 else "")
    ms = group_mfmas(1, range(3 * g, 3 * g + 3), 17)
    side = []
    nph, npp = (1, p + 1) if p < 7 else (2, 0)
    if g % 2 == 1:
        need = cover(1, p, 3 * g + 3, 3 * g + 9) if g < 5 else cover(nph, npp, 0, 6)
        if g == 1 and p == 1: need = need + [("ABST", 4)]
        side.append((0, [WAIT(f"g1_b{g}{kind}", vm=need), BAR()]))
    rd = []
    for s in range(3 * g + 3, 3 * g + 6):
        rd += trr(1, p, s) if s < 18 else trr(nph, npp, s - 18)
    side += list(zip([1, 2, 4, 5, 6, 7], rd))
    for k, s in enumerate(range(3 * g + 15, 3 * g + 18)):
        pre, dm = wdma(1, p, s) if s < 18 else wdma(nph, npp, s - 18)
        gp = [3, 8, 13][k]
        if pre: side.append((gp - 2, pre[0])); side.append((gp - 1, pre[1]))
        side.append((gp, dm))
    if g == 0:
        if p < 7:
            side.append((11, [I("s_add_u32 s73, s73, 128"), I("s_and_b32 s73, s73, 0x380")])); side.append((12, I("s_add_u32 s62, s73, s74")))
        else:
            side.append((11, I("s_mov_b32 s62, s72")))
    hr = []
    if kind == "z" and g >= 1:
        hr = hreads(2 * g - 2) + hreads(2 * g - 1)
        side += list(zip([0 if g % 2 == 0 else 1, 2, 4, 5, 6, 7, 9, 9, 11, 12], hr))
    if kind == "a":
        ep = ab_epilogue(); st = ab_once(0); wr = ab_once(2); ag = ab_gaddr()
        if g == 0: side += spread(ep[:26], [3, 4, 5, 6, 7, 9, 9, 10, 10, 11, 12, 13, 14])
        if g == 1:
            side += spread(ep[26:], [1, 2, 3, 4, 5, 6, 7, 9, 11, 12, 13]) + [(9, wr[0]), (10, wr[1]), (12, wr[2]), (14, wr[3])]
        if g == 2:
            r2 = ab_once(3); rd = rd + r2
            side += [(0, wr[4]), (9, r2[0]), (10, r2[1])]
        if g == 3: side += list(zip([0, 1, 2], st))
        if g in (3, 4, 5):
            s3_ = setup3(); n3 = (len(s3_) + 2) // 3
            side += spread(s3_[(g - 3) * n3:(g - 2) * n3], [3, 4, 5, 6, 7, 9, 9, 10, 10, 11, 12, 14])
    if kind == "" and g == 1:
        side.append((9, [I("s_cmp_eq_u32 s63, 6"), I("s_cbranch_scc1 L_once1")] + (ab_once(1) if (dyn and p == 1) else []) + [I("L_once1_ret:")]))
    if kind == "a": pass
    elif g < 5:
        cv, mx, w = h_tile(p - 1, g)
        if kind == "z" and g >= 1:
            side += [(3, cv[0]), (8, cv[1]), (10, mx), (13, w)]
        else:
            side += [(4, cv[0]), (5, cv[1]), (9, mx), (10, w)]
    else:
        side.append((10, I(f"v_add_u32 v{V_HW}, 10240, v{V_HW}")))
    if kind == "": cyc_stamp(side, g, 2, 12, 130)
    if g == 5 and kind == "": side.append((13, [I("s_sub_u32 s63, s63, 1"), I("s_cmp_lg_u32 s63, 0")]))
    side.append((14, WAIT(f"g1_r{g}{kind}", lg=tags(rd))))
    return place(ms, side)

def nextcol():
    return [[I("s_add_u32 s62, s62, 128"), I("s_cmp_eq_u32 s62, 1152"), I("s_cselect_b32 s62, 0, s62")],
            [I("s_cmp_eq_u32 s62, s72"), I(f"s_cselect_b32 s62, {OOB}, s62"), I("s_xor_b32 s60, s60, 0x10000")]]
def g2_pass0():
    o = []
    groups = [(0, 1, 2), (3, 4, 5), (6, 7), (8, 9, 10, 11), (12, 13, 14, 15)]
    cuts = [15, 19, 23, 26, 31, 36]
    hsteps = [(10,), (11, 12), (13,), (14, 15), ()]
    htl = [(0, 1), (2, 3), (4,), (), ()]
    for gi, st in enumerate(groups):
        ms = group_mfmas(2, st, 15); n = len(ms); side = []
        if gi == 1: side.append((0, [WAIT("g20_b1", vm=cover(2, 0, 6, 12)), BAR()]))
        if gi == 3: side.append((0, [WAIT("g20_b3", vm=cover(2, 0, 12, 16), lg=[("HW", 7, 4)]), BAR()]))
        if gi == 4: side.append((0, [WAIT("g20_b4", vm=cover(2, 1, 0, 8)), BAR(), I(f"v_xor_b32 v{V_TR}, 0x10000, v{V_TR}")]))
        dl = list(range(cuts[gi], cuts[gi + 1]))
        dg = [min(n - 1, 2 + (i * (n - 1)) // len(dl)) for i in range(len(dl))]
        for s, gp in zip(dl, dg):
            pre, dm = wdma(2, s // 16, s % 16)
            if s % 16 == 0:
                nc = nextcol(); side.append((gp - 2, nc[0] + nc[1]))
            if pre: side.append((gp - 1, pre))
            side.append((gp, dm))
        free = [x for x in range(1 if gi in (1, 3, 4) else 0, n - 3) if x not in dg]
        rd = []
        for s in (groups[gi + 1] if gi < 4 else range(16, 20)): rd += trr(2, s // 16, s % 16)
        for s in hsteps[gi]: rd += hreads(s)
        side += spread(rd, free)
        for k, t in enumerate(htl[gi]):
            cv, mx, w = h_tile(7, t)
            b = 3 + 4 * k
            side += [(b, cv[0]), (b + 1, cv[1]), (b + 2, mx[0]), (b + 3, mx[1]), (n - 3 + k, w)]
        gp_ = g2_pre()
        k_ = 30 if cfg.inloop else 12
        if gi == 3: side += spread(gp_[:k_], list(range(1, n - 1)))
        if gi == 4: side += spread(gp_[k_:], list(range(1, n - 1)))
        side.append((n - 1, WAIT(f"g20_r{gi}", lg=tags(rd))))
        o += place(ms, side)
    return o
SUM, PBUF, PB2 = 216, 236, 76
V_SELA = 248
V_FLW = 254
V_FLG = 128
V_K0, V_K1 = 129, 130
YR, GR, SEL, OA, V_YA, V_YA0, V_GA = 100, 132, 110, 114, 120, 121, 122
def slot_loads(b, tag, so="s34", r="v"):
    return [VM(f"buffer_load_dwordx4 {r}[{b}:{b+3}], v{V_P16}, s[16:19], {so} offen sc1", (tag, 0)),
            VM(f"buffer_load_dwordx4 {r}[{b+4}:{b+7}], v{V_P16}, s[16:19], {so} offen offset:1024 sc1", (tag, 1)),
            VM(f"buffer_load_dwordx2 {r}[{b+8}:{b+9}], v{V_P8}, s[16:19], {so} offen offset:2048 sc1", (tag, 2))]
def slot_add(d, b, first=False, r="v"):
    o = []
    for t in range(5):
        a = V_SELA + (0 if t & 1 else 2); bb = b + 4 * (t >> 1); D = f"v[{d+4*t}:{d+4*t+3}]"
        o.append(mfma(D, f"v[{a}:{a+3}]", f"{r}[{bb}:{bb+3}]", "0" if first else D))
    return o
def slot_next():
    return [[I("s_cmp_eq_u32 s96, 0"), I(f"s_cselect_b32 s97, {72*SL}, 0"), I("s_add_u32 s95, s95, s97")],
            [I(f"s_sub_u32 s95, s95, {7*SL}"), I("s_sub_u32 s96, s96, 1")]]
def sample(tag, so=None):
    if so: return VM(f"buffer_load_dword v{V_FLG}, v{V_FL}, s[16:19], {so} offen offset:2560 sc1", tag)
    return VM(f"buffer_load_dword v{V_FLG}, v{V_POLL}, s[16:19], 0 offen sc1", tag)
def check(lab):
    return [I(f"v_cmp_eq_u32 vcc, s7, v{V_FLG}"), I("s_and_b32 s97, vcc_lo, s35"), I("s_cmp_eq_u32 s97, s35"), I(f"s_cbranch_scc0 {lab}"), I(f"{lab}_ret:")]
def spin(lab, so=None):
    return T(f"""
    {lab}:
    s_mov_b32 s98, {SPIN}
    {lab}_l:
    {sample(None, so).text}
    s_sub_u32 s98, s98, 1
    s_cmp_eq_u32 s98, 0
    s_cbranch_scc1 {lab}_ret
    s_waitcnt vmcnt(0)
    v_cmp_eq_u32 vcc, s7, v{V_FLG}
    s_and_b32 s97, vcc_lo, s35
    s_cmp_eq_u32 s97, s35
    s_cbranch_scc0 {lab}_l
    s_branch {lab}_ret
    """)
def g2_group(p, g):
    ms = group_mfmas(2, range(4 * g, 4 * g + 4), 15); side = []
    if g in (1, 3):
        need = cover(2, p, 8, 16) if g == 1 else cover(2, p + 1, 0, 8) + [("PST", p - 1, 2)] + (([("SMP", p)] + ([(("SL", p - 1), 2)] if p > 1 else [])) if cfg.inloop else [])
        side.append((0, [WAIT(f"g2_b{g}", vm=need), BAR()] + ([I(f"v_xor_b32 v{V_TR}, 0x10000, v{V_TR}")] if g == 3 else [])))
    rd = []
    for s in range(4 * g + 4, 4 * g + 8): rd += trr(2, p + s // 16, s % 16)
    side += list(zip([1, 2, 4, 5, 6, 7, 9, 10], rd))
    for k, s in enumerate(range(4 * g + 20, 4 * g + 24)):
        pre, dm = wdma(2, p + s // 16, s % 16)
        gp = [3, 8, 13, 18][k]
        if pre: side.append((gp - 2, pre[0])); side.append((gp - 1, pre[1]))
        side.append((gp, dm))
    if g == 0:
        pp = p_parts(p - 1)
        if cfg.inloop: side.append((0, sample(("SMP", p), "s34")))
        side += list(zip([4, 5, 6, 7, 9, 10, 11, 12, 14, 14], pp[0][0] + pp[1][0] + pp[2][0]))
        side += [(15, pp[0][1]), (16, pp[1][1]), (17, pp[2][1])]
    if g == 2:
        nc = nextcol(); side += [(16, nc[0]), (17, nc[1])]
        if cfg.inloop: sn = slot_next(); side += [(14, sn[0]), (15, sn[1])]
    if g == 3 and not cfg.inloop:
        side.append((15, VM(f"buffer_store_dword v{V_TAG}, v{V_FLW}, s[16:19], s78 offen offset:2560 sc1", ("PFL", p - 1))))
        side.append((16, I(f"s_add_u32 s78, s78, {SL}")))
        side.append((17, [I("s_sub_u32 s63, s63, 1"), I("s_cmp_lg_u32 s63, 0")]))
    if g == 3 and cfg.inloop:
        ad = slot_add(SUM, PBUF); ld = slot_loads(PBUF, ("SL", p)); ck = check("L_sp1")
        side.append((0, [ad[0], VM(f"buffer_store_dword v{V_TAG}, v{V_FLW}, s[16:19], s78 offen offset:2560 sc1", ("PFL", p - 1)),
                         ad[1], ck[0], ad[2]] + ck[1:] + [ad[3], I(f"s_add_u32 s78, s78, {SL}"), ad[4]]))
        side += list(zip([14, 15, 16], ld))
        side.append((17, [I("s_cmp_gt_u32 s63, 6"), I(f"s_cselect_b32 s34, {OOB}, s95"), I("s_cselect_b32 s35, 0, 1")]))
        side.append((18, [I("s_sub_u32 s63, s63, 1"), I("s_cmp_lg_u32 s63, 0")]))
    cyc_stamp(side, g, 1, 19, 152-1 if False else 131)
    side.append((19, WAIT(f"g2_r{g}", lg=tags(rd))))
    return place(ms, side)

def g2_pre():
    o = T(f"""
    v_sub_u32 v5, s6, v{V_L}
    v_add_u32 v6, 9, v5
    v_min_u32 v5, v5, v6
    v_lshl_add_u32 v5, v5, 3, v{V_L}
    s_mul_i32 s95, s4, {72*SL}
    s_mul_i32 s96, s3, {WSL}
    s_add_u32 s95, s95, s96
    s_add_u32 s95, s95, {WS_PART}
    v_mul_u32_u24 v5, {SL}, v5
    s_add_u32 s97, s95, 2560
    v_add_u32 v5, s97, v5
    s_lshl_b32 s97, s4, 7
    s_add_u32 s97, s97, {WS_YFLAG - 32}
    v_lshl_add_u32 v6, v{V_L}, 2, s97
    v_cmp_gt_u32 vcc, 8, v{V_L}
    s_mov_b32 s82, {(0x60 if cfg.inloop else (1 << cfg.ne) - 1) | (0xfffff << 8)}
    s_mul_i32 s97, s6, {8*SL}
    v_cndmask_b32 v5, v6, v5, vcc
    s_mov_b32 s83, 0
    v_mov_b32 v6, {OOB}
    s_add_u32 s95, s95, s97
    v_cndmask_b32 v{V_POLL}, v6, v5, s[82:83]
    s_mov_b32 s82, {0xff & ~((1 << cfg.ne) - 1)}
    s_add_u32 s95, s95, {14*SL if cfg.inloop else 0}
    v_cndmask_b32 v255, v6, v5, s[82:83]
    s_add_u32 s96, s6, 2
    s_mov_b32 s63, 7
    s_mov_b32 s34, {OOB}
    s_mov_b32 s35, 0
    v_lshlrev_b32 v4, 2, v{V_L}
    v_cmp_gt_u32 vcc, 32, v{V_L}
    v_lshlrev_b32 v5, 2, v{V_Q}
    v_sub_u32 v5, v{V_C}, v5
    v_cndmask_b32 v{V_FLW}, v6, v4, vcc
    v_and_b32 v4, 1, v5
    v_lshlrev_b32 v4, 4, v4
    v_mov_b32 v6, 0x3f80
    v_lshlrev_b32 v4, v4, v6
    v_lshrrev_b32 v5, 1, v5
    v_cmp_eq_u32 vcc, 0, v5
    v_mov_b32 v{V_SELA}, 0
    v_mov_b32 v{V_SELA+1}, 0
    v_cndmask_b32 v{V_SELA+2}, 0, v4, vcc
    v_cmp_eq_u32 vcc, 1, v5
    v_mov_b32 v{V_SELA+4}, 0
    v_mov_b32 v{V_SELA+5}, 0
    v_cndmask_b32 v{V_SELA+3}, 0, v4, vcc
    """)
    if cfg.inloop:
        for i in range(20): o.append(I(f"v_mov_b32 v{SUM+i}, 0"))
        for i in range(12): o.append(I(f"v_mov_b32 v{PBUF+i}, 0"))
    return o

def fin_setup():
    o = T(f"""
    s_lshl_b32 s68, s6, 6
    s_lshl_b32 s69, s3, 4
    s_add_u32 s68, s68, s69
    v_add_u32 v5, s68, v{V_C}
    v_sub_u32 v6, 576, v5
    v_cmp_lt_u32 s[76:77], v6, v5
    v_min_u32 v6, v5, v6
    s_mul_i32 s69, s4, 20
    v_add_u32 v7, s69, v{V_Q}
    s_movk_i32 s70, 2560
    v_lshlrev_b32 v6, 3, v6
    v_mad_u32_u24 v{V_YA}, v7, s70, v6
    v_add_u32 v{V_YA}, {WS_YT}, v{V_YA}
    v_cmp_eq_u32 s[80:81], 0, v7
    v_add_u32 v9, {512*2560}, v{V_YA}
    s_and_b64 s[82:83], s[80:81], s[76:77]
    v_lshlrev_b32 v{V_GA}, 4, v7
    v_add_u32 v{V_GA}, {WS_GT}, v{V_GA}
    v_cndmask_b32 v{V_YA0}, v{V_YA}, v9, s[82:83]
    """)
    for rho in range(4):
        d = 0x0c0c | ((2 * rho) << 16) | ((2 * rho + 1) << 24); m = 0x0c0c | ((6 - 2 * rho) << 16) | ((7 - 2 * rho) << 24)
        o += T(f"v_mov_b32 v8, {d}\nv_mov_b32 v9, {m}\nv_cndmask_b32 v{SEL+rho}, v8, v9, s[76:77]")
    o += T(f"""
    s_lshl_b32 s68, s3, 1
    v_lshrrev_b32 v5, 1, v{V_Q}
    v_add_u32 v5, s68, v5
    v_and_b32 v6, 7, v{V_C}
    v_xor_b32 v5, v5, v6
    v_lshlrev_b32 v5, 4, v5
    v_lshl_add_u32 v5, v{V_C}, 7, v5
    v_and_b32 v6, 1, v{V_Q}
    v_lshl_add_u32 v5, v6, 3, v5
    v_add_u32 v{OA}, {OUTL}, v5
    v_lshrrev_b32 v5, 3, v{V_L}
    v_and_b32 v6, 7, v{V_L}
    v_xor_b32 v7, v5, v6
    v_lshlrev_b32 v7, 4, v7
    v_lshl_add_u32 v7, v5, 7, v7
    s_lshl_b32 s70, s3, 10
    s_add_u32 s70, s70, {OUTL}
    v_add_u32 v{OA+1}, s70, v7
    s_lshl_b32 s70, s6, 7
    v_lshl_add_u32 v6, v6, 4, s70
    v_and_b32 v5, 3, v5
    v_lshrrev_b32 v7, 5, v{V_L}
    s_add_u32 s68, s68, s69
    v_add_u32 v7, s68, v7
    s_add_u32 s69, s69, 20
    s_min_u32 s69, s69, 512
    s_movk_i32 s67, 1152
    """)
    for k in range(3):
        o += rowcalc(7, 5, OA + 2 + k, 8) + T(f"""
        v_cmp_gt_u32 vcc, s69, v7
        v_mad_u32_u24 v{OA+2+k}, v{OA+2+k}, s67, v6
        v_mov_b32 v8, {OOB}
        v_cndmask_b32 v{OA+2+k}, v8, v{OA+2+k}, vcc
        v_add_u32 v7, 8, v7
        """)
    return o

def g2_last0():
    o = []; p = 8
    fs = fin_setup()
    ad = []
    for j in range(8):
        ad.append([I(f"s_cmp_lt_u32 s6, {j}"), I(f"s_cselect_b32 s{64+j}, {72*SL}, 0"), I(f"s_add_u32 s{64+j}, s{64+j}, s95"), I(f"s_sub_u32 s95, s95, {7*SL}")])
    fs = [I(x.text.replace("s67", "s96").replace("s68", "s62").replace("s69", "s94").replace("s70", "s34")) for x in fs]
    NE = cfg.ne
    for g in range(4):
        ms = group_mfmas(2, range(4 * g, 4 * g + 4), 15); side = []
        rd = []
        if g < 3:
            for s in range(4 * g + 4, 4 * g + 8): rd += trr(2, p, s)
            side += list(zip([1, 2, 4, 5, 6, 7, 9, 10] if g else [9, 10, 11, 12, 13, 14, 15, 16], rd))
        if g == 0:
            pp = p_parts(7)
            side.append((0, sample("S0")))
            side += list(zip([1, 1, 2, 2, 4, 4, 5, 5, 7, 7], pp[0][0] + pp[1][0] + pp[2][0]))
            side += [(3, pp[0][1]), (6, pp[1][1]), (8, pp[2][1])]
            side += spread(ad, list(range(9, 19)))
            side.append((19, I(f"s_mov_b32 s35, {((1 << NE) - 1) | (0xfffff << 8)}")))
        if g == 1:
            side.append((0, [WAIT("g2z_b1", vm=cover(2, p, 8, 16)), BAR()]))
            side += spread(fs[:45], list(range(1, 19)))
        if g == 2:
            side.append((0, [WAIT("g2z_s0", vm=["S0"])] + check("L_sp2")))
            ld = []
            for j in range(NE): ld += slot_loads(12 * j, ("SL", j), f"s{64+j}", "a")
            h = min(9, len(ld))
            side += spread(ld[:h], list(range(1, 10)))
            side.append((10, [WAIT("g2z_st", vm=[("PST", 7, 2)]), VM(f"buffer_store_dword v{V_TAG}, v{V_FLW}, s[16:19], s78 offen offset:2560 sc1", ("PFL", 7))]))
            side += spread(ld[h:], list(range(11, 20)))
        if g == 3:
            ld = []
            for t in range(5):
                ld.append([I(f"s_or_b32 s61, s75, {t*4*2560}" if t >= 3 else f"s_mov_b32 s61, {t*4*2560}"), VM(f"buffer_load_dwordx2 v[{YR+2*t}:{YR+2*t+1}], v{V_YA0 if t == 0 else V_YA}, s[16:19], s61 offen sc1", ("YL", t))])
                ld.append(VM(f"buffer_load_dwordx4 v[{GR+4*t}:{GR+4*t+3}], v{V_GA}, s[16:19], {'s75' if t >= 3 else '0'} offen offset:{64*t} sc1", ("GL", t)))
            side += list(zip(range(0, 20, 2), ld))
            side += spread(fs[45:], list(range(0, 20)))
        if g < 3: side.append((19, WAIT(f"g2z_r{g}", lg=tags(rd))))
        o += place(ms, side)
    o += TS(7)
    o += [I(f"s_mov_b32 s35, {0xff & ~((1 << NE) - 1)}"), I(f"v_mov_b32 v{V_POLL}, v255"), sample("S1")]
    for j in range(NE):
        o.append(WAIT(f"fin_a{j}", vm=[(("SL", j), 2)])); o += slot_add(E0, 12 * j, r="a")
    o.append(WAIT("fin_s1", vm=["S1"])); o += check("L_sp3")
    for j in range(NE, 8): o += slot_loads(12 * j, ("SL", j), f"s{64+j}", "a")
    for t in range(5):
        for rho in range(4): o.append(I(f"v_perm_b32 v{56+4*t+rho}, v{YR+2*t+1}, v{YR+2*t}, v{SEL+rho}"))
    for i in range(20): o.append(I(f"v_mul_f32 v{56+i}, v{56+i}, v{GR+i}"))
    for i in range(20): o.append(I(f"v_sub_f32 v{GR+i}, 1.0, v{GR+i}"))
    for j in range(NE, 8):
        o.append(WAIT(f"fin_{j}", vm=[(("SL", j), 2)])); o += slot_add(E0, 12 * j, r="a")
    o.append(I("s_nop 3"))
    return o + fin_out()

def g2_last():
    if not cfg.inloop: return g2_last0()
    o = []; p = 8
    fs = fin_setup()
    for g in range(4):
        ms = group_mfmas(2, range(4 * g, 4 * g + 4), 15); side = []
        if g == 0:
            for t, m in enumerate([m for m in ms if m.text.endswith(", 0")]): m.text = m.text[:-1] + f"v[{SUM+4*t}:{SUM+4*t+3}]"
        rd = []
        if g < 3:
            for s in range(4 * g + 4, 4 * g + 8): rd += trr(2, p, s)
            side += list(zip([1, 2, 4, 5, 6, 7, 9, 10] if g else [9, 10, 11, 12, 13, 14, 15, 16], rd))
        if g == 0:
            pp = p_parts(7)
            side += list(zip([1, 1, 2, 2, 4, 4, 5, 5, 7, 7], pp[0][0] + pp[1][0] + pp[2][0]))
            side += [(3, pp[0][1]), (6, pp[1][1]), (8, pp[2][1])]
            side += spread(fs[:16], list(range(9, 19)))
            side.append((19, I(f"s_mov_b32 s35, {(3 << 5) | (0xfffff << 8)}")))
        if g == 1:
            side.append((0, [WAIT("g2z_b1", vm=cover(2, p, 8, 16) + [(("SL", 7), 2)]), BAR()]))
            side.append((3, sample("S0")))
            side += spread(fs[16:45], list(range(1, 12)))
            side.append((12, slot_add(SUM, PBUF, True)))
            sn = slot_next(); side += [(13, I("s_mov_b32 s34, s95")), (14, sn[0]), (15, sn[1]), (16, I("s_mov_b32 s94, s95"))]
            sn = slot_next(); side += [(17, sn[0]), (18, sn[1])]
        if g == 2:
            side.append((0, [WAIT("g2z_st", vm=[("PST", 7, 2)]), VM(f"buffer_store_dword v{V_TAG}, v{V_FLW}, s[16:19], s78 offen offset:2560 sc1", ("PFL", 7))]))
            side.append((3, [I(f"v_mov_b32 v{PK+10}, 0"), I(f"v_mov_b32 v{PK+11}, 0")]))
            side.append((12, [WAIT("g2z_s0", vm=["S0"])] + check("L_sp2")))
            side += list(zip([13, 14, 15, 16, 17, 18], slot_loads(PBUF, "SL5", "s34") + slot_loads(PK, "SL6", "s94")))
        if g == 3:
            ld = []
            for t in range(5):
                ld.append([I(f"s_or_b32 s61, s75, {t*4*2560}" if t >= 3 else f"s_mov_b32 s61, {t*4*2560}"), VM(f"buffer_load_dwordx2 v[{YR+2*t}:{YR+2*t+1}], v{V_YA0 if t == 0 else V_YA}, s[16:19], s61 offen sc1", ("YL", t))])
                ld.append(VM(f"buffer_load_dwordx4 v[{GR+4*t}:{GR+4*t+3}], v{V_GA}, s[16:19], {'s75' if t >= 3 else '0'} offen offset:{64*t} sc1", ("GL", t)))
            side += list(zip(range(10), ld))
            side.append((10, [I("s_mov_b32 s35, 1"), sample("S1", "s95")]))
            side += spread(fs[45:], list(range(0, 20)))
        if g < 3: side.append((19, WAIT(f"g2z_r{g}", lg=tags(rd))))
        o += place(ms, side)
    o += TS(7)
    o += T(f"v_mov_b32 v{PB2+10}, 0\nv_mov_b32 v{PB2+11}, 0")
    o.append(WAIT("fin_s1", vm=["S1"])); o += check("L_sp3")
    o += slot_loads(PB2, "SL7", "s95")
    o += slot_add(SUM, PBUF) + slot_add(E0, PK)
    for t in range(5):
        for rho in range(4): o.append(I(f"v_perm_b32 v{56+4*t+rho}, v{YR+2*t+1}, v{YR+2*t}, v{SEL+rho}"))
    for i in range(20): o.append(I(f"v_add_f32 v{E0+i}, v{E0+i}, v{SUM+i}"))
    for i in range(20): o.append(I(f"v_mul_f32 v{56+i}, v{56+i}, v{GR+i}"))
    for i in range(20): o.append(I(f"v_sub_f32 v{GR+i}, 1.0, v{GR+i}"))
    o.append(WAIT("fin_7", vm=[("SL7", 2)])); o += slot_add(E0, PB2)
    o.append(I("s_nop 3"))
    return o + fin_out()
def fin_out():
    OF = ('', ' sc1', ' nt', ' sc0 sc1')[cfg.osc]
    o = []
    for t in range(5):
        for rho in range(4): o.append(I(f"v_fmac_f32 v{56+4*t+rho}, v{E0+4*t+rho}, v{GR+4*t+rho}"))
        o += T(f"v_cvt_pk_bf16_f32 v{PK+2*t}, v{56+4*t}, v{56+4*t+1}\nv_cvt_pk_bf16_f32 v{PK+2*t+1}, v{56+4*t+2}, v{56+4*t+3}")
    o += T(f"v_mov_b32 v{PK+10}, 0\nv_mov_b32 v{PK+11}, 0")
    for t in range(5):
        a = V_SELA + (0 if t & 1 else 2); bb = PK + 4 * (t >> 1)
        o.append(mfma(ACC(t), f"v[{bb}:{bb+3}]", f"v[{a}:{a+3}]", "0"))
    o.append(I("s_nop 3"))
    for t in range(5):
        r = 16 + 4 * t
        o += T(f"v_cvt_pk_bf16_f32 v{56+2*t}, v{r}, v{r+1}\nv_cvt_pk_bf16_f32 v{57+2*t}, v{r+2}, v{r+3}")
        o.append(LG(f"ds_write_b64 v{OA}, v[{56+2*t}:{57+2*t}] offset:{2048*t}", ("OW", t), wr=(OUTL, OUTL + 10240)))
    o += [WAIT("out_w", lg="all"), BAR()]
    for k in range(3): o.append(LG(f"ds_read_b128 v[{68+4*k}:{71+4*k}], v{OA+1} offset:{4096*k}", ("OR", k), rd=(OUTL, OUTL + 10240)))
    for k in range(3):
        o += [WAIT(f"out_r{k}", lg=[("OR", k)]), I(f"buffer_store_dwordx4 v[{68+4*k}:{71+4*k}], v{OA+2+k}, s[24:27], 0 offen{OF}")]
    o += T(f"""
    s_or_b32 s68, s2, s3
    s_cmp_eq_u32 s68, 0
    s_cbranch_scc0 L_noepoch
    buffer_store_dword v{V_TAG}, v{V_FL}, s[16:19], 0 offen sc1
    L_noepoch:
    """)
    return o

def T(s): return [I(x.strip()) for x in s.strip().split("\n") if x.strip()]
def rowcalc(o, rho, d, tmp):
    return T(f"""
    v_cmp_eq_u32 vcc, 0, v{o}
    v_mov_b32 v{tmp}, 512
    v_add_u32 v{tmp+1}, 1, v{rho}
    v_cndmask_b32 v{tmp}, v{o}, v{tmp}, vcc
    v_cmp_lt_u32 vcc, 1, v{rho}
    v_sub_u32 v{tmp}, 0, v{tmp}
    v_lshrrev_b32 v{tmp+1}, 1, v{tmp+1}
    v_cndmask_b32 v{tmp}, v{o}, v{tmp}, vcc
    v_lshl_add_u32 v{d}, v{tmp+1}, 10, v{tmp}
    """)

def srd(b, p, n): return T(f"s_mov_b32 s{b}, s{p}\ns_mov_b32 s{b+1}, s{p+1}\ns_mov_b32 s{b+2}, {n}\ns_mov_b32 s{b+3}, 0x20000")

def prologue():
    o = T(f"""
    s_cmp_ge_u32 s2, 256
    s_cbranch_scc1 L_end
    s_load_dwordx16 s[36:51], s[0:1], 0
    s_load_dwordx8 s[52:59], s[0:1], 64
    """) + TS(0) + T(f"""
    v_lshrrev_b32 v4, 6, v0
    v_and_b32 v{V_L}, 63, v0
    v_readfirstlane_b32 s3, v4
    v_and_b32 v{V_C}, 15, v0
    v_bfe_u32 v{V_Q}, v0, 4, 2
    s_and_b32 s60, s2, 3
    s_bfe_u32 s61, s2, 0x10002
    s_lshr_b32 s62, s2, 3
    s_cmp_eq_u32 s60, 3
    s_cselect_b32 s63, 30, 29
    s_cmp_ge_u32 s62, s63
    s_cbranch_scc1 L_spare
    """)
    if cfg.map == 0:
        o += T("""
    s_mul_i32 s64, s60, 29
    s_add_u32 s64, s64, s62
    s_mul_i32 s5, s64, 5042
    s_lshr_b32 s5, s5, 16
    s_mul_i32 s65, s5, 13
    s_sub_u32 s64, s64, s65
    s_mul_i32 s4, s61, 13
    s_add_u32 s4, s4, s64
    """)
    elif cfg.map == 1:
        o += T("""
    s_mul_i32 s64, s61, 13
    s_mul_i32 s65, s60, 3
    s_add_u32 s64, s64, s65
    s_add_u32 s64, s64, s62
    s_sub_u32 s64, s64, 26
    s_and_b32 s65, s2, 7
    s_cmp_lt_u32 s62, 26
    s_cselect_b32 s4, s62, s64
    s_cselect_b32 s5, s65, 8
    """)
    else:
        o += T("""
    s_mul_i32 s65, s60, 3
    s_add_u32 s64, s65, s62
    s_sub_u32 s64, s64, 26
    s_lshl_b32 s5, s60, 1
    s_cmp_ge_u32 s62, 13
    s_cselect_b32 s65, 13, 0
    s_cselect_b32 s66, 1, 0
    s_add_u32 s5, s5, s66
    s_sub_u32 s4, s62, s65
    s_cmp_lt_u32 s62, 26
    s_cselect_b32 s4, s4, s64
    s_cselect_b32 s5, s5, 8
    s_mul_i32 s65, s61, 13
    s_add_u32 s4, s4, s65
    """)
    o += T(f"""
    s_and_b32 s66, s3, 1
    s_lshl_b32 s64, s62, 1
    s_add_u32 s64, s64, s66
    s_mul_i32 s64, s64, 15
    v_add_u32 v4, s64, v{V_L}
    s_mul_i32 s64, s60, {64*1152}
    v_lshlrev_b32 v5, 7, v4
    v_add_u32 v6, s64, v5
    v_add_u32 v5, {256*1152 - 576*128}, v5
    v_cmp_gt_u32 vcc, 576, v4
    v_mov_b32 v7, {OOB}
    s_mov_b32 s100, s60
    v_cndmask_b32 v5, v5, v6, vcc
    v_cmp_gt_u32 vcc, 15, v{V_L}
    s_mov_b32 s99, s62
    s_nop 0
    v_cndmask_b32 v{V_PFD}, v7, v5, vcc
    """)
    o += T(f"""
    v_lshrrev_b32 v4, 3, v{V_L}
    v_and_b32 v5, 3, v4
    v_lshrrev_b32 v6, 5, v{V_L}
    s_mul_i32 s65, s4, 20
    v_add_u32 v6, s65, v6
    s_and_b32 s66, s3, 1
    s_lshl_b32 s66, s66, 2
    v_lshrrev_b32 v7, 4, v{V_L}
    v_add_u32 v7, s66, v7
    v_and_b32 v8, 7, v{V_L}
    v_xor_b32 v7, v7, v8
    v_lshlrev_b32 v7, 4, v7
    s_movk_i32 s67, 1152
    v_mov_b32 v20, {OOB}
    s_bitcmp1_b32 s5, {0 if cfg.rev else 31}
    s_cselect_b32 s92, -1, 1
    s_cselect_b32 s79, 1024, 0
    s_cselect_b32 s34, {8*64*9216}, 0
    s_lshl_b32 s92, s92, 7
    s_lshl_b32 s93, s92, 1
    s_sub_u32 s83, s79, s92
    s_mul_i32 s35, s92, {64*72}
    """)
    for n in range(5):
        o += T(f"""
        s_add_u32 s68, s3, {4*n}
        s_cmp_ge_u32 s68, 10
        s_cselect_b32 s69, 10, 0
        s_cselect_b32 s{XH+n}, s92, 0
        s_sub_u32 s68, s68, s69
        s_lshl_b32 s68, s68, 1
        v_add_u32 v9, s68, v6
        """) + rowcalc(9, 5, 16, 17) + T(f"""
        v_cmp_gt_u32 vcc, 512, v9
        v_mad_u32_u24 v16, v16, s67, v7
        s_nop 0
        v_cndmask_b32 v{V_XO+n}, v20, v16, vcc
        """)
    o += T(f"""
    s_lshl_b32 s68, s5, 5
    s_lshl_b32 s69, s66, 2
    s_add_u32 s68, s68, s69
    v_add_u32 v9, s68, v4
    v_lshrrev_b32 v7, 4, v{V_L}
    v_xor_b32 v7, v7, v8
    v_lshlrev_b32 v7, 4, v7
    v_mad_u32_u24 v{V_ABA}, v9, s67, v7
    v_xor_b32 v7, 64, v7
    v_mad_u32_u24 v{V_ABB}, v9, s67, v7
    v_add_u32 v{V_ABB}, {8*1152-1024}, v{V_ABB}
    s_lshl_b32 s60, s3, 11
    s_lshl_b32 s82, s3, 10
    s_add_u32 s82, s82, {XB}
    s_waitcnt lgkmcnt(0)
    s_load_dword s7, s[58:59], 0
    """) + srd(12, 36, 2359296) + T(f"""
    s_cmp_lt_u32 s3, 2
    s_cselect_b32 s20, s42, s44
    s_cselect_b32 s21, s43, s45
    s_mov_b32 s22, 663552
    s_mov_b32 s23, 0x20000
    """)
    return o

def setup2():
    o = srd(8, 48, 5308416) + (lambda x: x if cfg.pf1 & 2 else [])(T(f"""
    s_lshl_b32 s68, s99, 2
    s_add_u32 s68, s68, s3
    s_mul_i32 s68, s68, 5
    v_mul_u32_u24 v5, 43, v{V_L}
    v_lshrrev_b32 v5, 8, v5
    v_mul_u32_u24 v6, 6, v5
    v_sub_u32 v6, v{V_L}, v6
    v_add_u32 v5, s68, v5
    v_lshrrev_b32 v7, 1, v6
    v_and_b32 v6, 1, v6
    s_lshl_b32 s68, s100, 1
    v_cmp_eq_u32 vcc, 2, v7
    v_add_u32 v7, s68, v7
    v_mul_u32_u24 v5, 9216, v5
    v_cndmask_b32 v7, v7, 8, vcc
    v_lshl_add_u32 v5, v6, 7, v5
    v_cmp_gt_u32 vcc, 30, v{V_L}
    v_lshl_add_u32 v5, v7, 10, v5
    v_mov_b32 v6, {OOB}
    v_cndmask_b32 v{V_PF1}, v6, v5, vcc
    """)) + srd(16, 58, WS_SIZE)
    o += T(f"""
    v_lshrrev_b32 v4, 3, v{V_L}
    s_lshl_b32 s68, s3, 4
    v_add_u32 v4, s68, v4
    v_and_b32 v5, 1, v{V_Q}
    v_lshlrev_b32 v5, 1, v5
    v_and_b32 v8, 7, v{V_L}
    v_xor_b32 v5, v5, v8
    v_lshlrev_b32 v5, 4, v5
    v_xor_b32 v6, 64, v5
    s_movk_i32 s68, 9216
    v_mad_u32_u24 v{V_A}, v4, s68, v5
    v_mad_u32_u24 v{V_B}, v4, s68, v6
    v_add_u32 v{V_B}, {8*9216-1024}, v{V_B}
    v_mad_u32_u24 v{V_W2A}, v4, s67, v5
    v_mad_u32_u24 v{V_W2B}, v4, s67, v6
    v_bfe_u32 v4, v{V_L}, 2, 2
    v_and_b32 v5, 3, v{V_L}
    v_and_b32 v6, 1, v{V_Q}
    v_lshlrev_b32 v6, 1, v6
    v_lshrrev_b32 v7, 1, v4
    v_add_u32 v6, v6, v7
    v_xor_b32 v6, s3, v6
    v_lshlrev_b32 v6, 5, v6
    v_lshl_add_u32 v6, v{V_Q}, 10, v6
    v_lshl_add_u32 v6, v4, 7, v6
    v_lshl_add_u32 v{V_TR}, v5, 3, v6
    v_add_u32 v{V_TR2}, 0x10000, v{V_TR}
    v_lshrrev_b32 v4, 1, v{V_C}
    v_xor_b32 v4, v4, v{V_Q}
    v_lshlrev_b32 v4, 4, v4
    v_lshl_add_u32 v4, v{V_C}, 7, v4
    v_add_u32 v{V_XR0}, {XB}, v4
    v_xor_b32 v{V_XR1}, 64, v{V_XR0}
    v_add_u32 v{V_WR0}, s60, v4
    v_xor_b32 v{V_WR1}, 64, v{V_WR0}
    v_mov_b32 v{V_PATCH}, 0xbf803f80
    s_lshl_b32 s68, s5, 2
    s_or_b32 s68, s68, s3
    s_cmp_eq_u32 s68, 2
    s_cselect_b32 s76, 0x00010001, 0
    s_mov_b32 s77, s76
    s_cselect_b32 s69, 1, 0
    s_lshr_b32 s70, s3, 1
    """)
    o += T(f"""
    s_cmp_eq_u32 s70, 0
    s_cselect_b32 s71, 1.0, -1.0
    v_mov_b32 v{V_SIG}, s71
    s_cmp_eq_u32 s69, 1
    s_cselect_b32 s72, 16, 0
    v_cmp_gt_u32 vcc, s72, v{V_L}
    v_mov_b32 v4, 1.0
    v_and_b32 v5, 1, v{V_L}
    v_cndmask_b32 v{V_SIG0}, v{V_SIG}, v4, vcc
    s_cmp_eq_u32 s4, 0
    s_cselect_b32 s72, 4, 0
    v_cmp_gt_u32 vcc, s72, v{V_C}
    s_cselect_b32 s80, 8, 0
    v_lshlrev_b32 v5, 31, v5
    v_cndmask_b32 v{V_SIGT0}, v{V_SIG}, 0, vcc
    v_cndmask_b32 v{V_SIG0T0}, v{V_SIG0}, 0, vcc
    v_or_b32 v{V_TAU}, v4, v5
    s_cmp_eq_u32 s69, 1
    s_cselect_b32 s80, s80, 0
    s_mov_b32 s81, 0
    """)
    o += T(f"""
    v_lshrrev_b32 v4, 2, v{V_C}
    v_and_b32 v5, 3, v{V_C}
    s_mul_i32 s68, s3, 1792
    s_add_u32 s68, s68, {ABL}
    v_and_b32 v6, 1, v4
    v_mul_u32_u24 v6, 320, v6
    v_lshrrev_b32 v7, 1, v4
    v_lshl_add_u32 v6, v7, 5, v6
    v_lshl_add_u32 v9, v{V_Q}, 3, s68
    v_add_u32 v6, v6, v9
    v_add_u32 v7, 640, v6
    v_add_u32 v8, 1344, v9
    v_cmp_eq_u32 vcc, 1, v5
    v_add_u32 v9, 1280, v9
    s_lshl_b32 s71, s70, 1
    v_cndmask_b32 v{V_ABS}, v8, v7, vcc
    v_cmp_eq_u32 vcc, 0, v5
    s_add_u32 s71, s71, 1
    s_nop 0
    v_cndmask_b32 v{V_ABS}, v{V_ABS}, v6, vcc
    v_cndmask_b32 v8, v8, v6, vcc
    v_cmp_eq_u32 vcc, s71, v5
    s_nop 1
    v_cndmask_b32 v8, v8, v7, vcc
    v_cmp_eq_u32 vcc, 2, v5
    s_nop 1
    v_cndmask_b32 v8, v8, v9, vcc
    v_cmp_gt_u32 vcc, s72, v{V_C}
    s_cmp_eq_u32 s4, 25
    s_cselect_b32 s75, {OOB}, 0
    v_cndmask_b32 v{V_ABS0}, v{V_ABS}, v8, vcc
    s_mul_i32 s68, s5, 26
    s_add_u32 s68, s68, s4
    s_lshl_b32 s68, s68, 7
    s_add_u32 s68, s68, {WS_ABFLAG}
    v_cmp_gt_u32 vcc, 32, v0
    v_mov_b32 v8, {OOB}
    v_lshl_add_u32 v9, v0, 2, s68
    v_cndmask_b32 v{V_ABFL}, v8, v9, vcc
    v_cmp_eq_u32 vcc, 0, v{V_L}
    v_lshrrev_b32 v4, 3, v{V_L}
    v_mul_u32_u24 v4, {SL}, v4
    v_and_b32 v5, 7, v{V_L}
    v_lshl_add_u32 v{ABP+14}, v5, 4, v4
    v_cndmask_b32 v{V_FL}, v8, 0, vcc
    """)
    o += T(f"""
    s_mul_i32 s73, s4, {cfg.rot1}
    s_and_b32 s73, s73, 7
    s_mov_b32 s101, s73
    s_lshl_b32 s73, s73, 7
    s_lshl_b32 s74, s5, 10
    s_add_u32 s74, s74, s34
    s_add_u32 s62, s73, s74
    s_add_u32 s6, s4, s5
    s_mul_i32 s72, s6, 7282
    s_lshr_b32 s72, s72, 16
    s_mul_i32 s72, s72, 9
    s_sub_u32 s6, s6, s72
    s_add_u32 s72, s6, 1
    s_cmp_eq_u32 s72, 9
    s_cselect_b32 s72, 0, s72
    s_mul_i32 s63, s4, 9
    s_add_u32 s63, s63, s72
    s_lshl_b32 s72, s72, 7
    s_mul_i32 s78, s63, {8*SL}
    s_mul_i32 s63, s3, {WSL}
    s_add_u32 s78, s78, s63
    s_add_u32 s78, s78, {WS_PART}
    s_mov_b32 s63, 6
    s_waitcnt lgkmcnt(0)
    s_add_u32 s7, s7, 0x9e3779b9
    v_mov_b32 v{V_TAG}, s7
    v_not_b32 v{ABP+10}, s7
    v_not_b32 v{ABP+11}, s7
    v_not_b32 v{ABP+12}, s7
    v_not_b32 v{ABP+13}, s7
    """)
    return o

def setup3():
    o = srd(24, 54, 2359296) + srd(28, 50, 5308416) + T(f"""
    v_add_u32 v{V_W2B}, {8*1152-1024}, v{V_W2B}
    s_and_b32 s68, s3, 1
    s_lshl_b32 s68, s68, 9
    s_lshr_b32 s70, s3, 1
    s_mul_i32 s71, s70, 5120
    s_add_u32 s68, s68, s71
    s_add_u32 s68, s68, {HB}
    v_lshrrev_b32 v4, 1, v{V_Q}
    v_lshl_add_u32 v4, v4, 4, v{V_C}
    v_lshlrev_b32 v4, 4, v4
    v_and_b32 v5, 1, v{V_Q}
    v_lshl_add_u32 v4, v5, 3, v4
    v_add_u32 v{V_HW}, s68, v4
    v_lshlrev_b32 v{V_P16}, 4, v{V_L}
    v_lshlrev_b32 v{V_P8}, 3, v{V_L}
    v_add_u32 v{V_HR}, {HB}, v{V_P16}
    v_add_u32 v{V_HR2}, {HB+40960}, v{V_P16}
    """)
    o += T("s_lshl_b32 s99, s5, 3")
    for i in range(8):
        o += T(f"""
        s_add_u32 s{64+i}, s101, {i}
        s_and_b32 s{64+i}, s{64+i}, 7
        s_add_u32 s{64+i}, s{64+i}, s99
        s_mul_i32 s{64+i}, s{64+i}, {64*1152}
        """)
    return o

def poll(lab, vaddr, nl):
    return T(f"""
    s_mov_b32 s63, {SPIN}
    v_cmp_le_u32 s[80:81], {nl}, v{V_L}
    {lab}:
    s_sleep {cfg.slp}
    buffer_load_dword v4, v{vaddr}, s[16:19], 0 offen sc1
    s_sub_u32 s63, s63, 1
    s_waitcnt vmcnt(0)
    v_cmp_eq_u32 vcc, s7, v4
    s_cmp_eq_u32 s63, 0
    s_cbranch_scc1 {lab}_out
    s_or_b64 vcc, vcc, s[80:81]
    s_cmp_eq_u64 vcc, -1
    s_cbranch_scc0 {lab}
    {lab}_out:
    """)

def ts_dump(fn=0):
    if not cfg.ts: return []
    if cfg.ts >= 10:
        return T(f"""
        L_hold{fn}:
        s_memrealtime s[100:101]
        s_waitcnt lgkmcnt(0)
        s_sub_u32 s100, s100, s84
        s_cmp_lt_u32 s100, {cfg.ts*100}
        s_cbranch_scc1 L_hold{fn}
        """)
    o = T("s_waitcnt vmcnt(0)") + TS(8) + T("s_waitcnt lgkmcnt(0)")
    for k in range(9): o.append(I(f"v_mov_b32 v{16+k}, s{tsr(k)}"))
    o += T(f"""
    s_getreg_b32 s68, hwreg(HW_REG_XCC_ID)
    v_mov_b32 v25, s68
    v_mov_b32 v26, 0
    v_mov_b32 v27, 0
    s_lshl_b32 s68, s2, 2
    s_add_u32 s68, s68, s3
    s_lshl_b32 s68, s68, 6
    s_add_u32 s68, s68, {WS_TS}
    v_cmp_eq_u32 vcc, 0, v{V_L}
    v_mov_b32 v4, {OOB}
    s_nop 0
    v_cndmask_b32 v4, v4, 0, vcc
    buffer_store_dwordx4 v[16:19], v4, s[16:19], s68 offen
    buffer_store_dwordx4 v[20:23], v4, s[16:19], s68 offen offset:16
    buffer_store_dwordx4 v[24:27], v4, s[16:19], s68 offen offset:32
    """)
    if cfg.ts == 2 and not fn:
        o += T(f"""
        v_lshlrev_b32 v5, 2, v{V_L}
        v_cmp_gt_u32 vcc, 16, v{V_L}
        v_mov_b32 v4, {OOB}
        s_lshl_b32 s69, s68, 2
        s_sub_u32 s69, s69, {4*WS_TS - WS_TS - 0x300000}
        buffer_store_dword v131, v5, s[16:19], s69 offen
        s_add_u32 s68, s68, 0x100000
        v_cndmask_b32 v4, v4, v5, vcc
        buffer_store_dword v130, v4, s[16:19], s68 offen
        s_add_u32 s68, s68, 0x100000
        buffer_store_dword v131, v4, s[16:19], s68 offen
        """)
    if cfg.ts != 3: return o
    o += T(f"""
    s_waitcnt vmcnt(0)
    v_not_b32 v16, v16
    v_cmp_eq_u32 vcc, 0, v0
    v_mov_b32 v4, {OOB}
    s_sleep 127
    s_sleep 127
    v_cndmask_b32 v4, v4, 0, vcc
    """) + srd(28, 56, 256)
    o.append(I("buffer_atomic_umax v16, v4, s[28:31], 0 offen"))
    for k in range(1, 9 if not fn else 8): o.append(I(f"buffer_atomic_umax v{16+k}, v4, s[28:31], 0 offen offset:{4*(k+8*fn)}"))
    return o

from fnet import fnet_code

def build():
    def dyn(hasx22):
        d = prologue()
        d += ab_pass(hasx22)
        d += TS(2)
        for p in range(8):
            for g in range(6): d += g1_group(p, g, True)
        d += TS(4)
        d += g2_pass0()
        for p in range(1, 8):
            for g in range(4): d += g2_group(p, g)
        d += g2_last()
        return d
    d1, d0 = dyn(True), dyn(False)
    r1, r0 = resolve(d1), resolve(d0)
    mn = lambda a, b: a if b is None else (b if a is None else min(a, b))
    res = {k: (mn(r1[k][0], r0[k][0]), mn(r1[k][1], r0[k][1])) for k in r1}
    txt = lambda l: [wait_text(res, it.site) if it.kind == "wait" else it.text for it in l]
    for d in (d1, d0):
        check_lds(d, res); check_loads(txt(d)); check_hazards(txt(d)); check_scc(txt(d))
    st = prologue()
    st += ab_pass(True)
    st += TS(2)
    for g in range(6): st += g1_group(0, g)
    st += TS(3) + [I("L_g1:")]
    for g in range(6): st += g1_group(1, g)
    st.append(I("s_cbranch_scc1 L_g1"))
    for g in range(6): st += g1_group(7, g)
    st += TS(4)
    st += g2_pass0() + TS(5) + [I("L_g2:")]
    for g in range(4): st += g2_group(1, g)
    st.append(I("s_cbranch_scc1 L_g2"))
    st += TS(6)
    st += g2_last() + ts_dump() + [I("s_endpgm")] + [I("L_once1:")] + ab_once(1) + [I("s_branch L_once1_ret")] + (spin("L_sp1", "s34") if cfg.inloop else []) + spin("L_sp2") + spin("L_sp3", "s95" if cfg.inloop else None)
    fn, idle = fnet_code(sys.modules[__name__])
    check_loads([it.text for it in fn]); check_hazards([it.text for it in fn]); check_scc([it.text for it in fn])
    st += fn + ts_dump(1) + [I("L_end:"), I("s_endpgm")] + idle
    if cfg.trace:
        ns = []; k = 0
        for it in st:
            ns.append(it)
            if it.kind == "wait" and it.site and re.match(r"(ab_rw\d|ab_r\d|ab_x\d|ab_b0|g1_r\d[az]|g20_r\d|g2z_r\d|g2z_st|g2z_s0|fin_)", it.site):
                ns += [I("s_waitcnt lgkmcnt(0)"), I(f"v_writelane_b32 v131, s32, {k}"), I("s_memtime s[32:33]")]; k += 1
                print(k, it.site, file=sys.stderr, end="; ")
            if it.text == "L_noepoch:": ns += [I("s_waitcnt lgkmcnt(0)"), I(f"v_writelane_b32 v131, s32, {k}")]
        st = ns
    if cfg.strip:
        a = [i for i, it in enumerate(st) if it.text == "L_g1:"][0]; b = [i for i, it in enumerate(st) if it.text == "s_cbranch_scc1 L_g2"][0]
        def drop(it):
            t = it.text or ""
            if cfg.strip & 1 and t.endswith(" lds"): return True
            if cfg.strip & 2 and (t.startswith(("v_cvt_pk", "v_pk_max", "ds_write")) or "s78 offen" in t): return True
            if cfg.strip & 4 and t == "s_barrier": return True
            if cfg.strip & 8 and it.kind == "wait" and it.need_vm: return True
            if cfg.strip & 16 and t.startswith("ds_read_b64_tr"): return True
            if cfg.strip & 32 and (t.startswith("ds_write") or "s78 offen" in t): return True
            if cfg.strip & 64 and t.startswith(("v_cvt_pk", "v_pk_max")): return True
            if cfg.strip & 128 and t.startswith("buffer_store_dword "): return True
            if cfg.strip & 1024 and it.kind == "wait" and it.need_lg and it.site not in ("g1_r2", "g2_r1"): return True
            if cfg.strip & 256 and "s78 offen" in t: it.text = t.replace(" sc1", "")
            if cfg.strip & 512 and "s78 offen" in t: it.text = t.replace(" sc1", " sc1 nt")
            return False
        st = st[:a] + [it for it in st[a:b] if not drop(it)] + st[b:]
    head = open("gated_mix__spectral_fnet__dense_activation_relu__prompt.s.ref").read().split("; Override launch")[0]
    out = head + "; @launch grid=(256,1,1) block=(256,1,1) lds=163840\n"
    out += f'.amdgcn_target "amdgcn-amd-amdhsa--gfx950"\n.text\n.globl {NAME}\n.p2align 8\n.type {NAME},@function\n{NAME}:\n'
    out += "\n".join(("" if (x.endswith(":") or x.startswith(".")) else "    ") + x for x in txt(st)) + "\n"
    out += f""".section .rodata,"a"
.p2align 6
.amdhsa_kernel {NAME}
  .amdhsa_next_free_vgpr 512
  .amdhsa_next_free_sgpr 102
  .amdhsa_accum_offset 256
  .amdhsa_group_segment_fixed_size 0
  .amdhsa_kernarg_size 96
  .amdhsa_user_sgpr_count 2
  .amdhsa_user_sgpr_kernarg_segment_ptr 1
  .amdhsa_system_sgpr_workgroup_id_x 1
.end_amdhsa_kernel
"""
    return out, res

if __name__ == "__main__":
    sys.modules["gen"] = sys.modules[__name__]
    outp = sys.argv[1]
    for a in sys.argv[2:]:
        k, v = a.split("="); setattr(cfg, k, int(v))
    out, res = build()
    open(outp, "w").write(out)
    print(res)
```

```python
from asmlib import *
def fnet_code(g):
    T, TS, srd = g.T, g.TS, g.srd
    V_L, V_C, V_Q, OOB = g.V_L, g.V_C, g.V_Q, g.OOB
    MF = lambda d, a, b, c: I(f"v_mfma_f32_16x16x32_bf16 {d}, {a}, {b}, {c}")
    def pf1():
        return T("buffer_load_dword v254, v253, s[12:15], s76 offen\ns_add_u32 s76, s76, 128") if g.cfg.pfs & 1 else []
    def pf2():
        return T(f"buffer_load_dword v254, v255, s[8:11], s75 offen\ns_add_u32 s75, s75, {22*256*128}") if g.cfg.pfs & 2 else []
    o = T(f"""
    L_spare:
    s_sub_u32 s62, s62, s63
    s_mul_i32 s64, s61, 11
    s_mul_i32 s65, s60, 3
    s_add_u32 s64, s64, s65
    s_add_u32 s64, s64, s62
    s_waitcnt lgkmcnt(0)
    """) + srd(8, 50, 5308416) + srd(12, 48, 5308416) + T(f"""
    s_lshl_b32 s65, s64, 8
    v_add_u32 v4, s65, v0
    v_lshlrev_b32 v255, 7, v4
    v_lshlrev_b32 v253, 10, v4
    s_mov_b32 s75, 0
    s_mov_b32 s76, 0
    """) + pf1() + pf1() + T(f"""
    s_cmp_ge_u32 s64, 20
    s_cbranch_scc1 L_idle
    s_cmp_ge_u32 s64, 10
    s_cselect_b32 s4, 1, 0
    s_cselect_b32 s65, 10, 0
    s_sub_u32 s65, s64, s65
    s_cmp_ge_u32 s65, 5
    s_cselect_b32 s5, 1, 0
    s_cselect_b32 s66, 5, 0
    s_sub_u32 s6, s65, s66
    s_waitcnt lgkmcnt(0)
    s_load_dword s7, s[58:59], 0
    """)
    o += srd(16, 58, g.WS_SIZE) + srd(20, 36, 2359296) + srd(24, 52, 1152)
    o += T(f"""
    s_lshl_b32 s66, s5, 7
    s_lshl_b32 s67, s3, 5
    s_add_u32 s66, s66, s67
    s_lshl_b32 s66, s66, 1
    s_add_u32 s66, s66, s4
    v_lshl_add_u32 v4, v{V_C}, 1, s66
    v_cmp_eq_u32 vcc, 0, v4
    v_mov_b32 v5, 512
    v_add_u32 v6, 32, v4
    v_cndmask_b32 v5, v4, v5, vcc
    v_cvt_f32_u32 v10, v4
    v_cvt_f32_u32 v11, v6
    v_cvt_f32_u32 v12, v5
    v_lshlrev_b32 v7, 4, v{V_Q}
    v_cvt_f32_u32 v7, v7
    v_mul_f32 v10, 0xba000000, v10
    v_mul_f32 v11, 0xba000000, v11
    v_mul_f32 v12, 0xba000000, v12
    s_mul_i32 s70, s4, 0xffff
    v_mov_b32 v8, s70
    v_cmp_eq_u32 vcc, 0, v{V_Q}
    v_and_b32 v9, 1, v{V_C}
    v_lshlrev_b32 v9, 15, v9
    v_cndmask_b32 v8, 0, v8, vcc
    v_xor_b32 v9, 0xbf80, v9
    v_mul_f32 v16, v7, v11
    v_mul_f32 v17, 0x42400000, v11
    s_mov_b32 s63, 0
    L_trig:
    """)
    o += T("""
    s_cmp_eq_u32 s63, 0
    s_cselect_b64 vcc, -1, 0
    v_cndmask_b32 v19, v12, v11, vcc
    v_mul_f32 v18, v7, v19
    v_mul_f32 v20, 0x42400000, v19
    """)
    for j in range(8):
        for i in range(4):
            for e in range(4):
                o += T(f"v_cos_f32 v{24+e}, v16\nv_sin_f32 v{28+e}, v18\nv_add_f32 v16, v16, v11\nv_add_f32 v18, v18, v19")
            c0 = 120 + j * 8; s0 = 120 + (8 + j) * 8
            o += T(f"""
            v_cvt_pk_bf16_f32 v{c0+i}, v24, v26
            v_cvt_pk_bf16_f32 v{c0+4+i}, v25, v27
            v_cvt_pk_bf16_f32 v{s0+i}, v28, v30
            v_cvt_pk_bf16_f32 v{s0+4+i}, v29, v31
            """)
        o += T("v_add_f32 v16, v16, v17\nv_add_f32 v18, v18, v20")
        if j in (1, 4, 7): o += pf1()
    o += T("""
    v_bfi_b32 v184, v8, v9, v184
    s_cmp_eq_u32 s63, 1
    s_cbranch_scc1 L_trigdone
    """)
    for i in range(128): o.append(I(f"v_accvgpr_write_b32 a{i}, v{120+i}"))
    o += T("""
    v_mov_b32 v11, v10
    v_mul_f32 v16, v7, v10
    v_mul_f32 v17, 0x42400000, v10
    s_mov_b32 s63, 1
    s_branch L_trig
    L_trigdone:
    """)
    o += gate_code(g)
    o += T(f"""
    v_and_b32 v5, 1, v{V_Q}
    v_lshlrev_b32 v5, 7, v5
    v_lshlrev_b32 v4, 4, v{V_L}
    v_xor_b32 v4, v4, v5
    s_mul_i32 s70, s4, 5
    s_add_u32 s70, s70, s6
    s_lshl_b32 s70, s70, 17
    s_add_u32 s70, s70, {g.WS_ABF}
    s_lshl_b32 s71, s3, 13
    s_add_u32 s70, s70, s71
    s_lshl_b32 s71, s6, 2
    s_add_u32 s71, s71, s3
    s_cmp_ge_u32 s71, 18
    s_cselect_b32 s71, {4*131072 - 65536 + 16384}, 0
    s_sub_u32 s70, s70, s71
    v_add_u32 v13, s70, v4
    v_lshlrev_b32 v4, 3, v{V_C}
    v_lshl_add_u32 v4, v{V_Q}, 8, v4
    v_add_u32 v15, v4, v5
    s_lshl_b32 s72, s6, 6
    v_add_u32 v116, s72, v{V_C}
    v_lshl_add_u32 v4, v{V_Q}, 3, s66
    s_movk_i32 s70, 2560
    v_lshlrev_b32 v5, 3, v116
    v_mad_u32_u24 v117, v4, s70, v5
    v_add_u32 v117, {g.WS_YT}, v117
    v_cmp_eq_u32 s[82:83], 0, v4
    v_add_u32 v5, {512*2560}, v117
    v_mov_b32 v6, {OOB}
    v_cndmask_b32 v118, v6, v5, s[82:83]
    v_cmp_eq_u32 vcc, 0, v{V_C}
    v_mov_b32 v5, 0xbf803f80
    s_mul_i32 s73, s4, 0x80008000
    v_cndmask_b32 v60, 0, v5, vcc
    s_sub_u32 s74, s4, 1
    v_mov_b32 v61, v60
    v_mov_b32 v62, v60
    v_mov_b32 v63, v60
    s_lshl_b32 s70, s6, 1
    s_add_u32 s71, s70, 1
    s_cmp_eq_u32 s71, 9
    s_cselect_b32 s71, 0, s71
    s_bitcmp1_b32 s3, 1
    s_cselect_b32 s70, s71, s70
    s_lshl_b32 s70, s70, 1
    s_and_b32 s71, s3, 1
    s_add_u32 s70, s70, s71
    s_mul_i32 s70, s70, {13*128}
    s_add_u32 s70, s70, {g.WS_ABFLAG}
    v_lshl_add_u32 v5, v{V_L}, 7, s70
    v_cmp_gt_u32 vcc, 13, v{V_L}
    s_nop 1
    v_cndmask_b32 v119, v6, v5, vcc
    s_lshl_b32 s60, s3, 15
    s_waitcnt lgkmcnt(0)
    s_add_u32 s7, s7, 0x9e3779b9
    """)
    A = lambda tl, mat, sp, j: (f"a[{(mat*8+j)*8+4*sp}:{(mat*8+j)*8+4*sp+3}]" if tl else f"v[{120+(mat*8+j)*8+4*sp}:{120+(mat*8+j)*8+4*sp+3}]")
    o += pf2() * g.cfg.npre
    o += TS(1) + g.poll("L_pollAB", 119, 13) + T("s_barrier") + TS(2)
    for P in range(8):
        o += T(f"s_add_u32 m0, s60, {P*4096}\ns_mov_b32 s61, {(P//2)*32768 + (P%2)*4096}")
        for i in range(4): o.append(I(f"buffer_load_dwordx4 v13, s[16:19], s61 offen offset:{1024*i} sc1 lds"))
    for ct in range(4):
        o += T(f"""
        v_add_u32 v4, {16*ct}, v116
        v_cmp_eq_u32 vcc, 288, v4
        v_mov_b32 v5, 512
        s_mov_b32 s61, {g.WS_XS}
        v_cndmask_b32 v4, v4, v5, vcc
        v_lshlrev_b32 v4, 1, v4
        buffer_load_ushort v{248+ct}, v4, s[16:19], s61 offen sc1
        """)
    o += T("s_waitcnt vmcnt(0)\ns_barrier") + TS(3) + pf2() * (4 - g.cfg.npre)
    for ct in range(4): o += T(f"v_lshlrev_b32 v{248+ct}, 16, v{248+ct}\nv_and_b32 v{248+ct}, s74, v{248+ct}")
    AC = lambda tl, gr: f"v[{64+(tl*4+gr)*4}:{67+(tl*4+gr)*4}]"
    o += T(f"""
    s_mov_b32 s63, 0
    L_ct:
    s_lshl_b32 s70, s63, 15
    v_add_u32 v16, s70, v15
    v_xor_b32 v17, 128, v16
    v_xor_b32 v18, 0x80000000, v248
    """)
    def rd(ks):
        b = 100 + 4 * (ks % 4)
        return [I(f"ds_read_b64_tr_b16 v[{b}:{b+1}], v16 offset:{ks*1024}"), I(f"ds_read_b64_tr_b16 v[{b+2}:{b+3}], v17 offset:{ks*1024}")]
    o += rd(0) + rd(1) + rd(2) + pf2()
    for tl in range(2):
        for r in range(4): o.append(I(f"v_mov_b32 v{64+tl*16+r}, v{18 if r & 1 else 248}"))
    for r in range(4): o.append(I(f"v_mov_b32 v{96+r}, v248"))
    for ks in range(32):
        gr, j = ks // 8, ks % 8; b = 100 + 4 * (ks % 4); B = f"v[{b}:{b+3}]"
        o.append(I(f"s_waitcnt lgkmcnt({min(4, 2*(31-ks))})"))
        nx = rd(ks + 3) if ks + 3 < 32 else [None, None]
        for tl in range(2):
            o.append(MF(AC(tl, gr), A(tl, gr >> 1, gr & 1, j), B, AC(tl, gr) if (j or gr == 0) else "0"))
            if nx[tl]: o.append(nx[tl])
        if gr == 0: o.append(MF("v[96:99]", "v[60:63]", B, "v[96:99]"))
    o += T(f"""
    v_cmp_eq_u32 vcc, 0, v116
    v_mov_b32 v4, 288
    v_cmp_eq_u32 s[80:81], v4, v116
    v_mov_b32 v248, v249
    v_mov_b32 v249, v250
    v_mov_b32 v250, v251
    s_or_b64 vcc, vcc, s[80:81]
    s_nop 1
    """)
    for tl in range(2):
        for r in range(4):
            pe, po, qe, qo = (64 + (tl * 4 + k) * 4 + r for k in range(4))
            d = 32 + 2 * (tl * 4 + r)
            o += T(f"""
            v_cndmask_b32 v{qe}, v{qe}, 0, vcc
            v_cndmask_b32 v{qo}, v{qo}, 0, vcc
            v_add_f32 v20, v{pe}, v{po}
            v_sub_f32 v21, v{pe}, v{po}
            v_add_f32 v22, v{qe}, v{qo}
            v_sub_f32 v23, v{qo}, v{qe}
            v_sub_f32 v24, v20, v22
            v_add_f32 v25, v21, v23
            v_sub_f32 v26, v21, v23
            v_add_f32 v27, v20, v22
            """)
            if tl == 0 and r == 0:
                o += T(f"""
                v_sub_f32 v28, v96, v{qo}
                v_add_f32 v29, v96, v{qo}
                v_cndmask_b32 v24, v24, v20, s[82:83]
                v_cndmask_b32 v25, v25, v21, s[82:83]
                v_cndmask_b32 v26, v26, v28, s[82:83]
                v_cndmask_b32 v27, v27, v29, s[82:83]
                v_cvt_pk_bf16_f32 v30, v26, v27
                v_cvt_pk_bf16_f32 v31, v25, v24
                buffer_store_dwordx2 v[30:31], v118, s[16:19], 0 offen sc1
                """)
            o += T(f"""
            v_cvt_pk_bf16_f32 v{d}, v24, v25
            v_cvt_pk_bf16_f32 v{d+1}, v26, v27
            s_mov_b32 s70, {tl*81920 + r*5120}
            v_xor_b32 v{d}, s73, v{d}
            v_xor_b32 v{d+1}, s73, v{d+1}
            buffer_store_dwordx2 v[{d}:{d+1}], v117, s[16:19], s70 offen sc1
            """)
    o += T(f"""
    v_add_u32 v116, 16, v116
    v_add_u32 v117, 128, v117
    v_add_u32 v118, 128, v118
    s_add_u32 s63, s63, 1
    s_cmp_lt_u32 s63, 4
    s_cbranch_scc1 L_ct
    """) + TS(4)
    o += TS(5)
    o += T(f"""
    s_waitcnt vmcnt(0)
    s_barrier
    s_lshl_b32 s70, s64, 2
    s_add_u32 s70, s70, {g.WS_YFLAG}
    v_cmp_gt_u32 vcc, 26, v0
    v_mov_b32 v4, {OOB}
    v_lshlrev_b32 v6, 7, v0
    v_mov_b32 v5, s7
    v_cndmask_b32 v4, v4, v6, vcc
    buffer_store_dword v5, v4, s[16:19], s70 offen sc1
    """) + TS(6) + TS(7)
    idle = [I("L_idle:")] + pf1() * 6 + pf2() * 8 + [I("s_endpgm")]
    return o, idle

def gate_code(g):
    T = g.T; V_L, OOB = g.V_L, g.OOB
    o = T(f"""
    v_and_b32 v4, 7, v{V_L}
    v_lshlrev_b32 v32, 4, v4
    v_bfe_u32 v33, v{V_L}, 3, 2
    v_lshrrev_b32 v34, 5, v{V_L}
    s_lshl_b32 s70, s64, 2
    s_add_u32 s70, s70, s3
    s_lshl_b32 s70, s70, 1
    v_add_u32 v34, s70, v34
    s_movk_i32 s67, 1152
    v_mov_b32 v35, {OOB}
    """)
    for j in range(9): o.append(I(f"buffer_load_dwordx4 v[{44+4*j}:{47+4*j}], v32, s[24:27], 0 offen offset:{128*j}"))
    for it in range(4):
        o += g.rowcalc(34, 33, 36, 37) + T(f"""
        v_cmp_gt_u32 vcc, 512, v34
        v_mad_u32_u24 v36, v36, s67, v32
        v_lshl_add_u32 v37, v34, 2, v33
        v_cndmask_b32 v36, v35, v36, vcc
        v_lshlrev_b32 v37, 2, v37
        v_cndmask_b32 v{20+it}, v35, v37, vcc
        v_add_u32 v34, 160, v34
        """)
        for j in range(9):
            d = f"v[{80+4*j}:{83+4*j}]" if it == 0 else f"a[{92+36*it+4*j}:{95+36*it+4*j}]"
            o.append(I(f"buffer_load_dwordx4 {d}, v36, s[20:23], 0 offen offset:{128*j}"))
    for it in range(4):
        o += T(f"v_mov_b32 v{24+it}, 0\nv_mov_b32 v28, 0\ns_waitcnt vmcnt({9*(3-it)})")
        if it:
            for k in range(36): o.append(I(f"v_accvgpr_read_b32 v{80+k}, a{92+36*it+k}"))
        for k in range(36):
            d = 28 if k & 1 else 24 + it
            o.append(I(f"v_dot2_f32_bf16 v{d}, v{80+k}, v{44+k}, v{d}"))
        o += T(f"s_nop 2\nv_add_f32 v{24+it}, v{24+it}, v28")
    o.append(I("s_nop 1"))
    for perm in ("quad_perm:[1,0,3,2]", "quad_perm:[2,3,0,1]", "row_half_mirror"):
        for it in range(4): o.append(I(f"v_add_f32_dpp v{24+it}, v{24+it}, v{24+it} {perm} row_mask:0xf bank_mask:0xf"))
    for it in range(4): o.append(I(f"v_mul_f32 v{24+it}, 0xbfb8aa3b, v{24+it}"))
    for it in range(4): o.append(I(f"v_exp_f32 v{24+it}, v{24+it}"))
    for it in range(4): o.append(I(f"v_add_f32 v{24+it}, 1.0, v{24+it}"))
    for it in range(4): o.append(I(f"v_rcp_f32 v{24+it}, v{24+it}"))
    o += T(f"""
    v_cmp_eq_u32 vcc, 0, v32
    s_mov_b32 s70, {g.WS_GT}
    s_nop 0
    """)
    for it in range(4): o.append(I(f"v_cndmask_b32 v{20+it}, v35, v{20+it}, vcc"))
    for it in range(4): o.append(I(f"buffer_store_dword v{24+it}, v{20+it}, s[16:19], s70 offen sc1"))
    return o
```

```python
import sys
from asmlib import *
NAME = "gated_mix__spectral_fnet__dense_activation_relu__prompt_kernel"
WS_PF, WS_ABFLAG, WS_YFLAG, WS_GT, WS_XS = 0x20000, 0x20000, 0xA000, 0x10000, 0x13000
WS_ABF, WS_YT, WS_PART, WS_TS, WS_SIZE = 0x100000, 0x280000, 0x400000, 0x2000000, 0x3000000
OOB = 0x40000000
WSL, SL = 2816, 11264
XB, HB = 71680, 81920
SPIN = 1 << 20

class Cfg:
    ts = False
    L2 = 12
    rot1 = 3
    chain = 0
    strip = 0
    pp = 0
    ep2 = 1
    epg = 5
    chk7 = 1
    s6g = 3
    flg = 4
    u0 = 7
    npre = 2
    abv = 0
    early = 3
    epm = 3
    rot2 = 2
    tag7 = 0
    stg = 2
    rdp = 0
    hw = 1
    hg = 9
    ne = 6
    inloop = 0
    osc = 1
    pt = 1
    trace = 0
    slp = 16
    map = 2
    pf1 = 1
    rev = 1
    pf2 = 0
    noab = 0
    pfs = 3
    warmfl = 1
    stspread = 1
    fake = 0
cfg = Cfg()

ACC = lambda t: f"v[{16+4*t}:{19+4*t}]"
EE = lambda t: f"v[{36+4*t}:{39+4*t}]"
E0 = 36
FB = lambda b: 56 + 4 * b
PK = 88
def act(i):
    return f"a[{4*i}:{4*i+3}]" if i < 64 else f"v[{152+4*(i-64)}:{155+4*(i-64)}]"
V_A, V_B = 10, 11
V_W2A, V_W2B = 12, 13
V_TR, V_TR2 = 14, 15
V_XO = 100
V_ABA, V_ABB = 105, 106
V_XR0, V_XR1 = 107, 108
V_WR0, V_WR1 = 109, 110
V_PATCH = 111
V_HW = 112
V_HR, V_HR2 = 113, 114
V_SIG, V_SIG0, V_SIGT0, V_SIG0T0, V_TAU = 115, 116, 117, 118, 119
V_ABS, V_ABS0 = 120, 121
V_ABFL = 122
V_TAG = 123
V_P16, V_P8 = 124, 125
V_FL = 126
V_POLL = 127
V_PFD, V_PF1, V_PF2, V_DUM = 132, 133, 134, 135
XH = 94
V_L, V_C, V_Q = 1, 2, 3

def mfma(d, a, b, c): return I(f"v_mfma_f32_16x16x32_bf16 {d}, {a}, {b}, {c}")
def place(ms, side):
    gaps = [[] for _ in ms]
    for g, it in side:
        gaps[g] += it if isinstance(it, list) else [it]
    out = []
    for m, g in zip(ms, gaps):
        out.append(m); out += g
    return out
def spread(items, gaps):
    n = len(items); k = len(gaps)
    return [(gaps[i * k // n], it) for i, it in enumerate(items)]

tsn = [0]
def tsr(k): return 84 + 2 * k if k < 4 else 36 + 2 * (k - 4)
def TS(k):
    if not cfg.ts: return []
    return [I(f"{'s_memtime' if cfg.ts == 2 else 's_memrealtime'} s[{tsr(k)}:{tsr(k)+1}]")]

def wslot(ph, p, s):
    if ph == 2: return ((p & 1) * 16 + s) * 4096
    return s * 4096
def wdma(ph, p, s):
    P, b = s >> 1, s & 1
    pre = []
    if b == 0:
        pre.append(I(f"s_add_u32 m0, s60, {P*8192}"))
        pre.append(I(f"s_add_u32 s61, s62, s{64+P}" if ph == 2 else ("s_add_u32 s61, s61, s35" if P else "s_mov_b32 s61, s62")))
    lo = wslot(ph, p, 2 * P)
    v, sr = (V_W2A, "s[28:31]") if ph == 2 else (V_A, "s[8:11]")
    return pre, VM(f"buffer_load_dwordx4 v{v+b}, {sr}, s61 offen offset:{1024*b} lds", ("W", ph, p, s), wr=(lo, lo + 8192))
def cover(ph, p, lo, hi): return [("W", ph, p, s) for s in range(lo, hi)]
def nf(ph): return 8 if ph == 2 else 6
def trr(ph, p, s):
    b = FB(s % nf(ph)); o = s * 4096; vr = V_TR
    if o >= 65536: o -= 65536; vr = V_TR2
    lo = wslot(ph, p, s)
    return [LG(f"ds_read_b64_tr_b16 v[{b+2*h}:{b+2*h+1}], v{vr} offset:{o+512*h}", ("R", ph, p, s, h), rd=(lo, lo + 4096)) for h in range(2)]
def group_mfmas(ph, steps, last):
    ms = []
    order = [(t, s) for t in range(5) for s in steps] if cfg.chain else [(t, s) for s in steps for t in range(5)]
    for t, s in order:
        if True:
            d = EE(t) if s == last else ACC(t)
            c = "0" if s == 0 else ACC(t)
            b = FB(s % nf(ph)); w = f"v[{b}:{b+3}]"
            ms.append(mfma(d, act(s * 5 + t), w, c) if ph == 2 else mfma(d, w, act(s * 5 + t), c))
    return ms

def xdma(n):
    pre = [I("s_add_u32 s79, s79, s93")] if (n % 5 == 0 and n) else []
    return pre + [I(f"s_add_u32 m0, s82, {n*4096}"), I(f"s_add_u32 s61, s79, s{XH+n%5}"),
            VM(f"buffer_load_dwordx4 v{V_XO+n%5}, s[12:15], s61 offen lds", ("X", n), wr=(XB + (n // 5) * 20480, min(XB + (n // 5 + 1) * 20480, 163840)))]
def abdma(P):
    lo = P * 8192
    return [I(f"s_add_u32 m0, s60, {lo}"), I("s_add_u32 s83, s83, s92"),
            VM(f"buffer_load_dwordx4 v{V_ABA}, s[20:23], s83 offen lds", ("WAB", P, 0), wr=(lo, lo + 8192)),
            VM(f"buffer_load_dwordx4 v{V_ABB}, s[20:23], s83 offen offset:1024 lds", ("WAB", P, 1), wr=(lo, lo + 8192))]
def wreads(P):
    out = []
    if P == 4: out += [I(f"v_add_u32 v{V_WR0}, 32768, v{V_WR0}"), I(f"v_add_u32 v{V_WR1}, 32768, v{V_WR1}")]
    Pp = P - 4 if P >= 4 else P
    for h in range(2):
        s = 2 * P + h; b = FB(s % 6)
        out.append(LG(f"ds_read_b128 v[{b}:{b+3}], v{V_WR0+h} offset:{Pp*8192}", ("RAB", s)))
    return out
def xreads(P):
    out = []
    if P == 4: out += [I(f"v_add_u32 v{V_XR0}, 40960, v{V_XR0}"), I(f"v_add_u32 v{V_XR1}, 40960, v{V_XR1}")]
    Pp = P - 4 if P >= 4 else P
    for t in range(5):
        for h in range(2):
            s = 2 * P + h; lo = XB + (P * 10 + 2 * t) * 1024
            out.append(LG(f"ds_read_b128 {act(s*5+t)}, v{V_XR0+h} offset:{(Pp*10+2*t)*1024}", ("RX", s, t), rd=(lo, lo + 2048)))
    return out
def patch(P):
    return [I(f"v_cndmask_b32 v{FB(s%6)+e}, v{FB(s%6)+e}, v{V_PATCH}, s[76:77]") for s in (2 * P, 2 * P + 1) for e in range(4)]
def xg(g, lastx): return [("X", n) for n in range(5 * g, min(5 * g + 5, lastx + 1))]

def cut(su, n):
    while su[n].text.startswith(("s_cselect", "v_c")) or su[n - 1].text.startswith(("s_cmp", "s_cselect", "v_c")): n += 1
    return n
def ab_pass(hasx22):
    lastx = 22 if hasx22 else 21
    o = []
    pf = lambda v, sr, off, tag: [VM(f"buffer_load_dword v{V_DUM}, v{v}, {sr}, 0 offen offset:{off}", tag)]
    Xr = lambda a, b: sum((xdma(n) for n in range(a, b)), [])
    TP = lambda n, vm=None: [WAIT(f'ab_x9{n}', vm=vm)] if cfg.trace else []
    if cfg.abv == 2:
        o += Xr(0, 5) + setup1() + setup1b() + abdma(0) + abdma(1)
        if cfg.pf1 & 1: o += pf(V_PFD, "s[20:23]", 0, "PFD")
        o += setup2()
        if cfg.pt & 1: o.append(VM(f"buffer_load_dword v{V_DUM}, v{V_ABFL}, s[16:19], 0 offen sc1", "PT0"))
        return o + ab_tail2(hasx22, Xr)
    o += TP(0) + Xr(0, 5) + setup1()
    if cfg.pf1 & 1: o += pf(V_PFD, "s[20:23]", 0, "PFD")
    o += Xr(5, 8) + TP(1) + setup1b() + setup2() + TP(2)
    if cfg.trace == 2: o += TP(3, [('X', 0)]) + TP(4, [('X', 4)]) + TP(5, [('X', 7)])
    if cfg.pf1 & 2: o += pf(V_PF1, "s[8:11]", 0, "PFA")
    if cfg.pt & 1: o.append(VM(f"buffer_load_dword v{V_DUM}, v{V_ABFL}, s[16:19], 0 offen sc1", "PT0"))
    if cfg.pt & 8:
        o += srd(24, 54, 2359296) + srd(28, 50, 5308416) + T(f"""
        s_lshl_b32 s68, s2, 7
        v_lshl_add_u32 v4, v0, 16, s68
        """) + [VM(f"buffer_load_dword v{V_DUM}, v4, s[24:27], 0 offen", "PT2"), VM(f"buffer_load_dword v{V_DUM}, v4, s[28:31], 0 offen", "PT3")]
    if cfg.pt & 2: o.append(VM(f"buffer_store_dword v{ABP+10}, v{V_ABFL}, s[16:19], 0 offen sc1", "PT1"))
    if cfg.pt & 4: o.append(VM(f"buffer_store_dwordx4 v[{ABP+10}:{ABP+13}], v{ABP+14}, s[16:19], s78 offen offset:2560 sc1", "WARMFL"))
    if cfg.abv == 1: return o + ab_tail1(hasx22, Xr)
    o += Xr(8, 17)
    o += [WAIT("ab_b0", vm=xg(0, lastx)), BAR()] + TS(1) + xreads(0) + Xr(17, 20) + xreads(1)
    o += xdma(20) + xdma(21) + [I("s_cmp_lt_u32 s3, 2"), I("s_cbranch_scc0 L_nox22")] + (xdma(22) if hasx22 else []) + [I("L_nox22:")]
    o += [WAIT("ab_x1", vm=xg(1, lastx)), BAR()] + abdma(0) + xreads(2) + abdma(1) + abdma(2) + xreads(3) + abdma(3) + abdma(4)
    o += [WAIT("ab_x4", vm=xg(4, lastx) + [("WAB", 0, 1)], lg=[("RX", 1, 0)]), BAR()] + wreads(0) + abdma(5)
    o.append(WAIT("ab_r0", lg=[("RAB", 1)])); o += patch(0); o.append(I("s_nop 1"))
    for g in range(9):
        ms = group_mfmas(0, (2 * g, 2 * g + 1), 17)
        side = []
        if g < 8:
            side.append((0, WAIT(f"ab_w{g}", vm=[("WAB", g + 1, 1)])))
            side += spread(wreads(g + 1), [0, 1])
            if g < 5: side += spread(xreads(g + 4), [1, 2, 3, 4, 5, 7, 8, 9])
        else:
            side.append((0, [WAIT("ab_b8", vm=cover(1, 0, 0, 6)), BAR()]))
            side += spread(trr(1, 0, 0) + trr(1, 0, 1) + trr(1, 0, 2), [1, 2, 3, 4, 5, 6])
        d = []
        if g == 0: d = [abdma(6)[:3], abdma(6)[3:], abdma(7)[:3], abdma(7)[3:]]
        if g == 1: d = [abdma(8)[:3], abdma(8)[3:]]
        sl = {0: (), 1: (0, 1), 2: (2, 3, 4), 3: (5, 6, 7), 4: (8, 9), 5: (10, 11), 6: (12, 13), 7: (14,), 8: ()}[g]
        for s in sl:
            pre, dm = wdma(1, 0, s); dm.wr = None
            d.append(pre + [dm])
        if d: side += spread(d, [2, 3, 4, 5])
        if g in (5, 6, 7): side += list(zip([1, 3, 5, 9, 9], ab_gaddr()[(g - 5) * 5:(g - 4) * 5]))
        if g < 8:
            side.append((6, WAIT(f"ab_rw{g}", lg=[("RAB", 2 * g + 3)])))
            side += spread(patch(g + 1), [6, 7, 8])
            side.append((9, I("s_nop 0")))
        else: side.append((9, WAIT(f"ab_r9", lg="all")))
        o += place(ms, side)
    return o

def ab_tail2(hasx22, Xr):
    lastx = 22 if hasx22 else 21
    x22 = [I("s_cmp_lt_u32 s3, 2"), I("s_cbranch_scc0 L_nox22")] + (xdma(22) if hasx22 else []) + [I("L_nox22:")]
    sp = lambda l: [l[:3], l[3:]]
    X = lambda a, b: [xdma(n) for n in range(a, b)]
    q = X(5, 10) + sp(abdma(2)) + sp(abdma(3)) + X(10, 15) + sp(abdma(4)) + sp(abdma(5)) + X(15, 20) + sp(abdma(6)) + sp(abdma(7)) + X(20, 22) + [x22] + sp(abdma(8))
    for s in range(15):
        pre, dm = wdma(1, 0, s); dm.wr = None
        q.append(pre + [dm])
    u0 = cfg.u0
    o = sum(q[:u0], [])
    o += [WAIT("ab_b0", vm=xg(0, lastx) + [("WAB", 0, 1)]), BAR()] + TS(1) + wreads(0) + xreads(0) + sum(q[u0:u0 + 4], [])
    o.append(WAIT("ab_r0", lg="all")); o += patch(0); o.append(I("s_nop 1"))
    rest = q[u0 + 4:]
    per = [len(rest) * (g + 1) // 8 for g in range(8)]
    for g in range(9):
        ms = group_mfmas(0, (2 * g, 2 * g + 1), 17)
        side = []
        if g < 8:
            need = [("WAB", g + 1, 1)]
            if g % 2: side.append((0, [WAIT(f"ab_x{g}", vm=need + xg((g + 1) // 2, lastx)), BAR()]))
            else: side.append((0, WAIT(f"ab_w{g}", vm=need)))
            side += spread(wreads(g + 1), [0, 0]) + spread(xreads(g + 1), [0, 1, 1, 2, 2, 3, 4])
            side += spread(rest[(per[g - 1] if g else 0):per[g]], [3, 4, 5, 6, 7, 8])
            side.append((6, WAIT(f"ab_rw{g}", lg=[("RAB", 2 * g + 3)])))
            side += spread(patch(g + 1), [6, 7, 8])
        else:
            side.append((0, [WAIT("ab_b8", vm=cover(1, 0, 0, 6)), BAR()]))
            side += spread(trr(1, 0, 0) + trr(1, 0, 1) + trr(1, 0, 2), [1, 2, 3, 4, 5, 6])
        if g in (6, 7, 8): side += list(zip([5, 5, 9, 9, 9] if g < 8 else [2, 4, 7, 8, 8], ab_gaddr()[(g - 6) * 5:(g - 5) * 5]))
        side.append((9, WAIT(f"ab_r{g+1}", lg="all")))
        o += place(ms, side)
    return o
def ab_tail1(hasx22, Xr):
    lastx = 22 if hasx22 else 21
    x22 = [I("s_cmp_lt_u32 s3, 2"), I("s_cbranch_scc0 L_nox22")] + (xdma(22) if hasx22 else []) + [I("L_nox22:")]
    o = Xr(8, 10) + abdma(0) + abdma(1) + Xr(10, 15)
    o += [WAIT("ab_b0", vm=xg(0, lastx)), BAR()] + TS(1) + xreads(0) + abdma(2) + abdma(3) + xreads(1) + Xr(15, 18)
    o += [WAIT("ab_x1", vm=xg(1, lastx) + [("WAB", 0, 1)], lg=[("RX", 1, 0)]), BAR()] + wreads(0) + Xr(18, 20)
    o.append(WAIT("ab_r0", lg=[("RAB", 1)])); o += patch(0); o.append(I("s_nop 1"))
    sp = lambda l: [l[:3], l[3:]]
    dl = {0: sp(abdma(4)) + sp(abdma(5)), 1: [xdma(20), xdma(21), x22] + sp(abdma(6)), 2: sp(abdma(7)) + sp(abdma(8))}
    sl = {3: (0, 1, 2, 3), 4: (4, 5, 6, 7), 5: (8, 9, 10), 6: (11, 12, 13), 7: (14,)}
    for g in range(9):
        ms = group_mfmas(0, (2 * g, 2 * g + 1), 17)
        side = []
        if g < 8:
            need = [("WAB", g + 1, 1)]
            if g in (2, 4, 6): side.append((0, [WAIT(f"ab_x{g}", vm=need + xg(g // 2 + 1, lastx)), BAR()]))
            else: side.append((0, WAIT(f"ab_w{g}", vm=need)))
            side += spread(wreads(g + 1), [0, 1])
            if g < 7: side += spread(xreads(g + 2), [1, 2, 3, 4, 5, 7, 8, 9])
        else:
            side.append((0, [WAIT("ab_b8", vm=cover(1, 0, 0, 6)), BAR()]))
            side += spread(trr(1, 0, 0) + trr(1, 0, 1) + trr(1, 0, 2), [1, 2, 3, 4, 5, 6])
        d = list(dl.get(g, []))
        for s in sl.get(g, ()):
            pre, dm = wdma(1, 0, s); dm.wr = None
            d.append(pre + [dm])
        if d: side += spread(d, [2, 3, 4, 5])
        if g in (6, 7, 8): side += list(zip([1, 3, 5, 9, 9] if g < 8 else [2, 4, 7, 8, 8], ab_gaddr()[(g - 6) * 5:(g - 5) * 5]))
        if g < 8:
            side.append((6, WAIT(f"ab_rw{g}", lg=[("RAB", 2 * g + 3)])))
            side += spread(patch(g + 1), [6, 7, 8])
            side.append((9, I("s_nop 0")))
        else: side.append((9, WAIT(f"ab_r9", lg="all")))
        o += place(ms, side)
    return o

ABP = 136
OUTL = 135168
ABL = 73728
V_ABR, V_ABG0, V_ABG1 = 100, 101, 102
def ab_epilogue():
    o = []
    for t in range(5):
        r = E0 + 4 * t
        sg = (V_SIG0T0, V_SIGT0) if t == 0 else (V_SIG0, V_SIG)
        for e in range(4): o.append(I(f"v_fmac_f32_dpp v{r+e}, v{r+e}, v{sg[0] if e == 0 else sg[1]} quad_perm:[3,2,1,0] row_mask:0xf bank_mask:0xf"))
        for e in range(4): o.append(I(f"v_fmac_f32_dpp v{r+e}, v{r+e}, v{V_TAU} quad_perm:[1,0,3,2] row_mask:0xf bank_mask:0xf"))
        if t == 0:
            o.append(I(f"v_mov_b32_dpp v{PK+10}, v{r} quad_perm:[0,1,2,1] row_mask:0xf bank_mask:0xf"))
            o.append(I(f"v_cndmask_b32 v{r}, v{r}, v{PK+10}, s[80:81]"))
        o.append(I(f"v_cvt_pk_bf16_f32 v{ABP+2*t}, v{r}, v{r+1}"))
        o.append(I(f"v_cvt_pk_bf16_f32 v{ABP+2*t+1}, v{r+2}, v{r+3}"))
    return o
def ab_gaddr():
    A = lambda x: T(x)
    return [A(f"s_lshr_b32 s68, s5, 1\ns_lshl_b32 s68, s68, 17\ns_lshr_b32 s70, s3, 1"),
            A(f"s_lshl_b32 s71, s70, 16\ns_add_u32 s68, s68, s71\ns_mul_i32 s71, s4, 320"),
            A(f"s_add_u32 s68, s68, s71\ns_and_b32 s71, s5, 1\ns_lshl_b32 s71, s71, 14"),
            A(f"s_add_u32 s68, s68, s71\ns_and_b32 s71, s3, 1\ns_lshl_b32 s69, s71, 13"),
            A(f"s_add_u32 s68, s68, s69\ns_add_u32 s68, s68, {WS_ABF}\ns_lshl_b32 s71, s71, 5"),
            A(f"s_lshl_b32 s69, s5, 6\ns_add_u32 s69, s69, s71\ns_lshl_b32 s70, s70, 10"),
            A(f"s_add_u32 s69, s69, s70\ns_add_u32 s69, s69, {WS_XS - 320}\nv_mul_u32_u24 v4, 13, v{V_L}"),
            A(f"v_lshrrev_b32 v4, 8, v4\nv_mul_u32_u24 v5, 20, v4\nv_sub_u32 v5, v{V_L}, v5"),
            A(f"v_and_b32 v6, 1, v4\nv_lshlrev_b32 v6, 15, v6\nv_lshrrev_b32 v7, 1, v4\nv_mul_u32_u24 v7, {5*131072}, v7"),
            A(f"v_lshl_add_u32 v6, v5, 4, v6\nv_add3_u32 v6, v6, v7, s68\ns_cmp_eq_u32 s4, 25\ns_cselect_b32 s70, 12, 20"),
            A(f"v_cmp_gt_u32 vcc, s70, v5\nv_mov_b32 v8, {OOB}\nv_lshlrev_b32 v7, 4, v{V_L}\nv_cndmask_b32 v6, v8, v6, vcc"),
            A(f"v_cmp_gt_u32 vcc, 60, v{V_L}\ns_add_u32 s68, s68, {5*131072 + 32768}\nv_add_u32 v9, s68, v7\nv_cndmask_b32 v{V_ABG0}, v8, v6, vcc"),
            A(f"v_cmp_gt_u32 vcc, s70, v{V_L}\nv_add_u32 v6, s69, v7\nv_lshrrev_b32 v5, 1, v{V_L}\nv_cndmask_b32 v9, v8, v9, vcc"),
            A(f"s_cmp_eq_u32 s4, 0\ns_cselect_b32 s70, 10, -1\nv_cmp_eq_u32 vcc, s70, v5\ns_mul_i32 s68, s3, 1792"),
            A(f"s_add_u32 s68, s68, {ABL}\nv_add_u32 v{V_ABR}, s68, v7\nv_cndmask_b32 v{V_ABG1}, v9, v6, vcc")]
def ab_once(which):
    if which == 2:
        return [LG(f"ds_write_b64 v{V_ABS0 if t == 0 else V_ABS}, v[{ABP+2*t}:{ABP+2*t+1}] offset:{64*t}", ("ABW", t)) for t in range(5)]
    if which == 3:
        return [LG(f"ds_read_b128 v[{PK}:{PK+3}], v{V_ABR}", ("ABR", 0)), LG(f"ds_read_b128 v[{PK+4}:{PK+7}], v{V_ABR} offset:960", ("ABR", 1))]
    if which == 0:
        o = [VM(f"buffer_store_dwordx4 v[{PK}:{PK+3}], v{V_ABG0}, s[16:19], 0 offen sc1", ("ABST", 0)),
             VM(f"buffer_store_dwordx4 v[{PK+4}:{PK+7}], v{V_ABG1}, s[16:19], 0 offen sc1", ("ABST", 4))]
        if cfg.warmfl:
            o += [VM(f"buffer_store_dwordx4 v[{ABP+10}:{ABP+13}], v{ABP+14}, s[16:19], s78 offen offset:2560 sc1", "WARMFL")]
        return o
    return [VM(f"buffer_store_dword v{V_TAG}, v{V_ABFL}, s[16:19], 0 offen sc1", "ABFL")]
def h_tile(p, t):
    r = E0 + 4 * t; d = PK + 2 * t
    lo = HB + p * 10240
    return ([I(f"v_cvt_pk_bf16_f32 v{d}, v{r}, v{r+1}"), I(f"v_cvt_pk_bf16_f32 v{d+1}, v{r+2}, v{r+3}")],
            [I(f"v_pk_max_i16 v{d}, v{d}, 0"), I(f"v_pk_max_i16 v{d+1}, v{d+1}, 0")],
            LG(f"ds_write_b64 v{V_HW}, v[{d}:{d+1}] offset:{1024*t}", ("HW", p, t), wr=(lo + (2048 if p < 0 else 0), lo + 10240)))
def p_parts(p):
    cv = [I(f"v_cvt_pk_bf16_f32 v{PK+i}, v{E0+2*i}, v{E0+2*i+1}") for i in range(10)]
    st = [VM(f"buffer_store_dwordx4 v[{PK}:{PK+3}], v{V_P16}, s[16:19], s78 offen sc1", ("PST", p, 0)),
          VM(f"buffer_store_dwordx4 v[{PK+4}:{PK+7}], v{V_P16}, s[16:19], s78 offen offset:1024 sc1", ("PST", p, 1)),
          VM(f"buffer_store_dwordx2 v[{PK+8}:{PK+9}], v{V_P8}, s[16:19], s78 offen offset:2048 sc1", ("PST", p, 2))]
    return [(cv[:4], st[0]), (cv[4:8], st[1]), (cv[8:], st[2])]
def hreads(s):
    o = []
    for t in range(5):
        off = (s * 5 + t) * 1024; vr = V_HR
        if off >= 40960: off -= 40960; vr = V_HR2
        lo = HB + (s * 5 + t) * 1024
        o.append(LG(f"ds_read_b128 {act(s*5+t)}, v{vr} offset:{off}", ("RH", s, t), rd=(lo, lo + 1024)))
    return o
def tags(items): return [it.tag for it in items if it.kind == "lg"]
def cyc_stamp(side, g, g0, gap, v):
    if cfg.ts == 2 and cfg.pp and g == g0: side.append((gap, [I("s_memtime s[32:33]")]))
    if cfg.ts == 2 and cfg.pp and g == g0 + 1: side.append((gap, [I("s_waitcnt lgkmcnt(0)"), I("v_cmp_eq_u32 vcc, s63, v1"), I("v_mov_b32 v9, s32"), I("s_nop 0"), I(f"v_cndmask_b32 v{v}, v{v}, v9, vcc")]))

def g1_group(p, g, dyn=False):
    kind = "a" if p == 0 else ("z" if p == 7 else "")
    ms = group_mfmas(1, range(3 * g, 3 * g + 3), 17)
    side = []
    nph, npp = (1, p + 1) if p < 7 else (2, 0)
    if g % 2 == 1:
        need = cover(1, p, 3 * g + 3, 3 * g + 9) if g < 5 else cover(nph, npp, 0, 6)
        if g == 1 and p == 1: need = need + [("ABST", 4)]
        side.append((0, [WAIT(f"g1_b{g}{kind}", vm=need), BAR()]))
    rd = []
    for s in range(3 * g + 3, 3 * g + 6):
        rd += trr(1, p, s) if s < 18 else trr(nph, npp, s - 18)
    side += list(zip([1, 2, 4, 5, 6, 7] if not cfg.rdp else [0, 1, 2, 4, 5, 6], rd))
    for k, s in enumerate(range(3 * g + 15, 3 * g + 18)):
        pre, dm = wdma(1, p, s) if s < 18 else wdma(nph, npp, s - 18)
        gp = [3, 8, 13][k]
        if pre: side.append((gp - 2, pre[0])); side.append((gp - 1, pre[1]))
        side.append((gp, dm))
    if g == 0:
        if p < 7:
            side.append((11, [I("s_add_u32 s73, s73, 128"), I("s_and_b32 s73, s73, 0x380")])); side.append((12, I("s_add_u32 s62, s73, s74")))
        else:
            side.append((11, I("s_mov_b32 s62, s72")))
    if kind == "z" and cfg.tag7:
        if g == 0: side += [(1, I(f"v_mov_b32 v{ABP}, -1")), (2, I(f"v_mov_b32 v{ABP+1}, -1")), (7, I(f"v_mov_b32 v{ABP+2}, -1")), (10, I(f"v_mov_b32 v{ABP+3}, -1")),
                            (12, I(f"s_add_u32 s34, s78, {7*SL}"))]
        if g == 1: side.append((0, [VM(f"buffer_store_dwordx4 v[{ABP}:{ABP+3}], v{V_P16}, s[16:19], s34 offen sc1", ("POI", 0)),
                                    VM(f"buffer_store_dwordx4 v[{ABP}:{ABP+3}], v{V_P16}, s[16:19], s34 offen offset:1024 sc1", ("POI", 1)),
                                    VM(f"buffer_store_dwordx2 v[{ABP}:{ABP+1}], v{V_P8}, s[16:19], s34 offen offset:2048 sc1", ("POI", 2))]))
        if g == 4: side += [(1, [I(f"v_lshlrev_b32 v4, 2, v{V_L}"), I(f"v_cmp_gt_u32 vcc, 32, v{V_L}")]), (3, I(f"v_mov_b32 v5, {OOB}")), (8, I(f"v_cndmask_b32 v{ABP+4}, v5, v4, vcc"))]
    hr = []
    if kind == "z" and g >= 1:
        hr = hreads(2 * g - 2) + hreads(2 * g - 1)
        side += list(zip([0 if g % 2 == 0 else 1, 2, 4, 5, 6, 7, 9, 9, 11, 12], hr))
    if kind == "a":
        ep = ab_epilogue(); st = ab_once(0); wr = ab_once(2); ag = ab_gaddr()
        if g == 0: side += spread(ep[:26], [3, 4, 5, 6, 7, 9, 9, 10, 10, 11, 12, 13, 14])
        if g == 1:
            side += spread(ep[26:], [1, 2, 3, 4, 5, 6, 7, 9, 11, 12, 13]) + [(9, wr[0]), (10, wr[1]), (12, wr[2]), (14, wr[3])]
        if g == 2:
            r2 = ab_once(3); rd = rd + r2
            side += [(0, wr[4]), (9, r2[0]), (10, r2[1])]
        if g == 3: side += list(zip([0, 1, 2], st))
        if g in (3, 4, 5):
            s3_ = setup3(); n3 = (len(s3_) + 2) // 3
            side += spread(s3_[(g - 3) * n3:(g - 2) * n3], [3, 4, 5, 6, 7, 9, 9, 10, 10, 11, 12, 14])
    if kind == "" and g == 1:
        side.append((9, [I("s_cmp_eq_u32 s63, 6"), I("s_cbranch_scc1 L_once1")] + (ab_once(1) if (dyn and p == 1) else []) + [I("L_once1_ret:")]))
    if kind == "a": pass
    elif g < 5:
        cv, mx, w = h_tile(p - 1, g)
        if kind == "z" and g >= 1:
            side += [(3, cv[0]), (8, cv[1]), (10, mx), (13, w)]
        elif cfg.hw == 1:
            side += [(3, cv[0]), (4, cv[1]), (5, mx[0]), (6, mx[1]), (cfg.hg, w)]
        else:
            side += [(4, cv[0]), (5, cv[1]), (9, mx), (cfg.hg, w)]
    else:
        side.append((10, I(f"v_add_u32 v{V_HW}, 10240, v{V_HW}")))
    if kind == "": cyc_stamp(side, g, 2, 12, 130)
    if g == 5 and kind == "": side.append((13, [I("s_sub_u32 s63, s63, 1"), I("s_cmp_lg_u32 s63, 0")]))
    side.append((14, WAIT(f"g1_r{g}{kind}", lg=tags(rd))))
    return place(ms, side)

def nextcol():
    return [[I("s_add_u32 s62, s62, 128"), I("s_cmp_eq_u32 s62, 1152"), I("s_cselect_b32 s62, 0, s62")],
            [I("s_cmp_eq_u32 s62, s72"), I(f"s_cselect_b32 s62, {OOB}, s62"), I("s_xor_b32 s60, s60, 0x10000")]]
def g2_pass0():
    o = []
    groups = [(0, 1, 2), (3, 4, 5), (6, 7), (8, 9, 10, 11), (12, 13, 14, 15)]
    cuts = [15, 19, 23, 26, 31, 36]
    hsteps = [(10,), (11, 12), (13,), (14, 15), ()]
    htl = [(0, 1), (2, 3), (4,), (), ()]
    for gi, st in enumerate(groups):
        ms = group_mfmas(2, st, 15); n = len(ms); side = []
        if gi == 1: side.append((0, [WAIT("g20_b1", vm=cover(2, 0, 6, 12) + ([("POI", 2)] if cfg.tag7 else [])), BAR()] +
                                 ([VM(f"buffer_store_dword v{V_TAG}, v{ABP+4}, s[16:19], s34 offen offset:2560 sc1", "POIF")] if cfg.tag7 else [])))
        if gi == 3: side.append((0, [WAIT("g20_b3", vm=cover(2, 0, 12, 16), lg=[("HW", 7, 4)]), BAR()]))
        if gi == 4: side.append((0, [WAIT("g20_b4", vm=cover(2, 1, 0, 8)), BAR(), I(f"v_xor_b32 v{V_TR}, 0x10000, v{V_TR}")]))
        dl = list(range(cuts[gi], cuts[gi + 1]))
        dg = [min(n - 1, 2 + (i * (n - 1)) // len(dl)) for i in range(len(dl))]
        for s, gp in zip(dl, dg):
            pre, dm = wdma(2, s // 16, s % 16)
            if s % 16 == 0:
                nc = nextcol(); side.append((gp - 2, nc[0] + nc[1]))
            if pre: side.append((gp - 1, pre))
            side.append((gp, dm))
        free = [x for x in range(1 if gi in (1, 3, 4) else 0, n - 3) if x not in dg]
        rd = []
        for s in (groups[gi + 1] if gi < 4 else range(16, 20)): rd += trr(2, s // 16, s % 16)
        for s in hsteps[gi]: rd += hreads(s)
        side += spread(rd, free)
        for k, t in enumerate(htl[gi]):
            cv, mx, w = h_tile(7, t)
            b = 3 + 4 * k
            side += [(b, cv[0]), (b + 1, cv[1]), (b + 2, mx[0]), (b + 3, mx[1]), (n - 3 + k, w)]
        gp_ = g2_pre()
        k_ = 30 if cfg.inloop else 20
        if gi == 3: side += spread(gp_[:k_], list(range(1, n - 1)))
        if gi == 4: side += spread(gp_[k_:], list(range(1, n - 1)))
        side.append((n - 1, WAIT(f"g20_r{gi}", lg=tags(rd))))
        o += place(ms, side)
    return o
SUM, PBUF, PB2 = 216, 236, 76
V_SELA = 248
V_FLW = 254
V_FLG = 128
V_K0, V_K1 = 129, 130
YR, GR, SEL, OA, V_YA, V_YA0, V_GA = 100, 132, 110, 114, 120, 121, 122
def slot_loads(b, tag, so="s34", r="v"):
    return [VM(f"buffer_load_dwordx4 {r}[{b}:{b+3}], v{V_P16}, s[16:19], {so} offen sc1", (tag, 0)),
            VM(f"buffer_load_dwordx4 {r}[{b+4}:{b+7}], v{V_P16}, s[16:19], {so} offen offset:1024 sc1", (tag, 1)),
            VM(f"buffer_load_dwordx2 {r}[{b+8}:{b+9}], v{V_P8}, s[16:19], {so} offen offset:2048 sc1", (tag, 2))]
def slot_add(d, b, first=False, r="v"):
    o = []
    for t in range(5):
        a = V_SELA + (0 if t & 1 else 2); bb = b + 4 * (t >> 1); D = f"v[{d+4*t}:{d+4*t+3}]"
        o.append(mfma(D, f"v[{a}:{a+3}]", f"{r}[{bb}:{bb+3}]", "0" if first else D))
    return o
def slot_next():
    return [[I("s_cmp_eq_u32 s96, 0"), I(f"s_cselect_b32 s97, {72*SL}, 0"), I("s_add_u32 s95, s95, s97")],
            [I(f"s_sub_u32 s95, s95, {7*SL}"), I("s_sub_u32 s96, s96, 1")]]
def sample(tag, so=None):
    if so: return VM(f"buffer_load_dword v{V_FLG}, v{V_FL}, s[16:19], {so} offen offset:2560 sc1", tag)
    return VM(f"buffer_load_dword v{V_FLG}, v{V_POLL}, s[16:19], 0 offen sc1", tag)
def check(lab):
    return [I(f"v_cmp_eq_u32 vcc, s7, v{V_FLG}"), I("s_and_b32 s97, vcc_lo, s35"), I("s_cmp_eq_u32 s97, s35"), I(f"s_cbranch_scc0 {lab}"), I(f"{lab}_ret:")]
def spin(lab, so=None):
    return T(f"""
    {lab}:
    s_mov_b32 s98, {SPIN}
    {lab}_l:
    {sample(None, so).text}
    s_sub_u32 s98, s98, 1
    s_cmp_eq_u32 s98, 0
    s_cbranch_scc1 {lab}_ret
    s_waitcnt vmcnt(0)
    v_cmp_eq_u32 vcc, s7, v{V_FLG}
    s_and_b32 s97, vcc_lo, s35
    s_cmp_eq_u32 s97, s35
    s_cbranch_scc0 {lab}_l
    s_branch {lab}_ret
    """)
def tagcheck():
    b = PB2
    return T(f"""
    v_max3_u32 v4, v{b}, v{b+1}, v{b+2}
    v_max3_u32 v5, v{b+3}, v{b+4}, v{b+5}
    v_max3_u32 v6, v{b+6}, v{b+7}, v{b+8}
    v_max3_u32 v4, v4, v{b+9}, v5
    v_max_u32 v4, v4, v6
    v_cmp_eq_u32 vcc, -1, v4
    s_nop 4
    """)
def spin_tag():
    return T(f"L_sp3:\ns_mov_b32 s98, {SPIN}\nL_sp3_l:") + slot_loads(PB2, None, "s95") + T("""
    s_sub_u32 s98, s98, 1
    s_waitcnt vmcnt(0)
    s_cmp_eq_u32 s98, 0
    s_cbranch_scc1 L_sp3_ret
    """) + tagcheck() + T("s_cbranch_vccnz L_sp3_l\ns_branch L_sp3_ret")
EB = 216
V_POLLE = 129
EB2 = 132
def ep_block(which, p=None):
    if which == 0: return [VM(f"buffer_load_dword v{V_FLG}, v{V_POLLE}, s[16:19], 0 offen sc1", ("EPS", p))]
    o = check("L_sp1")
    e1 = []; e2 = []
    for j in range(cfg.early): e1 += slot_loads(EB + 10 * j, ("SL", j), f"s{(94, 96, 34)[j]}")
    if not cfg.ep2: return o + e1
    e1.append(I("s_movk_i32 s35, 0x18"))
    for j in (3, 4): e2 += slot_loads(EB2 + 10 * (j - 3), ("SL", j), f"s{(100, 101)[j - 3]}")
    o += [I("s_cmp_eq_u32 s63, 1"), I("s_cbranch_scc1 L_ep2")]
    if p is None: return o + e1 + [I("s_branch L_ep1_ret"), I("L_ep2:")] + e2
    return o + (e2 if p == 7 else e1)
def g2_group(p, g, ep=()):
    ms = group_mfmas(2, range(4 * g, 4 * g + 4), 15); side = []
    if g in (1, 3):
        need = cover(2, p, 8, 16) if g == 1 else cover(2, p + 1, 0, 8) + [("PST", p - 1, 2)] + (([("SMP", p)] + ([(("SL", p - 1), 2)] if p > 1 else [])) if cfg.inloop else [])
        if g == 3 and p in ep and cfg.early and not cfg.inloop: need = need + [("EPS", p)]
        side.append((0, [WAIT(f"g2_b{g}", vm=need), BAR()] + ([I(f"v_xor_b32 v{V_TR}, 0x10000, v{V_TR}")] if g == 3 else [])))
    rd = []
    for s in range(4 * g + 4, 4 * g + 8): rd += trr(2, p + s // 16, s % 16)
    side += list(zip([1, 2, 4, 5, 6, 7, 9, 10], rd))
    for k, s in enumerate(range(4 * g + 20, 4 * g + 24)):
        pre, dm = wdma(2, p + s // 16, s % 16)
        gp = [3, 8, 13, 18][k]
        if pre: side.append((gp - 2, pre[0])); side.append((gp - 1, pre[1]))
        side.append((gp, dm))
    if g == 0:
        pp = p_parts(p - 1)
        if cfg.inloop: side.append((0, sample(("SMP", p), "s34")))
        side += list(zip([4, 5, 6, 7, 9, 10, 11, 12, 14, 14], pp[0][0] + pp[1][0] + pp[2][0]))
        side += [(15, pp[0][1]), (16, pp[1][1]), (17, pp[2][1])]
    if g == 2:
        nc = nextcol(); side += [(16, nc[0]), (17, nc[1])]
        if cfg.inloop: sn = slot_next(); side += [(14, sn[0]), (15, sn[1])]
    if cfg.early and not cfg.inloop and g in (0, 3):
        w = 0 if g == 0 else 1
        side.append((0 if g == 0 else cfg.epg, [I("s_bitcmp1_b32 s99, s63"), I(f"s_cbranch_scc1 L_ep{w}")] + (ep_block(w, p) if p in ep else []) + [I(f"L_ep{w}_ret:")]))
    if g == 3 and not cfg.inloop:
        side.append((cfg.flg, VM(f"buffer_store_dword v{V_TAG}, v{V_FLW}, s[16:19], s78 offen offset:2560 sc1", ("PFL", p - 1))))
        side.append((16, I(f"s_add_u32 s78, s78, {SL}")))
        side.append((19, [I("s_sub_u32 s63, s63, 1"), I("s_cmp_lg_u32 s63, 0")]))
    if g == 3 and cfg.inloop:
        ad = slot_add(SUM, PBUF); ld = slot_loads(PBUF, ("SL", p)); ck = check("L_sp1")
        side.append((0, [ad[0], VM(f"buffer_store_dword v{V_TAG}, v{V_FLW}, s[16:19], s78 offen offset:2560 sc1", ("PFL", p - 1)),
                         ad[1], ck[0], ad[2]] + ck[1:] + [ad[3], I(f"s_add_u32 s78, s78, {SL}"), ad[4]]))
        side += list(zip([14, 15, 16], ld))
        side.append((17, [I("s_cmp_gt_u32 s63, 6"), I(f"s_cselect_b32 s34, {OOB}, s95"), I("s_cselect_b32 s35, 0, 1")]))
        side.append((18, [I("s_sub_u32 s63, s63, 1"), I("s_cmp_lg_u32 s63, 0")]))
    cyc_stamp(side, g, 1, 19, 152-1 if False else 131)
    side.append((19, WAIT(f"g2_r{g}", lg=tags(rd))))
    return place(ms, side)

def g2_pre():
    o = T(f"""
    v_sub_u32 v5, s6, v{V_L}
    v_add_u32 v6, 9, v5
    v_min_u32 v5, v5, v6
    v_lshl_add_u32 v5, v5, 3, v{V_L}
    s_mul_i32 s95, s4, {72*SL}
    s_mul_i32 s96, s3, {WSL}
    s_add_u32 s95, s95, s96
    s_add_u32 s95, s95, {WS_PART}
    v_mul_u32_u24 v5, {SL}, v5
    s_add_u32 s97, s95, 2560
    v_add_u32 v5, s97, v5
    s_lshl_b32 s97, s4, 7
    s_add_u32 s97, s97, {WS_YFLAG - 32}
    v_lshl_add_u32 v6, v{V_L}, 2, s97
    v_cmp_gt_u32 vcc, 8, v{V_L}
    s_mov_b32 s82, {(0x20 if (cfg.inloop or cfg.ep2) else (1 << cfg.ne) - (1 << cfg.early)) | (0xfffff << 8)}
    s_mul_i32 s97, s6, {8*SL}
    v_cndmask_b32 v5, v6, v5, vcc
    s_mov_b32 s83, 0
    v_mov_b32 v6, {OOB}
    s_add_u32 s95, s95, s97
    v_cndmask_b32 v{V_POLL}, v6, v5, s[82:83]
    s_mov_b32 s82, {0xff & ~((1 << cfg.ne) - 1)}
    s_add_u32 s95, s95, {14*SL if cfg.inloop else 0}
    v_cndmask_b32 v255, v6, v5, s[82:83]
    s_mov_b32 s82, {0x1f if cfg.ep2 else (1 << cfg.early) - 1}
    s_nop 0
    v_cndmask_b32 v{V_POLLE}, v6, v5, s[82:83]
    s_add_u32 s96, s6, 2
    s_mov_b32 s63, 7
    s_mov_b32 s34, {OOB}
    s_mov_b32 s35, 0
    v_lshlrev_b32 v4, 2, v{V_L}
    v_cmp_gt_u32 vcc, 32, v{V_L}
    v_lshlrev_b32 v5, 2, v{V_Q}
    v_sub_u32 v5, v{V_C}, v5
    v_cndmask_b32 v{V_FLW}, v6, v4, vcc
    v_and_b32 v4, 1, v5
    v_lshlrev_b32 v4, 4, v4
    v_mov_b32 v6, 0x3f80
    v_lshlrev_b32 v4, v4, v6
    v_lshrrev_b32 v5, 1, v5
    v_cmp_eq_u32 vcc, 0, v5
    v_mov_b32 v{V_SELA}, 0
    v_mov_b32 v{V_SELA+1}, 0
    v_cndmask_b32 v{V_SELA+2}, 0, v4, vcc
    v_cmp_eq_u32 vcc, 1, v5
    v_mov_b32 v{V_SELA+4}, 0
    v_mov_b32 v{V_SELA+5}, 0
    v_cndmask_b32 v{V_SELA+3}, 0, v4, vcc
    v_mul_u32_u24 v{V_P12}, 12, v{V_L}
    """)
    if cfg.early and not cfg.inloop:
        o += T(f"""
        v_mov_b32 v{EB+30}, 0
        v_mov_b32 v{EB+31}, 0
        s_mov_b32 s35, {(1 << cfg.early) - 1}
        s_mul_i32 s99, s4, 21846
        s_lshr_b32 s99, s99, 16
        s_mul_i32 s99, s99, 3
        s_sub_u32 s99, s4, s99
        s_min_u32 s99, s99, {cfg.epm - 1}
        s_lshl_b32 s99, 2, s99
        s_mov_b32 s94, s95
        """)
        if cfg.ep2:
            o += T("s_and_b32 s99, s4, 1\ns_lshl_b32 s99, 4, s99\ns_or_b32 s99, s99, 2")
            for j in (3, 4): o.append([I(f"s_cmp_lt_u32 s6, {j}"), I(f"s_cselect_b32 s{97+j}, {72*SL}, 0"), I(f"s_add_u32 s{97+j}, s{97+j}, s95"), I(f"s_sub_u32 s{97+j}, s{97+j}, {7*j*SL}")])
        o.append([I("s_cmp_lt_u32 s6, 1"), I(f"s_cselect_b32 s96, {72*SL}, 0"), I("s_add_u32 s96, s96, s95"), I(f"s_sub_u32 s96, s96, {7*SL}")])
        o.append([I("s_cmp_lt_u32 s6, 2"), I(f"s_cselect_b32 s34, {72*SL}, 0"), I("s_add_u32 s34, s34, s95"), I(f"s_sub_u32 s34, s34, {14*SL}")])
    if cfg.inloop:
        for i in range(20): o.append(I(f"v_mov_b32 v{SUM+i}, 0"))
        for i in range(12): o.append(I(f"v_mov_b32 v{PBUF+i}, 0"))
    return o

def fin_setup():
    o = T(f"""
    s_lshl_b32 s68, s6, 6
    s_lshl_b32 s69, s3, 4
    s_add_u32 s68, s68, s69
    v_add_u32 v5, s68, v{V_C}
    v_sub_u32 v6, 576, v5
    v_cmp_lt_u32 s[76:77], v6, v5
    v_min_u32 v6, v5, v6
    s_mul_i32 s69, s4, 20
    v_add_u32 v7, s69, v{V_Q}
    s_movk_i32 s70, 2560
    v_lshlrev_b32 v6, 3, v6
    v_mad_u32_u24 v{V_YA}, v7, s70, v6
    v_add_u32 v{V_YA}, {WS_YT}, v{V_YA}
    v_cmp_eq_u32 s[80:81], 0, v7
    v_add_u32 v9, {512*2560}, v{V_YA}
    s_and_b64 s[82:83], s[80:81], s[76:77]
    v_lshlrev_b32 v{V_GA}, 4, v7
    v_add_u32 v{V_GA}, {WS_GT}, v{V_GA}
    v_cndmask_b32 v{V_YA0}, v{V_YA}, v9, s[82:83]
    """)
    for rho in range(4):
        d = 0x0c0c | ((2 * rho) << 16) | ((2 * rho + 1) << 24); m = 0x0c0c | ((6 - 2 * rho) << 16) | ((7 - 2 * rho) << 24)
        o += T(f"v_mov_b32 v8, {d}\nv_mov_b32 v9, {m}\nv_cndmask_b32 v{SEL+rho}, v8, v9, s[76:77]")
    o += T(f"""
    s_lshl_b32 s68, s3, 1
    v_lshrrev_b32 v5, 1, v{V_Q}
    v_add_u32 v5, s68, v5
    v_and_b32 v6, 7, v{V_C}
    v_xor_b32 v5, v5, v6
    v_lshlrev_b32 v5, 4, v5
    v_lshl_add_u32 v5, v{V_C}, 7, v5
    v_and_b32 v6, 1, v{V_Q}
    v_lshl_add_u32 v5, v6, 3, v5
    v_add_u32 v{OA}, {OUTL}, v5
    v_lshrrev_b32 v5, 3, v{V_L}
    v_and_b32 v6, 7, v{V_L}
    v_xor_b32 v7, v5, v6
    v_lshlrev_b32 v7, 4, v7
    v_lshl_add_u32 v7, v5, 7, v7
    s_lshl_b32 s70, s3, 10
    s_add_u32 s70, s70, {OUTL}
    v_add_u32 v{OA+1}, s70, v7
    s_lshl_b32 s70, s6, 7
    v_lshl_add_u32 v6, v6, 4, s70
    v_and_b32 v5, 3, v5
    v_lshrrev_b32 v7, 5, v{V_L}
    s_add_u32 s68, s68, s69
    v_add_u32 v7, s68, v7
    s_add_u32 s69, s69, 20
    s_min_u32 s69, s69, 512
    s_movk_i32 s67, 1152
    """)
    for k in range(3):
        o += rowcalc(7, 5, OA + 2 + k, 8) + T(f"""
        v_cmp_gt_u32 vcc, s69, v7
        v_mad_u32_u24 v{OA+2+k}, v{OA+2+k}, s67, v6
        v_mov_b32 v8, {OOB}
        v_cndmask_b32 v{OA+2+k}, v8, v{OA+2+k}, vcc
        v_add_u32 v7, 8, v7
        """)
    return o

V_P12, V_FLG2 = 130, 131
def xsum(d, last):
    b = PK
    return T(f"""
    v_bitop3_b32 v{d}, v{b}, v{b+1}, v{b+2} bitop3:0x96
    v_bitop3_b32 v{d}, v{d}, v{b+3}, v{b+4} bitop3:0x96
    v_bitop3_b32 v{d}, v{d}, v{b+5}, v{b+6} bitop3:0x96
    v_bitop3_b32 v{d}, v{d}, v{b+7}, v{b+8} bitop3:0x96
    v_bitop3_b32 v{d}, v{d}, v{b+9}, v{last} bitop3:0x96
    """)
def loads7():
    l = slot_loads(PK, ("SL", 7), "s71")
    l[2].text = f"buffer_load_dwordx3 v[{PK+8}:{PK+10}], v{V_P12}, s[16:19], s71 offen offset:2048 sc1"
    return l
def chk7(): return xsum(4, PK + 10) + T("v_cmp_ne_u32 vcc, s7, v4\ns_nop 4")
def spin7():
    return T(f"L_sp4:\ns_mov_b32 s98, {SPIN}\nL_sp4_l:") + loads7() + T("""
    s_sub_u32 s98, s98, 1
    s_waitcnt vmcnt(0)
    s_cmp_eq_u32 s98, 0
    s_cbranch_scc1 L_sp4_ret
    """) + chk7() + T("s_cbranch_vccnz L_sp4_l\ns_branch L_sp4_ret")
def g2_last2(fs, ad):
    o = []; p = 8; E = 5 if cfg.ep2 else cfg.early
    yg = []
    for t in range(5):
        yg.append([I(f"s_or_b32 s61, s75, {t*4*2560}" if t >= 3 else f"s_mov_b32 s61, {t*4*2560}"), VM(f"buffer_load_dwordx2 v[{YR+2*t}:{YR+2*t+1}], v{V_YA0 if t == 0 else V_YA}, s[16:19], s61 offen sc1", ("YL", t))])
        yg.append(VM(f"buffer_load_dwordx4 v[{GR+4*t}:{GR+4*t+3}], v{V_GA}, s[16:19], {'s75' if t >= 3 else '0'} offen offset:{64*t} sc1", ("GL", t)))
    ld = []
    for j in range(E, 6): ld += slot_loads(12 * j, ("SL", j), f"s{64+j}", "a")
    ld += yg
    for g in range(4):
        ms = group_mfmas(2, range(4 * g, 4 * g + 4), 15); side = []
        rd = []
        if g < 3:
            for s in range(4 * g + 4, 4 * g + 8): rd += trr(2, p, s)
            side += list(zip([1, 2, 4, 5, 6, 7, 9, 10] if g else [10, 11, 12, 13, 14, 15, 16, 17], rd))
        if g == 0:
            pp = p_parts(7); xs = xsum(PK + 10, V_TAG)
            pp[2][1].text = f"buffer_store_dwordx3 v[{PK+8}:{PK+10}], v{V_P12}, s[16:19], s78 offen offset:2048 sc1"
            side.append((0, sample("S0")))
            side += list(zip([1, 1, 2, 2, 4, 4, 5, 5, 7, 7], pp[0][0] + pp[1][0] + pp[2][0]))
            side += [(3, [pp[0][1], xs[0]]), (6, [pp[1][1], xs[1]]), (7, xs[2]), (8, xs[3:]), (9, pp[2][1])]
            side += spread(ad, list(range(10, 19)))
            side.append((19, I(f"s_mov_b32 s35, {((1 << 6) - (1 << E)) | (0xfffff << 8)}")))
        if g == 1:
            side.append((0, [WAIT("g2z_b1", vm=cover(2, p, 8, 16)), BAR()]))
            side += spread(fs[:24], list(range(1, 12)))
            side.append((12, [WAIT("g2z_s0", vm=["S0"])] + check("L_sp2") + [I("s_mov_b32 s35, 1"), sample("S1", "s70")]))
            if cfg.ep2:
                ld = ld[:3] + yg[0::2] + yg[1::2]
                side.append((14, slot_add(16, EB2) + slot_add(16, EB2 + 10)))
            side += list(zip(range(13, 20), ld[:7]))
        if g == 2:
            side += spread(ld[7:], list(range(0, 6 if cfg.ep2 else 16)))
            side += spread(fs[24:45], list(range(0, 20)))
        if g == 3:
            side += spread(fs[45:], [x for x in range(0, 20) if x < cfg.s6g - 1 or x > cfg.s6g])
            ck = [I(x.text.replace("vcc_lo", "s80").replace("vcc", "s[80:81]")) for x in check("L_sp3")]
            side.append((cfg.s6g, [WAIT("g2z_s1", vm=["S1"])] + ck + slot_loads(72, ("SL", 6), "s70", "a") + loads7()))
        if g < 3: side.append((19, WAIT(f"g2z_r{g}", lg=tags(rd))))
        o += place(ms, side)
    o += TS(7)
    for j in range(cfg.early): o += slot_add(E0, EB + 10 * j)
    for j in range(E, 6):
        o.append(WAIT(f"fin_a{j}", vm=[(("SL", j), 2)])); o += slot_add(E0, 12 * j, r="a")
    o.append(WAIT("fin_gl", vm=[("GL", 4)]))
    for t in range(5):
        for rho in range(4): o.append(I(f"v_perm_b32 v{56+4*t+rho}, v{YR+2*t+1}, v{YR+2*t}, v{SEL+rho}"))
    for i in range(20): o.append(I(f"v_mul_f32 v{56+i}, v{56+i}, v{GR+i}"))
    for i in range(20): o.append(I(f"v_sub_f32 v{GR+i}, 1.0, v{GR+i}"))
    o.append(WAIT("fin_6", vm=[(("SL", 6), 2)])); o += slot_add(E0, 72, r="a")
    o.append(WAIT("fin_7", vm=[(("SL", 7), 2)]))
    o += chk7() + T(f"s_cbranch_vccnz L_sp4\nL_sp4_ret:\nv_mov_b32 v{PK+10}, 0\nv_mov_b32 v{PK+11}, 0")
    o += slot_add(E0, PK)
    o.append(I("s_nop 3"))
    return o + fin_out()
def g2_last0():
    o = []; p = 8
    fs = fin_setup()
    ad = []
    for j in range(8):
        ad.append([I(f"s_cmp_lt_u32 s6, {j}"), I(f"s_cselect_b32 s{64+j}, {72*SL}, 0"), I(f"s_add_u32 s{64+j}, s{64+j}, s95"), I(f"s_sub_u32 s95, s95, {7*SL}")])
    fs = [I(x.text.replace("s67", "s96").replace("s68", "s62").replace("s69", "s94").replace("s70", "s34")) for x in fs]
    if cfg.chk7: return g2_last2(fs, ad)
    NE = cfg.ne; E = cfg.early
    yg = []
    for t in range(5):
        yg.append([I(f"s_or_b32 s61, s75, {t*4*2560}" if t >= 3 else f"s_mov_b32 s61, {t*4*2560}"), VM(f"buffer_load_dwordx2 v[{YR+2*t}:{YR+2*t+1}], v{V_YA0 if t == 0 else V_YA}, s[16:19], s61 offen sc1", ("YL", t))])
        yg.append(VM(f"buffer_load_dwordx4 v[{GR+4*t}:{GR+4*t+3}], v{V_GA}, s[16:19], {'s75' if t >= 3 else '0'} offen offset:{64*t} sc1", ("GL", t)))
    ld = []
    for j in range(E, NE): ld += slot_loads(12 * j, ("SL", j), f"s{64+j}", "a")
    ld += yg
    for g in range(4):
        ms = group_mfmas(2, range(4 * g, 4 * g + 4), 15); side = []
        rd = []
        if g < 3:
            for s in range(4 * g + 4, 4 * g + 8): rd += trr(2, p, s)
            side += list(zip([1, 2, 4, 5, 6, 7, 9, 10] if g else [9, 10, 11, 12, 13, 14, 15, 16], rd))
        if g == 0:
            pp = p_parts(7)
            side.append((0, sample("S0")))
            side += list(zip([1, 1, 2, 2, 4, 4, 5, 5, 7, 7], pp[0][0] + pp[1][0] + pp[2][0]))
            side += [(3, pp[0][1]), (6, pp[1][1]), (8, pp[2][1])]
            side += spread(ad, list(range(9, 19)))
            side.append((19, I(f"s_mov_b32 s35, {((1 << NE) - (1 << E)) | (0xfffff << 8)}")))
        if g == 1:
            side.append((0, [WAIT("g2z_b1", vm=cover(2, p, 8, 16)), BAR()]))
            side += spread(fs[:24], list(range(1, 12)))
            side.append((12, [WAIT("g2z_s0", vm=["S0"])] + check("L_sp2")))
            side += list(zip(range(13, 20), ld[:7]))
        if g == 2:
            side.append((cfg.stg, [WAIT("g2z_st", vm=[("PST", 7, 2)]), VM(f"buffer_store_dword v{V_TAG}, v{V_FLW}, s[16:19], s78 offen offset:2560 sc1", ("PFL", 7))]))
            side += spread(ld[7:], list(range(cfg.stg + 1, 20)))
            side += spread(fs[24:45], list(range(0, 20)))
        if g == 3:
            side += spread(fs[45:], list(range(0, 19)))
            side.append((19, [I(f"s_mov_b32 s35, {0xff & ~((1 << NE) - 1)}"), I(f"v_mov_b32 v{V_POLL}, v255"), sample("S1")]))
        if g < 3: side.append((19, WAIT(f"g2z_r{g}", lg=tags(rd))))
        o += place(ms, side)
    o += TS(7)
    for j in range(E): o += slot_add(E0, EB + 10 * j)
    for j in range(E, NE):
        o.append(WAIT(f"fin_a{j}", vm=[(("SL", j), 2)])); o += slot_add(E0, 12 * j, r="a")
    o.append(WAIT("fin_s1", vm=["S1"])); o += check("L_sp3")
    for j in range(7, NE - 1, -1): o += slot_loads(12 * j, ("SL", j), f"s{64+j}", "a")
    for t in range(5):
        for rho in range(4): o.append(I(f"v_perm_b32 v{56+4*t+rho}, v{YR+2*t+1}, v{YR+2*t}, v{SEL+rho}"))
    for i in range(20): o.append(I(f"v_mul_f32 v{56+i}, v{56+i}, v{GR+i}"))
    for i in range(20): o.append(I(f"v_sub_f32 v{GR+i}, 1.0, v{GR+i}"))
    for j in range(7, NE - 1, -1):
        o.append(WAIT(f"fin_{j}", vm=[(("SL", j), 2)])); o += slot_add(E0, 12 * j, r="a")
    o.append(I("s_nop 3"))
    return o + fin_out()

def g2_last():
    if not cfg.inloop: return g2_last0()
    o = []; p = 8
    fs = fin_setup()
    yg = []
    for t in range(5):
        yg.append([I(f"s_or_b32 s61, s75, {t*4*2560}" if t >= 3 else f"s_mov_b32 s61, {t*4*2560}"), VM(f"buffer_load_dwordx2 v[{YR+2*t}:{YR+2*t+1}], v{V_YA0 if t == 0 else V_YA}, s[16:19], s61 offen sc1", ("YL", t))])
        yg.append(VM(f"buffer_load_dwordx4 v[{GR+4*t}:{GR+4*t+3}], v{V_GA}, s[16:19], {'s75' if t >= 3 else '0'} offen offset:{64*t} sc1", ("GL", t)))
    for g in range(4):
        ms = group_mfmas(2, range(4 * g, 4 * g + 4), 15); side = []
        if g == 0:
            for t, m in enumerate([m for m in ms if m.text.endswith(", 0")]): m.text = m.text[:-1] + f"v[{SUM+4*t}:{SUM+4*t+3}]"
        rd = []
        if g < 3:
            for s in range(4 * g + 4, 4 * g + 8): rd += trr(2, p, s)
            side += list(zip([1, 2, 4, 5, 6, 7, 9, 10] if g else [9, 10, 11, 12, 13, 14, 15, 16], rd))
        if g == 0:
            pp = p_parts(7)
            side.append((0, sample("S0")))
            side += list(zip([1, 1, 2, 2, 4, 4, 5, 5, 7, 7], pp[0][0] + pp[1][0] + pp[2][0]))
            side += [(3, pp[0][1]), (6, pp[1][1]), (8, pp[2][1])]
            side += spread(fs[:19], list(range(9, 19)))
            side.append((19, I(f"s_mov_b32 s35, {(1 << 5) | (0xfffff << 8)}")))
        if g == 1:
            side.append((0, [WAIT("g2z_b1", vm=cover(2, p, 8, 16)), BAR()]))
            side += spread(fs[19:40], list(range(1, 11)))
            side.append((11, [I(f"v_mov_b32 v{PK+10}, 0"), I(f"v_mov_b32 v{PK+11}, 0")]))
            side.append((12, [WAIT("g2z_s0", vm=["S0"])] + check("L_sp2")))
            side += list(zip([13, 14, 15], slot_loads(PK, "SL5", "s95"))) + list(zip([16, 17, 18, 19], yg[:4]))
        if g == 2:
            side += list(zip([0, 1, 2, 3, 4, 5], yg[4:]))
            side.append((cfg.stg, [WAIT("g2z_st", vm=[("PST", 7, 2)]), VM(f"buffer_store_dword v{V_TAG}, v{V_FLW}, s[16:19], s78 offen offset:2560 sc1", ("PFL", 7))]))
            side.append((11, slot_add(SUM, PBUF, True)))
            sn = slot_next(); side += [(12, sn[0]), (13, sn[1]), (14, I("s_mov_b32 s34, s95"))]
            sn = slot_next(); side += [(15, sn[0]), (16, sn[1]), (17, [I("s_movk_i32 s35, 0xc0"), I(f"v_mov_b32 v{V_POLL}, v255")])]
        if g == 3:
            side += spread(fs[40:], list(range(0, 20)))
            side.append((19, sample("S1")))
        if g < 3: side.append((19, WAIT(f"g2z_r{g}", lg=tags(rd))))
        o += place(ms, side)
    o += TS(7)
    o += T(f"v_mov_b32 v{PB2+10}, 0\nv_mov_b32 v{PB2+11}, 0")
    o.append(WAIT("fin_gl", vm=[("GL", 4)]))
    o += slot_add(SUM, PK)
    for t in range(5):
        for rho in range(4): o.append(I(f"v_perm_b32 v{56+4*t+rho}, v{YR+2*t+1}, v{YR+2*t}, v{SEL+rho}"))
    o.append(WAIT("fin_s1", vm=["S1"])); o += check("L_sp3")
    o += slot_loads(PB2, "SL7", "s95") + slot_loads(PBUF, "SL6", "s34")
    for i in range(20): o.append(I(f"v_add_f32 v{E0+i}, v{E0+i}, v{SUM+i}"))
    for i in range(20): o.append(I(f"v_mul_f32 v{56+i}, v{56+i}, v{GR+i}"))
    for i in range(20): o.append(I(f"v_sub_f32 v{GR+i}, 1.0, v{GR+i}"))
    o.append(WAIT("fin_7", vm=[("SL7", 2)])); o += slot_add(E0, PB2)
    o.append(WAIT("fin_6", vm=[("SL6", 2)])); o += slot_add(E0, PBUF)
    o.append(I("s_nop 3"))
    return o + fin_out()
def fin_out():
    OF = ('', ' sc1', ' nt', ' sc0 sc1')[cfg.osc]
    o = []
    for t in range(5):
        for rho in range(4): o.append(I(f"v_fmac_f32 v{56+4*t+rho}, v{E0+4*t+rho}, v{GR+4*t+rho}"))
        o += T(f"v_cvt_pk_bf16_f32 v{PK+2*t}, v{56+4*t}, v{56+4*t+1}\nv_cvt_pk_bf16_f32 v{PK+2*t+1}, v{56+4*t+2}, v{56+4*t+3}")
    o += T(f"v_mov_b32 v{PK+10}, 0\nv_mov_b32 v{PK+11}, 0")
    for t in range(5):
        a = V_SELA + (0 if t & 1 else 2); bb = PK + 4 * (t >> 1)
        o.append(mfma(ACC(t), f"v[{bb}:{bb+3}]", f"v[{a}:{a+3}]", "0"))
    o.append(I("s_nop 3"))
    for t in range(5):
        r = 16 + 4 * t
        o += T(f"v_cvt_pk_bf16_f32 v{56+2*t}, v{r}, v{r+1}\nv_cvt_pk_bf16_f32 v{57+2*t}, v{r+2}, v{r+3}")
        o.append(LG(f"ds_write_b64 v{OA}, v[{56+2*t}:{57+2*t}] offset:{2048*t}", ("OW", t), wr=(OUTL, OUTL + 10240)))
    o += [WAIT("out_w", lg="all"), BAR()]
    for k in range(3): o.append(LG(f"ds_read_b128 v[{68+4*k}:{71+4*k}], v{OA+1} offset:{4096*k}", ("OR", k), rd=(OUTL, OUTL + 10240)))
    for k in range(3):
        o += [WAIT(f"out_r{k}", lg=[("OR", k)]), I(f"buffer_store_dwordx4 v[{68+4*k}:{71+4*k}], v{OA+2+k}, s[24:27], 0 offen{OF}")]
    o += T(f"""
    s_or_b32 s68, s2, s3
    s_cmp_eq_u32 s68, 0
    s_cbranch_scc0 L_noepoch
    buffer_store_dword v{V_TAG}, v{V_FL}, s[16:19], 0 offen sc1
    L_noepoch:
    """)
    return o

def T(s): return [I(x.strip()) for x in s.strip().split("\n") if x.strip()]
def rowcalc(o, rho, d, tmp):
    return T(f"""
    v_cmp_eq_u32 vcc, 0, v{o}
    v_mov_b32 v{tmp}, 512
    v_add_u32 v{tmp+1}, 1, v{rho}
    v_cndmask_b32 v{tmp}, v{o}, v{tmp}, vcc
    v_cmp_lt_u32 vcc, 1, v{rho}
    v_sub_u32 v{tmp}, 0, v{tmp}
    v_lshrrev_b32 v{tmp+1}, 1, v{tmp+1}
    v_cndmask_b32 v{tmp}, v{o}, v{tmp}, vcc
    v_lshl_add_u32 v{d}, v{tmp+1}, 10, v{tmp}
    """)

def srd(b, p, n): return T(f"s_mov_b32 s{b}, s{p}\ns_mov_b32 s{b+1}, s{p+1}\ns_mov_b32 s{b+2}, {n}\ns_mov_b32 s{b+3}, 0x20000")

def prologue():
    o = T(f"""
    s_cmp_ge_u32 s2, 256
    s_cbranch_scc1 L_end
    s_load_dwordx16 s[36:51], s[0:1], 0
    s_load_dwordx8 s[52:59], s[0:1], 64
    """) + TS(0) + T(f"""
    v_lshrrev_b32 v4, 6, v0
    v_and_b32 v{V_L}, 63, v0
    v_readfirstlane_b32 s3, v4
    v_and_b32 v{V_C}, 15, v0
    v_bfe_u32 v{V_Q}, v0, 4, 2
    s_and_b32 s60, s2, 3
    s_bfe_u32 s61, s2, 0x10002
    s_lshr_b32 s62, s2, 3
    s_cmp_eq_u32 s60, 3
    s_cselect_b32 s63, 30, 29
    s_cmp_ge_u32 s62, s63
    s_cbranch_scc1 L_spare
    """)
    if cfg.map == 0:
        o += T("""
    s_mul_i32 s64, s60, 29
    s_add_u32 s64, s64, s62
    s_mul_i32 s5, s64, 5042
    s_lshr_b32 s5, s5, 16
    s_mul_i32 s65, s5, 13
    s_sub_u32 s64, s64, s65
    s_mul_i32 s4, s61, 13
    s_add_u32 s4, s4, s64
    """)
    elif cfg.map == 1:
        o += T("""
    s_mul_i32 s64, s61, 13
    s_mul_i32 s65, s60, 3
    s_add_u32 s64, s64, s65
    s_add_u32 s64, s64, s62
    s_sub_u32 s64, s64, 26
    s_and_b32 s65, s2, 7
    s_cmp_lt_u32 s62, 26
    s_cselect_b32 s4, s62, s64
    s_cselect_b32 s5, s65, 8
    """)
    else:
        o += T("""
    s_mul_i32 s65, s60, 3
    s_add_u32 s64, s65, s62
    s_sub_u32 s64, s64, 26
    s_lshl_b32 s5, s60, 1
    s_cmp_ge_u32 s62, 13
    s_cselect_b32 s65, 13, 0
    s_cselect_b32 s66, 1, 0
    s_add_u32 s5, s5, s66
    s_sub_u32 s4, s62, s65
    s_cmp_lt_u32 s62, 26
    s_cselect_b32 s4, s4, s64
    s_cselect_b32 s5, s5, 8
    s_mul_i32 s65, s61, 13
    s_add_u32 s4, s4, s65
    """)
    o += T(f"""
    v_lshrrev_b32 v4, 3, v{V_L}
    v_bfe_u32 v5, v{V_L}, 4, 1
    v_lshrrev_b32 v6, 5, v{V_L}
    s_mul_i32 s65, s4, 20
    v_mul_u32_u24 v9, 511, v5
    v_add3_u32 v6, v6, v9, s65
    s_and_b32 s66, s3, 1
    s_lshl_b32 s66, s66, 2
    v_add_u32 v7, s66, v{V_Q}
    v_and_b32 v8, 7, v{V_L}
    v_xor_b32 v7, v7, v8
    v_lshlrev_b32 v7, 4, v7
    s_movk_i32 s67, 1152
    v_and_b32 v9, 3, v4
    v_add_u32 v9, 1, v9
    v_lshrrev_b32 v9, 1, v9
    v_lshlrev_b32 v9, 10, v9
    v_sub_u32 v9, v9, v5
    v_mad_u32_u24 v7, v9, s67, v7
    v_mul_u32_u24 v5, 2304, v5
    v_sub_u32 v5, 1152, v5
    s_bitcmp1_b32 s5, {0 if cfg.rev else 31}
    s_cselect_b32 s92, -1, 1
    s_cselect_b32 s79, 1024, 0
    s_cselect_b32 s34, {8*64*9216}, 0
    s_lshl_b32 s92, s92, 7
    s_lshl_b32 s93, s92, 1
    s_lshl_b32 s82, s3, 10
    s_add_u32 s82, s82, {XB}
    s_lshl_b32 s68, s3, 1
    """)
    for n in range(5):
        if n < 2: o += T(f"s_mov_b32 s{XH+n}, 0\ns_add_u32 s69, s68, {8*n}")
        elif n > 2: o += T(f"s_mov_b32 s{XH+n}, s92\ns_add_u32 s69, s68, {8*n-20}")
        else: o += T(f"s_cmp_ge_u32 s3, 2\ns_cselect_b32 s{XH+n}, s92, 0\ns_cselect_b32 s69, -4, 16\ns_add_u32 s69, s69, s68")
        o += T(f"""
        v_add_u32 v9, s69, v6
        v_and_b32 v9, 511, v9
        v_mad_i32_i24 v{V_XO+n}, v9, v5, v7
        """)
    o += T("s_waitcnt lgkmcnt(0)") + srd(12, 36, 2359296)
    return o
def setup1():
    return T(f"""
    s_load_dword s7, s[58:59], 0
    s_cmp_lt_u32 s3, 2
    s_cselect_b32 s20, s42, s44
    s_cselect_b32 s21, s43, s45
    s_mov_b32 s22, 663552
    s_mov_b32 s23, 0x20000
    s_and_b32 s68, s3, 1
    s_lshl_b32 s64, s62, 1
    s_add_u32 s64, s64, s68
    s_mul_i32 s64, s64, 15
    v_add_u32 v9, s64, v{V_L}
    s_mul_i32 s64, s60, {64*1152}
    v_lshlrev_b32 v5, 7, v9
    v_add_u32 v6, s64, v5
    v_add_u32 v5, {256*1152 - 576*128}, v5
    v_cmp_gt_u32 vcc, 576, v9
    v_mov_b32 v7, {OOB}
    s_mov_b32 s100, s60
    v_cndmask_b32 v5, v5, v6, vcc
    v_cmp_gt_u32 vcc, 15, v{V_L}
    s_mov_b32 s99, s62
    s_sub_u32 s83, s79, s92
    v_cndmask_b32 v{V_PFD}, v7, v5, vcc
    """)
def setup1b():
    return T(f"""
    s_mul_i32 s35, s92, {64*72}
    s_lshl_b32 s68, s5, 5
    s_lshl_b32 s69, s66, 2
    s_add_u32 s68, s68, s69
    v_add_u32 v9, s68, v4
    v_xor_b32 v7, v{V_Q}, v8
    v_lshlrev_b32 v7, 4, v7
    v_mad_u32_u24 v{V_ABA}, v9, s67, v7
    v_xor_b32 v7, 64, v7
    v_mad_u32_u24 v{V_ABB}, v9, s67, v7
    v_add_u32 v{V_ABB}, {8*1152-1024}, v{V_ABB}
    s_lshl_b32 s60, s3, 11
    """)

def setup2():
    o = srd(8, 48, 5308416) + (lambda x: x if cfg.pf1 & 2 else [])(T(f"""
    s_lshl_b32 s68, s99, 2
    s_add_u32 s68, s68, s3
    s_mul_i32 s68, s68, 5
    v_mul_u32_u24 v5, 43, v{V_L}
    v_lshrrev_b32 v5, 8, v5
    v_mul_u32_u24 v6, 6, v5
    v_sub_u32 v6, v{V_L}, v6
    v_add_u32 v5, s68, v5
    v_lshrrev_b32 v7, 1, v6
    v_and_b32 v6, 1, v6
    s_lshl_b32 s68, s100, 1
    v_cmp_eq_u32 vcc, 2, v7
    v_add_u32 v7, s68, v7
    v_mul_u32_u24 v5, 9216, v5
    v_cndmask_b32 v7, v7, 8, vcc
    v_lshl_add_u32 v5, v6, 7, v5
    v_cmp_gt_u32 vcc, 30, v{V_L}
    v_lshl_add_u32 v5, v7, 10, v5
    v_mov_b32 v6, {OOB}
    v_cndmask_b32 v{V_PF1}, v6, v5, vcc
    """)) + srd(16, 58, WS_SIZE)
    o += T(f"""
    v_lshrrev_b32 v4, 3, v{V_L}
    s_lshl_b32 s68, s3, 4
    v_add_u32 v4, s68, v4
    v_and_b32 v5, 1, v{V_Q}
    v_lshlrev_b32 v5, 1, v5
    v_and_b32 v8, 7, v{V_L}
    v_xor_b32 v5, v5, v8
    v_lshlrev_b32 v5, 4, v5
    v_xor_b32 v6, 64, v5
    s_movk_i32 s68, 9216
    v_mad_u32_u24 v{V_A}, v4, s68, v5
    v_mad_u32_u24 v{V_B}, v4, s68, v6
    v_add_u32 v{V_B}, {8*9216-1024}, v{V_B}
    v_mad_u32_u24 v{V_W2A}, v4, s67, v5
    v_mad_u32_u24 v{V_W2B}, v4, s67, v6
    v_bfe_u32 v4, v{V_L}, 2, 2
    v_and_b32 v5, 3, v{V_L}
    v_and_b32 v6, 1, v{V_Q}
    v_lshlrev_b32 v6, 1, v6
    v_lshrrev_b32 v7, 1, v4
    v_add_u32 v6, v6, v7
    v_xor_b32 v6, s3, v6
    v_lshlrev_b32 v6, 5, v6
    v_lshl_add_u32 v6, v{V_Q}, 10, v6
    v_lshl_add_u32 v6, v4, 7, v6
    v_lshl_add_u32 v{V_TR}, v5, 3, v6
    v_add_u32 v{V_TR2}, 0x10000, v{V_TR}
    v_lshrrev_b32 v4, 1, v{V_C}
    v_xor_b32 v4, v4, v{V_Q}
    v_lshlrev_b32 v4, 4, v4
    v_lshl_add_u32 v4, v{V_C}, 7, v4
    v_add_u32 v{V_XR0}, {XB}, v4
    v_xor_b32 v{V_XR1}, 64, v{V_XR0}
    v_add_u32 v{V_WR0}, s60, v4
    v_xor_b32 v{V_WR1}, 64, v{V_WR0}
    v_mov_b32 v{V_PATCH}, 0xbf803f80
    s_lshl_b32 s68, s5, 2
    s_or_b32 s68, s68, s3
    s_cmp_eq_u32 s68, 2
    s_cselect_b32 s76, 0x00010001, 0
    s_mov_b32 s77, s76
    s_cselect_b32 s69, 1, 0
    s_lshr_b32 s70, s3, 1
    """)
    o += T(f"""
    s_cmp_eq_u32 s70, 0
    s_cselect_b32 s71, 1.0, -1.0
    v_mov_b32 v{V_SIG}, s71
    s_cmp_eq_u32 s69, 1
    s_cselect_b32 s72, 16, 0
    v_cmp_gt_u32 vcc, s72, v{V_L}
    v_mov_b32 v4, 1.0
    v_and_b32 v5, 1, v{V_L}
    v_cndmask_b32 v{V_SIG0}, v{V_SIG}, v4, vcc
    s_cmp_eq_u32 s4, 0
    s_cselect_b32 s72, 4, 0
    v_cmp_gt_u32 vcc, s72, v{V_C}
    s_cselect_b32 s80, 8, 0
    v_lshlrev_b32 v5, 31, v5
    v_cndmask_b32 v{V_SIGT0}, v{V_SIG}, 0, vcc
    v_cndmask_b32 v{V_SIG0T0}, v{V_SIG0}, 0, vcc
    v_or_b32 v{V_TAU}, v4, v5
    s_cmp_eq_u32 s69, 1
    s_cselect_b32 s80, s80, 0
    s_mov_b32 s81, 0
    """)
    o += T(f"""
    v_lshrrev_b32 v4, 2, v{V_C}
    v_and_b32 v5, 3, v{V_C}
    s_mul_i32 s68, s3, 1792
    s_add_u32 s68, s68, {ABL}
    v_and_b32 v6, 1, v4
    v_mul_u32_u24 v6, 320, v6
    v_lshrrev_b32 v7, 1, v4
    v_lshl_add_u32 v6, v7, 5, v6
    v_lshl_add_u32 v9, v{V_Q}, 3, s68
    v_add_u32 v6, v6, v9
    v_add_u32 v7, 640, v6
    v_add_u32 v8, 1344, v9
    v_cmp_eq_u32 vcc, 1, v5
    v_add_u32 v9, 1280, v9
    s_lshl_b32 s71, s70, 1
    v_cndmask_b32 v{V_ABS}, v8, v7, vcc
    v_cmp_eq_u32 vcc, 0, v5
    s_add_u32 s71, s71, 1
    s_nop 0
    v_cndmask_b32 v{V_ABS}, v{V_ABS}, v6, vcc
    v_cndmask_b32 v8, v8, v6, vcc
    v_cmp_eq_u32 vcc, s71, v5
    s_nop 1
    v_cndmask_b32 v8, v8, v7, vcc
    v_cmp_eq_u32 vcc, 2, v5
    s_nop 1
    v_cndmask_b32 v8, v8, v9, vcc
    v_cmp_gt_u32 vcc, s72, v{V_C}
    s_cmp_eq_u32 s4, 25
    s_cselect_b32 s75, {OOB}, 0
    v_cndmask_b32 v{V_ABS0}, v{V_ABS}, v8, vcc
    s_mul_i32 s68, s5, 26
    s_add_u32 s68, s68, s4
    s_lshl_b32 s68, s68, 7
    s_add_u32 s68, s68, {WS_ABFLAG}
    v_cmp_gt_u32 vcc, 32, v0
    v_mov_b32 v8, {OOB}
    v_lshl_add_u32 v9, v0, 2, s68
    v_cndmask_b32 v{V_ABFL}, v8, v9, vcc
    v_cmp_eq_u32 vcc, 0, v{V_L}
    v_lshrrev_b32 v4, 3, v{V_L}
    v_mul_u32_u24 v4, {SL}, v4
    v_and_b32 v5, 7, v{V_L}
    v_lshl_add_u32 v{ABP+14}, v5, 4, v4
    v_cndmask_b32 v{V_FL}, v8, 0, vcc
    """)
    o += T(f"""
    s_mul_i32 s73, s4, {cfg.rot1}
    s_and_b32 s73, s73, 7
    s_mov_b32 s101, s73
    s_lshl_b32 s73, s73, 7
    s_lshl_b32 s74, s5, 10
    s_add_u32 s74, s74, s34
    s_add_u32 s62, s73, s74
    s_mul_i32 s6, s4, {cfg.rot2}
    s_add_u32 s6, s6, s5
    s_mul_i32 s72, s6, 7282
    s_lshr_b32 s72, s72, 16
    s_mul_i32 s72, s72, 9
    s_sub_u32 s6, s6, s72
    s_add_u32 s72, s6, 1
    s_cmp_eq_u32 s72, 9
    s_cselect_b32 s72, 0, s72
    s_mul_i32 s63, s4, 9
    s_add_u32 s63, s63, s72
    s_lshl_b32 s72, s72, 7
    s_mul_i32 s78, s63, {8*SL}
    s_mul_i32 s63, s3, {WSL}
    s_add_u32 s78, s78, s63
    s_add_u32 s78, s78, {WS_PART}
    s_mov_b32 s63, 6
    s_waitcnt lgkmcnt(0)
    s_add_u32 s7, s7, 0x9e3779b9
    v_mov_b32 v{V_TAG}, s7
    v_not_b32 v{ABP+10}, s7
    v_not_b32 v{ABP+11}, s7
    v_not_b32 v{ABP+12}, s7
    v_not_b32 v{ABP+13}, s7
    """)
    return o

def setup3():
    o = srd(24, 54, 2359296) + srd(28, 50, 5308416) + T(f"""
    v_add_u32 v{V_W2B}, {8*1152-1024}, v{V_W2B}
    s_and_b32 s68, s3, 1
    s_lshl_b32 s68, s68, 9
    s_lshr_b32 s70, s3, 1
    s_mul_i32 s71, s70, 5120
    s_add_u32 s68, s68, s71
    s_add_u32 s68, s68, {HB}
    v_lshrrev_b32 v4, 1, v{V_Q}
    v_lshl_add_u32 v4, v4, 4, v{V_C}
    v_lshlrev_b32 v4, 4, v4
    v_and_b32 v5, 1, v{V_Q}
    v_lshl_add_u32 v4, v5, 3, v4
    v_add_u32 v{V_HW}, s68, v4
    v_lshlrev_b32 v{V_P16}, 4, v{V_L}
    v_lshlrev_b32 v{V_P8}, 3, v{V_L}
    v_add_u32 v{V_HR}, {HB}, v{V_P16}
    v_add_u32 v{V_HR2}, {HB+40960}, v{V_P16}
    """)
    o += T("s_lshl_b32 s99, s5, 3")
    for i in range(8):
        o += T(f"""
        s_add_u32 s{64+i}, s101, {i}
        s_and_b32 s{64+i}, s{64+i}, 7
        s_add_u32 s{64+i}, s{64+i}, s99
        s_mul_i32 s{64+i}, s{64+i}, {64*1152}
        """)
    return o

def poll(lab, vaddr, nl):
    return T(f"""
    s_mov_b32 s63, {SPIN}
    v_cmp_le_u32 s[80:81], {nl}, v{V_L}
    {lab}:
    s_sleep {cfg.slp}
    buffer_load_dword v4, v{vaddr}, s[16:19], 0 offen sc1
    s_sub_u32 s63, s63, 1
    s_waitcnt vmcnt(0)
    v_cmp_eq_u32 vcc, s7, v4
    s_cmp_eq_u32 s63, 0
    s_cbranch_scc1 {lab}_out
    s_or_b64 vcc, vcc, s[80:81]
    s_cmp_eq_u64 vcc, -1
    s_cbranch_scc0 {lab}
    {lab}_out:
    """)

def ts_dump(fn=0):
    if not cfg.ts: return []
    if cfg.ts >= 10:
        return T(f"""
        L_hold{fn}:
        s_memrealtime s[100:101]
        s_waitcnt lgkmcnt(0)
        s_sub_u32 s100, s100, s84
        s_cmp_lt_u32 s100, {cfg.ts*100}
        s_cbranch_scc1 L_hold{fn}
        """)
    o = T("s_waitcnt vmcnt(0)") + TS(8) + T("s_waitcnt lgkmcnt(0)")
    for k in range(9): o.append(I(f"v_mov_b32 v{16+k}, s{tsr(k)}"))
    o += T(f"""
    s_getreg_b32 s68, hwreg(HW_REG_XCC_ID)
    v_mov_b32 v25, s68
    v_mov_b32 v26, 0
    v_mov_b32 v27, 0
    s_lshl_b32 s68, s2, 2
    s_add_u32 s68, s68, s3
    s_lshl_b32 s68, s68, 6
    s_add_u32 s68, s68, {WS_TS}
    v_cmp_eq_u32 vcc, 0, v{V_L}
    v_mov_b32 v4, {OOB}
    s_nop 0
    v_cndmask_b32 v4, v4, 0, vcc
    buffer_store_dwordx4 v[16:19], v4, s[16:19], s68 offen
    buffer_store_dwordx4 v[20:23], v4, s[16:19], s68 offen offset:16
    buffer_store_dwordx4 v[24:27], v4, s[16:19], s68 offen offset:32
    """)
    if cfg.ts == 2 and not fn:
        o += T(f"""
        v_lshlrev_b32 v5, 2, v{V_L}
        v_cmp_gt_u32 vcc, 16, v{V_L}
        v_mov_b32 v4, {OOB}
        s_lshl_b32 s69, s68, 2
        s_sub_u32 s69, s69, {4*WS_TS - WS_TS - 0x300000}
        buffer_store_dword v131, v5, s[16:19], s69 offen
        s_add_u32 s68, s68, 0x100000
        v_cndmask_b32 v4, v4, v5, vcc
        buffer_store_dword v130, v4, s[16:19], s68 offen
        s_add_u32 s68, s68, 0x100000
        buffer_store_dword v131, v4, s[16:19], s68 offen
        """)
    if cfg.ts != 3: return o
    o += T(f"""
    s_waitcnt vmcnt(0)
    v_not_b32 v16, v16
    v_cmp_eq_u32 vcc, 0, v0
    v_mov_b32 v4, {OOB}
    s_sleep 127
    s_sleep 127
    v_cndmask_b32 v4, v4, 0, vcc
    """) + srd(28, 56, 256)
    o.append(I("buffer_atomic_umax v16, v4, s[28:31], 0 offen"))
    for k in range(1, 9 if not fn else 8): o.append(I(f"buffer_atomic_umax v{16+k}, v4, s[28:31], 0 offen offset:{4*(k+8*fn)}"))
    return o

from fnet import fnet_code

def build():
    def dyn(hasx22, ep):
        d = prologue()
        d += ab_pass(hasx22)
        d += TS(2)
        for p in range(8):
            for g in range(6): d += g1_group(p, g, True)
        d += TS(4)
        d += g2_pass0()
        for p in range(1, 8):
            for g in range(4): d += g2_group(p, g, ep)
        d += g2_last()
        return d
    ds = [dyn(True, (5, 7)), dyn(False, (6, 7))] if cfg.ep2 else [dyn(True, (5,)), dyn(False, (6,)), dyn(True, (7,))]
    rs = [resolve(d) for d in ds]
    mn = lambda l: None if all(x is None for x in l) else min(x for x in l if x is not None)
    res = {k: (mn([r[k][0] for r in rs]), mn([r[k][1] for r in rs])) for k in rs[0]}
    txt = lambda l: [wait_text(res, it.site) if it.kind == "wait" else it.text for it in l]
    for d in ds:
        check_lds(d, res); check_loads(txt(d)); check_hazards(txt(d)); check_scc(txt(d))
    st = prologue()
    st += ab_pass(True)
    st += TS(2)
    for g in range(6): st += g1_group(0, g)
    st += TS(3) + [I("L_g1:")]
    for g in range(6): st += g1_group(1, g)
    st.append(I("s_cbranch_scc1 L_g1"))
    for g in range(6): st += g1_group(7, g)
    st += TS(4)
    st += g2_pass0() + TS(5) + [I("L_g2:")]
    for g in range(4): st += g2_group(1, g)
    st.append(I("s_cbranch_scc1 L_g2"))
    st += TS(6)
    st += g2_last() + ts_dump() + [I("s_endpgm")] + [I("L_once1:")] + ab_once(1) + [I("s_branch L_once1_ret")] + (spin("L_sp1", "s34") if cfg.inloop else (([I("L_ep0:")] + ep_block(0) + [I("s_branch L_ep0_ret"), I("L_ep1:")] + ep_block(1) + [I("s_branch L_ep1_ret")] + [I(x.text.replace(f"v{V_POLL},", f"v{V_POLLE},")) for x in spin("L_sp1")]) if cfg.early else [])) + spin("L_sp2") + (([I(x.text.replace("vcc_lo", "s80").replace("vcc", "s[80:81]")) for x in spin("L_sp3", "s70")] + spin7()) if cfg.chk7 else spin("L_sp3"))
    fn, idle = fnet_code(sys.modules[__name__])
    check_loads([it.text for it in fn]); check_hazards([it.text for it in fn]); check_scc([it.text for it in fn])
    st += fn + ts_dump(1) + [I("L_end:"), I("s_endpgm")] + idle
    if cfg.trace:
        ns = []; k = 0
        for it in st:
            ns.append(it)
            if it.kind == "wait" and it.site and re.match(r"(ab_rw\d|ab_r\d|ab_x\d|ab_b0|g1_r\d[az]|g20_r\d|g2z_r\d|g2z_st|g2z_s0|fin_)", it.site):
                ns += [I("s_waitcnt lgkmcnt(0)"), I(f"v_writelane_b32 v131, s32, {k}"), I("s_memtime s[32:33]")]; k += 1
                print(k, it.site, file=sys.stderr, end="; ")
            if it.text == "L_noepoch:": ns += [I("s_waitcnt lgkmcnt(0)"), I(f"v_writelane_b32 v131, s32, {k}")]
        st = ns
    if cfg.strip:
        a = [i for i, it in enumerate(st) if it.text == "L_g1:"][0]; b = [i for i, it in enumerate(st) if it.text == "s_cbranch_scc1 L_g2"][0]
        def drop(it):
            t = it.text or ""
            if cfg.strip & 1 and t.endswith(" lds"): return True
            if cfg.strip & 2 and (t.startswith(("v_cvt_pk", "v_pk_max", "ds_write")) or "s78 offen" in t): return True
            if cfg.strip & 4 and t == "s_barrier": return True
            if cfg.strip & 8 and it.kind == "wait" and it.need_vm: return True
            if cfg.strip & 16 and t.startswith("ds_read_b64_tr"): return True
            if cfg.strip & 32 and (t.startswith("ds_write") or "s78 offen" in t): return True
            if cfg.strip & 64 and t.startswith(("v_cvt_pk", "v_pk_max")): return True
            if cfg.strip & 128 and t.startswith("buffer_store_dword "): return True
            if cfg.strip & 1024 and it.kind == "wait" and it.need_lg and it.site not in ("g1_r2", "g2_r1"): return True
            if cfg.strip & 256 and "s78 offen" in t: it.text = t.replace(" sc1", "")
            if cfg.strip & 512 and "s78 offen" in t: it.text = t.replace(" sc1", " sc1 nt")
            return False
        st = st[:a] + [it for it in st[a:b] if not drop(it)] + st[b:]
    head = open("gated_mix__spectral_fnet__dense_activation_relu__prompt.s.ref").read().split("; Override launch")[0]
    out = head + "; @launch grid=(256,1,1) block=(256,1,1) lds=163840\n"
    out += f'.amdgcn_target "amdgcn-amd-amdhsa--gfx950"\n.text\n.globl {NAME}\n.p2align 8\n.type {NAME},@function\n{NAME}:\n'
    out += "\n".join(("" if (x.endswith(":") or x.startswith(".")) else "    ") + x for x in txt(st)) + "\n"
    out += f""".section .rodata,"a"
.p2align 6
.amdhsa_kernel {NAME}
  .amdhsa_next_free_vgpr 512
  .amdhsa_next_free_sgpr 102
  .amdhsa_accum_offset 256
  .amdhsa_group_segment_fixed_size 0
  .amdhsa_kernarg_size 96
  .amdhsa_user_sgpr_count 2
  .amdhsa_user_sgpr_kernarg_segment_ptr 1
  .amdhsa_system_sgpr_workgroup_id_x 1
.end_amdhsa_kernel
"""
    return out, res

if __name__ == "__main__":
    sys.modules["gen"] = sys.modules[__name__]
    outp = sys.argv[1]
    for a in sys.argv[2:]:
        k, v = a.split("="); setattr(cfg, k, int(v))
    out, res = build()
    open(outp, "w").write(out)
    print(res)
```

```python
from asmlib import *
def fnet_code(g):
    T, TS, srd = g.T, g.TS, g.srd
    V_L, V_C, V_Q, OOB = g.V_L, g.V_C, g.V_Q, g.OOB
    MF = lambda d, a, b, c: I(f"v_mfma_f32_16x16x32_bf16 {d}, {a}, {b}, {c}")
    def pf1():
        return T("buffer_load_dword v254, v253, s[12:15], s76 offen\ns_add_u32 s76, s76, 128") if g.cfg.pfs & 1 else []
    def pf2():
        return T(f"buffer_load_dword v254, v255, s[8:11], s75 offen\ns_add_u32 s75, s75, {22*256*128}") if g.cfg.pfs & 2 else []
    o = T(f"""
    L_spare:
    """) + (T(f"""
    s_getpc_b64 s[68:69]
    L_pc:
    s_sub_u32 s68, s68, L_pc-{g.NAME}
    s_subb_u32 s69, s69, 0
    v_lshlrev_b32 v4, 7, v0
    v_min_u32 v4, L_end-{g.NAME}, v4
    v_mov_b32 v5, s69
    v_add_co_u32 v4, vcc, s68, v4
    s_nop 1
    v_addc_co_u32 v5, vcc, 0, v5, vcc
    global_load_dword v254, v[4:5], off
    """) if g.cfg.pfc else []) + T(f"""
    s_sub_u32 s62, s62, s63
    """) + (T("""
    s_and_b32 s65, s2, 7
    s_mul_i32 s64, s65, 3
    s_add_u32 s64, s64, s62
    s_lshl_b32 s62, s62, 1
    s_add_u32 s62, s62, s65
    s_add_u32 s62, s62, 12
    s_cmp_ge_u32 s65, 6
    s_cselect_b32 s64, s62, s64
    """) if g.cfg.bal else T("""
    s_mul_i32 s64, s61, 11
    s_mul_i32 s65, s60, 3
    s_add_u32 s64, s64, s65
    s_add_u32 s64, s64, s62
    """)) + T(f"""
    s_waitcnt lgkmcnt(0)
    """) + srd(8, 50, 5308416) + srd(12, 48, 5308416) + T(f"""
    s_lshl_b32 s65, s64, 8
    v_add_u32 v4, s65, v0
    v_lshlrev_b32 v255, 7, v4
    v_lshlrev_b32 v253, 10, v4
    s_mov_b32 s75, 0
    s_mov_b32 s76, 0
    """) + (pf1() + pf1() if g.cfg.pfo != 1 else []) + T(f"""
    s_cmp_ge_u32 s64, 20
    s_cbranch_scc1 L_idle
    s_cmp_ge_u32 s64, 10
    s_cselect_b32 s4, 1, 0
    s_cselect_b32 s65, 10, 0
    s_sub_u32 s65, s64, s65
    s_cmp_ge_u32 s65, 5
    s_cselect_b32 s5, 1, 0
    s_cselect_b32 s66, 5, 0
    s_sub_u32 s6, s65, s66
    s_waitcnt lgkmcnt(0)
    s_load_dword s7, s[58:59], 0
    """)
    o += srd(16, 58, g.WS_SIZE) + srd(20, 36, 2359296) + srd(24, 52, 1152)
    o += T(f"""
    s_lshl_b32 s66, s5, 7
    s_lshl_b32 s67, s3, 5
    s_add_u32 s66, s66, s67
    s_lshl_b32 s66, s66, 1
    s_add_u32 s66, s66, s4
    v_lshl_add_u32 v4, v{V_C}, 1, s66
    v_cmp_eq_u32 vcc, 0, v4
    v_mov_b32 v5, 512
    v_add_u32 v6, 32, v4
    v_cndmask_b32 v5, v4, v5, vcc
    v_cvt_f32_u32 v10, v4
    v_cvt_f32_u32 v11, v6
    v_cvt_f32_u32 v12, v5
    v_lshlrev_b32 v7, 4, v{V_Q}
    v_cvt_f32_u32 v7, v7
    v_mul_f32 v10, 0xba000000, v10
    v_mul_f32 v11, 0xba000000, v11
    v_mul_f32 v12, 0xba000000, v12
    s_mul_i32 s70, s4, 0xffff
    v_mov_b32 v8, s70
    v_cmp_eq_u32 vcc, 0, v{V_Q}
    v_and_b32 v9, 1, v{V_C}
    v_lshlrev_b32 v9, 15, v9
    v_cndmask_b32 v8, 0, v8, vcc
    v_xor_b32 v9, 0xbf80, v9
    v_mul_f32 v16, v7, v11
    v_mul_f32 v17, 0x42400000, v11
    s_mov_b32 s63, 0
    L_trig:
    """)
    o += T("""
    s_cmp_eq_u32 s63, 0
    s_cselect_b64 vcc, -1, 0
    v_cndmask_b32 v19, v12, v11, vcc
    v_mul_f32 v18, v7, v19
    v_mul_f32 v20, 0x42400000, v19
    """)
    for j in range(8):
        for i in range(4):
            for e in range(4):
                o += T(f"v_cos_f32 v{24+e}, v16\nv_sin_f32 v{28+e}, v18\nv_add_f32 v16, v16, v11\nv_add_f32 v18, v18, v19")
            c0 = 120 + j * 8; s0 = 120 + (8 + j) * 8
            o += T(f"""
            v_cvt_pk_bf16_f32 v{c0+i}, v24, v26
            v_cvt_pk_bf16_f32 v{c0+4+i}, v25, v27
            v_cvt_pk_bf16_f32 v{s0+i}, v28, v30
            v_cvt_pk_bf16_f32 v{s0+4+i}, v29, v31
            """)
        o += T("v_add_f32 v16, v16, v17\nv_add_f32 v18, v18, v20")
        if g.cfg.pfo == 0 and j in (1, 4, 7): o += pf1()
        if g.cfg.pfo and j in (1, 3, 5, 7): o += pf2()
    o += T("""
    v_bfi_b32 v184, v8, v9, v184
    s_cmp_eq_u32 s63, 1
    s_cbranch_scc1 L_trigdone
    """)
    for i in range(128): o.append(I(f"v_accvgpr_write_b32 a{i}, v{120+i}"))
    o += T("""
    v_mov_b32 v11, v10
    v_mul_f32 v16, v7, v10
    v_mul_f32 v17, 0x42400000, v10
    s_mov_b32 s63, 1
    s_branch L_trig
    L_trigdone:
    """)
    if not g.cfg.gl: o += gate_code(g)
    o += T(f"""
    v_and_b32 v5, 1, v{V_Q}
    v_lshlrev_b32 v5, 7, v5
    v_lshlrev_b32 v4, 4, v{V_L}
    v_xor_b32 v4, v4, v5
    s_mul_i32 s70, s4, 5
    s_add_u32 s70, s70, s6
    s_lshl_b32 s70, s70, 17
    s_add_u32 s70, s70, {g.WS_ABF}
    s_lshl_b32 s71, s3, 13
    s_add_u32 s70, s70, s71
    s_lshl_b32 s71, s6, 2
    s_add_u32 s71, s71, s3
    s_cmp_ge_u32 s71, 18
    s_cselect_b32 s71, {4*131072 - 65536 + 16384}, 0
    s_sub_u32 s70, s70, s71
    v_add_u32 v13, s70, v4
    v_lshlrev_b32 v4, 3, v{V_C}
    v_lshl_add_u32 v4, v{V_Q}, 8, v4
    v_add_u32 v15, v4, v5
    s_lshl_b32 s72, s6, 6
    v_add_u32 v116, s72, v{V_C}
    v_lshl_add_u32 v4, v{V_Q}, 3, s66
    s_movk_i32 s70, 2560
    v_lshlrev_b32 v5, 3, v116
    v_mad_u32_u24 v117, v4, s70, v5
    v_add_u32 v117, {g.WS_YT}, v117
    v_cmp_eq_u32 s[82:83], 0, v4
    v_add_u32 v5, {512*2560}, v117
    v_mov_b32 v6, {OOB}
    v_cndmask_b32 v118, v6, v5, s[82:83]
    v_cmp_eq_u32 vcc, 0, v{V_C}
    v_mov_b32 v5, 0xbf803f80
    s_mul_i32 s73, s4, 0x80008000
    v_cndmask_b32 v60, 0, v5, vcc
    s_sub_u32 s74, s4, 1
    v_mov_b32 v61, v60
    v_mov_b32 v62, v60
    v_mov_b32 v63, v60
    s_lshl_b32 s70, s6, 1
    s_add_u32 s71, s70, 1
    s_cmp_eq_u32 s71, 9
    s_cselect_b32 s71, 0, s71
    s_bitcmp1_b32 s3, 1
    s_cselect_b32 s70, s71, s70
    s_lshl_b32 s70, s70, 1
    s_and_b32 s71, s3, 1
    s_add_u32 s70, s70, s71
    s_mul_i32 s70, s70, {13*128}
    s_add_u32 s70, s70, {g.WS_ABFLAG}
    v_lshl_add_u32 v5, v{V_L}, 7, s70
    v_cmp_gt_u32 vcc, 13, v{V_L}
    s_nop 1
    v_cndmask_b32 v119, v6, v5, vcc
    s_lshl_b32 s60, s3, 15
    s_waitcnt lgkmcnt(0)
    s_add_u32 s7, s7, 0x9e3779b9
    """)
    A = lambda tl, mat, sp, j: (f"a[{(mat*8+j)*8+4*sp}:{(mat*8+j)*8+4*sp+3}]" if tl else f"v[{120+(mat*8+j)*8+4*sp}:{120+(mat*8+j)*8+4*sp+3}]")
    if not g.cfg.pfo: o += pf2() * g.cfg.npre
    o += TS(1) + g.poll("L_pollAB", 119, 13) + T("s_barrier") + TS(2)
    for P in range(8):
        o += T(f"s_add_u32 m0, s60, {P*4096}\ns_mov_b32 s61, {(P//2)*32768 + (P%2)*4096}")
        for i in range(4): o.append(I(f"buffer_load_dwordx4 v13, s[16:19], s61 offen offset:{1024*i} sc1 lds"))
    for ct in range(4):
        o += T(f"""
        v_add_u32 v4, {16*ct}, v116
        v_cmp_eq_u32 vcc, 288, v4
        v_mov_b32 v5, 512
        s_mov_b32 s61, {g.WS_XS}
        v_cndmask_b32 v4, v4, v5, vcc
        v_lshlrev_b32 v4, 1, v4
        buffer_load_ushort v{248+ct}, v4, s[16:19], s61 offen sc1
        """)
    o += T("s_waitcnt vmcnt(0)\ns_barrier") + TS(3) + (pf2() * ((8 if g.cfg.gl else 4) - g.cfg.npre) if not g.cfg.pfo else [])
    for ct in range(4): o += T(f"v_lshlrev_b32 v{248+ct}, 16, v{248+ct}\nv_and_b32 v{248+ct}, s74, v{248+ct}")
    AC = lambda tl, gr: f"v[{64+(tl*4+gr)*4}:{67+(tl*4+gr)*4}]"
    o += T(f"""
    s_mov_b32 s63, 0
    L_ct:
    s_lshl_b32 s70, s63, 15
    v_add_u32 v16, s70, v15
    v_xor_b32 v17, 128, v16
    v_xor_b32 v18, 0x80000000, v248
    """)
    def rd(ks):
        b = 100 + 4 * (ks % 4)
        return [I(f"ds_read_b64_tr_b16 v[{b}:{b+1}], v16 offset:{ks*1024}"), I(f"ds_read_b64_tr_b16 v[{b+2}:{b+3}], v17 offset:{ks*1024}")]
    o += rd(0) + rd(1) + rd(2) + (pf2() if not (g.cfg.pfo or g.cfg.gl) else [])
    for tl in range(2):
        for r in range(4): o.append(I(f"v_mov_b32 v{64+tl*16+r}, v{18 if r & 1 else 248}"))
    for r in range(4): o.append(I(f"v_mov_b32 v{96+r}, v248"))
    for ks in range(32):
        gr, j = ks // 8, ks % 8; b = 100 + 4 * (ks % 4); B = f"v[{b}:{b+3}]"
        o.append(I(f"s_waitcnt lgkmcnt({min(4, 2*(31-ks))})"))
        nx = rd(ks + 3) if ks + 3 < 32 else [None, None]
        for tl in range(2):
            o.append(MF(AC(tl, gr), A(tl, gr >> 1, gr & 1, j), B, AC(tl, gr) if (j or gr == 0) else "0"))
            if nx[tl]: o.append(nx[tl])
        if gr == 0: o.append(MF("v[96:99]", "v[60:63]", B, "v[96:99]"))
    o += T(f"""
    v_cmp_eq_u32 vcc, 0, v116
    v_mov_b32 v4, 288
    v_cmp_eq_u32 s[80:81], v4, v116
    v_mov_b32 v248, v249
    v_mov_b32 v249, v250
    v_mov_b32 v250, v251
    s_or_b64 vcc, vcc, s[80:81]
    s_nop 1
    """)
    for tl in range(2):
        for r in range(4):
            pe, po, qe, qo = (64 + (tl * 4 + k) * 4 + r for k in range(4))
            d = 32 + 2 * (tl * 4 + r)
            o += T(f"""
            v_cndmask_b32 v{qe}, v{qe}, 0, vcc
            v_cndmask_b32 v{qo}, v{qo}, 0, vcc
            v_add_f32 v20, v{pe}, v{po}
            v_sub_f32 v21, v{pe}, v{po}
            v_add_f32 v22, v{qe}, v{qo}
            v_sub_f32 v23, v{qo}, v{qe}
            v_sub_f32 v24, v20, v22
            v_add_f32 v25, v21, v23
            v_sub_f32 v26, v21, v23
            v_add_f32 v27, v20, v22
            """)
            if tl == 0 and r == 0:
                o += T(f"""
                v_sub_f32 v28, v96, v{qo}
                v_add_f32 v29, v96, v{qo}
                v_cndmask_b32 v24, v24, v20, s[82:83]
                v_cndmask_b32 v25, v25, v21, s[82:83]
                v_cndmask_b32 v26, v26, v28, s[82:83]
                v_cndmask_b32 v27, v27, v29, s[82:83]
                v_cvt_pk_bf16_f32 v30, v26, v27
                v_cvt_pk_bf16_f32 v31, v25, v24
                buffer_store_dwordx2 v[30:31], v118, s[16:19], 0 offen sc1
                """)
            o += T(f"""
            v_cvt_pk_bf16_f32 v{d}, v24, v25
            v_cvt_pk_bf16_f32 v{d+1}, v26, v27
            s_mov_b32 s70, {tl*81920 + r*5120}
            v_xor_b32 v{d}, s73, v{d}
            v_xor_b32 v{d+1}, s73, v{d+1}
            buffer_store_dwordx2 v[{d}:{d+1}], v117, s[16:19], s70 offen sc1
            """)
    o += T(f"""
    v_add_u32 v116, 16, v116
    v_add_u32 v117, 128, v117
    v_add_u32 v118, 128, v118
    s_add_u32 s63, s63, 1
    s_cmp_lt_u32 s63, 4
    s_cbranch_scc1 L_ct
    """) + TS(4)
    if g.cfg.gl: o += gate_code(g)
    o += TS(5)
    o += T(f"""
    s_waitcnt vmcnt(0)
    s_barrier
    s_lshl_b32 s70, s64, 2
    s_add_u32 s70, s70, {g.WS_YFLAG}
    v_cmp_gt_u32 vcc, 26, v0
    v_mov_b32 v4, {OOB}
    v_lshlrev_b32 v6, 7, v0
    v_mov_b32 v5, s7
    v_cndmask_b32 v4, v4, v6, vcc
    buffer_store_dword v5, v4, s[16:19], s70 offen sc1
    """) + TS(6) + TS(7)
    idle = [I("L_idle:")] + (pf1() * 6 if not g.cfg.pfo else []) + pf2() * 8 + [I("s_endpgm")]
    return o, idle

def gate_code(g):
    T = g.T; V_L, OOB = g.V_L, g.OOB
    o = T(f"""
    v_and_b32 v4, 7, v{V_L}
    v_lshlrev_b32 v32, 4, v4
    v_bfe_u32 v33, v{V_L}, 3, 2
    v_lshrrev_b32 v34, 5, v{V_L}
    s_lshl_b32 s70, s64, 2
    s_add_u32 s70, s70, s3
    s_lshl_b32 s70, s70, 1
    v_add_u32 v34, s70, v34
    s_movk_i32 s67, 1152
    v_mov_b32 v35, {OOB}
    """)
    for j in range(9): o.append(I(f"buffer_load_dwordx4 v[{44+4*j}:{47+4*j}], v32, s[24:27], 0 offen offset:{128*j}"))
    for it in range(4):
        o += g.rowcalc(34, 33, 36, 37) + T(f"""
        v_cmp_gt_u32 vcc, 512, v34
        v_mad_u32_u24 v36, v36, s67, v32
        v_lshl_add_u32 v37, v34, 2, v33
        v_cndmask_b32 v36, v35, v36, vcc
        v_lshlrev_b32 v37, 2, v37
        v_cndmask_b32 v{20+it}, v35, v37, vcc
        v_add_u32 v34, 160, v34
        """)
        for j in range(9):
            d = f"v[{80+4*j}:{83+4*j}]" if it == 0 else f"a[{92+36*it+4*j}:{95+36*it+4*j}]"
            o.append(I(f"buffer_load_dwordx4 {d}, v36, s[20:23], 0 offen offset:{128*j}"))
    for it in range(4):
        o += T(f"v_mov_b32 v{24+it}, 0\nv_mov_b32 v28, 0\ns_waitcnt vmcnt({9*(3-it)})")
        if it:
            for k in range(36): o.append(I(f"v_accvgpr_read_b32 v{80+k}, a{92+36*it+k}"))
        for k in range(36):
            d = 28 if k & 1 else 24 + it
            o.append(I(f"v_dot2_f32_bf16 v{d}, v{80+k}, v{44+k}, v{d}"))
        o += T(f"s_nop 2\nv_add_f32 v{24+it}, v{24+it}, v28")
    o.append(I("s_nop 1"))
    for perm in ("quad_perm:[1,0,3,2]", "quad_perm:[2,3,0,1]", "row_half_mirror"):
        for it in range(4): o.append(I(f"v_add_f32_dpp v{24+it}, v{24+it}, v{24+it} {perm} row_mask:0xf bank_mask:0xf"))
    for it in range(4): o.append(I(f"v_mul_f32 v{24+it}, 0xbfb8aa3b, v{24+it}"))
    for it in range(4): o.append(I(f"v_exp_f32 v{24+it}, v{24+it}"))
    for it in range(4): o.append(I(f"v_add_f32 v{24+it}, 1.0, v{24+it}"))
    for it in range(4): o.append(I(f"v_rcp_f32 v{24+it}, v{24+it}"))
    o += T(f"""
    v_cmp_eq_u32 vcc, 0, v32
    s_mov_b32 s70, {g.WS_GT}
    s_nop 0
    """)
    for it in range(4): o.append(I(f"v_cndmask_b32 v{20+it}, v35, v{20+it}, vcc"))
    for it in range(4): o.append(I(f"buffer_store_dword v{24+it}, v{20+it}, s[16:19], s70 offen sc1"))
    return o
```

```python
import sys
from asmlib import *
NAME = "gated_mix__spectral_fnet__dense_activation_relu__prompt_kernel"
WS_PF, WS_ABFLAG, WS_YFLAG, WS_GT, WS_XS = 0x20000, 0x20000, 0xA000, 0x10000, 0x13000
WS_ABF, WS_YT, WS_PART, WS_TS, WS_SIZE = 0x100000, 0x280000, 0x400000, 0x2000000, 0x3000000
OOB = 0x40000000
WSL, SL = 2816, 11264
XB, HB = 71680, 81920
SPIN = 1 << 20

class Cfg:
    ts = False
    L2 = 12
    rot1 = 3
    chain = 0
    strip = 0
    pp = 0
    pfc = 1
    pfo = 0
    gl = 0
    bal = 1
    p0v = 1
    ep2 = 1
    epg = 5
    chk7 = 2
    s6g = 3
    flg = 4
    u0 = 7
    npre = 2
    abv = 0
    early = 3
    epm = 3
    rot2 = 2
    tag7 = 0
    stg = 2
    rdp = 0
    hw = 1
    hg = 9
    ne = 6
    inloop = 0
    osc = 1
    pt = 1
    trace = 0
    slp = 16
    map = 2
    pf1 = 1
    rev = 1
    pf2 = 0
    noab = 0
    pfs = 3
    warmfl = 1
    stspread = 1
    fake = 0
cfg = Cfg()

ACC = lambda t: f"v[{16+4*t}:{19+4*t}]"
EE = lambda t: f"v[{36+4*t}:{39+4*t}]"
E0 = 36
FB = lambda b: 56 + 4 * b
PK = 88
def act(i):
    return f"a[{4*i}:{4*i+3}]" if i < 64 else f"v[{152+4*(i-64)}:{155+4*(i-64)}]"
V_A, V_B = 10, 11
V_W2A, V_W2B = 12, 13
V_TR, V_TR2 = 14, 15
V_XO = 100
V_ABA, V_ABB = 105, 106
V_XR0, V_XR1 = 107, 108
V_WR0, V_WR1 = 109, 110
V_PATCH = 111
V_HW = 112
V_HR, V_HR2 = 113, 114
V_SIG, V_SIG0, V_SIGT0, V_SIG0T0, V_TAU = 115, 116, 117, 118, 119
V_ABS, V_ABS0 = 120, 121
V_ABFL = 122
V_TAG = 123
V_P16, V_P8 = 124, 125
V_FL = 126
V_POLL = 127
V_PFD, V_PF1, V_PF2, V_DUM = 132, 133, 134, 135
XH = 94
V_L, V_C, V_Q = 1, 2, 3

def mfma(d, a, b, c): return I(f"v_mfma_f32_16x16x32_bf16 {d}, {a}, {b}, {c}")
def place(ms, side):
    gaps = [[] for _ in ms]
    for g, it in side:
        gaps[g] += it if isinstance(it, list) else [it]
    out = []
    for m, g in zip(ms, gaps):
        out.append(m); out += g
    return out
def spread(items, gaps):
    n = len(items); k = len(gaps)
    return [(gaps[i * k // n], it) for i, it in enumerate(items)]

tsn = [0]
def tsr(k): return 84 + 2 * k if k < 4 else 36 + 2 * (k - 4)
def TS(k):
    if not cfg.ts: return []
    return [I(f"{'s_memtime' if cfg.ts == 2 else 's_memrealtime'} s[{tsr(k)}:{tsr(k)+1}]")]

def wslot(ph, p, s):
    if ph == 2: return ((p & 1) * 16 + s) * 4096
    return s * 4096
def wdma(ph, p, s):
    P, b = s >> 1, s & 1
    pre = []
    if b == 0:
        pre.append(I(f"s_add_u32 m0, s60, {P*8192}"))
        pre.append(I(f"s_add_u32 s61, s62, s{64+P}" if ph == 2 else ("s_add_u32 s61, s61, s35" if P else "s_mov_b32 s61, s62")))
    lo = wslot(ph, p, 2 * P)
    v, sr = (V_W2A, "s[28:31]") if ph == 2 else (V_A, "s[8:11]")
    return pre, VM(f"buffer_load_dwordx4 v{v+b}, {sr}, s61 offen offset:{1024*b} lds", ("W", ph, p, s), wr=(lo, lo + 8192))
def cover(ph, p, lo, hi): return [("W", ph, p, s) for s in range(lo, hi)]
def nf(ph): return 8 if ph == 2 else 6
def trr(ph, p, s):
    b = FB(s % nf(ph)); o = s * 4096; vr = V_TR
    if o >= 65536: o -= 65536; vr = V_TR2
    lo = wslot(ph, p, s)
    return [LG(f"ds_read_b64_tr_b16 v[{b+2*h}:{b+2*h+1}], v{vr} offset:{o+512*h}", ("R", ph, p, s, h), rd=(lo, lo + 4096)) for h in range(2)]
def group_mfmas(ph, steps, last):
    ms = []
    order = [(t, s) for t in range(5) for s in steps] if cfg.chain else [(t, s) for s in steps for t in range(5)]
    for t, s in order:
        if True:
            d = EE(t) if s == last else ACC(t)
            c = "0" if s == 0 else ACC(t)
            b = FB(s % nf(ph)); w = f"v[{b}:{b+3}]"
            ms.append(mfma(d, act(s * 5 + t), w, c) if ph == 2 else mfma(d, w, act(s * 5 + t), c))
    return ms

def xdma(n):
    pre = [I("s_add_u32 s79, s79, s93")] if (n % 5 == 0 and n) else []
    return pre + [I(f"s_add_u32 m0, s82, {n*4096}"), I(f"s_add_u32 s61, s79, s{XH+n%5}"),
            VM(f"buffer_load_dwordx4 v{V_XO+n%5}, s[12:15], s61 offen lds", ("X", n), wr=(XB + (n // 5) * 20480, min(XB + (n // 5 + 1) * 20480, 163840)))]
def abdma(P):
    lo = P * 8192
    return [I(f"s_add_u32 m0, s60, {lo}"), I("s_add_u32 s83, s83, s92"),
            VM(f"buffer_load_dwordx4 v{V_ABA}, s[20:23], s83 offen lds", ("WAB", P, 0), wr=(lo, lo + 8192)),
            VM(f"buffer_load_dwordx4 v{V_ABB}, s[20:23], s83 offen offset:1024 lds", ("WAB", P, 1), wr=(lo, lo + 8192))]
def wreads(P):
    out = []
    if P == 4: out += [I(f"v_add_u32 v{V_WR0}, 32768, v{V_WR0}"), I(f"v_add_u32 v{V_WR1}, 32768, v{V_WR1}")]
    Pp = P - 4 if P >= 4 else P
    for h in range(2):
        s = 2 * P + h; b = FB(s % 6)
        out.append(LG(f"ds_read_b128 v[{b}:{b+3}], v{V_WR0+h} offset:{Pp*8192}", ("RAB", s)))
    return out
def xreads(P):
    out = []
    if P == 4: out += [I(f"v_add_u32 v{V_XR0}, 40960, v{V_XR0}"), I(f"v_add_u32 v{V_XR1}, 40960, v{V_XR1}")]
    Pp = P - 4 if P >= 4 else P
    for t in range(5):
        for h in range(2):
            s = 2 * P + h; lo = XB + (P * 10 + 2 * t) * 1024
            out.append(LG(f"ds_read_b128 {act(s*5+t)}, v{V_XR0+h} offset:{(Pp*10+2*t)*1024}", ("RX", s, t), rd=(lo, lo + 2048)))
    return out
def patch(P):
    return [I(f"v_cndmask_b32 v{FB(s%6)+e}, v{FB(s%6)+e}, v{V_PATCH}, s[76:77]") for s in (2 * P, 2 * P + 1) for e in range(4)]
def xg(g, lastx): return [("X", n) for n in range(5 * g, min(5 * g + 5, lastx + 1))]

def cut(su, n):
    while su[n].text.startswith(("s_cselect", "v_c")) or su[n - 1].text.startswith(("s_cmp", "s_cselect", "v_c")): n += 1
    return n
def ab_pass(hasx22):
    lastx = 22 if hasx22 else 21
    o = []
    pf = lambda v, sr, off, tag: [VM(f"buffer_load_dword v{V_DUM}, v{v}, {sr}, 0 offen offset:{off}", tag)]
    Xr = lambda a, b: sum((xdma(n) for n in range(a, b)), [])
    TP = lambda n, vm=None: [WAIT(f'ab_x9{n}', vm=vm)] if cfg.trace else []
    if cfg.abv == 2:
        o += Xr(0, 5) + setup1() + setup1b() + abdma(0) + abdma(1)
        if cfg.pf1 & 1: o += pf(V_PFD, "s[20:23]", 0, "PFD")
        o += setup2()
        if cfg.pt & 1: o.append(VM(f"buffer_load_dword v{V_DUM}, v{V_ABFL}, s[16:19], 0 offen sc1", "PT0"))
        return o + ab_tail2(hasx22, Xr)
    o += TP(0) + Xr(0, 5) + setup1()
    if cfg.pf1 & 1: o += pf(V_PFD, "s[20:23]", 0, "PFD")
    o += Xr(5, 8) + TP(1) + setup1b() + setup2() + TP(2)
    if cfg.trace == 2: o += TP(3, [('X', 0)]) + TP(4, [('X', 4)]) + TP(5, [('X', 7)])
    if cfg.pf1 & 2: o += pf(V_PF1, "s[8:11]", 0, "PFA")
    if cfg.pt & 1: o.append(VM(f"buffer_load_dword v{V_DUM}, v{V_ABFL}, s[16:19], 0 offen sc1", "PT0"))
    if cfg.pt & 8:
        o += srd(24, 54, 2359296) + srd(28, 50, 5308416) + T(f"""
        s_lshl_b32 s68, s2, 7
        v_lshl_add_u32 v4, v0, 16, s68
        """) + [VM(f"buffer_load_dword v{V_DUM}, v4, s[24:27], 0 offen", "PT2"), VM(f"buffer_load_dword v{V_DUM}, v4, s[28:31], 0 offen", "PT3")]
    if cfg.pt & 2: o.append(VM(f"buffer_store_dword v{ABP+10}, v{V_ABFL}, s[16:19], 0 offen sc1", "PT1"))
    if cfg.pt & 4: o.append(VM(f"buffer_store_dwordx4 v[{ABP+10}:{ABP+13}], v{ABP+14}, s[16:19], s78 offen offset:2560 sc1", "WARMFL"))
    if cfg.abv == 1: return o + ab_tail1(hasx22, Xr)
    o += Xr(8, 17)
    o += [WAIT("ab_b0", vm=xg(0, lastx)), BAR()] + TS(1) + xreads(0) + Xr(17, 20) + xreads(1)
    o += xdma(20) + xdma(21) + [I("s_cmp_lt_u32 s3, 2"), I("s_cbranch_scc0 L_nox22")] + (xdma(22) if hasx22 else []) + [I("L_nox22:")]
    o += [WAIT("ab_x1", vm=xg(1, lastx)), BAR()] + abdma(0) + xreads(2) + abdma(1) + abdma(2) + xreads(3) + abdma(3) + abdma(4)
    o += [WAIT("ab_x4", vm=xg(4, lastx) + [("WAB", 0, 1)], lg=[("RX", 1, 0)]), BAR()] + wreads(0) + abdma(5)
    o.append(WAIT("ab_r0", lg=[("RAB", 1)])); o += patch(0); o.append(I("s_nop 1"))
    for g in range(9):
        ms = group_mfmas(0, (2 * g, 2 * g + 1), 17)
        side = []
        if g < 8:
            side.append((0, WAIT(f"ab_w{g}", vm=[("WAB", g + 1, 1)])))
            side += spread(wreads(g + 1), [0, 1])
            if g < 5: side += spread(xreads(g + 4), [1, 2, 3, 4, 5, 7, 8, 9])
        else:
            side.append((0, [WAIT("ab_b8", vm=cover(1, 0, 0, 6)), BAR()]))
            side += spread(trr(1, 0, 0) + trr(1, 0, 1) + trr(1, 0, 2), [1, 2, 3, 4, 5, 6])
        d = []
        if g == 0: d = [abdma(6)[:3], abdma(6)[3:], abdma(7)[:3], abdma(7)[3:]]
        if g == 1: d = [abdma(8)[:3], abdma(8)[3:]]
        sl = {0: (), 1: (0, 1), 2: (2, 3, 4), 3: (5, 6, 7), 4: (8, 9), 5: (10, 11), 6: (12, 13), 7: (14,), 8: ()}[g]
        for s in sl:
            pre, dm = wdma(1, 0, s); dm.wr = None
            d.append(pre + [dm])
        if d: side += spread(d, [2, 3, 4, 5])
        if g in (5, 6, 7): side += list(zip([1, 3, 5, 9, 9], ab_gaddr()[(g - 5) * 5:(g - 4) * 5]))
        if g < 8:
            side.append((6, WAIT(f"ab_rw{g}", lg=[("RAB", 2 * g + 3)])))
            side += spread(patch(g + 1), [6, 7, 8])
            side.append((9, I("s_nop 0")))
        else: side.append((9, WAIT(f"ab_r9", lg="all")))
        o += place(ms, side)
    return o

def ab_tail2(hasx22, Xr):
    lastx = 22 if hasx22 else 21
    x22 = [I("s_cmp_lt_u32 s3, 2"), I("s_cbranch_scc0 L_nox22")] + (xdma(22) if hasx22 else []) + [I("L_nox22:")]
    sp = lambda l: [l[:3], l[3:]]
    X = lambda a, b: [xdma(n) for n in range(a, b)]
    q = X(5, 10) + sp(abdma(2)) + sp(abdma(3)) + X(10, 15) + sp(abdma(4)) + sp(abdma(5)) + X(15, 20) + sp(abdma(6)) + sp(abdma(7)) + X(20, 22) + [x22] + sp(abdma(8))
    for s in range(15):
        pre, dm = wdma(1, 0, s); dm.wr = None
        q.append(pre + [dm])
    u0 = cfg.u0
    o = sum(q[:u0], [])
    o += [WAIT("ab_b0", vm=xg(0, lastx) + [("WAB", 0, 1)]), BAR()] + TS(1) + wreads(0) + xreads(0) + sum(q[u0:u0 + 4], [])
    o.append(WAIT("ab_r0", lg="all")); o += patch(0); o.append(I("s_nop 1"))
    rest = q[u0 + 4:]
    per = [len(rest) * (g + 1) // 8 for g in range(8)]
    for g in range(9):
        ms = group_mfmas(0, (2 * g, 2 * g + 1), 17)
        side = []
        if g < 8:
            need = [("WAB", g + 1, 1)]
            if g % 2: side.append((0, [WAIT(f"ab_x{g}", vm=need + xg((g + 1) // 2, lastx)), BAR()]))
            else: side.append((0, WAIT(f"ab_w{g}", vm=need)))
            side += spread(wreads(g + 1), [0, 0]) + spread(xreads(g + 1), [0, 1, 1, 2, 2, 3, 4])
            side += spread(rest[(per[g - 1] if g else 0):per[g]], [3, 4, 5, 6, 7, 8])
            side.append((6, WAIT(f"ab_rw{g}", lg=[("RAB", 2 * g + 3)])))
            side += spread(patch(g + 1), [6, 7, 8])
        else:
            side.append((0, [WAIT("ab_b8", vm=cover(1, 0, 0, 6)), BAR()]))
            side += spread(trr(1, 0, 0) + trr(1, 0, 1) + trr(1, 0, 2), [1, 2, 3, 4, 5, 6])
        if g in (6, 7, 8): side += list(zip([5, 5, 9, 9, 9] if g < 8 else [2, 4, 7, 8, 8], ab_gaddr()[(g - 6) * 5:(g - 5) * 5]))
        side.append((9, WAIT(f"ab_r{g+1}", lg="all")))
        o += place(ms, side)
    return o
def ab_tail1(hasx22, Xr):
    lastx = 22 if hasx22 else 21
    x22 = [I("s_cmp_lt_u32 s3, 2"), I("s_cbranch_scc0 L_nox22")] + (xdma(22) if hasx22 else []) + [I("L_nox22:")]
    o = Xr(8, 10) + abdma(0) + abdma(1) + Xr(10, 15)
    o += [WAIT("ab_b0", vm=xg(0, lastx)), BAR()] + TS(1) + xreads(0) + abdma(2) + abdma(3) + xreads(1) + Xr(15, 18)
    o += [WAIT("ab_x1", vm=xg(1, lastx) + [("WAB", 0, 1)], lg=[("RX", 1, 0)]), BAR()] + wreads(0) + Xr(18, 20)
    o.append(WAIT("ab_r0", lg=[("RAB", 1)])); o += patch(0); o.append(I("s_nop 1"))
    sp = lambda l: [l[:3], l[3:]]
    dl = {0: sp(abdma(4)) + sp(abdma(5)), 1: [xdma(20), xdma(21), x22] + sp(abdma(6)), 2: sp(abdma(7)) + sp(abdma(8))}
    sl = {3: (0, 1, 2, 3), 4: (4, 5, 6, 7), 5: (8, 9, 10), 6: (11, 12, 13), 7: (14,)}
    for g in range(9):
        ms = group_mfmas(0, (2 * g, 2 * g + 1), 17)
        side = []
        if g < 8:
            need = [("WAB", g + 1, 1)]
            if g in (2, 4, 6): side.append((0, [WAIT(f"ab_x{g}", vm=need + xg(g // 2 + 1, lastx)), BAR()]))
            else: side.append((0, WAIT(f"ab_w{g}", vm=need)))
            side += spread(wreads(g + 1), [0, 1])
            if g < 7: side += spread(xreads(g + 2), [1, 2, 3, 4, 5, 7, 8, 9])
        else:
            side.append((0, [WAIT("ab_b8", vm=cover(1, 0, 0, 6)), BAR()]))
            side += spread(trr(1, 0, 0) + trr(1, 0, 1) + trr(1, 0, 2), [1, 2, 3, 4, 5, 6])
        d = list(dl.get(g, []))
        for s in sl.get(g, ()):
            pre, dm = wdma(1, 0, s); dm.wr = None
            d.append(pre + [dm])
        if d: side += spread(d, [2, 3, 4, 5])
        if g in (6, 7, 8): side += list(zip([1, 3, 5, 9, 9] if g < 8 else [2, 4, 7, 8, 8], ab_gaddr()[(g - 6) * 5:(g - 5) * 5]))
        if g < 8:
            side.append((6, WAIT(f"ab_rw{g}", lg=[("RAB", 2 * g + 3)])))
            side += spread(patch(g + 1), [6, 7, 8])
            side.append((9, I("s_nop 0")))
        else: side.append((9, WAIT(f"ab_r9", lg="all")))
        o += place(ms, side)
    return o

ABP = 136
OUTL = 135168
ABL = 73728
V_ABR, V_ABG0, V_ABG1 = 100, 101, 102
def ab_epilogue():
    o = []
    for t in range(5):
        r = E0 + 4 * t
        sg = (V_SIG0T0, V_SIGT0) if t == 0 else (V_SIG0, V_SIG)
        for e in range(4): o.append(I(f"v_fmac_f32_dpp v{r+e}, v{r+e}, v{sg[0] if e == 0 else sg[1]} quad_perm:[3,2,1,0] row_mask:0xf bank_mask:0xf"))
        for e in range(4): o.append(I(f"v_fmac_f32_dpp v{r+e}, v{r+e}, v{V_TAU} quad_perm:[1,0,3,2] row_mask:0xf bank_mask:0xf"))
        if t == 0:
            o.append(I(f"v_mov_b32_dpp v{PK+10}, v{r} quad_perm:[0,1,2,1] row_mask:0xf bank_mask:0xf"))
            o.append(I(f"v_cndmask_b32 v{r}, v{r}, v{PK+10}, s[80:81]"))
        o.append(I(f"v_cvt_pk_bf16_f32 v{ABP+2*t}, v{r}, v{r+1}"))
        o.append(I(f"v_cvt_pk_bf16_f32 v{ABP+2*t+1}, v{r+2}, v{r+3}"))
    return o
def ab_gaddr():
    A = lambda x: T(x)
    return [A(f"s_lshr_b32 s68, s5, 1\ns_lshl_b32 s68, s68, 17\ns_lshr_b32 s70, s3, 1"),
            A(f"s_lshl_b32 s71, s70, 16\ns_add_u32 s68, s68, s71\ns_mul_i32 s71, s4, 320"),
            A(f"s_add_u32 s68, s68, s71\ns_and_b32 s71, s5, 1\ns_lshl_b32 s71, s71, 14"),
            A(f"s_add_u32 s68, s68, s71\ns_and_b32 s71, s3, 1\ns_lshl_b32 s69, s71, 13"),
            A(f"s_add_u32 s68, s68, s69\ns_add_u32 s68, s68, {WS_ABF}\ns_lshl_b32 s71, s71, 5"),
            A(f"s_lshl_b32 s69, s5, 6\ns_add_u32 s69, s69, s71\ns_lshl_b32 s70, s70, 10"),
            A(f"s_add_u32 s69, s69, s70\ns_add_u32 s69, s69, {WS_XS - 320}\nv_mul_u32_u24 v4, 13, v{V_L}"),
            A(f"v_lshrrev_b32 v4, 8, v4\nv_mul_u32_u24 v5, 20, v4\nv_sub_u32 v5, v{V_L}, v5"),
            A(f"v_and_b32 v6, 1, v4\nv_lshlrev_b32 v6, 15, v6\nv_lshrrev_b32 v7, 1, v4\nv_mul_u32_u24 v7, {5*131072}, v7"),
            A(f"v_lshl_add_u32 v6, v5, 4, v6\nv_add3_u32 v6, v6, v7, s68\ns_cmp_eq_u32 s4, 25\ns_cselect_b32 s70, 12, 20"),
            A(f"v_cmp_gt_u32 vcc, s70, v5\nv_mov_b32 v8, {OOB}\nv_lshlrev_b32 v7, 4, v{V_L}\nv_cndmask_b32 v6, v8, v6, vcc"),
            A(f"v_cmp_gt_u32 vcc, 60, v{V_L}\ns_add_u32 s68, s68, {5*131072 + 32768}\nv_add_u32 v9, s68, v7\nv_cndmask_b32 v{V_ABG0}, v8, v6, vcc"),
            A(f"v_cmp_gt_u32 vcc, s70, v{V_L}\nv_add_u32 v6, s69, v7\nv_lshrrev_b32 v5, 1, v{V_L}\nv_cndmask_b32 v9, v8, v9, vcc"),
            A(f"s_cmp_eq_u32 s4, 0\ns_cselect_b32 s70, 10, -1\nv_cmp_eq_u32 vcc, s70, v5\ns_mul_i32 s68, s3, 1792"),
            A(f"s_add_u32 s68, s68, {ABL}\nv_add_u32 v{V_ABR}, s68, v7\nv_cndmask_b32 v{V_ABG1}, v9, v6, vcc")]
def ab_once(which):
    if which == 2:
        return [LG(f"ds_write_b64 v{V_ABS0 if t == 0 else V_ABS}, v[{ABP+2*t}:{ABP+2*t+1}] offset:{64*t}", ("ABW", t)) for t in range(5)]
    if which == 3:
        return [LG(f"ds_read_b128 v[{PK}:{PK+3}], v{V_ABR}", ("ABR", 0)), LG(f"ds_read_b128 v[{PK+4}:{PK+7}], v{V_ABR} offset:960", ("ABR", 1))]
    if which == 0:
        o = [VM(f"buffer_store_dwordx4 v[{PK}:{PK+3}], v{V_ABG0}, s[16:19], 0 offen sc1", ("ABST", 0)),
             VM(f"buffer_store_dwordx4 v[{PK+4}:{PK+7}], v{V_ABG1}, s[16:19], 0 offen sc1", ("ABST", 4))]
        if cfg.warmfl:
            o += [VM(f"buffer_store_dwordx4 v[{ABP+10}:{ABP+13}], v{ABP+14}, s[16:19], s78 offen offset:2560 sc1", "WARMFL")]
        return o
    return [VM(f"buffer_store_dword v{V_TAG}, v{V_ABFL}, s[16:19], 0 offen sc1", "ABFL")]
def h_tile(p, t):
    r = E0 + 4 * t; d = PK + 2 * t
    lo = HB + p * 10240
    return ([I(f"v_cvt_pk_bf16_f32 v{d}, v{r}, v{r+1}"), I(f"v_cvt_pk_bf16_f32 v{d+1}, v{r+2}, v{r+3}")],
            [I(f"v_pk_max_i16 v{d}, v{d}, 0"), I(f"v_pk_max_i16 v{d+1}, v{d+1}, 0")],
            LG(f"ds_write_b64 v{V_HW}, v[{d}:{d+1}] offset:{1024*t}", ("HW", p, t), wr=(lo + (2048 if p < 0 else 0), lo + 10240)))
def p_parts(p):
    cv = [I(f"v_cvt_pk_bf16_f32 v{PK+i}, v{E0+2*i}, v{E0+2*i+1}") for i in range(10)]
    st = [VM(f"buffer_store_dwordx4 v[{PK}:{PK+3}], v{V_P16}, s[16:19], s78 offen sc1", ("PST", p, 0)),
          VM(f"buffer_store_dwordx4 v[{PK+4}:{PK+7}], v{V_P16}, s[16:19], s78 offen offset:1024 sc1", ("PST", p, 1)),
          VM(f"buffer_store_dwordx2 v[{PK+8}:{PK+9}], v{V_P8}, s[16:19], s78 offen offset:2048 sc1", ("PST", p, 2))]
    return [(cv[:4], st[0]), (cv[4:8], st[1]), (cv[8:], st[2])]
def hreads(s):
    o = []
    for t in range(5):
        off = (s * 5 + t) * 1024; vr = V_HR
        if off >= 40960: off -= 40960; vr = V_HR2
        lo = HB + (s * 5 + t) * 1024
        o.append(LG(f"ds_read_b128 {act(s*5+t)}, v{vr} offset:{off}", ("RH", s, t), rd=(lo, lo + 1024)))
    return o
def tags(items): return [it.tag for it in items if it.kind == "lg"]
def cyc_stamp(side, g, g0, gap, v):
    if cfg.ts == 2 and cfg.pp and g == g0: side.append((gap, [I("s_memtime s[32:33]")]))
    if cfg.ts == 2 and cfg.pp and g == g0 + 1: side.append((gap, [I("s_waitcnt lgkmcnt(0)"), I("v_cmp_eq_u32 vcc, s63, v1"), I("v_mov_b32 v9, s32"), I("s_nop 0"), I(f"v_cndmask_b32 v{v}, v{v}, v9, vcc")]))

def g1_group(p, g, dyn=False):
    kind = "a" if p == 0 else ("z" if p == 7 else "")
    ms = group_mfmas(1, range(3 * g, 3 * g + 3), 17)
    side = []
    nph, npp = (1, p + 1) if p < 7 else (2, 0)
    if g % 2 == 1:
        need = cover(1, p, 3 * g + 3, 3 * g + 9) if g < 5 else cover(nph, npp, 0, 6)
        if g == 1 and p == 1: need = need + [("ABST", 4)]
        side.append((0, [WAIT(f"g1_b{g}{kind}", vm=need), BAR()]))
    rd = []
    for s in range(3 * g + 3, 3 * g + 6):
        rd += trr(1, p, s) if s < 18 else trr(nph, npp, s - 18)
    side += list(zip([1, 2, 4, 5, 6, 7] if not cfg.rdp else [0, 1, 2, 4, 5, 6], rd))
    for k, s in enumerate(range(3 * g + 15, 3 * g + 18)):
        pre, dm = wdma(1, p, s) if s < 18 else wdma(nph, npp, s - 18)
        gp = [3, 8, 13][k]
        if pre: side.append((gp - 2, pre[0])); side.append((gp - 1, pre[1]))
        side.append((gp, dm))
    if g == 0:
        if p < 7:
            side.append((11, [I("s_add_u32 s73, s73, 128"), I("s_and_b32 s73, s73, 0x380")])); side.append((12, I("s_add_u32 s62, s73, s74")))
        else:
            side.append((11, I("s_mov_b32 s62, s72")))
    if kind == "z" and cfg.tag7:
        if g == 0: side += [(1, I(f"v_mov_b32 v{ABP}, -1")), (2, I(f"v_mov_b32 v{ABP+1}, -1")), (7, I(f"v_mov_b32 v{ABP+2}, -1")), (10, I(f"v_mov_b32 v{ABP+3}, -1")),
                            (12, I(f"s_add_u32 s34, s78, {7*SL}"))]
        if g == 1: side.append((0, [VM(f"buffer_store_dwordx4 v[{ABP}:{ABP+3}], v{V_P16}, s[16:19], s34 offen sc1", ("POI", 0)),
                                    VM(f"buffer_store_dwordx4 v[{ABP}:{ABP+3}], v{V_P16}, s[16:19], s34 offen offset:1024 sc1", ("POI", 1)),
                                    VM(f"buffer_store_dwordx2 v[{ABP}:{ABP+1}], v{V_P8}, s[16:19], s34 offen offset:2048 sc1", ("POI", 2))]))
        if g == 4: side += [(1, [I(f"v_lshlrev_b32 v4, 2, v{V_L}"), I(f"v_cmp_gt_u32 vcc, 32, v{V_L}")]), (3, I(f"v_mov_b32 v5, {OOB}")), (8, I(f"v_cndmask_b32 v{ABP+4}, v5, v4, vcc"))]
    hr = []
    if kind == "z" and g >= 1:
        hr = hreads(2 * g - 2) + hreads(2 * g - 1)
        side += list(zip([0 if g % 2 == 0 else 1, 2, 4, 5, 6, 7, 9, 9, 11, 12], hr))
    if kind == "a":
        ep = ab_epilogue(); st = ab_once(0); wr = ab_once(2); ag = ab_gaddr()
        if cfg.p0v:
            if g == 0: side += spread(ep[:12], [3, 4, 5, 6, 7]) + [(9, wr[0])] + spread(ep[12:22], [8, 9, 10, 11]) + [(12, wr[1])] + spread(ep[22:28], [12, 13, 14])
            if g == 1: side += spread(ep[28:42], [1, 2, 3, 4, 5, 6, 7, 8]) + [(9, wr[2]), (11, wr[3])] + spread(ep[42:], [10, 11, 12, 13, 14])
        else:
            if g == 0: side += spread(ep[:26], [3, 4, 5, 6, 7, 9, 9, 10, 10, 11, 12, 13, 14])
            if g == 1: side += spread(ep[26:], [1, 2, 3, 4, 5, 6, 7, 9, 11, 12, 13]) + [(9, wr[0]), (10, wr[1]), (12, wr[2]), (14, wr[3])]
        if g == 2:
            r2 = ab_once(3); rd = rd + r2
            side += [(0, wr[4]), (9, r2[0]), (10, r2[1])]
        if g == 3: side += list(zip([0, 1, 2], st))
        if g in (3, 4, 5):
            s3_ = setup3(); n3 = (len(s3_) + 2) // 3
            side += spread(s3_[(g - 3) * n3:(g - 2) * n3], [3, 4, 5, 6, 7, 9, 9, 10, 10, 11, 12, 14])
    if kind == "" and g == 1:
        side.append((9, [I("s_cmp_eq_u32 s63, 6"), I("s_cbranch_scc1 L_once1")] + (ab_once(1) if (dyn and p == 1) else []) + [I("L_once1_ret:")]))
    if kind == "a": pass
    elif g < 5:
        cv, mx, w = h_tile(p - 1, g)
        if kind == "z" and g >= 1:
            side += [(3, cv[0]), (8, cv[1]), (10, mx), (13, w)]
        elif cfg.hw == 1:
            side += [(3, cv[0]), (4, cv[1]), (5, mx[0]), (6, mx[1]), (cfg.hg, w)]
        else:
            side += [(4, cv[0]), (5, cv[1]), (9, mx), (cfg.hg, w)]
    else:
        side.append((10, I(f"v_add_u32 v{V_HW}, 10240, v{V_HW}")))
    if kind == "": cyc_stamp(side, g, 2, 12, 130)
    if g == 5 and kind == "": side.append((13, [I("s_sub_u32 s63, s63, 1"), I("s_cmp_lg_u32 s63, 0")]))
    side.append((14, WAIT(f"g1_r{g}{kind}", lg=tags(rd))))
    return place(ms, side)

def nextcol():
    return [[I("s_add_u32 s62, s62, 128"), I("s_cmp_eq_u32 s62, 1152"), I("s_cselect_b32 s62, 0, s62")],
            [I("s_cmp_eq_u32 s62, s72"), I(f"s_cselect_b32 s62, {OOB}, s62"), I("s_xor_b32 s60, s60, 0x10000")]]
def g2_pass0():
    o = []
    groups = [(0, 1, 2), (3, 4, 5), (6, 7), (8, 9, 10, 11), (12, 13, 14, 15)]
    cuts = [15, 19, 23, 26, 31, 36]
    hsteps = [(10,), (11, 12), (13,), (14, 15), ()]
    htl = [(0, 1), (2, 3), (4,), (), ()]
    for gi, st in enumerate(groups):
        ms = group_mfmas(2, st, 15); n = len(ms); side = []
        if gi == 1: side.append((0, [WAIT("g20_b1", vm=cover(2, 0, 6, 12) + ([("POI", 2)] if cfg.tag7 else [])), BAR()] +
                                 ([VM(f"buffer_store_dword v{V_TAG}, v{ABP+4}, s[16:19], s34 offen offset:2560 sc1", "POIF")] if cfg.tag7 else [])))
        if gi == 3: side.append((0, [WAIT("g20_b3", vm=cover(2, 0, 12, 16), lg=[("HW", 7, 4)]), BAR()]))
        if gi == 4: side.append((0, [WAIT("g20_b4", vm=cover(2, 1, 0, 8)), BAR(), I(f"v_xor_b32 v{V_TR}, 0x10000, v{V_TR}")]))
        dl = list(range(cuts[gi], cuts[gi + 1]))
        dg = [min(n - 1, 2 + (i * (n - 1)) // len(dl)) for i in range(len(dl))]
        for s, gp in zip(dl, dg):
            pre, dm = wdma(2, s // 16, s % 16)
            if s % 16 == 0:
                nc = nextcol(); side.append((gp - 2, nc[0] + nc[1]))
            if pre: side.append((gp - 1, pre))
            side.append((gp, dm))
        free = [x for x in range(1 if gi in (1, 3, 4) else 0, n - 3) if x not in dg]
        rd = []
        for s in (groups[gi + 1] if gi < 4 else range(16, 20)): rd += trr(2, s // 16, s % 16)
        for s in hsteps[gi]: rd += hreads(s)
        side += spread(rd, free)
        for k, t in enumerate(htl[gi]):
            cv, mx, w = h_tile(7, t)
            b = 3 + 4 * k
            side += [(b, cv[0]), (b + 1, cv[1]), (b + 2, mx[0]), (b + 3, mx[1]), (n - 3 + k, w)]
        gp_ = g2_pre()
        k_ = 30 if cfg.inloop else 20
        if gi == 3: side += spread(gp_[:k_], list(range(1, n - 1)))
        if gi == 4: side += spread(gp_[k_:], list(range(1, n - 1)))
        side.append((n - 1, WAIT(f"g20_r{gi}", lg=tags(rd))))
        o += place(ms, side)
    return o
SUM, PBUF, PB2 = 216, 236, 76
V_SELA = 248
V_FLW = 254
V_FLG = 128
V_K0, V_K1 = 129, 130
YR, GR, SEL, OA, V_YA, V_YA0, V_GA = 100, 132, 110, 114, 120, 121, 122
def slot_loads(b, tag, so="s34", r="v"):
    return [VM(f"buffer_load_dwordx4 {r}[{b}:{b+3}], v{V_P16}, s[16:19], {so} offen sc1", (tag, 0)),
            VM(f"buffer_load_dwordx4 {r}[{b+4}:{b+7}], v{V_P16}, s[16:19], {so} offen offset:1024 sc1", (tag, 1)),
            VM(f"buffer_load_dwordx2 {r}[{b+8}:{b+9}], v{V_P8}, s[16:19], {so} offen offset:2048 sc1", (tag, 2))]
def slot_add(d, b, first=False, r="v"):
    o = []
    for t in range(5):
        a = V_SELA + (0 if t & 1 else 2); bb = b + 4 * (t >> 1); D = f"v[{d+4*t}:{d+4*t+3}]"
        o.append(mfma(D, f"v[{a}:{a+3}]", f"{r}[{bb}:{bb+3}]", "0" if first else D))
    return o
def slot_next():
    return [[I("s_cmp_eq_u32 s96, 0"), I(f"s_cselect_b32 s97, {72*SL}, 0"), I("s_add_u32 s95, s95, s97")],
            [I(f"s_sub_u32 s95, s95, {7*SL}"), I("s_sub_u32 s96, s96, 1")]]
def sample(tag, so=None):
    if so: return VM(f"buffer_load_dword v{V_FLG}, v{V_FL}, s[16:19], {so} offen offset:2560 sc1", tag)
    return VM(f"buffer_load_dword v{V_FLG}, v{V_POLL}, s[16:19], 0 offen sc1", tag)
def check(lab):
    return [I(f"v_cmp_eq_u32 vcc, s7, v{V_FLG}"), I("s_and_b32 s97, vcc_lo, s35"), I("s_cmp_eq_u32 s97, s35"), I(f"s_cbranch_scc0 {lab}"), I(f"{lab}_ret:")]
def spin(lab, so=None):
    return T(f"""
    {lab}:
    s_mov_b32 s98, {SPIN}
    {lab}_l:
    {sample(None, so).text}
    s_sub_u32 s98, s98, 1
    s_cmp_eq_u32 s98, 0
    s_cbranch_scc1 {lab}_ret
    s_waitcnt vmcnt(0)
    v_cmp_eq_u32 vcc, s7, v{V_FLG}
    s_and_b32 s97, vcc_lo, s35
    s_cmp_eq_u32 s97, s35
    s_cbranch_scc0 {lab}_l
    s_branch {lab}_ret
    """)
def tagcheck():
    b = PB2
    return T(f"""
    v_max3_u32 v4, v{b}, v{b+1}, v{b+2}
    v_max3_u32 v5, v{b+3}, v{b+4}, v{b+5}
    v_max3_u32 v6, v{b+6}, v{b+7}, v{b+8}
    v_max3_u32 v4, v4, v{b+9}, v5
    v_max_u32 v4, v4, v6
    v_cmp_eq_u32 vcc, -1, v4
    s_nop 4
    """)
def spin_tag():
    return T(f"L_sp3:\ns_mov_b32 s98, {SPIN}\nL_sp3_l:") + slot_loads(PB2, None, "s95") + T("""
    s_sub_u32 s98, s98, 1
    s_waitcnt vmcnt(0)
    s_cmp_eq_u32 s98, 0
    s_cbranch_scc1 L_sp3_ret
    """) + tagcheck() + T("s_cbranch_vccnz L_sp3_l\ns_branch L_sp3_ret")
EB = 216
V_POLLE = 129
EB2 = 132
def ep_block(which, p=None):
    if cfg.ep2 == 2:
        if which == 0: return [sample(("EPS", p), "s79")]
        adr = (94, 96, 34, 100, 101, 101); buf = (EB, EB + 10, EB + 20, EB2, EB2 + 10)
        o = check("L_sp1")
        for j in range(5):
            body = slot_loads(buf[j], ("SL", j), "s79") + [I(f"s_mov_b32 s79, s{adr[j+1]}")]
            head = [I(f"s_cmp_lg_u32 s63, {5-j}"), I(f"s_cbranch_scc1 L_epn{j}")] if j < 4 else []
            if p is None: o += head + body + ([I("s_branch L_ep1_ret"), I(f"L_epn{j}:")] if j < 4 else [])
            elif p == 3 + j: return o + head + body
            else: o += head
        return o
    if which == 0: return [VM(f"buffer_load_dword v{V_FLG}, v{V_POLLE}, s[16:19], 0 offen sc1", ("EPS", p))]
    o = check("L_sp1")
    e1 = []; e2 = []
    for j in range(cfg.early): e1 += slot_loads(EB + 10 * j, ("SL", j), f"s{(94, 96, 34)[j]}")
    if not cfg.ep2: return o + e1
    e1.append(I("s_movk_i32 s35, 0x18"))
    for j in (3, 4): e2 += slot_loads(EB2 + 10 * (j - 3), ("SL", j), f"s{(100, 101)[j - 3]}")
    o += [I("s_cmp_eq_u32 s63, 1"), I("s_cbranch_scc1 L_ep2")]
    if p is None: return o + e1 + [I("s_branch L_ep1_ret"), I("L_ep2:")] + e2
    return o + (e2 if p == 7 else e1)
def g2_group(p, g, ep=()):
    ms = group_mfmas(2, range(4 * g, 4 * g + 4), 15); side = []
    if g in (1, 3):
        need = cover(2, p, 8, 16) if g == 1 else cover(2, p + 1, 0, 8) + [("PST", p - 1, 2)] + (([("SMP", p)] + ([(("SL", p - 1), 2)] if p > 1 else [])) if cfg.inloop else [])
        if g == 3 and p in ep and cfg.early and not cfg.inloop: need = need + [("EPS", p)]
        side.append((0, [WAIT(f"g2_b{g}", vm=need), BAR()] + ([I(f"v_xor_b32 v{V_TR}, 0x10000, v{V_TR}")] if g == 3 else [])))
    rd = []
    for s in range(4 * g + 4, 4 * g + 8): rd += trr(2, p + s // 16, s % 16)
    side += list(zip([1, 2, 4, 5, 6, 7, 9, 10], rd))
    for k, s in enumerate(range(4 * g + 20, 4 * g + 24)):
        pre, dm = wdma(2, p + s // 16, s % 16)
        gp = [3, 8, 13, 18][k]
        if pre: side.append((gp - 2, pre[0])); side.append((gp - 1, pre[1]))
        side.append((gp, dm))
    if g == 0:
        pp = p_parts(p - 1)
        if cfg.inloop: side.append((0, sample(("SMP", p), "s34")))
        side += list(zip([4, 5, 6, 7, 9, 10, 11, 12, 14, 14], pp[0][0] + pp[1][0] + pp[2][0]))
        side += [(15, pp[0][1]), (16, pp[1][1]), (17, pp[2][1])]
    if g == 2:
        nc = nextcol(); side += [(16, nc[0]), (17, nc[1])]
        if cfg.inloop: sn = slot_next(); side += [(14, sn[0]), (15, sn[1])]
    if cfg.early and not cfg.inloop and g in (0, 3):
        w = 0 if g == 0 else 1
        side.append((0 if g == 0 else cfg.epg, [I("s_bitcmp1_b32 s99, s63"), I(f"s_cbranch_scc1 L_ep{w}")] + (ep_block(w, p) if p in ep else []) + [I(f"L_ep{w}_ret:")]))
    if g == 3 and not cfg.inloop:
        side.append((cfg.flg, VM(f"buffer_store_dword v{V_TAG}, v{V_FLW}, s[16:19], s78 offen offset:2560 sc1", ("PFL", p - 1))))
        side.append((16, I(f"s_add_u32 s78, s78, {SL}")))
        side.append((19, [I("s_sub_u32 s63, s63, 1"), I("s_cmp_lg_u32 s63, 0")]))
    if g == 3 and cfg.inloop:
        ad = slot_add(SUM, PBUF); ld = slot_loads(PBUF, ("SL", p)); ck = check("L_sp1")
        side.append((0, [ad[0], VM(f"buffer_store_dword v{V_TAG}, v{V_FLW}, s[16:19], s78 offen offset:2560 sc1", ("PFL", p - 1)),
                         ad[1], ck[0], ad[2]] + ck[1:] + [ad[3], I(f"s_add_u32 s78, s78, {SL}"), ad[4]]))
        side += list(zip([14, 15, 16], ld))
        side.append((17, [I("s_cmp_gt_u32 s63, 6"), I(f"s_cselect_b32 s34, {OOB}, s95"), I("s_cselect_b32 s35, 0, 1")]))
        side.append((18, [I("s_sub_u32 s63, s63, 1"), I("s_cmp_lg_u32 s63, 0")]))
    cyc_stamp(side, g, 1, 19, 152-1 if False else 131)
    side.append((19, WAIT(f"g2_r{g}", lg=tags(rd))))
    return place(ms, side)

def g2_pre():
    o = T(f"""
    v_sub_u32 v5, s6, v{V_L}
    v_add_u32 v6, 9, v5
    v_min_u32 v5, v5, v6
    v_lshl_add_u32 v5, v5, 3, v{V_L}
    s_mul_i32 s95, s4, {72*SL}
    s_mul_i32 s96, s3, {WSL}
    s_add_u32 s95, s95, s96
    s_add_u32 s95, s95, {WS_PART}
    v_mul_u32_u24 v5, {SL}, v5
    s_add_u32 s97, s95, 2560
    v_add_u32 v5, s97, v5
    s_lshl_b32 s97, s4, 7
    s_add_u32 s97, s97, {WS_YFLAG - 32}
    v_lshl_add_u32 v6, v{V_L}, 2, s97
    v_cmp_gt_u32 vcc, 8, v{V_L}
    s_mov_b32 s82, {(0x20 if (cfg.inloop or cfg.ep2) else (1 << cfg.ne) - (1 << cfg.early)) | (0xfffff << 8)}
    s_mul_i32 s97, s6, {8*SL}
    v_cndmask_b32 v5, v6, v5, vcc
    s_mov_b32 s83, 0
    v_mov_b32 v6, {OOB}
    s_add_u32 s95, s95, s97
    v_cndmask_b32 v{V_POLL}, v6, v5, s[82:83]
    s_mov_b32 s82, {0xff & ~((1 << cfg.ne) - 1)}
    s_add_u32 s95, s95, {14*SL if cfg.inloop else 0}
    v_cndmask_b32 v255, v6, v5, s[82:83]
    s_mov_b32 s82, {0x1f if cfg.ep2 else (1 << cfg.early) - 1}
    s_nop 0
    v_cndmask_b32 v{V_POLLE}, v6, v5, s[82:83]
    s_add_u32 s96, s6, 2
    s_mov_b32 s63, 7
    s_mov_b32 s34, {OOB}
    s_mov_b32 s35, 0
    v_lshlrev_b32 v4, 2, v{V_L}
    v_cmp_gt_u32 vcc, 32, v{V_L}
    v_lshlrev_b32 v5, 2, v{V_Q}
    v_sub_u32 v5, v{V_C}, v5
    v_cndmask_b32 v{V_FLW}, v6, v4, vcc
    v_and_b32 v4, 1, v5
    v_lshlrev_b32 v4, 4, v4
    v_mov_b32 v6, 0x3f80
    v_lshlrev_b32 v4, v4, v6
    v_lshrrev_b32 v5, 1, v5
    v_cmp_eq_u32 vcc, 0, v5
    v_mov_b32 v{V_SELA}, 0
    v_mov_b32 v{V_SELA+1}, 0
    v_cndmask_b32 v{V_SELA+2}, 0, v4, vcc
    v_cmp_eq_u32 vcc, 1, v5
    v_mov_b32 v{V_SELA+4}, 0
    v_mov_b32 v{V_SELA+5}, 0
    v_cndmask_b32 v{V_SELA+3}, 0, v4, vcc
    v_mul_u32_u24 v{V_P12}, 12, v{V_L}
    """)
    if cfg.early and not cfg.inloop:
        o += T(f"""
        v_mov_b32 v{EB+30}, 0
        v_mov_b32 v{EB+31}, 0
        s_mov_b32 s35, {(1 << cfg.early) - 1}
        s_mul_i32 s99, s4, 21846
        s_lshr_b32 s99, s99, 16
        s_mul_i32 s99, s99, 3
        s_sub_u32 s99, s4, s99
        s_min_u32 s99, s99, {cfg.epm - 1}
        s_lshl_b32 s99, 2, s99
        s_mov_b32 s94, s95
        """)
        if cfg.ep2:
            o += T("s_and_b32 s99, s4, 1\ns_lshl_b32 s99, 4, s99\ns_or_b32 s99, s99, 2")
            if cfg.ep2 == 2: o += T("s_movk_i32 s99, 0x3e\ns_mov_b32 s35, 1\ns_mov_b32 s79, s95")
            for j in (3, 4): o.append([I(f"s_cmp_lt_u32 s6, {j}"), I(f"s_cselect_b32 s{97+j}, {72*SL}, 0"), I(f"s_add_u32 s{97+j}, s{97+j}, s95"), I(f"s_sub_u32 s{97+j}, s{97+j}, {7*j*SL}")])
        o.append([I("s_cmp_lt_u32 s6, 1"), I(f"s_cselect_b32 s96, {72*SL}, 0"), I("s_add_u32 s96, s96, s95"), I(f"s_sub_u32 s96, s96, {7*SL}")])
        o.append([I("s_cmp_lt_u32 s6, 2"), I(f"s_cselect_b32 s34, {72*SL}, 0"), I("s_add_u32 s34, s34, s95"), I(f"s_sub_u32 s34, s34, {14*SL}")])
    if cfg.inloop:
        for i in range(20): o.append(I(f"v_mov_b32 v{SUM+i}, 0"))
        for i in range(12): o.append(I(f"v_mov_b32 v{PBUF+i}, 0"))
    return o

def fin_setup():
    o = T(f"""
    s_lshl_b32 s68, s6, 6
    s_lshl_b32 s69, s3, 4
    s_add_u32 s68, s68, s69
    v_add_u32 v5, s68, v{V_C}
    v_sub_u32 v6, 576, v5
    v_cmp_lt_u32 s[76:77], v6, v5
    v_min_u32 v6, v5, v6
    s_mul_i32 s69, s4, 20
    v_add_u32 v7, s69, v{V_Q}
    s_movk_i32 s70, 2560
    v_lshlrev_b32 v6, 3, v6
    v_mad_u32_u24 v{V_YA}, v7, s70, v6
    v_add_u32 v{V_YA}, {WS_YT}, v{V_YA}
    v_cmp_eq_u32 s[80:81], 0, v7
    v_add_u32 v9, {512*2560}, v{V_YA}
    s_and_b64 s[82:83], s[80:81], s[76:77]
    v_lshlrev_b32 v{V_GA}, 4, v7
    v_add_u32 v{V_GA}, {WS_GT}, v{V_GA}
    v_cndmask_b32 v{V_YA0}, v{V_YA}, v9, s[82:83]
    """)
    for rho in range(4):
        d = 0x0c0c | ((2 * rho) << 16) | ((2 * rho + 1) << 24); m = 0x0c0c | ((6 - 2 * rho) << 16) | ((7 - 2 * rho) << 24)
        o += T(f"v_mov_b32 v8, {d}\nv_mov_b32 v9, {m}\nv_cndmask_b32 v{SEL+rho}, v8, v9, s[76:77]")
    o += T(f"""
    s_lshl_b32 s68, s3, 1
    v_lshrrev_b32 v5, 1, v{V_Q}
    v_add_u32 v5, s68, v5
    v_and_b32 v6, 7, v{V_C}
    v_xor_b32 v5, v5, v6
    v_lshlrev_b32 v5, 4, v5
    v_lshl_add_u32 v5, v{V_C}, 7, v5
    v_and_b32 v6, 1, v{V_Q}
    v_lshl_add_u32 v5, v6, 3, v5
    v_add_u32 v{OA}, {OUTL}, v5
    v_lshrrev_b32 v5, 3, v{V_L}
    v_and_b32 v6, 7, v{V_L}
    v_xor_b32 v7, v5, v6
    v_lshlrev_b32 v7, 4, v7
    v_lshl_add_u32 v7, v5, 7, v7
    s_lshl_b32 s70, s3, 10
    s_add_u32 s70, s70, {OUTL}
    v_add_u32 v{OA+1}, s70, v7
    s_lshl_b32 s70, s6, 7
    v_lshl_add_u32 v6, v6, 4, s70
    v_and_b32 v5, 3, v5
    v_lshrrev_b32 v7, 5, v{V_L}
    s_add_u32 s68, s68, s69
    v_add_u32 v7, s68, v7
    s_add_u32 s69, s69, 20
    s_min_u32 s69, s69, 512
    s_movk_i32 s67, 1152
    """)
    for k in range(3):
        o += rowcalc(7, 5, OA + 2 + k, 8) + T(f"""
        v_cmp_gt_u32 vcc, s69, v7
        v_mad_u32_u24 v{OA+2+k}, v{OA+2+k}, s67, v6
        v_mov_b32 v8, {OOB}
        v_cndmask_b32 v{OA+2+k}, v8, v{OA+2+k}, vcc
        v_add_u32 v7, 8, v7
        """)
    return o

V_P12, V_FLG2 = 130, 131
def xsum(d, last):
    b = PK
    return T(f"""
    v_bitop3_b32 v{d}, v{b}, v{b+1}, v{b+2} bitop3:0x96
    v_bitop3_b32 v{d}, v{d}, v{b+3}, v{b+4} bitop3:0x96
    v_bitop3_b32 v{d}, v{d}, v{b+5}, v{b+6} bitop3:0x96
    v_bitop3_b32 v{d}, v{d}, v{b+7}, v{b+8} bitop3:0x96
    v_bitop3_b32 v{d}, v{d}, v{b+9}, v{last} bitop3:0x96
    """)
def loads7():
    l = slot_loads(PK, ("SL", 7), "s71")
    l[2].text = f"buffer_load_dwordx3 v[{PK+8}:{PK+10}], v{V_P12}, s[16:19], s71 offen offset:2048 sc1"
    return l
def chk7(): return xsum(4, PK + 10) + T("v_cmp_ne_u32 vcc, s7, v4\ns_nop 4")
def spin7():
    return T(f"L_sp4:\ns_mov_b32 s98, {SPIN}\nL_sp4_l:") + loads7() + T("""
    s_sub_u32 s98, s98, 1
    s_waitcnt vmcnt(0)
    s_cmp_eq_u32 s98, 0
    s_cbranch_scc1 L_sp4_ret
    """) + chk7() + T("s_cbranch_vccnz L_sp4_l\ns_branch L_sp4_ret")
def g2_last2(fs, ad):
    o = []; p = 8; E = 5 if cfg.ep2 else cfg.early; F7 = cfg.chk7 == 2
    yg = []
    for t in range(5):
        yg.append([I(f"s_or_b32 s61, s75, {t*4*2560}" if t >= 3 else f"s_mov_b32 s61, {t*4*2560}"), VM(f"buffer_load_dwordx2 v[{YR+2*t}:{YR+2*t+1}], v{V_YA0 if t == 0 else V_YA}, s[16:19], s61 offen sc1", ("YL", t))])
        yg.append(VM(f"buffer_load_dwordx4 v[{GR+4*t}:{GR+4*t+3}], v{V_GA}, s[16:19], {'s75' if t >= 3 else '0'} offen offset:{64*t} sc1", ("GL", t)))
    ld = []
    for j in range(E, 6): ld += slot_loads(12 * j, ("SL", j), f"s{64+j}", "a")
    ld += yg
    for g in range(4):
        ms = group_mfmas(2, range(4 * g, 4 * g + 4), 15); side = []
        rd = []
        if g < 3:
            for s in range(4 * g + 4, 4 * g + 8): rd += trr(2, p, s)
            side += list(zip([1, 2, 4, 5, 6, 7, 9, 10] if g else [10, 11, 12, 13, 14, 15, 16, 17], rd))
        if g == 0:
            pp = p_parts(7); xs = xsum(PK + 10, V_TAG)
            if F7: xs = [I("s_nop 0")] * 4
            else: pp[2][1].text = f"buffer_store_dwordx3 v[{PK+8}:{PK+10}], v{V_P12}, s[16:19], s78 offen offset:2048 sc1"
            side.append((0, sample("S0")))
            side += list(zip([1, 1, 2, 2, 4, 4, 5, 5, 7, 7], pp[0][0] + pp[1][0] + pp[2][0]))
            side += [(3, [pp[0][1], xs[0]]), (6, [pp[1][1], xs[1]]), (7, xs[2]), (8, xs[3:]), (9, pp[2][1])]
            side += spread(ad, list(range(10, 19)))
            side.append((19, I(f"s_mov_b32 s35, {((1 << 6) - (1 << E)) | (0xfffff << 8)}")))
        if g == 1:
            side.append((0, [WAIT("g2z_b1", vm=cover(2, p, 8, 16)), BAR()]))
            side += spread(fs[:24], list(range(1, 12)))
            side.append((12, [WAIT("g2z_s0", vm=["S0"])] + check("L_sp2") + [I("s_mov_b32 s35, 1"), sample("S1", "s70")]))
            if cfg.ep2:
                ld = ld[:3] + yg[0::2] + yg[1::2]
                side.append((14, slot_add(16, EB2) + slot_add(16, EB2 + 10)))
            side += list(zip(range(13, 20), ld[:7]))
        if g == 2:
            if F7: side.append((0, [WAIT("g2z_st", vm=[("PST", 7, 2)]), VM(f"buffer_store_dword v{V_TAG}, v{V_FLW}, s[16:19], s78 offen offset:2560 sc1", ("PFL", 7))]))
            side += spread(ld[7:], list(range(0, 6 if cfg.ep2 else 16)))
            side += spread(fs[24:45], list(range(0, 20)))
        if g == 3:
            side += spread(fs[45:], [x for x in range(0, 20) if x < cfg.s6g - 1 or x > cfg.s6g])
            ck = [I(x.text.replace("vcc_lo", "s80").replace("vcc", "s[80:81]")) for x in check("L_sp3")]
            side.append((cfg.s6g, [WAIT("g2z_s1", vm=["S1"])] + ck + slot_loads(72, ("SL", 6), "s70", "a") + ([] if F7 else loads7())))
            if F7: side.append((19, sample("S2", "s71")))
        if g < 3: side.append((19, WAIT(f"g2z_r{g}", lg=tags(rd))))
        o += place(ms, side)
    o += TS(7)
    for j in range(cfg.early): o += slot_add(E0, EB + 10 * j)
    for j in range(E, 6):
        o.append(WAIT(f"fin_a{j}", vm=[(("SL", j), 2)])); o += slot_add(E0, 12 * j, r="a")
    o.append(WAIT("fin_gl", vm=[("GL", 4)]))
    for t in range(5):
        for rho in range(4): o.append(I(f"v_perm_b32 v{56+4*t+rho}, v{YR+2*t+1}, v{YR+2*t}, v{SEL+rho}"))
    if F7:
        o.append(WAIT("fin_s2", vm=["S2"])); o += check("L_sp4") + slot_loads(84, ("SL", 7), "s71", "a")
    for i in range(20): o.append(I(f"v_mul_f32 v{56+i}, v{56+i}, v{GR+i}"))
    for i in range(20): o.append(I(f"v_sub_f32 v{GR+i}, 1.0, v{GR+i}"))
    o.append(WAIT("fin_6", vm=[(("SL", 6), 2)])); o += slot_add(E0, 72, r="a")
    o.append(WAIT("fin_7", vm=[(("SL", 7), 2)]))
    if F7: return o + slot_add(E0, 84, r="a") + [I("s_nop 3")] + fin_out()
    o += chk7() + T(f"s_cbranch_vccnz L_sp4\nL_sp4_ret:\nv_mov_b32 v{PK+10}, 0\nv_mov_b32 v{PK+11}, 0")
    o += slot_add(E0, PK)
    o.append(I("s_nop 3"))
    return o + fin_out()
def g2_last0():
    o = []; p = 8
    fs = fin_setup()
    ad = []
    for j in range(8):
        ad.append([I(f"s_cmp_lt_u32 s6, {j}"), I(f"s_cselect_b32 s{64+j}, {72*SL}, 0"), I(f"s_add_u32 s{64+j}, s{64+j}, s95"), I(f"s_sub_u32 s95, s95, {7*SL}")])
    fs = [I(x.text.replace("s67", "s96").replace("s68", "s62").replace("s69", "s94").replace("s70", "s34")) for x in fs]
    if cfg.chk7: return g2_last2(fs, ad)
    NE = cfg.ne; E = cfg.early
    yg = []
    for t in range(5):
        yg.append([I(f"s_or_b32 s61, s75, {t*4*2560}" if t >= 3 else f"s_mov_b32 s61, {t*4*2560}"), VM(f"buffer_load_dwordx2 v[{YR+2*t}:{YR+2*t+1}], v{V_YA0 if t == 0 else V_YA}, s[16:19], s61 offen sc1", ("YL", t))])
        yg.append(VM(f"buffer_load_dwordx4 v[{GR+4*t}:{GR+4*t+3}], v{V_GA}, s[16:19], {'s75' if t >= 3 else '0'} offen offset:{64*t} sc1", ("GL", t)))
    ld = []
    for j in range(E, NE): ld += slot_loads(12 * j, ("SL", j), f"s{64+j}", "a")
    ld += yg
    for g in range(4):
        ms = group_mfmas(2, range(4 * g, 4 * g + 4), 15); side = []
        rd = []
        if g < 3:
            for s in range(4 * g + 4, 4 * g + 8): rd += trr(2, p, s)
            side += list(zip([1, 2, 4, 5, 6, 7, 9, 10] if g else [9, 10, 11, 12, 13, 14, 15, 16], rd))
        if g == 0:
            pp = p_parts(7)
            side.append((0, sample("S0")))
            side += list(zip([1, 1, 2, 2, 4, 4, 5, 5, 7, 7], pp[0][0] + pp[1][0] + pp[2][0]))
            side += [(3, pp[0][1]), (6, pp[1][1]), (8, pp[2][1])]
            side += spread(ad, list(range(9, 19)))
            side.append((19, I(f"s_mov_b32 s35, {((1 << NE) - (1 << E)) | (0xfffff << 8)}")))
        if g == 1:
            side.append((0, [WAIT("g2z_b1", vm=cover(2, p, 8, 16)), BAR()]))
            side += spread(fs[:24], list(range(1, 12)))
            side.append((12, [WAIT("g2z_s0", vm=["S0"])] + check("L_sp2")))
            side += list(zip(range(13, 20), ld[:7]))
        if g == 2:
            side.append((cfg.stg, [WAIT("g2z_st", vm=[("PST", 7, 2)]), VM(f"buffer_store_dword v{V_TAG}, v{V_FLW}, s[16:19], s78 offen offset:2560 sc1", ("PFL", 7))]))
            side += spread(ld[7:], list(range(cfg.stg + 1, 20)))
            side += spread(fs[24:45], list(range(0, 20)))
        if g == 3:
            side += spread(fs[45:], list(range(0, 19)))
            side.append((19, [I(f"s_mov_b32 s35, {0xff & ~((1 << NE) - 1)}"), I(f"v_mov_b32 v{V_POLL}, v255"), sample("S1")]))
        if g < 3: side.append((19, WAIT(f"g2z_r{g}", lg=tags(rd))))
        o += place(ms, side)
    o += TS(7)
    for j in range(E): o += slot_add(E0, EB + 10 * j)
    for j in range(E, NE):
        o.append(WAIT(f"fin_a{j}", vm=[(("SL", j), 2)])); o += slot_add(E0, 12 * j, r="a")
    o.append(WAIT("fin_s1", vm=["S1"])); o += check("L_sp3")
    for j in range(7, NE - 1, -1): o += slot_loads(12 * j, ("SL", j), f"s{64+j}", "a")
    for t in range(5):
        for rho in range(4): o.append(I(f"v_perm_b32 v{56+4*t+rho}, v{YR+2*t+1}, v{YR+2*t}, v{SEL+rho}"))
    for i in range(20): o.append(I(f"v_mul_f32 v{56+i}, v{56+i}, v{GR+i}"))
    for i in range(20): o.append(I(f"v_sub_f32 v{GR+i}, 1.0, v{GR+i}"))
    for j in range(7, NE - 1, -1):
        o.append(WAIT(f"fin_{j}", vm=[(("SL", j), 2)])); o += slot_add(E0, 12 * j, r="a")
    o.append(I("s_nop 3"))
    return o + fin_out()

def g2_last():
    if not cfg.inloop: return g2_last0()
    o = []; p = 8
    fs = fin_setup()
    yg = []
    for t in range(5):
        yg.append([I(f"s_or_b32 s61, s75, {t*4*2560}" if t >= 3 else f"s_mov_b32 s61, {t*4*2560}"), VM(f"buffer_load_dwordx2 v[{YR+2*t}:{YR+2*t+1}], v{V_YA0 if t == 0 else V_YA}, s[16:19], s61 offen sc1", ("YL", t))])
        yg.append(VM(f"buffer_load_dwordx4 v[{GR+4*t}:{GR+4*t+3}], v{V_GA}, s[16:19], {'s75' if t >= 3 else '0'} offen offset:{64*t} sc1", ("GL", t)))
    for g in range(4):
        ms = group_mfmas(2, range(4 * g, 4 * g + 4), 15); side = []
        if g == 0:
            for t, m in enumerate([m for m in ms if m.text.endswith(", 0")]): m.text = m.text[:-1] + f"v[{SUM+4*t}:{SUM+4*t+3}]"
        rd = []
        if g < 3:
            for s in range(4 * g + 4, 4 * g + 8): rd += trr(2, p, s)
            side += list(zip([1, 2, 4, 5, 6, 7, 9, 10] if g else [9, 10, 11, 12, 13, 14, 15, 16], rd))
        if g == 0:
            pp = p_parts(7)
            side.append((0, sample("S0")))
            side += list(zip([1, 1, 2, 2, 4, 4, 5, 5, 7, 7], pp[0][0] + pp[1][0] + pp[2][0]))
            side += [(3, pp[0][1]), (6, pp[1][1]), (8, pp[2][1])]
            side += spread(fs[:19], list(range(9, 19)))
            side.append((19, I(f"s_mov_b32 s35, {(1 << 5) | (0xfffff << 8)}")))
        if g == 1:
            side.append((0, [WAIT("g2z_b1", vm=cover(2, p, 8, 16)), BAR()]))
            side += spread(fs[19:40], list(range(1, 11)))
            side.append((11, [I(f"v_mov_b32 v{PK+10}, 0"), I(f"v_mov_b32 v{PK+11}, 0")]))
            side.append((12, [WAIT("g2z_s0", vm=["S0"])] + check("L_sp2")))
            side += list(zip([13, 14, 15], slot_loads(PK, "SL5", "s95"))) + list(zip([16, 17, 18, 19], yg[:4]))
        if g == 2:
            side += list(zip([0, 1, 2, 3, 4, 5], yg[4:]))
            side.append((cfg.stg, [WAIT("g2z_st", vm=[("PST", 7, 2)]), VM(f"buffer_store_dword v{V_TAG}, v{V_FLW}, s[16:19], s78 offen offset:2560 sc1", ("PFL", 7))]))
            side.append((11, slot_add(SUM, PBUF, True)))
            sn = slot_next(); side += [(12, sn[0]), (13, sn[1]), (14, I("s_mov_b32 s34, s95"))]
            sn = slot_next(); side += [(15, sn[0]), (16, sn[1]), (17, [I("s_movk_i32 s35, 0xc0"), I(f"v_mov_b32 v{V_POLL}, v255")])]
        if g == 3:
            side += spread(fs[40:], list(range(0, 20)))
            side.append((19, sample("S1")))
        if g < 3: side.append((19, WAIT(f"g2z_r{g}", lg=tags(rd))))
        o += place(ms, side)
    o += TS(7)
    o += T(f"v_mov_b32 v{PB2+10}, 0\nv_mov_b32 v{PB2+11}, 0")
    o.append(WAIT("fin_gl", vm=[("GL", 4)]))
    o += slot_add(SUM, PK)
    for t in range(5):
        for rho in range(4): o.append(I(f"v_perm_b32 v{56+4*t+rho}, v{YR+2*t+1}, v{YR+2*t}, v{SEL+rho}"))
    o.append(WAIT("fin_s1", vm=["S1"])); o += check("L_sp3")
    o += slot_loads(PB2, "SL7", "s95") + slot_loads(PBUF, "SL6", "s34")
    for i in range(20): o.append(I(f"v_add_f32 v{E0+i}, v{E0+i}, v{SUM+i}"))
    for i in range(20): o.append(I(f"v_mul_f32 v{56+i}, v{56+i}, v{GR+i}"))
    for i in range(20): o.append(I(f"v_sub_f32 v{GR+i}, 1.0, v{GR+i}"))
    o.append(WAIT("fin_7", vm=[("SL7", 2)])); o += slot_add(E0, PB2)
    o.append(WAIT("fin_6", vm=[("SL6", 2)])); o += slot_add(E0, PBUF)
    o.append(I("s_nop 3"))
    return o + fin_out()
def fin_out():
    OF = ('', ' sc1', ' nt', ' sc0 sc1')[cfg.osc]
    o = []
    for t in range(5):
        for rho in range(4): o.append(I(f"v_fmac_f32 v{56+4*t+rho}, v{E0+4*t+rho}, v{GR+4*t+rho}"))
        o += T(f"v_cvt_pk_bf16_f32 v{PK+2*t}, v{56+4*t}, v{56+4*t+1}\nv_cvt_pk_bf16_f32 v{PK+2*t+1}, v{56+4*t+2}, v{56+4*t+3}")
    o += T(f"v_mov_b32 v{PK+10}, 0\nv_mov_b32 v{PK+11}, 0")
    for t in range(5):
        a = V_SELA + (0 if t & 1 else 2); bb = PK + 4 * (t >> 1)
        o.append(mfma(ACC(t), f"v[{bb}:{bb+3}]", f"v[{a}:{a+3}]", "0"))
    o.append(I("s_nop 3"))
    for t in range(5):
        r = 16 + 4 * t
        o += T(f"v_cvt_pk_bf16_f32 v{56+2*t}, v{r}, v{r+1}\nv_cvt_pk_bf16_f32 v{57+2*t}, v{r+2}, v{r+3}")
        o.append(LG(f"ds_write_b64 v{OA}, v[{56+2*t}:{57+2*t}] offset:{2048*t}", ("OW", t), wr=(OUTL, OUTL + 10240)))
    o += [WAIT("out_w", lg="all"), BAR()]
    for k in range(3): o.append(LG(f"ds_read_b128 v[{68+4*k}:{71+4*k}], v{OA+1} offset:{4096*k}", ("OR", k), rd=(OUTL, OUTL + 10240)))
    for k in range(3):
        o += [WAIT(f"out_r{k}", lg=[("OR", k)]), I(f"buffer_store_dwordx4 v[{68+4*k}:{71+4*k}], v{OA+2+k}, s[24:27], 0 offen{OF}")]
    o += T(f"""
    s_or_b32 s68, s2, s3
    s_cmp_eq_u32 s68, 0
    s_cbranch_scc0 L_noepoch
    buffer_store_dword v{V_TAG}, v{V_FL}, s[16:19], 0 offen sc1
    L_noepoch:
    """)
    return o

def T(s): return [I(x.strip()) for x in s.strip().split("\n") if x.strip()]
def rowcalc(o, rho, d, tmp):
    return T(f"""
    v_cmp_eq_u32 vcc, 0, v{o}
    v_mov_b32 v{tmp}, 512
    v_add_u32 v{tmp+1}, 1, v{rho}
    v_cndmask_b32 v{tmp}, v{o}, v{tmp}, vcc
    v_cmp_lt_u32 vcc, 1, v{rho}
    v_sub_u32 v{tmp}, 0, v{tmp}
    v_lshrrev_b32 v{tmp+1}, 1, v{tmp+1}
    v_cndmask_b32 v{tmp}, v{o}, v{tmp}, vcc
    v_lshl_add_u32 v{d}, v{tmp+1}, 10, v{tmp}
    """)

def srd(b, p, n): return T(f"s_mov_b32 s{b}, s{p}\ns_mov_b32 s{b+1}, s{p+1}\ns_mov_b32 s{b+2}, {n}\ns_mov_b32 s{b+3}, 0x20000")

def prologue():
    o = T(f"""
    s_cmp_ge_u32 s2, 256
    s_cbranch_scc1 L_end
    s_load_dwordx16 s[36:51], s[0:1], 0
    s_load_dwordx8 s[52:59], s[0:1], 64
    """) + TS(0) + T(f"""
    v_lshrrev_b32 v4, 6, v0
    v_and_b32 v{V_L}, 63, v0
    v_readfirstlane_b32 s3, v4
    v_and_b32 v{V_C}, 15, v0
    v_bfe_u32 v{V_Q}, v0, 4, 2
    s_and_b32 s60, s2, 3
    s_bfe_u32 s61, s2, 0x10002
    s_lshr_b32 s62, s2, 3
    {"s_and_b32 s63, s2, 7" if cfg.bal else "s_nop 0"}
    {"s_cmp_ge_u32 s63, 6" if cfg.bal else "s_cmp_eq_u32 s60, 3"}
    s_cselect_b32 s63, 30, 29
    s_cmp_ge_u32 s62, s63
    s_cbranch_scc1 L_spare
    """)
    if cfg.map == 0:
        o += T("""
    s_mul_i32 s64, s60, 29
    s_add_u32 s64, s64, s62
    s_mul_i32 s5, s64, 5042
    s_lshr_b32 s5, s5, 16
    s_mul_i32 s65, s5, 13
    s_sub_u32 s64, s64, s65
    s_mul_i32 s4, s61, 13
    s_add_u32 s4, s4, s64
    """)
    elif cfg.map == 1:
        o += T("""
    s_mul_i32 s64, s61, 13
    s_mul_i32 s65, s60, 3
    s_add_u32 s64, s64, s65
    s_add_u32 s64, s64, s62
    s_sub_u32 s64, s64, 26
    s_and_b32 s65, s2, 7
    s_cmp_lt_u32 s62, 26
    s_cselect_b32 s4, s62, s64
    s_cselect_b32 s5, s65, 8
    """)
    else:
        o += T("""
    s_mul_i32 s65, s60, 3
    s_add_u32 s64, s65, s62
    s_sub_u32 s64, s64, 26
    s_lshl_b32 s5, s60, 1
    s_cmp_ge_u32 s62, 13
    s_cselect_b32 s65, 13, 0
    s_cselect_b32 s66, 1, 0
    s_add_u32 s5, s5, s66
    s_sub_u32 s4, s62, s65
    s_cmp_lt_u32 s62, 26
    s_cselect_b32 s4, s4, s64
    s_cselect_b32 s5, s5, 8
    s_mul_i32 s65, s61, 13
    s_add_u32 s4, s4, s65
    """)
        if cfg.bal: o += T("s_cmp_eq_u32 s2, 238\ns_cselect_b32 s4, 12, s4")
    o += T(f"""
    v_lshrrev_b32 v4, 3, v{V_L}
    v_bfe_u32 v5, v{V_L}, 4, 1
    v_lshrrev_b32 v6, 5, v{V_L}
    s_mul_i32 s65, s4, 20
    v_mul_u32_u24 v9, 511, v5
    v_add3_u32 v6, v6, v9, s65
    s_and_b32 s66, s3, 1
    s_lshl_b32 s66, s66, 2
    v_add_u32 v7, s66, v{V_Q}
    v_and_b32 v8, 7, v{V_L}
    v_xor_b32 v7, v7, v8
    v_lshlrev_b32 v7, 4, v7
    s_movk_i32 s67, 1152
    v_and_b32 v9, 3, v4
    v_add_u32 v9, 1, v9
    v_lshrrev_b32 v9, 1, v9
    v_lshlrev_b32 v9, 10, v9
    v_sub_u32 v9, v9, v5
    v_mad_u32_u24 v7, v9, s67, v7
    v_mul_u32_u24 v5, 2304, v5
    v_sub_u32 v5, 1152, v5
    s_bitcmp1_b32 s5, {0 if cfg.rev else 31}
    s_cselect_b32 s92, -1, 1
    s_cselect_b32 s79, 1024, 0
    s_cselect_b32 s34, {8*64*9216}, 0
    s_lshl_b32 s92, s92, 7
    s_lshl_b32 s93, s92, 1
    s_lshl_b32 s82, s3, 10
    s_add_u32 s82, s82, {XB}
    s_lshl_b32 s68, s3, 1
    """)
    for n in range(5):
        if n < 2: o += T(f"s_mov_b32 s{XH+n}, 0\ns_add_u32 s69, s68, {8*n}")
        elif n > 2: o += T(f"s_mov_b32 s{XH+n}, s92\ns_add_u32 s69, s68, {8*n-20}")
        else: o += T(f"s_cmp_ge_u32 s3, 2\ns_cselect_b32 s{XH+n}, s92, 0\ns_cselect_b32 s69, -4, 16\ns_add_u32 s69, s69, s68")
        o += T(f"""
        v_add_u32 v9, s69, v6
        v_and_b32 v9, 511, v9
        v_mad_i32_i24 v{V_XO+n}, v9, v5, v7
        """)
        if cfg.bal: o += T(f"s_add_u32 s69, s69, s65\ns_cmp_ge_u32 s69, 512\ns_cselect_b32 s69, {OOB}, 0\ns_add_u32 s{XH+n}, s{XH+n}, s69")
    o += T("s_waitcnt lgkmcnt(0)") + srd(12, 36, 2359296)
    return o
def setup1():
    return T(f"""
    s_load_dword s7, s[58:59], 0
    s_cmp_lt_u32 s3, 2
    s_cselect_b32 s20, s42, s44
    s_cselect_b32 s21, s43, s45
    s_mov_b32 s22, 663552
    s_mov_b32 s23, 0x20000
    s_and_b32 s68, s3, 1
    s_lshl_b32 s64, s62, 1
    s_add_u32 s64, s64, s68
    s_mul_i32 s64, s64, 15
    v_add_u32 v9, s64, v{V_L}
    s_mul_i32 s64, s60, {64*1152}
    v_lshlrev_b32 v5, 7, v9
    v_add_u32 v6, s64, v5
    v_add_u32 v5, {256*1152 - 576*128}, v5
    v_cmp_gt_u32 vcc, 576, v9
    v_mov_b32 v7, {OOB}
    s_mov_b32 s100, s60
    v_cndmask_b32 v5, v5, v6, vcc
    v_cmp_gt_u32 vcc, 15, v{V_L}
    s_mov_b32 s99, s62
    s_sub_u32 s83, s79, s92
    v_cndmask_b32 v{V_PFD}, v7, v5, vcc
    """)
def setup1b():
    return T(f"""
    s_mul_i32 s35, s92, {64*72}
    s_lshl_b32 s68, s5, 5
    s_lshl_b32 s69, s66, 2
    s_add_u32 s68, s68, s69
    v_add_u32 v9, s68, v4
    v_xor_b32 v7, v{V_Q}, v8
    v_lshlrev_b32 v7, 4, v7
    v_mad_u32_u24 v{V_ABA}, v9, s67, v7
    v_xor_b32 v7, 64, v7
    v_mad_u32_u24 v{V_ABB}, v9, s67, v7
    v_add_u32 v{V_ABB}, {8*1152-1024}, v{V_ABB}
    s_lshl_b32 s60, s3, 11
    """)

def setup2():
    o = srd(8, 48, 5308416) + (lambda x: x if cfg.pf1 & 2 else [])(T(f"""
    s_lshl_b32 s68, s99, 2
    s_add_u32 s68, s68, s3
    s_mul_i32 s68, s68, 5
    v_mul_u32_u24 v5, 43, v{V_L}
    v_lshrrev_b32 v5, 8, v5
    v_mul_u32_u24 v6, 6, v5
    v_sub_u32 v6, v{V_L}, v6
    v_add_u32 v5, s68, v5
    v_lshrrev_b32 v7, 1, v6
    v_and_b32 v6, 1, v6
    s_lshl_b32 s68, s100, 1
    v_cmp_eq_u32 vcc, 2, v7
    v_add_u32 v7, s68, v7
    v_mul_u32_u24 v5, 9216, v5
    v_cndmask_b32 v7, v7, 8, vcc
    v_lshl_add_u32 v5, v6, 7, v5
    v_cmp_gt_u32 vcc, 30, v{V_L}
    v_lshl_add_u32 v5, v7, 10, v5
    v_mov_b32 v6, {OOB}
    v_cndmask_b32 v{V_PF1}, v6, v5, vcc
    """)) + srd(16, 58, WS_SIZE)
    o += T(f"""
    v_lshrrev_b32 v4, 3, v{V_L}
    s_lshl_b32 s68, s3, 4
    v_add_u32 v4, s68, v4
    v_and_b32 v5, 1, v{V_Q}
    v_lshlrev_b32 v5, 1, v5
    v_and_b32 v8, 7, v{V_L}
    v_xor_b32 v5, v5, v8
    v_lshlrev_b32 v5, 4, v5
    v_xor_b32 v6, 64, v5
    s_movk_i32 s68, 9216
    v_mad_u32_u24 v{V_A}, v4, s68, v5
    v_mad_u32_u24 v{V_B}, v4, s68, v6
    v_add_u32 v{V_B}, {8*9216-1024}, v{V_B}
    v_mad_u32_u24 v{V_W2A}, v4, s67, v5
    v_mad_u32_u24 v{V_W2B}, v4, s67, v6
    v_bfe_u32 v4, v{V_L}, 2, 2
    v_and_b32 v5, 3, v{V_L}
    v_and_b32 v6, 1, v{V_Q}
    v_lshlrev_b32 v6, 1, v6
    v_lshrrev_b32 v7, 1, v4
    v_add_u32 v6, v6, v7
    v_xor_b32 v6, s3, v6
    v_lshlrev_b32 v6, 5, v6
    v_lshl_add_u32 v6, v{V_Q}, 10, v6
    v_lshl_add_u32 v6, v4, 7, v6
    v_lshl_add_u32 v{V_TR}, v5, 3, v6
    v_add_u32 v{V_TR2}, 0x10000, v{V_TR}
    v_lshrrev_b32 v4, 1, v{V_C}
    v_xor_b32 v4, v4, v{V_Q}
    v_lshlrev_b32 v4, 4, v4
    v_lshl_add_u32 v4, v{V_C}, 7, v4
    v_add_u32 v{V_XR0}, {XB}, v4
    v_xor_b32 v{V_XR1}, 64, v{V_XR0}
    v_add_u32 v{V_WR0}, s60, v4
    v_xor_b32 v{V_WR1}, 64, v{V_WR0}
    v_mov_b32 v{V_PATCH}, 0xbf803f80
    s_lshl_b32 s68, s5, 2
    s_or_b32 s68, s68, s3
    s_cmp_eq_u32 s68, 2
    s_cselect_b32 s76, 0x00010001, 0
    s_mov_b32 s77, s76
    s_cselect_b32 s69, 1, 0
    s_lshr_b32 s70, s3, 1
    """)
    o += T(f"""
    s_cmp_eq_u32 s70, 0
    s_cselect_b32 s71, 1.0, -1.0
    v_mov_b32 v{V_SIG}, s71
    s_cmp_eq_u32 s69, 1
    s_cselect_b32 s72, 16, 0
    v_cmp_gt_u32 vcc, s72, v{V_L}
    v_mov_b32 v4, 1.0
    v_and_b32 v5, 1, v{V_L}
    v_cndmask_b32 v{V_SIG0}, v{V_SIG}, v4, vcc
    s_cmp_eq_u32 s4, 0
    s_cselect_b32 s72, 4, 0
    v_cmp_gt_u32 vcc, s72, v{V_C}
    s_cselect_b32 s80, 8, 0
    v_lshlrev_b32 v5, 31, v5
    v_cndmask_b32 v{V_SIGT0}, v{V_SIG}, 0, vcc
    v_cndmask_b32 v{V_SIG0T0}, v{V_SIG0}, 0, vcc
    v_or_b32 v{V_TAU}, v4, v5
    s_cmp_eq_u32 s69, 1
    s_cselect_b32 s80, s80, 0
    s_mov_b32 s81, 0
    """)
    o += T(f"""
    v_lshrrev_b32 v4, 2, v{V_C}
    v_and_b32 v5, 3, v{V_C}
    s_mul_i32 s68, s3, 1792
    s_add_u32 s68, s68, {ABL}
    v_and_b32 v6, 1, v4
    v_mul_u32_u24 v6, 320, v6
    v_lshrrev_b32 v7, 1, v4
    v_lshl_add_u32 v6, v7, 5, v6
    v_lshl_add_u32 v9, v{V_Q}, 3, s68
    v_add_u32 v6, v6, v9
    v_add_u32 v7, 640, v6
    v_add_u32 v8, 1344, v9
    v_cmp_eq_u32 vcc, 1, v5
    v_add_u32 v9, 1280, v9
    s_lshl_b32 s71, s70, 1
    v_cndmask_b32 v{V_ABS}, v8, v7, vcc
    v_cmp_eq_u32 vcc, 0, v5
    s_add_u32 s71, s71, 1
    s_nop 0
    v_cndmask_b32 v{V_ABS}, v{V_ABS}, v6, vcc
    v_cndmask_b32 v8, v8, v6, vcc
    v_cmp_eq_u32 vcc, s71, v5
    s_nop 1
    v_cndmask_b32 v8, v8, v7, vcc
    v_cmp_eq_u32 vcc, 2, v5
    s_nop 1
    v_cndmask_b32 v8, v8, v9, vcc
    v_cmp_gt_u32 vcc, s72, v{V_C}
    s_cmp_eq_u32 s4, 25
    s_cselect_b32 s75, {OOB}, 0
    v_cndmask_b32 v{V_ABS0}, v{V_ABS}, v8, vcc
    s_mul_i32 s68, s5, 26
    s_add_u32 s68, s68, s4
    s_lshl_b32 s68, s68, 7
    s_add_u32 s68, s68, {WS_ABFLAG}
    v_cmp_gt_u32 vcc, 32, v0
    v_mov_b32 v8, {OOB}
    v_lshl_add_u32 v9, v0, 2, s68
    v_cndmask_b32 v{V_ABFL}, v8, v9, vcc
    v_cmp_eq_u32 vcc, 0, v{V_L}
    v_lshrrev_b32 v4, 3, v{V_L}
    v_mul_u32_u24 v4, {SL}, v4
    v_and_b32 v5, 7, v{V_L}
    v_lshl_add_u32 v{ABP+14}, v5, 4, v4
    v_cndmask_b32 v{V_FL}, v8, 0, vcc
    """)
    o += T(f"""
    s_mul_i32 s73, s4, {cfg.rot1}
    s_and_b32 s73, s73, 7
    s_mov_b32 s101, s73
    s_lshl_b32 s73, s73, 7
    s_lshl_b32 s74, s5, 10
    s_add_u32 s74, s74, s34
    s_add_u32 s62, s73, s74
    s_mul_i32 s6, s4, {cfg.rot2}
    s_add_u32 s6, s6, s5
    s_mul_i32 s72, s6, 7282
    s_lshr_b32 s72, s72, 16
    s_mul_i32 s72, s72, 9
    s_sub_u32 s6, s6, s72
    s_add_u32 s72, s6, 1
    s_cmp_eq_u32 s72, 9
    s_cselect_b32 s72, 0, s72
    s_mul_i32 s63, s4, 9
    s_add_u32 s63, s63, s72
    s_lshl_b32 s72, s72, 7
    s_mul_i32 s78, s63, {8*SL}
    s_mul_i32 s63, s3, {WSL}
    s_add_u32 s78, s78, s63
    s_add_u32 s78, s78, {WS_PART}
    s_mov_b32 s63, 6
    s_waitcnt lgkmcnt(0)
    s_add_u32 s7, s7, 0x9e3779b9
    v_mov_b32 v{V_TAG}, s7
    v_not_b32 v{ABP+10}, s7
    v_not_b32 v{ABP+11}, s7
    v_not_b32 v{ABP+12}, s7
    v_not_b32 v{ABP+13}, s7
    """)
    return o

def setup3():
    o = srd(24, 54, 2359296) + srd(28, 50, 5308416) + T(f"""
    v_add_u32 v{V_W2B}, {8*1152-1024}, v{V_W2B}
    s_and_b32 s68, s3, 1
    s_lshl_b32 s68, s68, 9
    s_lshr_b32 s70, s3, 1
    s_mul_i32 s71, s70, 5120
    s_add_u32 s68, s68, s71
    s_add_u32 s68, s68, {HB}
    v_lshrrev_b32 v4, 1, v{V_Q}
    v_lshl_add_u32 v4, v4, 4, v{V_C}
    v_lshlrev_b32 v4, 4, v4
    v_and_b32 v5, 1, v{V_Q}
    v_lshl_add_u32 v4, v5, 3, v4
    v_add_u32 v{V_HW}, s68, v4
    v_lshlrev_b32 v{V_P16}, 4, v{V_L}
    v_lshlrev_b32 v{V_P8}, 3, v{V_L}
    v_add_u32 v{V_HR}, {HB}, v{V_P16}
    v_add_u32 v{V_HR2}, {HB+40960}, v{V_P16}
    """)
    o += T("s_lshl_b32 s99, s5, 3")
    for i in range(8):
        o += T(f"""
        s_add_u32 s{64+i}, s101, {i}
        s_and_b32 s{64+i}, s{64+i}, 7
        s_add_u32 s{64+i}, s{64+i}, s99
        s_mul_i32 s{64+i}, s{64+i}, {64*1152}
        """)
    return o

def poll(lab, vaddr, nl):
    return T(f"""
    s_mov_b32 s63, {SPIN}
    v_cmp_le_u32 s[80:81], {nl}, v{V_L}
    {lab}:
    s_sleep {cfg.slp}
    buffer_load_dword v4, v{vaddr}, s[16:19], 0 offen sc1
    s_sub_u32 s63, s63, 1
    s_waitcnt vmcnt(0)
    v_cmp_eq_u32 vcc, s7, v4
    s_cmp_eq_u32 s63, 0
    s_cbranch_scc1 {lab}_out
    s_or_b64 vcc, vcc, s[80:81]
    s_cmp_eq_u64 vcc, -1
    s_cbranch_scc0 {lab}
    {lab}_out:
    """)

def ts_dump(fn=0):
    if not cfg.ts: return []
    if cfg.ts >= 100:
        if fn != (cfg.ts >= 200): return []
        return T("s_waitcnt vmcnt(0)") + TS(8) + T(f"""
        L_hold{fn}:
        s_memrealtime s[100:101]
        s_waitcnt lgkmcnt(0)
        s_sub_u32 s100, s100, s{tsr(cfg.ts % 100)}
        s_cmp_lt_u32 s100, 3000
        s_cbranch_scc1 L_hold{fn}
        """)
    if cfg.ts >= 10:
        return T(f"""
        L_hold{fn}:
        s_memrealtime s[100:101]
        s_waitcnt lgkmcnt(0)
        s_sub_u32 s100, s100, s84
        s_cmp_lt_u32 s100, {cfg.ts*100}
        s_cbranch_scc1 L_hold{fn}
        """)
    o = T("s_waitcnt vmcnt(0)") + TS(8) + T("s_waitcnt lgkmcnt(0)")
    for k in range(9): o.append(I(f"v_mov_b32 v{16+k}, s{tsr(k)}"))
    o += T(f"""
    s_getreg_b32 s68, hwreg(HW_REG_XCC_ID)
    v_mov_b32 v25, s68
    v_mov_b32 v26, 0
    v_mov_b32 v27, 0
    s_lshl_b32 s68, s2, 2
    s_add_u32 s68, s68, s3
    s_lshl_b32 s68, s68, 6
    s_add_u32 s68, s68, {WS_TS}
    v_cmp_eq_u32 vcc, 0, v{V_L}
    v_mov_b32 v4, {OOB}
    s_nop 0
    v_cndmask_b32 v4, v4, 0, vcc
    buffer_store_dwordx4 v[16:19], v4, s[16:19], s68 offen
    buffer_store_dwordx4 v[20:23], v4, s[16:19], s68 offen offset:16
    buffer_store_dwordx4 v[24:27], v4, s[16:19], s68 offen offset:32
    """)
    if cfg.ts == 2 and not fn:
        o += T(f"""
        v_lshlrev_b32 v5, 2, v{V_L}
        v_cmp_gt_u32 vcc, 16, v{V_L}
        v_mov_b32 v4, {OOB}
        s_lshl_b32 s69, s68, 2
        s_sub_u32 s69, s69, {4*WS_TS - WS_TS - 0x300000}
        buffer_store_dword v131, v5, s[16:19], s69 offen
        s_add_u32 s68, s68, 0x100000
        v_cndmask_b32 v4, v4, v5, vcc
        buffer_store_dword v130, v4, s[16:19], s68 offen
        s_add_u32 s68, s68, 0x100000
        buffer_store_dword v131, v4, s[16:19], s68 offen
        """)
    if cfg.ts != 3: return o
    o += T(f"""
    s_waitcnt vmcnt(0)
    v_not_b32 v16, v16
    v_cmp_eq_u32 vcc, 0, v0
    v_mov_b32 v4, {OOB}
    s_sleep 127
    s_sleep 127
    v_cndmask_b32 v4, v4, 0, vcc
    """) + srd(28, 56, 256)
    o.append(I("buffer_atomic_umax v16, v4, s[28:31], 0 offen"))
    for k in range(1, 9 if not fn else 8): o.append(I(f"buffer_atomic_umax v{16+k}, v4, s[28:31], 0 offen offset:{4*(k+8*fn)}"))
    return o

from fnet import fnet_code

def build():
    def dyn(hasx22, ep):
        d = prologue()
        d += ab_pass(hasx22)
        d += TS(2)
        for p in range(8):
            for g in range(6): d += g1_group(p, g, True)
        d += TS(4)
        d += g2_pass0()
        for p in range(1, 8):
            for g in range(4): d += g2_group(p, g, ep)
        d += g2_last()
        return d
    ds = [dyn(True, (3, 4, 5, 6, 7)), dyn(False, (3, 4, 5, 6, 7))] if cfg.ep2 == 2 else [dyn(True, (5, 7)), dyn(False, (6, 7))] if cfg.ep2 else [dyn(True, (5,)), dyn(False, (6,)), dyn(True, (7,))]
    rs = [resolve(d) for d in ds]
    mn = lambda l: None if all(x is None for x in l) else min(x for x in l if x is not None)
    res = {k: (mn([r[k][0] for r in rs]), mn([r[k][1] for r in rs])) for k in rs[0]}
    txt = lambda l: [wait_text(res, it.site) if it.kind == "wait" else it.text for it in l]
    for d in ds:
        check_lds(d, res); check_loads(txt(d)); check_hazards(txt(d)); check_scc(txt(d))
    st = prologue()
    st += ab_pass(True)
    st += TS(2)
    for g in range(6): st += g1_group(0, g)
    st += TS(3) + [I("L_g1:")]
    for g in range(6): st += g1_group(1, g)
    st.append(I("s_cbranch_scc1 L_g1"))
    for g in range(6): st += g1_group(7, g)
    st += TS(4)
    st += g2_pass0() + TS(5) + [I("L_g2:")]
    for g in range(4): st += g2_group(1, g)
    st.append(I("s_cbranch_scc1 L_g2"))
    st += TS(6)
    st += g2_last() + ts_dump() + [I("s_endpgm")] + [I("L_once1:")] + ab_once(1) + [I("s_branch L_once1_ret")] + (spin("L_sp1", "s34") if cfg.inloop else (([I("L_ep0:")] + ep_block(0) + [I("s_branch L_ep0_ret"), I("L_ep1:")] + ep_block(1) + [I("s_branch L_ep1_ret")] + [I(x.text.replace(f"v{V_POLL},", f"v{V_POLLE},")) for x in spin("L_sp1", "s79" if cfg.ep2 == 2 else None)]) if cfg.early else [])) + spin("L_sp2") + (([I(x.text.replace("vcc_lo", "s80").replace("vcc", "s[80:81]")) for x in spin("L_sp3", "s70")] + (spin("L_sp4", "s71") if cfg.chk7 == 2 else spin7())) if cfg.chk7 else spin("L_sp3"))
    fn, idle = fnet_code(sys.modules[__name__])
    check_loads([it.text for it in fn]); check_hazards([it.text for it in fn]); check_scc([it.text for it in fn])
    st += fn + ts_dump(1) + [I("L_end:"), I("s_endpgm")] + idle
    if cfg.trace:
        ns = []; k = 0
        for it in st:
            ns.append(it)
            if it.kind == "wait" and it.site and re.match(r"(ab_rw\d|ab_r\d|ab_x\d|ab_b0|g1_r\d[az]|g20_r\d|g2z_r\d|g2z_st|g2z_s0|fin_)", it.site):
                ns += [I("s_waitcnt lgkmcnt(0)"), I(f"v_writelane_b32 v131, s32, {k}"), I("s_memtime s[32:33]")]; k += 1
                print(k, it.site, file=sys.stderr, end="; ")
            if it.text == "L_noepoch:": ns += [I("s_waitcnt lgkmcnt(0)"), I(f"v_writelane_b32 v131, s32, {k}")]
        st = ns
    if cfg.strip:
        a = [i for i, it in enumerate(st) if it.text == "L_g1:"][0]; b = [i for i, it in enumerate(st) if it.text == "s_cbranch_scc1 L_g2"][0]
        def drop(it):
            t = it.text or ""
            if cfg.strip & 1 and t.endswith(" lds"): return True
            if cfg.strip & 2 and (t.startswith(("v_cvt_pk", "v_pk_max", "ds_write")) or "s78 offen" in t): return True
            if cfg.strip & 4 and t == "s_barrier": return True
            if cfg.strip & 8 and it.kind == "wait" and it.need_vm: return True
            if cfg.strip & 16 and t.startswith("ds_read_b64_tr"): return True
            if cfg.strip & 32 and (t.startswith("ds_write") or "s78 offen" in t): return True
            if cfg.strip & 64 and t.startswith(("v_cvt_pk", "v_pk_max")): return True
            if cfg.strip & 128 and t.startswith("buffer_store_dword "): return True
            if cfg.strip & 1024 and it.kind == "wait" and it.need_lg and it.site not in ("g1_r2", "g2_r1"): return True
            if cfg.strip & 256 and "s78 offen" in t: it.text = t.replace(" sc1", "")
            if cfg.strip & 512 and "s78 offen" in t: it.text = t.replace(" sc1", " sc1 nt")
            return False
        st = st[:a] + [it for it in st[a:b] if not drop(it)] + st[b:]
    head = open("gated_mix__spectral_fnet__dense_activation_relu__prompt.s.ref").read().split("; Override launch")[0]
    out = head + "; @launch grid=(256,1,1) block=(256,1,1) lds=163840\n"
    out += f'.amdgcn_target "amdgcn-amd-amdhsa--gfx950"\n.text\n.globl {NAME}\n.p2align 8\n.type {NAME},@function\n{NAME}:\n'
    out += "\n".join(("" if (x.endswith(":") or x.startswith(".")) else "    ") + x for x in txt(st)) + "\n"
    out += f""".section .rodata,"a"
.p2align 6
.amdhsa_kernel {NAME}
  .amdhsa_next_free_vgpr 512
  .amdhsa_next_free_sgpr 102
  .amdhsa_accum_offset 256
  .amdhsa_group_segment_fixed_size 0
  .amdhsa_kernarg_size 96
  .amdhsa_user_sgpr_count 2
  .amdhsa_user_sgpr_kernarg_segment_ptr 1
  .amdhsa_system_sgpr_workgroup_id_x 1
.end_amdhsa_kernel
"""
    return out, res

if __name__ == "__main__":
    sys.modules["gen"] = sys.modules[__name__]
    outp = sys.argv[1]
    for a in sys.argv[2:]:
        k, v = a.split("="); setattr(cfg, k, int(v))
    out, res = build()
    open(outp, "w").write(out)
    print(res)
```

```python
from asmlib import *
def fnet_code(g):
    T, TS, srd = g.T, g.TS, g.srd
    V_L, V_C, V_Q, OOB = g.V_L, g.V_C, g.V_Q, g.OOB
    MF = lambda d, a, b, c: I(f"v_mfma_f32_16x16x32_bf16 {d}, {a}, {b}, {c}")
    def pf1():
        return T("buffer_load_dword v254, v253, s[12:15], s76 offen\ns_add_u32 s76, s76, 128") if g.cfg.pfs & 1 else []
    def pf2():
        if g.cfg.rot2 == 0:
            return T("""
            v_add_u32 v252, 128, v252
            v_subrev_u32 v59, 1152, v252
            v_min_u32 v252, v252, v59
            v_add_u32 v59, v252, v255
            buffer_load_dword v254, v59, s[8:11], 0 offen
            """)
        return T(f"buffer_load_dword v254, v255, s[8:11], s75 offen\ns_add_u32 s75, s75, {22*256*128}") if g.cfg.pfs & 2 else []
    o = T(f"""
    L_spare:
    """) + (T(f"""
    s_getpc_b64 s[68:69]
    L_pc:
    s_sub_u32 s68, s68, L_pc-{g.NAME}
    s_subb_u32 s69, s69, 0
    v_lshlrev_b32 v4, 7, v0
    v_min_u32 v4, L_end-{g.NAME}, v4
    v_mov_b32 v5, s69
    v_add_co_u32 v4, vcc, s68, v4
    s_nop 1
    v_addc_co_u32 v5, vcc, 0, v5, vcc
    global_load_dword v254, v[4:5], off
    """) if g.cfg.pfc else []) + T(f"""
    s_sub_u32 s62, s62, s63
    """) + (T("""
    s_and_b32 s65, s2, 7
    s_mul_i32 s64, s65, 3
    s_add_u32 s64, s64, s62
    s_lshl_b32 s62, s62, 1
    s_add_u32 s62, s62, s65
    s_add_u32 s62, s62, 12
    s_cmp_ge_u32 s65, 6
    s_cselect_b32 s64, s62, s64
    """) if g.cfg.bal else T("""
    s_mul_i32 s64, s61, 11
    s_mul_i32 s65, s60, 3
    s_add_u32 s64, s64, s65
    s_add_u32 s64, s64, s62
    """)) + T(f"""
    s_waitcnt lgkmcnt(0)
    """) + srd(8, 50, 5308416) + srd(12, 48, 5308416) + T(f"""
    s_lshl_b32 s65, s64, 8
    v_add_u32 v4, s65, v0
    {"v_mul_u32_u24 v255, 1152, v4" if g.cfg.rot2 == 0 else "v_lshlrev_b32 v255, 7, v4"}
    v_lshrrev_b32 v252, 9, v4
    v_lshlrev_b32 v252, 7, v252
    v_lshlrev_b32 v253, 10, v4
    s_mov_b32 s75, 0
    s_mov_b32 s76, 0
    """) + (pf1() + pf1() if g.cfg.pfo != 1 else []) + T(f"""
    s_cmp_ge_u32 s64, 20
    s_cbranch_scc1 L_idle
    s_cmp_ge_u32 s64, 10
    s_cselect_b32 s4, 1, 0
    s_cselect_b32 s65, 10, 0
    s_sub_u32 s65, s64, s65
    s_cmp_ge_u32 s65, 5
    s_cselect_b32 s5, 1, 0
    s_cselect_b32 s66, 5, 0
    s_sub_u32 s6, s65, s66
    s_waitcnt lgkmcnt(0)
    s_load_dword s7, s[58:59], 0
    """)
    o += srd(16, 58, g.WS_SIZE) + srd(20, 36, 2359296) + srd(24, 52, 1152)
    o += T(f"""
    s_lshl_b32 s66, s5, 7
    s_lshl_b32 s67, s3, 5
    s_add_u32 s66, s66, s67
    s_lshl_b32 s66, s66, 1
    s_add_u32 s66, s66, s4
    v_lshl_add_u32 v4, v{V_C}, 1, s66
    v_cmp_eq_u32 vcc, 0, v4
    v_mov_b32 v5, 512
    v_add_u32 v6, 32, v4
    v_cndmask_b32 v5, v4, v5, vcc
    v_cvt_f32_u32 v10, v4
    v_cvt_f32_u32 v11, v6
    v_cvt_f32_u32 v12, v5
    v_lshlrev_b32 v7, 4, v{V_Q}
    v_cvt_f32_u32 v7, v7
    v_mul_f32 v10, 0xba000000, v10
    v_mul_f32 v11, 0xba000000, v11
    v_mul_f32 v12, 0xba000000, v12
    s_mul_i32 s70, s4, 0xffff
    v_mov_b32 v8, s70
    v_cmp_eq_u32 vcc, 0, v{V_Q}
    v_and_b32 v9, 1, v{V_C}
    v_lshlrev_b32 v9, 15, v9
    v_cndmask_b32 v8, 0, v8, vcc
    v_xor_b32 v9, 0xbf80, v9
    v_mul_f32 v16, v7, v11
    v_mul_f32 v17, 0x42400000, v11
    s_mov_b32 s63, 0
    L_trig:
    """)
    o += T("""
    s_cmp_eq_u32 s63, 0
    s_cselect_b64 vcc, -1, 0
    v_cndmask_b32 v19, v12, v11, vcc
    v_mul_f32 v18, v7, v19
    v_mul_f32 v20, 0x42400000, v19
    """)
    for j in range(8):
        for i in range(4):
            for e in range(4):
                o += T(f"v_cos_f32 v{24+e}, v16\nv_sin_f32 v{28+e}, v18\nv_add_f32 v16, v16, v11\nv_add_f32 v18, v18, v19")
            c0 = 120 + j * 8; s0 = 120 + (8 + j) * 8
            o += T(f"""
            v_cvt_pk_bf16_f32 v{c0+i}, v24, v26
            v_cvt_pk_bf16_f32 v{c0+4+i}, v25, v27
            v_cvt_pk_bf16_f32 v{s0+i}, v28, v30
            v_cvt_pk_bf16_f32 v{s0+4+i}, v29, v31
            """)
        o += T("v_add_f32 v16, v16, v17\nv_add_f32 v18, v18, v20")
        if g.cfg.pfo == 0 and j in (1, 4, 7): o += pf1()
        if g.cfg.pfo and j in (1, 3, 5, 7): o += pf2()
    o += T("""
    v_bfi_b32 v184, v8, v9, v184
    s_cmp_eq_u32 s63, 1
    s_cbranch_scc1 L_trigdone
    """)
    for i in range(128): o.append(I(f"v_accvgpr_write_b32 a{i}, v{120+i}"))
    o += T("""
    v_mov_b32 v11, v10
    v_mul_f32 v16, v7, v10
    v_mul_f32 v17, 0x42400000, v10
    s_mov_b32 s63, 1
    s_branch L_trig
    L_trigdone:
    """)
    if not g.cfg.gl: o += gate_code(g)
    o += T(f"""
    v_and_b32 v5, 1, v{V_Q}
    v_lshlrev_b32 v5, 7, v5
    v_lshlrev_b32 v4, 4, v{V_L}
    v_xor_b32 v4, v4, v5
    s_mul_i32 s70, s4, 5
    s_add_u32 s70, s70, s6
    s_lshl_b32 s70, s70, 17
    s_add_u32 s70, s70, {g.WS_ABF}
    s_lshl_b32 s71, s3, 13
    s_add_u32 s70, s70, s71
    s_lshl_b32 s71, s6, 2
    s_add_u32 s71, s71, s3
    s_cmp_ge_u32 s71, 18
    s_cselect_b32 s71, {4*131072 - 65536 + 16384}, 0
    s_sub_u32 s70, s70, s71
    v_add_u32 v13, s70, v4
    v_lshlrev_b32 v4, 3, v{V_C}
    v_lshl_add_u32 v4, v{V_Q}, 8, v4
    v_add_u32 v15, v4, v5
    s_lshl_b32 s72, s6, 6
    v_add_u32 v116, s72, v{V_C}
    v_lshl_add_u32 v4, v{V_Q}, 3, s66
    s_movk_i32 s70, 2560
    v_lshlrev_b32 v5, 3, v116
    v_mad_u32_u24 v117, v4, s70, v5
    v_add_u32 v117, {g.WS_YT}, v117
    v_cmp_eq_u32 s[82:83], 0, v4
    v_add_u32 v5, {512*2560}, v117
    v_mov_b32 v6, {OOB}
    v_cndmask_b32 v118, v6, v5, s[82:83]
    v_cmp_eq_u32 vcc, 0, v{V_C}
    v_mov_b32 v5, 0xbf803f80
    s_mul_i32 s73, s4, 0x80008000
    v_cndmask_b32 v60, 0, v5, vcc
    s_sub_u32 s74, s4, 1
    v_mov_b32 v61, v60
    v_mov_b32 v62, v60
    v_mov_b32 v63, v60
    s_lshl_b32 s70, s6, 1
    s_add_u32 s71, s70, 1
    s_cmp_eq_u32 s71, 9
    s_cselect_b32 s71, 0, s71
    s_bitcmp1_b32 s3, 1
    s_cselect_b32 s70, s71, s70
    s_lshl_b32 s70, s70, 1
    s_and_b32 s71, s3, 1
    s_add_u32 s70, s70, s71
    s_mul_i32 s70, s70, {13*128}
    s_add_u32 s70, s70, {g.WS_ABFLAG}
    v_lshl_add_u32 v5, v{V_L}, 7, s70
    v_cmp_gt_u32 vcc, 13, v{V_L}
    s_nop 1
    v_cndmask_b32 v119, v6, v5, vcc
    s_lshl_b32 s60, s3, 15
    s_waitcnt lgkmcnt(0)
    s_add_u32 s7, s7, 0x9e3779b9
    """)
    A = lambda tl, mat, sp, j: (f"a[{(mat*8+j)*8+4*sp}:{(mat*8+j)*8+4*sp+3}]" if tl else f"v[{120+(mat*8+j)*8+4*sp}:{120+(mat*8+j)*8+4*sp+3}]")
    if not g.cfg.pfo: o += pf2() * g.cfg.npre
    o += TS(1) + g.poll("L_pollAB", 119, 13) + T("s_barrier") + TS(2)
    for P in range(8):
        o += T(f"s_add_u32 m0, s60, {P*4096}\ns_mov_b32 s61, {(P//2)*32768 + (P%2)*4096}")
        for i in range(4): o.append(I(f"buffer_load_dwordx4 v13, s[16:19], s61 offen offset:{1024*i} sc1 lds"))
    for ct in range(4):
        o += T(f"""
        v_add_u32 v4, {16*ct}, v116
        v_cmp_eq_u32 vcc, 288, v4
        v_mov_b32 v5, 512
        s_mov_b32 s61, {g.WS_XS}
        v_cndmask_b32 v4, v4, v5, vcc
        v_lshlrev_b32 v4, 1, v4
        buffer_load_ushort v{248+ct}, v4, s[16:19], s61 offen sc1
        """)
    o += T("s_waitcnt vmcnt(0)\ns_barrier") + TS(3) + (pf2() * ((8 if g.cfg.gl else 4) - g.cfg.npre) if not g.cfg.pfo else [])
    for ct in range(4): o += T(f"v_lshlrev_b32 v{248+ct}, 16, v{248+ct}\nv_and_b32 v{248+ct}, s74, v{248+ct}")
    AC = lambda tl, gr: f"v[{64+(tl*4+gr)*4}:{67+(tl*4+gr)*4}]"
    o += T(f"""
    s_mov_b32 s63, 0
    L_ct:
    s_lshl_b32 s70, s63, 15
    v_add_u32 v16, s70, v15
    v_xor_b32 v17, 128, v16
    v_xor_b32 v18, 0x80000000, v248
    """)
    def rd(ks):
        b = 100 + 4 * (ks % 4)
        return [I(f"ds_read_b64_tr_b16 v[{b}:{b+1}], v16 offset:{ks*1024}"), I(f"ds_read_b64_tr_b16 v[{b+2}:{b+3}], v17 offset:{ks*1024}")]
    o += rd(0) + rd(1) + rd(2) + (pf2() if not (g.cfg.pfo or g.cfg.gl) else [])
    for tl in range(2):
        for r in range(4): o.append(I(f"v_mov_b32 v{64+tl*16+r}, v{18 if r & 1 else 248}"))
    for r in range(4): o.append(I(f"v_mov_b32 v{96+r}, v248"))
    for ks in range(32):
        gr, j = ks // 8, ks % 8; b = 100 + 4 * (ks % 4); B = f"v[{b}:{b+3}]"
        o.append(I(f"s_waitcnt lgkmcnt({min(4, 2*(31-ks))})"))
        nx = rd(ks + 3) if ks + 3 < 32 else [None, None]
        for tl in range(2):
            o.append(MF(AC(tl, gr), A(tl, gr >> 1, gr & 1, j), B, AC(tl, gr) if (j or gr == 0) else "0"))
            if nx[tl]: o.append(nx[tl])
        if gr == 0: o.append(MF("v[96:99]", "v[60:63]", B, "v[96:99]"))
    o += T(f"""
    v_cmp_eq_u32 vcc, 0, v116
    v_mov_b32 v4, 288
    v_cmp_eq_u32 s[80:81], v4, v116
    v_mov_b32 v248, v249
    v_mov_b32 v249, v250
    v_mov_b32 v250, v251
    s_or_b64 vcc, vcc, s[80:81]
    s_nop 1
    """)
    for tl in range(2):
        for r in range(4):
            pe, po, qe, qo = (64 + (tl * 4 + k) * 4 + r for k in range(4))
            d = 32 + 2 * (tl * 4 + r)
            o += T(f"""
            v_cndmask_b32 v{qe}, v{qe}, 0, vcc
            v_cndmask_b32 v{qo}, v{qo}, 0, vcc
            v_add_f32 v20, v{pe}, v{po}
            v_sub_f32 v21, v{pe}, v{po}
            v_add_f32 v22, v{qe}, v{qo}
            v_sub_f32 v23, v{qo}, v{qe}
            v_sub_f32 v24, v20, v22
            v_add_f32 v25, v21, v23
            v_sub_f32 v26, v21, v23
            v_add_f32 v27, v20, v22
            """)
            if tl == 0 and r == 0:
                o += T(f"""
                v_sub_f32 v28, v96, v{qo}
                v_add_f32 v29, v96, v{qo}
                v_cndmask_b32 v24, v24, v20, s[82:83]
                v_cndmask_b32 v25, v25, v21, s[82:83]
                v_cndmask_b32 v26, v26, v28, s[82:83]
                v_cndmask_b32 v27, v27, v29, s[82:83]
                v_cvt_pk_bf16_f32 v30, v26, v27
                v_cvt_pk_bf16_f32 v31, v25, v24
                buffer_store_dwordx2 v[30:31], v118, s[16:19], 0 offen sc1
                """)
            o += T(f"""
            v_cvt_pk_bf16_f32 v{d}, v24, v25
            v_cvt_pk_bf16_f32 v{d+1}, v26, v27
            s_mov_b32 s70, {tl*81920 + r*5120}
            v_xor_b32 v{d}, s73, v{d}
            v_xor_b32 v{d+1}, s73, v{d+1}
            buffer_store_dwordx2 v[{d}:{d+1}], v117, s[16:19], s70 offen sc1
            """)
    o += T(f"""
    v_add_u32 v116, 16, v116
    v_add_u32 v117, 128, v117
    v_add_u32 v118, 128, v118
    s_add_u32 s63, s63, 1
    s_cmp_lt_u32 s63, 4
    s_cbranch_scc1 L_ct
    """) + TS(4)
    if g.cfg.gl: o += gate_code(g)
    if g.cfg.rot2 == 0: o += pf2()
    o += TS(5)
    o += T(f"""
    s_waitcnt vmcnt(0)
    s_barrier
    s_lshl_b32 s70, s64, 2
    s_add_u32 s70, s70, {g.WS_YFLAG}
    v_cmp_gt_u32 vcc, 26, v0
    v_mov_b32 v4, {OOB}
    v_lshlrev_b32 v6, 7, v0
    v_mov_b32 v5, s7
    v_cndmask_b32 v4, v4, v6, vcc
    buffer_store_dword v5, v4, s[16:19], s70 offen sc1
    """) + TS(6) + TS(7)
    idle = [I("L_idle:")] + (pf1() * 6 if not g.cfg.pfo else []) + pf2() * (9 if g.cfg.rot2 == 0 else 8) + [I("s_endpgm")]
    return o, idle

def gate_code(g):
    T = g.T; V_L, OOB = g.V_L, g.OOB
    o = T(f"""
    v_and_b32 v4, 7, v{V_L}
    v_lshlrev_b32 v32, 4, v4
    v_bfe_u32 v33, v{V_L}, 3, 2
    v_lshrrev_b32 v34, 5, v{V_L}
    s_lshl_b32 s70, s64, 2
    s_add_u32 s70, s70, s3
    s_lshl_b32 s70, s70, 1
    v_add_u32 v34, s70, v34
    s_movk_i32 s67, 1152
    v_mov_b32 v35, {OOB}
    """)
    for j in range(9): o.append(I(f"buffer_load_dwordx4 v[{44+4*j}:{47+4*j}], v32, s[24:27], 0 offen offset:{128*j}"))
    for it in range(4):
        o += g.rowcalc(34, 33, 36, 37) + T(f"""
        v_cmp_gt_u32 vcc, 512, v34
        v_mad_u32_u24 v36, v36, s67, v32
        v_lshl_add_u32 v37, v34, 2, v33
        v_cndmask_b32 v36, v35, v36, vcc
        v_lshlrev_b32 v37, 2, v37
        v_cndmask_b32 v{20+it}, v35, v37, vcc
        v_add_u32 v34, 160, v34
        """)
        for j in range(9):
            d = f"v[{80+4*j}:{83+4*j}]" if it == 0 else f"a[{92+36*it+4*j}:{95+36*it+4*j}]"
            o.append(I(f"buffer_load_dwordx4 {d}, v36, s[20:23], 0 offen offset:{128*j}"))
    for it in range(4):
        o += T(f"v_mov_b32 v{24+it}, 0\nv_mov_b32 v28, 0\ns_waitcnt vmcnt({9*(3-it)})")
        if it:
            for k in range(36): o.append(I(f"v_accvgpr_read_b32 v{80+k}, a{92+36*it+k}"))
        for k in range(36):
            d = 28 if k & 1 else 24 + it
            o.append(I(f"v_dot2_f32_bf16 v{d}, v{80+k}, v{44+k}, v{d}"))
        o += T(f"s_nop 2\nv_add_f32 v{24+it}, v{24+it}, v28")
    o.append(I("s_nop 1"))
    for perm in ("quad_perm:[1,0,3,2]", "quad_perm:[2,3,0,1]", "row_half_mirror"):
        for it in range(4): o.append(I(f"v_add_f32_dpp v{24+it}, v{24+it}, v{24+it} {perm} row_mask:0xf bank_mask:0xf"))
    for it in range(4): o.append(I(f"v_mul_f32 v{24+it}, 0xbfb8aa3b, v{24+it}"))
    for it in range(4): o.append(I(f"v_exp_f32 v{24+it}, v{24+it}"))
    for it in range(4): o.append(I(f"v_add_f32 v{24+it}, 1.0, v{24+it}"))
    for it in range(4): o.append(I(f"v_rcp_f32 v{24+it}, v{24+it}"))
    o += T(f"""
    v_cmp_eq_u32 vcc, 0, v32
    s_mov_b32 s70, {g.WS_GT}
    s_nop 0
    """)
    for it in range(4): o.append(I(f"v_cndmask_b32 v{20+it}, v35, v{20+it}, vcc"))
    for it in range(4): o.append(I(f"buffer_store_dword v{24+it}, v{20+it}, s[16:19], s70 offen sc1"))
    return o
```

```python
import sys
from asmlib import *
NAME = "gated_mix__spectral_fnet__dense_activation_relu__prompt_kernel"
WS_PF, WS_ABFLAG, WS_YFLAG, WS_GT, WS_XS = 0x20000, 0x20000, 0xA000, 0x10000, 0x13000
WS_ABF, WS_YT, WS_PART, WS_TS, WS_SIZE = 0x100000, 0x280000, 0x400000, 0x2000000, 0x3000000
OOB = 0x40000000
WSL, SL = 3584, 14336
XB, HB = 71680, 81920
SPIN = 1 << 20

class Cfg:
    ts = False
    L2 = 12
    rot1 = 3
    chain = 0
    strip = 0
    pp = 0
    hx = -1
    slp2 = 2
    g20v = 0
    pfc = 1
    pfo = 0
    gl = 0
    bal = 1
    p0v = 1
    ep2 = 1
    epg = 5
    chk7 = 2
    s6g = 3
    flg = 4
    u0 = 7
    npre = 2
    abv = 0
    early = 3
    epm = 3
    rot2 = 2
    tag7 = 0
    stg = 2
    rdp = 0
    hw = 1
    hg = 9
    ne = 6
    inloop = 0
    osc = 1
    pt = 1
    trace = 0
    slp = 16
    map = 2
    pf1 = 1
    rev = 1
    pf2 = 0
    noab = 0
    pfs = 3
    warmfl = 1
    stspread = 1
    fake = 0
cfg = Cfg()

ACC = lambda t: f"v[{16+4*t}:{19+4*t}]"
EE = lambda t: f"v[{36+4*t}:{39+4*t}]"
E0 = 36
FB = lambda b: 56 + 4 * b
PK = 88
def act(i):
    return f"a[{4*i}:{4*i+3}]" if i < 64 else f"v[{152+4*(i-64)}:{155+4*(i-64)}]"
V_A, V_B = 10, 11
V_W2A, V_W2B = 12, 13
V_TR, V_TR2 = 14, 15
V_XO = 100
V_ABA, V_ABB = 105, 106
V_XR0, V_XR1 = 107, 108
V_WR0, V_WR1 = 109, 110
V_PATCH = 111
V_HW = 112
V_HR, V_HR2 = 113, 114
V_SIG, V_SIG0, V_SIGT0, V_SIG0T0, V_TAU = 115, 116, 117, 118, 119
V_ABS, V_ABS0 = 120, 121
V_ABFL = 122
V_TAG = 123
V_P16, V_P8 = 124, 125
V_FL = 126
V_POLL = 127
V_PFD, V_PF1, V_PF2, V_DUM = 132, 133, 134, 135
XH = 94
V_L, V_C, V_Q = 1, 2, 3

def mfma(d, a, b, c): return I(f"v_mfma_f32_16x16x32_bf16 {d}, {a}, {b}, {c}")
def place(ms, side):
    gaps = [[] for _ in ms]
    for g, it in side:
        gaps[g] += it if isinstance(it, list) else [it]
    out = []
    for m, g in zip(ms, gaps):
        out.append(m); out += g
    return out
def spread(items, gaps):
    n = len(items); k = len(gaps)
    return [(gaps[i * k // n], it) for i, it in enumerate(items)]

tsn = [0]
def tsr(k): return 84 + 2 * k if k < 4 else 36 + 2 * (k - 4)
def TS(k):
    if not cfg.ts: return []
    return [I(f"{'s_memtime' if cfg.ts == 2 else 's_memrealtime'} s[{tsr(k)}:{tsr(k)+1}]")]

def wslot(ph, p, s):
    if ph == 2: return ((p & 1) * 16 + s) * 4096
    return s * 4096
def wdma(ph, p, s):
    P, b = s >> 1, s & 1
    pre = []
    if b == 0:
        pre.append(I(f"s_add_u32 m0, s60, {P*8192}"))
        pre.append(I(f"s_add_u32 s61, s62, s{64+P}" if ph == 2 else ("s_add_u32 s61, s61, s35" if P else "s_mov_b32 s61, s62")))
    lo = wslot(ph, p, 2 * P)
    v, sr = (V_W2A, "s[28:31]") if ph == 2 else (V_A, "s[8:11]")
    return pre, VM(f"buffer_load_dwordx4 v{v+b}, {sr}, s61 offen offset:{1024*b} lds", ("W", ph, p, s), wr=(lo, lo + 8192))
def cover(ph, p, lo, hi): return [("W", ph, p, s) for s in range(lo, hi)]
def nf(ph): return 8 if ph == 2 else 6
def trr(ph, p, s):
    b = FB(s % nf(ph)); o = s * 4096; vr = V_TR
    if o >= 65536: o -= 65536; vr = V_TR2
    lo = wslot(ph, p, s)
    return [LG(f"ds_read_b64_tr_b16 v[{b+2*h}:{b+2*h+1}], v{vr} offset:{o+512*h}", ("R", ph, p, s, h), rd=(lo, lo + 4096)) for h in range(2)]
def group_mfmas(ph, steps, last):
    ms = []
    order = [(t, s) for t in range(5) for s in steps] if cfg.chain else [(t, s) for s in steps for t in range(5)]
    for t, s in order:
        if True:
            d = EE(t) if s == last else ACC(t)
            c = "0" if s == 0 else ACC(t)
            b = FB(s % nf(ph)); w = f"v[{b}:{b+3}]"
            ms.append(mfma(d, act(s * 5 + t), w, c) if ph == 2 else mfma(d, w, act(s * 5 + t), c))
    return ms

def xdma(n):
    pre = [I("s_add_u32 s79, s79, s93")] if (n % 5 == 0 and n) else []
    return pre + [I(f"s_add_u32 m0, s82, {n*4096}"), I(f"s_add_u32 s61, s79, s{XH+n%5}"),
            VM(f"buffer_load_dwordx4 v{V_XO+n%5}, s[12:15], s61 offen lds", ("X", n), wr=(XB + (n // 5) * 20480, min(XB + (n // 5 + 1) * 20480, 163840)))]
def abdma(P):
    lo = P * 8192
    return [I(f"s_add_u32 m0, s60, {lo}"), I("s_add_u32 s83, s83, s92"),
            VM(f"buffer_load_dwordx4 v{V_ABA}, s[20:23], s83 offen lds", ("WAB", P, 0), wr=(lo, lo + 8192)),
            VM(f"buffer_load_dwordx4 v{V_ABB}, s[20:23], s83 offen offset:1024 lds", ("WAB", P, 1), wr=(lo, lo + 8192))]
def wreads(P):
    out = []
    if P == 4: out += [I(f"v_add_u32 v{V_WR0}, 32768, v{V_WR0}"), I(f"v_add_u32 v{V_WR1}, 32768, v{V_WR1}")]
    Pp = P - 4 if P >= 4 else P
    for h in range(2):
        s = 2 * P + h; b = FB(s % 6)
        out.append(LG(f"ds_read_b128 v[{b}:{b+3}], v{V_WR0+h} offset:{Pp*8192}", ("RAB", s)))
    return out
def xreads(P):
    out = []
    if P == 4: out += [I(f"v_add_u32 v{V_XR0}, 40960, v{V_XR0}"), I(f"v_add_u32 v{V_XR1}, 40960, v{V_XR1}")]
    Pp = P - 4 if P >= 4 else P
    for t in range(5):
        for h in range(2):
            s = 2 * P + h; lo = XB + (P * 10 + 2 * t) * 1024
            out.append(LG(f"ds_read_b128 {act(s*5+t)}, v{V_XR0+h} offset:{(Pp*10+2*t)*1024}", ("RX", s, t), rd=(lo, lo + 2048)))
    return out
def patch(P):
    return [I(f"v_cndmask_b32 v{FB(s%6)+e}, v{FB(s%6)+e}, v{V_PATCH}, s[76:77]") for s in (2 * P, 2 * P + 1) for e in range(4)]
def xg(g, lastx): return [("X", n) for n in range(5 * g, min(5 * g + 5, lastx + 1))]

def cut(su, n):
    while su[n].text.startswith(("s_cselect", "v_c")) or su[n - 1].text.startswith(("s_cmp", "s_cselect", "v_c")): n += 1
    return n
def ab_pass(hasx22):
    lastx = 22 if hasx22 else 21
    o = []
    pf = lambda v, sr, off, tag: [VM(f"buffer_load_dword v{V_DUM}, v{v}, {sr}, 0 offen offset:{off}", tag)]
    Xr = lambda a, b: sum((xdma(n) for n in range(a, b)), [])
    TP = lambda n, vm=None: [WAIT(f'ab_x9{n}', vm=vm)] if cfg.trace else []
    if cfg.abv == 2:
        o += Xr(0, 5) + setup1() + setup1b() + abdma(0) + abdma(1)
        if cfg.pf1 & 1: o += pf(V_PFD, "s[20:23]", 0, "PFD")
        o += setup2()
        if cfg.pt & 1: o.append(VM(f"buffer_load_dword v{V_DUM}, v{V_ABFL}, s[16:19], 0 offen sc1", "PT0"))
        return o + ab_tail2(hasx22, Xr)
    o += TP(0) + Xr(0, 5) + setup1()
    if cfg.pf1 & 1: o += pf(V_PFD, "s[20:23]", 0, "PFD")
    o += Xr(5, 8) + TP(1) + setup1b() + setup2() + TP(2)
    if cfg.trace == 2: o += TP(3, [('X', 0)]) + TP(4, [('X', 4)]) + TP(5, [('X', 7)])
    if cfg.pf1 & 2: o += pf(V_PF1, "s[8:11]", 0, "PFA")
    if cfg.pt & 1: o.append(VM(f"buffer_load_dword v{V_DUM}, v{V_ABFL}, s[16:19], 0 offen sc1", "PT0"))
    if cfg.pt & 8:
        o += srd(24, 54, 2359296) + srd(28, 50, 5308416) + T(f"""
        s_lshl_b32 s68, s2, 7
        v_lshl_add_u32 v4, v0, 16, s68
        """) + [VM(f"buffer_load_dword v{V_DUM}, v4, s[24:27], 0 offen", "PT2"), VM(f"buffer_load_dword v{V_DUM}, v4, s[28:31], 0 offen", "PT3")]
    if cfg.pt & 2: o.append(VM(f"buffer_store_dword v{ABP+10}, v{V_ABFL}, s[16:19], 0 offen sc1", "PT1"))
    if cfg.pt & 4: o.append(VM(f"buffer_store_dwordx4 v[{ABP+10}:{ABP+13}], v{ABP+14}, s[16:19], s78 offen offset:2560 sc1", "WARMFL"))
    if cfg.abv == 1: return o + ab_tail1(hasx22, Xr)
    o += Xr(8, 17)
    o += [WAIT("ab_b0", vm=xg(0, lastx)), BAR()] + TS(1) + xreads(0) + Xr(17, 20) + xreads(1)
    o += xdma(20) + xdma(21) + [I("s_cmp_lt_u32 s3, 2"), I("s_cbranch_scc0 L_nox22")] + (xdma(22) if hasx22 else []) + [I("L_nox22:")]
    o += [WAIT("ab_x1", vm=xg(1, lastx)), BAR()] + abdma(0) + xreads(2) + abdma(1) + abdma(2) + xreads(3) + abdma(3) + abdma(4)
    o += [WAIT("ab_x4", vm=xg(4, lastx) + [("WAB", 0, 1)], lg=[("RX", 1, 0)]), BAR()] + wreads(0) + abdma(5)
    o.append(WAIT("ab_r0", lg=[("RAB", 1)])); o += patch(0); o.append(I("s_nop 1"))
    for g in range(9):
        ms = group_mfmas(0, (2 * g, 2 * g + 1), 17)
        side = []
        if g < 8:
            side.append((0, WAIT(f"ab_w{g}", vm=[("WAB", g + 1, 1)])))
            side += spread(wreads(g + 1), [0, 1])
            if g < 5: side += spread(xreads(g + 4), [1, 2, 3, 4, 5, 7, 8, 9])
        else:
            side.append((0, [WAIT("ab_b8", vm=cover(1, 0, 0, 6)), BAR()]))
            side += spread(trr(1, 0, 0) + trr(1, 0, 1) + trr(1, 0, 2), [1, 2, 3, 4, 5, 6])
        d = []
        if g == 0: d = [abdma(6)[:3], abdma(6)[3:], abdma(7)[:3], abdma(7)[3:]]
        if g == 1: d = [abdma(8)[:3], abdma(8)[3:]]
        sl = {0: (), 1: (0, 1), 2: (2, 3, 4), 3: (5, 6, 7), 4: (8, 9), 5: (10, 11), 6: (12, 13), 7: (14,), 8: ()}[g]
        for s in sl:
            pre, dm = wdma(1, 0, s); dm.wr = None
            d.append(pre + [dm])
        if d: side += spread(d, [2, 3, 4, 5])
        if g in (5, 6, 7): side += list(zip([1, 3, 5, 9, 9], ab_gaddr()[(g - 5) * 5:(g - 4) * 5]))
        if g < 8:
            side.append((6, WAIT(f"ab_rw{g}", lg=[("RAB", 2 * g + 3)])))
            side += spread(patch(g + 1), [6, 7, 8])
            side.append((9, I("s_nop 0")))
        else: side.append((9, WAIT(f"ab_r9", lg="all")))
        o += place(ms, side)
    return o

def ab_tail2(hasx22, Xr):
    lastx = 22 if hasx22 else 21
    x22 = [I("s_cmp_lt_u32 s3, 2"), I("s_cbranch_scc0 L_nox22")] + (xdma(22) if hasx22 else []) + [I("L_nox22:")]
    sp = lambda l: [l[:3], l[3:]]
    X = lambda a, b: [xdma(n) for n in range(a, b)]
    q = X(5, 10) + sp(abdma(2)) + sp(abdma(3)) + X(10, 15) + sp(abdma(4)) + sp(abdma(5)) + X(15, 20) + sp(abdma(6)) + sp(abdma(7)) + X(20, 22) + [x22] + sp(abdma(8))
    for s in range(15):
        pre, dm = wdma(1, 0, s); dm.wr = None
        q.append(pre + [dm])
    u0 = cfg.u0
    o = sum(q[:u0], [])
    o += [WAIT("ab_b0", vm=xg(0, lastx) + [("WAB", 0, 1)]), BAR()] + TS(1) + wreads(0) + xreads(0) + sum(q[u0:u0 + 4], [])
    o.append(WAIT("ab_r0", lg="all")); o += patch(0); o.append(I("s_nop 1"))
    rest = q[u0 + 4:]
    per = [len(rest) * (g + 1) // 8 for g in range(8)]
    for g in range(9):
        ms = group_mfmas(0, (2 * g, 2 * g + 1), 17)
        side = []
        if g < 8:
            need = [("WAB", g + 1, 1)]
            if g % 2: side.append((0, [WAIT(f"ab_x{g}", vm=need + xg((g + 1) // 2, lastx)), BAR()]))
            else: side.append((0, WAIT(f"ab_w{g}", vm=need)))
            side += spread(wreads(g + 1), [0, 0]) + spread(xreads(g + 1), [0, 1, 1, 2, 2, 3, 4])
            side += spread(rest[(per[g - 1] if g else 0):per[g]], [3, 4, 5, 6, 7, 8])
            side.append((6, WAIT(f"ab_rw{g}", lg=[("RAB", 2 * g + 3)])))
            side += spread(patch(g + 1), [6, 7, 8])
        else:
            side.append((0, [WAIT("ab_b8", vm=cover(1, 0, 0, 6)), BAR()]))
            side += spread(trr(1, 0, 0) + trr(1, 0, 1) + trr(1, 0, 2), [1, 2, 3, 4, 5, 6])
        if g in (6, 7, 8): side += list(zip([5, 5, 9, 9, 9] if g < 8 else [2, 4, 7, 8, 8], ab_gaddr()[(g - 6) * 5:(g - 5) * 5]))
        side.append((9, WAIT(f"ab_r{g+1}", lg="all")))
        o += place(ms, side)
    return o
def ab_tail1(hasx22, Xr):
    lastx = 22 if hasx22 else 21
    x22 = [I("s_cmp_lt_u32 s3, 2"), I("s_cbranch_scc0 L_nox22")] + (xdma(22) if hasx22 else []) + [I("L_nox22:")]
    o = Xr(8, 10) + abdma(0) + abdma(1) + Xr(10, 15)
    o += [WAIT("ab_b0", vm=xg(0, lastx)), BAR()] + TS(1) + xreads(0) + abdma(2) + abdma(3) + xreads(1) + Xr(15, 18)
    o += [WAIT("ab_x1", vm=xg(1, lastx) + [("WAB", 0, 1)], lg=[("RX", 1, 0)]), BAR()] + wreads(0) + Xr(18, 20)
    o.append(WAIT("ab_r0", lg=[("RAB", 1)])); o += patch(0); o.append(I("s_nop 1"))
    sp = lambda l: [l[:3], l[3:]]
    dl = {0: sp(abdma(4)) + sp(abdma(5)), 1: [xdma(20), xdma(21), x22] + sp(abdma(6)), 2: sp(abdma(7)) + sp(abdma(8))}
    sl = {3: (0, 1, 2, 3), 4: (4, 5, 6, 7), 5: (8, 9, 10), 6: (11, 12, 13), 7: (14,)}
    for g in range(9):
        ms = group_mfmas(0, (2 * g, 2 * g + 1), 17)
        side = []
        if g < 8:
            need = [("WAB", g + 1, 1)]
            if g in (2, 4, 6): side.append((0, [WAIT(f"ab_x{g}", vm=need + xg(g // 2 + 1, lastx)), BAR()]))
            else: side.append((0, WAIT(f"ab_w{g}", vm=need)))
            side += spread(wreads(g + 1), [0, 1])
            if g < 7: side += spread(xreads(g + 2), [1, 2, 3, 4, 5, 7, 8, 9])
        else:
            side.append((0, [WAIT("ab_b8", vm=cover(1, 0, 0, 6)), BAR()]))
            side += spread(trr(1, 0, 0) + trr(1, 0, 1) + trr(1, 0, 2), [1, 2, 3, 4, 5, 6])
        d = list(dl.get(g, []))
        for s in sl.get(g, ()):
            pre, dm = wdma(1, 0, s); dm.wr = None
            d.append(pre + [dm])
        if d: side += spread(d, [2, 3, 4, 5])
        if g in (6, 7, 8): side += list(zip([1, 3, 5, 9, 9] if g < 8 else [2, 4, 7, 8, 8], ab_gaddr()[(g - 6) * 5:(g - 5) * 5]))
        if g < 8:
            side.append((6, WAIT(f"ab_rw{g}", lg=[("RAB", 2 * g + 3)])))
            side += spread(patch(g + 1), [6, 7, 8])
            side.append((9, I("s_nop 0")))
        else: side.append((9, WAIT(f"ab_r9", lg="all")))
        o += place(ms, side)
    return o

ABP = 136
OUTL = 135168
ABL = 73728
V_ABR, V_ABG0, V_ABG1 = 100, 101, 102
def ab_epilogue():
    o = []
    for t in range(5):
        r = E0 + 4 * t
        sg = (V_SIG0T0, V_SIGT0) if t == 0 else (V_SIG0, V_SIG)
        for e in range(4): o.append(I(f"v_fmac_f32_dpp v{r+e}, v{r+e}, v{sg[0] if e == 0 else sg[1]} quad_perm:[3,2,1,0] row_mask:0xf bank_mask:0xf"))
        for e in range(4): o.append(I(f"v_fmac_f32_dpp v{r+e}, v{r+e}, v{V_TAU} quad_perm:[1,0,3,2] row_mask:0xf bank_mask:0xf"))
        if t == 0:
            o.append(I(f"v_mov_b32_dpp v{PK+10}, v{r} quad_perm:[0,1,2,1] row_mask:0xf bank_mask:0xf"))
            o.append(I(f"v_cndmask_b32 v{r}, v{r}, v{PK+10}, s[80:81]"))
        o.append(I(f"v_cvt_pk_bf16_f32 v{ABP+2*t}, v{r}, v{r+1}"))
        o.append(I(f"v_cvt_pk_bf16_f32 v{ABP+2*t+1}, v{r+2}, v{r+3}"))
    return o
def ab_gaddr():
    A = lambda x: T(x)
    return [A(f"s_lshr_b32 s68, s5, 1\ns_lshl_b32 s68, s68, 17\ns_lshr_b32 s70, s3, 1"),
            A(f"s_lshl_b32 s71, s70, 16\ns_add_u32 s68, s68, s71\ns_mul_i32 s71, s4, 320"),
            A(f"s_add_u32 s68, s68, s71\ns_and_b32 s71, s5, 1\ns_lshl_b32 s71, s71, 14"),
            A(f"s_add_u32 s68, s68, s71\ns_and_b32 s71, s3, 1\ns_lshl_b32 s69, s71, 13"),
            A(f"s_add_u32 s68, s68, s69\ns_add_u32 s68, s68, {WS_ABF}\ns_lshl_b32 s71, s71, 5"),
            A(f"s_lshl_b32 s69, s5, 6\ns_add_u32 s69, s69, s71\ns_lshl_b32 s70, s70, 10"),
            A(f"s_add_u32 s69, s69, s70\ns_add_u32 s69, s69, {WS_XS - 320}\nv_mul_u32_u24 v4, 13, v{V_L}"),
            A(f"v_lshrrev_b32 v4, 8, v4\nv_mul_u32_u24 v5, 20, v4\nv_sub_u32 v5, v{V_L}, v5"),
            A(f"v_and_b32 v6, 1, v4\nv_lshlrev_b32 v6, 15, v6\nv_lshrrev_b32 v7, 1, v4\nv_mul_u32_u24 v7, {5*131072}, v7"),
            A(f"v_lshl_add_u32 v6, v5, 4, v6\nv_add3_u32 v6, v6, v7, s68\ns_cmp_eq_u32 s4, 25\ns_cselect_b32 s70, 12, 20"),
            A(f"v_cmp_gt_u32 vcc, s70, v5\nv_mov_b32 v8, {OOB}\nv_lshlrev_b32 v7, 4, v{V_L}\nv_cndmask_b32 v6, v8, v6, vcc"),
            A(f"v_cmp_gt_u32 vcc, 60, v{V_L}\ns_add_u32 s68, s68, {5*131072 + 32768}\nv_add_u32 v9, s68, v7\nv_cndmask_b32 v{V_ABG0}, v8, v6, vcc"),
            A(f"v_cmp_gt_u32 vcc, s70, v{V_L}\nv_add_u32 v6, s69, v7\nv_lshrrev_b32 v5, 1, v{V_L}\nv_cndmask_b32 v9, v8, v9, vcc"),
            A(f"s_cmp_eq_u32 s4, 0\ns_cselect_b32 s70, 10, -1\nv_cmp_eq_u32 vcc, s70, v5\ns_mul_i32 s68, s3, 1792"),
            A(f"s_add_u32 s68, s68, {ABL}\nv_add_u32 v{V_ABR}, s68, v7\nv_cndmask_b32 v{V_ABG1}, v9, v6, vcc")]
def ab_once(which):
    if which == 2:
        return [LG(f"ds_write_b64 v{V_ABS0 if t == 0 else V_ABS}, v[{ABP+2*t}:{ABP+2*t+1}] offset:{64*t}", ("ABW", t)) for t in range(5)]
    if which == 3:
        return [LG(f"ds_read_b128 v[{PK}:{PK+3}], v{V_ABR}", ("ABR", 0)), LG(f"ds_read_b128 v[{PK+4}:{PK+7}], v{V_ABR} offset:960", ("ABR", 1))]
    if which == 0:
        o = [VM(f"buffer_store_dwordx4 v[{PK}:{PK+3}], v{V_ABG0}, s[16:19], 0 offen sc1", ("ABST", 0)),
             VM(f"buffer_store_dwordx4 v[{PK+4}:{PK+7}], v{V_ABG1}, s[16:19], 0 offen sc1", ("ABST", 4))]
        if cfg.warmfl:
            o += [VM(f"buffer_store_dwordx4 v[{ABP+10}:{ABP+13}], v{ABP+14}, s[16:19], s78 offen offset:2560 sc1", "WARMFL")]
        return o
    return [VM(f"buffer_store_dword v{V_TAG}, v{V_ABFL}, s[16:19], 0 offen sc1", "ABFL")]
def h_tile(p, t):
    r = E0 + 4 * t; d = PK + 2 * t
    lo = HB + p * 10240
    return ([I(f"v_cvt_pk_bf16_f32 v{d}, v{r}, v{r+1}"), I(f"v_cvt_pk_bf16_f32 v{d+1}, v{r+2}, v{r+3}")],
            [I(f"v_pk_max_i16 v{d}, v{d}, 0"), I(f"v_pk_max_i16 v{d+1}, v{d+1}, 0")],
            LG(f"ds_write_b64 v{V_HW}, v[{d}:{d+1}] offset:{1024*t}", ("HW", p, t), wr=(lo + (2048 if p < 0 else 0), lo + 10240)))
def p_parts(p):
    cv = [I(f"v_cvt_pk_bf16_f32 v{PK+i}, v{E0+2*i}, v{E0+2*i+1}") for i in range(10)]
    st = [VM(f"buffer_store_dwordx4 v[{PK}:{PK+3}], v{V_P16}, s[16:19], s78 offen sc1", ("PST", p, 0)),
          VM(f"buffer_store_dwordx4 v[{PK+4}:{PK+7}], v{V_P16}, s[16:19], s78 offen offset:1024 sc1", ("PST", p, 1)),
          VM(f"buffer_store_dwordx2 v[{PK+8}:{PK+9}], v{V_P8}, s[16:19], s78 offen offset:2048 sc1", ("PST", p, 2))]
    return [(cv[:4], st[0]), (cv[4:8], st[1]), (cv[8:], st[2])]
def hreads(s):
    o = []
    for t in range(5):
        off = (s * 5 + t) * 1024; vr = V_HR
        if off >= 40960: off -= 40960; vr = V_HR2
        lo = HB + (s * 5 + t) * 1024
        o.append(LG(f"ds_read_b128 {act(s*5+t)}, v{vr} offset:{off}", ("RH", s, t), rd=(lo, lo + 1024)))
    return o
def tags(items): return [it.tag for it in items if it.kind == "lg"]
def cyc_stamp(side, g, g0, gap, v):
    if cfg.ts == 2 and cfg.pp and g == g0: side.append((gap, [I("s_memtime s[32:33]")]))
    if cfg.ts == 2 and cfg.pp and g == g0 + 1: side.append((gap, [I("s_waitcnt lgkmcnt(0)"), I("v_cmp_eq_u32 vcc, s63, v1"), I("v_mov_b32 v9, s32"), I("s_nop 0"), I(f"v_cndmask_b32 v{v}, v{v}, v9, vcc")]))

def g1_group(p, g, dyn=False):
    kind = "a" if p == 0 else ("z" if p == 7 else "")
    ms = group_mfmas(1, range(3 * g, 3 * g + 3), 17)
    side = []
    nph, npp = (1, p + 1) if p < 7 else (2, 0)
    if g % 2 == 1:
        need = cover(1, p, 3 * g + 3, 3 * g + 9) if g < 5 else cover(nph, npp, 0, 6)
        if g == 1 and p == 1: need = need + [("ABST", 4)]
        side.append((0, [WAIT(f"g1_b{g}{kind}", vm=need), BAR()]))
    rd = []
    for s in range(3 * g + 3, 3 * g + 6):
        rd += trr(1, p, s) if s < 18 else trr(nph, npp, s - 18)
    side += list(zip([1, 2, 4, 5, 6, 7] if not cfg.rdp else [0, 1, 2, 4, 5, 6], rd))
    for k, s in enumerate(range(3 * g + 15, 3 * g + 18)):
        pre, dm = wdma(1, p, s) if s < 18 else wdma(nph, npp, s - 18)
        gp = [3, 8, 13][k]
        if pre: side.append((gp - 2, pre[0])); side.append((gp - 1, pre[1]))
        side.append((gp, dm))
    if g == 0:
        if p < 7:
            side.append((11, [I("s_add_u32 s73, s73, 128"), I("s_and_b32 s73, s73, 0x380")])); side.append((12, I("s_add_u32 s62, s73, s74")))
        else:
            side.append((11, I("s_mov_b32 s62, s72")))
    if kind == "z" and cfg.tag7:
        if g == 0: side += [(1, I(f"v_mov_b32 v{ABP}, -1")), (2, I(f"v_mov_b32 v{ABP+1}, -1")), (7, I(f"v_mov_b32 v{ABP+2}, -1")), (10, I(f"v_mov_b32 v{ABP+3}, -1")),
                            (12, I(f"s_add_u32 s34, s78, {7*SL}"))]
        if g == 1: side.append((0, [VM(f"buffer_store_dwordx4 v[{ABP}:{ABP+3}], v{V_P16}, s[16:19], s34 offen sc1", ("POI", 0)),
                                    VM(f"buffer_store_dwordx4 v[{ABP}:{ABP+3}], v{V_P16}, s[16:19], s34 offen offset:1024 sc1", ("POI", 1)),
                                    VM(f"buffer_store_dwordx2 v[{ABP}:{ABP+1}], v{V_P8}, s[16:19], s34 offen offset:2048 sc1", ("POI", 2))]))
        if g == 4: side += [(1, [I(f"v_lshlrev_b32 v4, 2, v{V_L}"), I(f"v_cmp_gt_u32 vcc, 32, v{V_L}")]), (3, I(f"v_mov_b32 v5, {OOB}")), (8, I(f"v_cndmask_b32 v{ABP+4}, v5, v4, vcc"))]
    hr = []
    if kind == "z" and g >= 1:
        hr = hreads(2 * g - 2) + hreads(2 * g - 1)
        side += list(zip([0 if g % 2 == 0 else 1, 2, 4, 5, 6, 7, 9, 9, 11, 12], hr))
    if kind == "a":
        ep = ab_epilogue(); st = ab_once(0); wr = ab_once(2); ag = ab_gaddr()
        if cfg.p0v:
            if g == 0: side += spread(ep[:12], [3, 4, 5, 6, 7]) + [(9, wr[0])] + spread(ep[12:22], [8, 9, 10, 11]) + [(12, wr[1])] + spread(ep[22:28], [12, 13, 14])
            if g == 1: side += spread(ep[28:42], [1, 2, 3, 4, 5, 6, 7, 8]) + [(9, wr[2]), (11, wr[3])] + spread(ep[42:], [10, 11, 12, 13, 14])
        else:
            if g == 0: side += spread(ep[:26], [3, 4, 5, 6, 7, 9, 9, 10, 10, 11, 12, 13, 14])
            if g == 1: side += spread(ep[26:], [1, 2, 3, 4, 5, 6, 7, 9, 11, 12, 13]) + [(9, wr[0]), (10, wr[1]), (12, wr[2]), (14, wr[3])]
        if g == 2:
            r2 = ab_once(3); rd = rd + r2
            side += [(0, wr[4]), (9, r2[0]), (10, r2[1])]
        if g == 3: side += list(zip([0, 1, 2], st))
        if g in (3, 4, 5):
            s3_ = setup3(); n3 = (len(s3_) + 2) // 3
            side += spread(s3_[(g - 3) * n3:(g - 2) * n3], [3, 4, 5, 6, 7, 9, 9, 10, 10, 11, 12, 14])
    if kind == "" and g == 1:
        side.append((9, [I("s_cmp_eq_u32 s63, 6"), I("s_cbranch_scc1 L_once1")] + (ab_once(1) if (dyn and p == 1) else []) + [I("L_once1_ret:")]))
    if kind == "a": pass
    elif g < 5:
        cv, mx, w = h_tile(p - 1, g)
        if kind == "z" and g >= 1:
            side += [(3, cv[0]), (8, cv[1]), (10, mx), (13, w)]
        elif cfg.hw == 1:
            side += [(3, cv[0]), (4, cv[1]), (5, mx[0]), (6, mx[1]), (cfg.hg, w)]
        else:
            side += [(4, cv[0]), (5, cv[1]), (9, mx), (cfg.hg, w)]
    else:
        side.append((10, I(f"v_add_u32 v{V_HW}, 10240, v{V_HW}")))
    if kind == "": cyc_stamp(side, g, 2, 12, 130)
    if g == 5 and kind == "": side.append((13, [I("s_sub_u32 s63, s63, 1"), I("s_cmp_lg_u32 s63, 0")]))
    side.append((14, WAIT(f"g1_r{g}{kind}", lg=tags(rd))))
    return place(ms, side)

def nextcol():
    return [[I("s_add_u32 s62, s62, 128"), I("s_cmp_eq_u32 s62, 1152"), I("s_cselect_b32 s62, 0, s62")],
            [I("s_cmp_eq_u32 s62, s72"), I(f"s_cselect_b32 s62, {OOB}, s62"), I("s_xor_b32 s60, s60, 0x10000")]]
def g2_pass0():
    o = []
    groups = [(0, 1, 2), (3, 4, 5), (6, 7), (8, 9, 10, 11), (12, 13, 14, 15)]
    cuts = [15, 19, 23, 26, 31, 36]
    hsteps = [(10,), (11, 12), (13,), (14, 15), ()]
    htl = [(0, 1), (2, 3), (4,), (), ()]
    if cfg.g20v:
        hsteps = [(10,), (11,), (), (12, 13), (14, 15)]
        htl = [(0,), (1, 2), (3,), (4,), ()]
    for gi, st in enumerate(groups):
        ms = group_mfmas(2, st, 15); n = len(ms); side = []
        hw7 = [("HW", 7, 4)]
        if gi == 1: side.append((0, [WAIT("g20_b1", vm=cover(2, 0, 6, 12)), BAR()]))
        if gi == 3: side.append((0, [WAIT("g20_b3", vm=cover(2, 0, 12, 16), lg=None if cfg.g20v else hw7), BAR()]))
        if gi == 4: side.append((0, [WAIT("g20_b4", vm=cover(2, 1, 0, 8), lg=hw7 if cfg.g20v else None), BAR(), I(f"v_xor_b32 v{V_TR}, 0x10000, v{V_TR}")]))
        dl = list(range(cuts[gi], cuts[gi + 1]))
        dg = [min(n - 1, 2 + (i * (n - 1)) // len(dl)) for i in range(len(dl))]
        for s, gp in zip(dl, dg):
            pre, dm = wdma(2, s // 16, s % 16)
            if s % 16 == 0:
                nc = nextcol(); side.append((gp - 2, nc[0] + nc[1]))
            if pre: side.append((gp - 1, pre))
            side.append((gp, dm))
        free = [x for x in range(1 if gi in (1, 3, 4) else 0, n - 3) if x not in dg]
        rd = []
        for s in (groups[gi + 1] if gi < 4 else range(16, 20)): rd += trr(2, s // 16, s % 16)
        if cfg.g20v and gi == 4:
            h14, h15 = hreads(14), hreads(15)
            side += spread(h14 + h15, [0, 1, 2, 3, 4]) + [(9, WAIT("g20_h14", lg=tags(h14))), (14, WAIT("g20_h15", lg=tags(h15)))]
            free = [x for x in free if x > 4]
        else:
            for s in hsteps[gi]: rd += hreads(s)
        side += spread(rd, free)
        for k, t in enumerate(htl[gi]):
            cv, mx, w = h_tile(7, t)
            b = 3 + 4 * k
            side += [(b, cv[0]), (b + 1, cv[1]), (b + 2, mx[0]), (b + 3, mx[1]), ((8 if (cfg.g20v and gi == 3) else n - 3 + k), w)]
        gp_ = g2_pre()
        k_ = 30 if cfg.inloop else 20
        if gi == 3: side += spread(gp_[:k_], list(range(1, n - 1)))
        if gi == 4: side += spread(gp_[k_:], list(range(1, n - 1)))
        side.append((n - 1, WAIT(f"g20_r{gi}", lg=tags(rd))))
        o += place(ms, side)
    return o
SUM, PBUF, PB2 = 216, 236, 76
V_SELA = 248
V_FLW = 254
V_FLG = 128
V_K0, V_K1 = 129, 130
YR, GR, SEL, OA, V_YA, V_YA0, V_GA = 100, 132, 110, 114, 120, 121, 122
def slot_loads(b, tag, so="s34", r="v"):
    return [VM(f"buffer_load_dwordx4 {r}[{b}:{b+3}], v{V_P16}, s[16:19], {so} offen sc1", (tag, 0)),
            VM(f"buffer_load_dwordx4 {r}[{b+4}:{b+7}], v{V_P16}, s[16:19], {so} offen offset:1024 sc1", (tag, 1)),
            VM(f"buffer_load_dwordx2 {r}[{b+8}:{b+9}], v{V_P8}, s[16:19], {so} offen offset:2048 sc1", (tag, 2))]
def slot_add(d, b, first=False, r="v"):
    o = []
    for t in range(5):
        a = V_SELA + (0 if t & 1 else 2); bb = b + 4 * (t >> 1); D = f"v[{d+4*t}:{d+4*t+3}]"
        o.append(mfma(D, f"v[{a}:{a+3}]", f"{r}[{bb}:{bb+3}]", "0" if first else D))
    return o
def slot_next():
    return [[I("s_cmp_eq_u32 s96, 0"), I(f"s_cselect_b32 s97, {72*SL}, 0"), I("s_add_u32 s95, s95, s97")],
            [I(f"s_sub_u32 s95, s95, {7*SL}"), I("s_sub_u32 s96, s96, 1")]]
def sample(tag, so=None):
    if so: return VM(f"buffer_load_dword v{V_FLG}, v{V_FL}, s[16:19], {so} offen offset:2560 sc1", tag)
    return VM(f"buffer_load_dword v{V_FLG}, v{V_POLL}, s[16:19], 0 offen sc1", tag)
def check(lab):
    return [I(f"v_cmp_eq_u32 vcc, s7, v{V_FLG}"), I("s_and_b32 s97, vcc_lo, s35"), I("s_cmp_eq_u32 s97, s35"), I(f"s_cbranch_scc0 {lab}"), I(f"{lab}_ret:")]
def spin(lab, so=None):
    return T(f"""
    {lab}:
    s_mov_b32 s98, {SPIN}
    {lab}_l:
    {sample(None, so).text}
    s_sub_u32 s98, s98, 1
    s_cmp_eq_u32 s98, 0
    s_cbranch_scc1 {lab}_ret
    s_waitcnt vmcnt(0)
    v_cmp_eq_u32 vcc, s7, v{V_FLG}
    s_and_b32 s97, vcc_lo, s35
    s_cmp_eq_u32 s97, s35
    s_cbranch_scc1 {lab}_ret
    {f"s_sleep {cfg.slp2}" if cfg.slp2 else "s_nop 0"}
    s_branch {lab}_l
    """)
def tagcheck():
    b = PB2
    return T(f"""
    v_max3_u32 v4, v{b}, v{b+1}, v{b+2}
    v_max3_u32 v5, v{b+3}, v{b+4}, v{b+5}
    v_max3_u32 v6, v{b+6}, v{b+7}, v{b+8}
    v_max3_u32 v4, v4, v{b+9}, v5
    v_max_u32 v4, v4, v6
    v_cmp_eq_u32 vcc, -1, v4
    s_nop 4
    """)
def spin_tag():
    return T(f"L_sp3:\ns_mov_b32 s98, {SPIN}\nL_sp3_l:") + slot_loads(PB2, None, "s95") + T("""
    s_sub_u32 s98, s98, 1
    s_waitcnt vmcnt(0)
    s_cmp_eq_u32 s98, 0
    s_cbranch_scc1 L_sp3_ret
    """) + tagcheck() + T("s_cbranch_vccnz L_sp3_l\ns_branch L_sp3_ret")
EB = 216
V_POLLE = 129
EB2 = 132
def ep_block(which, p=None):
    if cfg.ep2 == 2:
        if which == 0: return [sample(("EPS", p), "s79")]
        adr = (94, 96, 34, 100, 101, 101); buf = (EB, EB + 10, EB + 20, EB2, EB2 + 10)
        o = check("L_sp1")
        for j in range(5):
            body = slot_loads(buf[j], ("SL", j), "s79") + [I(f"s_mov_b32 s79, s{adr[j+1]}")]
            head = [I(f"s_cmp_lg_u32 s63, {5-j}"), I(f"s_cbranch_scc1 L_epn{j}")] if j < 4 else []
            if p is None: o += head + body + ([I("s_branch L_ep1_ret"), I(f"L_epn{j}:")] if j < 4 else [])
            elif p == 3 + j: return o + head + body
            else: o += head
        return o
    if which == 0: return [VM(f"buffer_load_dword v{V_FLG}, v{V_POLLE}, s[16:19], 0 offen sc1", ("EPS", p))]
    o = check("L_sp1")
    e1 = []; e2 = []
    for j in range(cfg.early): e1 += slot_loads(EB + 10 * j, ("SL", j), f"s{(94, 96, 34)[j]}")
    if not cfg.ep2: return o + e1
    e1.append(I("s_movk_i32 s35, 0x18"))
    for j in (3, 4): e2 += slot_loads(EB2 + 10 * (j - 3), ("SL", j), f"s{(100, 101)[j - 3]}")
    o += [I("s_cmp_eq_u32 s63, 1"), I("s_cbranch_scc1 L_ep2")]
    if p is None: return o + e1 + [I("s_branch L_ep1_ret"), I("L_ep2:")] + e2
    return o + (e2 if p == 7 else e1)
def g2_group(p, g, ep=()):
    ms = group_mfmas(2, range(4 * g, 4 * g + 4), 15); side = []
    if g in (1, 3):
        need = cover(2, p, 8, 16) if g == 1 else cover(2, p + 1, 0, 8) + [("PST", p - 1, 2)] + (([("SMP", p)] + ([(("SL", p - 1), 2)] if p > 1 else [])) if cfg.inloop else [])
        if g == 3 and p in ep and cfg.early and not cfg.inloop: need = need + [("EPS", p)]
        side.append((0, [WAIT(f"g2_b{g}", vm=need), BAR()] + ([I(f"v_xor_b32 v{V_TR}, 0x10000, v{V_TR}")] if g == 3 else [])))
    rd = []
    for s in range(4 * g + 4, 4 * g + 8): rd += trr(2, p + s // 16, s % 16)
    side += list(zip([1, 2, 4, 5, 6, 7, 9, 10], rd))
    for k, s in enumerate(range(4 * g + 20, 4 * g + 24)):
        pre, dm = wdma(2, p + s // 16, s % 16)
        gp = [3, 8, 13, 18][k]
        if pre: side.append((gp - 2, pre[0])); side.append((gp - 1, pre[1]))
        side.append((gp, dm))
    if g == 0:
        pp = p_parts(p - 1)
        if cfg.inloop: side.append((0, sample(("SMP", p), "s34")))
        side += list(zip([4, 5, 6, 7, 9, 10, 11, 12, 14, 14], pp[0][0] + pp[1][0] + pp[2][0]))
        side += [(15, pp[0][1]), (16, pp[1][1]), (17, pp[2][1])]
    if g == 2:
        nc = nextcol(); side += [(16, nc[0]), (17, nc[1])]
        if cfg.inloop: sn = slot_next(); side += [(14, sn[0]), (15, sn[1])]
    if cfg.early and not cfg.inloop and g in (0, 3):
        w = 0 if g == 0 else 1
        side.append((0 if g == 0 else cfg.epg, [I("s_bitcmp1_b32 s99, s63"), I(f"s_cbranch_scc1 L_ep{w}")] + (ep_block(w, p) if p in ep else []) + [I(f"L_ep{w}_ret:")]))
    if g == 3 and not cfg.inloop:
        side.append((cfg.flg, VM(f"buffer_store_dword v{V_TAG}, v{V_FLW}, s[16:19], s78 offen offset:2560 sc1", ("PFL", p - 1))))
        side.append((16, I(f"s_add_u32 s78, s78, {SL}")))
        side.append((19, [I("s_sub_u32 s63, s63, 1"), I("s_cmp_lg_u32 s63, 0")]))
    if g == 3 and cfg.inloop:
        ad = slot_add(SUM, PBUF); ld = slot_loads(PBUF, ("SL", p)); ck = check("L_sp1")
        side.append((0, [ad[0], VM(f"buffer_store_dword v{V_TAG}, v{V_FLW}, s[16:19], s78 offen offset:2560 sc1", ("PFL", p - 1)),
                         ad[1], ck[0], ad[2]] + ck[1:] + [ad[3], I(f"s_add_u32 s78, s78, {SL}"), ad[4]]))
        side += list(zip([14, 15, 16], ld))
        side.append((17, [I("s_cmp_gt_u32 s63, 6"), I(f"s_cselect_b32 s34, {OOB}, s95"), I("s_cselect_b32 s35, 0, 1")]))
        side.append((18, [I("s_sub_u32 s63, s63, 1"), I("s_cmp_lg_u32 s63, 0")]))
    cyc_stamp(side, g, 1, 19, 152-1 if False else 131)
    side.append((19, WAIT(f"g2_r{g}", lg=tags(rd))))
    return place(ms, side)

def g2_pre():
    o = T(f"""
    v_sub_u32 v5, s6, v{V_L}
    v_add_u32 v6, 9, v5
    v_min_u32 v5, v5, v6
    v_lshl_add_u32 v5, v5, 3, v{V_L}
    s_mul_i32 s95, s4, {72*SL}
    s_mul_i32 s96, s3, {WSL}
    s_add_u32 s95, s95, s96
    s_add_u32 s95, s95, {WS_PART}
    v_mul_u32_u24 v5, {SL}, v5
    s_add_u32 s97, s95, 2560
    v_add_u32 v5, s97, v5
    s_lshl_b32 s97, s4, 7
    s_add_u32 s97, s97, {WS_YFLAG - 32}
    v_lshl_add_u32 v6, v{V_L}, 2, s97
    v_cmp_gt_u32 vcc, 8, v{V_L}
    s_mov_b32 s82, {(0x20 if (cfg.inloop or cfg.ep2) else (1 << cfg.ne) - (1 << cfg.early)) | (0xfffff << 8)}
    s_mul_i32 s97, s6, {8*SL}
    v_cndmask_b32 v5, v6, v5, vcc
    s_mov_b32 s83, 0
    v_mov_b32 v6, {OOB}
    s_add_u32 s95, s95, s97
    v_cndmask_b32 v{V_POLL}, v6, v5, s[82:83]
    s_mov_b32 s82, {0xff & ~((1 << cfg.ne) - 1)}
    s_add_u32 s95, s95, {14*SL if cfg.inloop else 0}
    v_cndmask_b32 v255, v6, v5, s[82:83]
    s_mov_b32 s82, {0x1f if cfg.ep2 else (1 << cfg.early) - 1}
    s_nop 0
    v_cndmask_b32 v{V_POLLE}, v6, v5, s[82:83]
    s_add_u32 s96, s6, 2
    s_mov_b32 s63, 7
    s_mov_b32 s34, {OOB}
    s_mov_b32 s35, 0
    v_lshlrev_b32 v4, 2, v{V_L}
    v_cmp_gt_u32 vcc, 32, v{V_L}
    v_lshlrev_b32 v5, 2, v{V_Q}
    v_sub_u32 v5, v{V_C}, v5
    v_cndmask_b32 v{V_FLW}, v6, v4, vcc
    v_and_b32 v4, 1, v5
    v_lshlrev_b32 v4, 4, v4
    v_mov_b32 v6, 0x3f80
    v_lshlrev_b32 v4, v4, v6
    v_lshrrev_b32 v5, 1, v5
    v_cmp_eq_u32 vcc, 0, v5
    v_mov_b32 v{V_SELA}, 0
    v_mov_b32 v{V_SELA+1}, 0
    v_cndmask_b32 v{V_SELA+2}, 0, v4, vcc
    v_cmp_eq_u32 vcc, 1, v5
    v_mov_b32 v{V_SELA+4}, 0
    v_mov_b32 v{V_SELA+5}, 0
    v_cndmask_b32 v{V_SELA+3}, 0, v4, vcc
    """)
    if cfg.early and not cfg.inloop:
        o += T(f"""
        v_mov_b32 v{EB+30}, 0
        v_mov_b32 v{EB+31}, 0
        s_mov_b32 s35, {(1 << cfg.early) - 1}
        s_mul_i32 s99, s4, 21846
        s_lshr_b32 s99, s99, 16
        s_mul_i32 s99, s99, 3
        s_sub_u32 s99, s4, s99
        s_min_u32 s99, s99, {cfg.epm - 1}
        s_lshl_b32 s99, 2, s99
        s_mov_b32 s94, s95
        """)
        if cfg.ep2:
            o += T("s_and_b32 s99, s4, 1\ns_lshl_b32 s99, 4, s99\ns_or_b32 s99, s99, 2")
            if cfg.ep2 == 2: o += T("s_movk_i32 s99, 0x3e\ns_mov_b32 s35, 1\ns_mov_b32 s79, s95")
            for j in (3, 4): o.append([I(f"s_cmp_lt_u32 s6, {j}"), I(f"s_cselect_b32 s{97+j}, {72*SL}, 0"), I(f"s_add_u32 s{97+j}, s{97+j}, s95"), I(f"s_sub_u32 s{97+j}, s{97+j}, {7*j*SL}")])
        o.append([I("s_cmp_lt_u32 s6, 1"), I(f"s_cselect_b32 s96, {72*SL}, 0"), I("s_add_u32 s96, s96, s95"), I(f"s_sub_u32 s96, s96, {7*SL}")])
        o.append([I("s_cmp_lt_u32 s6, 2"), I(f"s_cselect_b32 s34, {72*SL}, 0"), I("s_add_u32 s34, s34, s95"), I(f"s_sub_u32 s34, s34, {14*SL}")])
    if cfg.inloop:
        for i in range(20): o.append(I(f"v_mov_b32 v{SUM+i}, 0"))
        for i in range(12): o.append(I(f"v_mov_b32 v{PBUF+i}, 0"))
    return o

def fin_setup():
    o = T(f"""
    s_lshl_b32 s68, s6, 6
    s_lshl_b32 s69, s3, 4
    s_add_u32 s68, s68, s69
    v_add_u32 v5, s68, v{V_C}
    v_sub_u32 v6, 576, v5
    v_cmp_lt_u32 s[76:77], v6, v5
    v_min_u32 v6, v5, v6
    s_mul_i32 s69, s4, 20
    v_add_u32 v7, s69, v{V_Q}
    s_movk_i32 s70, 2560
    v_lshlrev_b32 v6, 3, v6
    v_mad_u32_u24 v{V_YA}, v7, s70, v6
    v_add_u32 v{V_YA}, {WS_YT}, v{V_YA}
    v_cmp_eq_u32 s[80:81], 0, v7
    v_add_u32 v9, {512*2560}, v{V_YA}
    s_and_b64 s[82:83], s[80:81], s[76:77]
    v_lshlrev_b32 v{V_GA}, 4, v7
    v_add_u32 v{V_GA}, {WS_GT}, v{V_GA}
    v_cndmask_b32 v{V_YA0}, v{V_YA}, v9, s[82:83]
    """)
    for rho in range(4):
        d = 0x0c0c | ((2 * rho) << 16) | ((2 * rho + 1) << 24); m = 0x0c0c | ((6 - 2 * rho) << 16) | ((7 - 2 * rho) << 24)
        o += T(f"v_mov_b32 v8, {d}\nv_mov_b32 v9, {m}\nv_cndmask_b32 v{SEL+rho}, v8, v9, s[76:77]")
    o += T(f"""
    s_lshl_b32 s68, s3, 1
    v_lshrrev_b32 v5, 1, v{V_Q}
    v_add_u32 v5, s68, v5
    v_and_b32 v6, 7, v{V_C}
    v_xor_b32 v5, v5, v6
    v_lshlrev_b32 v5, 4, v5
    v_lshl_add_u32 v5, v{V_C}, 7, v5
    v_and_b32 v6, 1, v{V_Q}
    v_lshl_add_u32 v5, v6, 3, v5
    v_add_u32 v{OA}, {OUTL}, v5
    v_lshrrev_b32 v5, 3, v{V_L}
    v_and_b32 v6, 7, v{V_L}
    v_xor_b32 v7, v5, v6
    v_lshlrev_b32 v7, 4, v7
    v_lshl_add_u32 v7, v5, 7, v7
    s_lshl_b32 s70, s3, 10
    s_add_u32 s70, s70, {OUTL}
    v_add_u32 v{OA+1}, s70, v7
    s_lshl_b32 s70, s6, 7
    v_lshl_add_u32 v6, v6, 4, s70
    v_and_b32 v5, 3, v5
    v_lshrrev_b32 v7, 5, v{V_L}
    s_add_u32 s68, s68, s69
    v_add_u32 v7, s68, v7
    s_add_u32 s69, s69, 20
    s_min_u32 s69, s69, 512
    s_movk_i32 s67, 1152
    """)
    for k in range(3):
        o += rowcalc(7, 5, OA + 2 + k, 8) + T(f"""
        v_cmp_gt_u32 vcc, s69, v7
        v_mad_u32_u24 v{OA+2+k}, v{OA+2+k}, s67, v6
        v_mov_b32 v8, {OOB}
        v_cndmask_b32 v{OA+2+k}, v8, v{OA+2+k}, vcc
        v_add_u32 v7, 8, v7
        """)
    return o

V_P12, V_FLG2 = 99, 131
T7 = 56
Q7 = 100
def pos7(i): return i + i // 3
def loads7():
    l = [VM(f"buffer_load_dwordx4 v[{T7+4*k}:{T7+4*k+3}], v{V_P16}, s[16:19], s71 offen offset:{1024*k} sc1", (("SL", 7), 5 + k)) for k in range(3)]
    return l + [VM(f"buffer_load_dwordx2 v[{T7+12}:{T7+13}], v{V_P8}, s[16:19], s71 offen offset:3072 sc1", (("SL", 7), 2))]
def chk7():
    return T(f"""
    v_xor_b32 v4, s7, v{T7+3}
    v_xor_b32 v5, s7, v{T7+7}
    v_xor_b32 v6, s7, v{T7+11}
    v_xor_b32 v7, s7, v{T7+13}
    v_or3_b32 v4, v4, v5, v6
    v_or_b32 v4, v4, v7
    v_cmp_ne_u32 vcc, 0, v4
    s_nop 4
    """)
def spin7():
    return T(f"L_sp4:\ns_mov_b32 s98, {SPIN}\nL_sp4_l:") + loads7() + T("""
    s_sub_u32 s98, s98, 1
    s_waitcnt vmcnt(0)
    s_cmp_eq_u32 s98, 0
    s_cbranch_scc1 L_sp4_ret
    """) + chk7() + T("s_cbranch_vccnz L_sp4_l\ns_branch L_sp4_ret")
def g2_last2(fs, ad):
    o = []; p = 8; E = 5 if cfg.ep2 else cfg.early; F7 = cfg.chk7 == 2
    yg = []
    for t in range(5):
        yg.append([I(f"s_or_b32 s61, s75, {t*4*2560}" if t >= 3 else f"s_mov_b32 s61, {t*4*2560}"), VM(f"buffer_load_dwordx2 v[{YR+2*t}:{YR+2*t+1}], v{V_YA0 if t == 0 else V_YA}, s[16:19], s61 offen sc1", ("YL", t))])
        yg.append(VM(f"buffer_load_dwordx4 v[{GR+4*t}:{GR+4*t+3}], v{V_GA}, s[16:19], {'s75' if t >= 3 else '0'} offen offset:{64*t} sc1", ("GL", t)))
    ld = []
    for j in range(E, 6): ld += slot_loads(12 * j, ("SL", j), f"s{64+j}", "a")
    ld += yg
    for g in range(4):
        ms = group_mfmas(2, range(4 * g, 4 * g + 4), 15); side = []
        rd = []
        if g < 3:
            for s in range(4 * g + 4, 4 * g + 8): rd += trr(2, p, s)
            side += list(zip([1, 2, 4, 5, 6, 7, 9, 10] if g else [10, 11, 12, 13, 14, 15, 16, 17], rd))
        if g == 0:
            side.append((0, sample("S0")))
            if F7:
                pp = p_parts(7)
                side += list(zip([1, 1, 2, 2, 4, 4, 5, 5, 7, 7], pp[0][0] + pp[1][0] + pp[2][0]))
                side += [(3, pp[0][1]), (6, pp[1][1]), (8, pp[2][1])]
            else:
                cv = [I(f"v_cvt_pk_bf16_f32 v{Q7+pos7(i)}, v{E0+2*i}, v{E0+2*i+1}") for i in range(10)]
                st = [VM(f"buffer_store_dwordx4 v[{Q7+4*k}:{Q7+4*k+3}], v{V_P16}, s[16:19], s78 offen offset:{1024*k} sc1", ("PST", 7, k)) for k in range(3)]
                st.append(VM(f"buffer_store_dwordx2 v[{Q7+12}:{Q7+13}], v{V_P8}, s[16:19], s78 offen offset:3072 sc1", ("PST", 7, 3)))
                side += list(zip([1, 1, 2, 3, 4, 4, 5, 6, 6, 7], cv)) + list(zip([2, 4, 7, 8], st))
            side += spread(ad, list(range(10, 19)))
            side.append((19, I(f"s_mov_b32 s35, {((1 << 6) - (1 << E)) | (0xfffff << 8)}")))
        if g == 1:
            side.append((0, [WAIT("g2z_b1", vm=cover(2, p, 8, 16)), BAR()]))
            side += spread(fs[:24], list(range(1, 12)))
            side.append((12, [WAIT("g2z_s0", vm=["S0"])] + check("L_sp2") + [I("s_mov_b32 s35, 1"), sample("S1", "s70")]))
            if cfg.ep2:
                ld = ld[:3] + yg[0::2] + yg[1::2]
                side.append((14, slot_add(16, EB2) + slot_add(16, EB2 + 10)))
            side += list(zip(range(13, 20), ld[:7]))
        if g == 2:
            if F7: side.append((0, [WAIT("g2z_st", vm=[("PST", 7, 2)]), VM(f"buffer_store_dword v{V_TAG}, v{V_FLW}, s[16:19], s78 offen offset:2560 sc1", ("PFL", 7))]))
            side += spread(ld[7:], list(range(0, 6 if cfg.ep2 else 16)))
            side += spread(fs[24:45], list(range(0, 20)))
        if g == 3:
            side += spread(fs[45:], [x for x in range(0, 20) if x < cfg.s6g - 1 or x > cfg.s6g])
            ck = [I(x.text.replace("vcc_lo", "s80").replace("vcc", "s[80:81]")) for x in check("L_sp3")]
            side.append((cfg.s6g, [WAIT("g2z_s1", vm=["S1"])] + ck + slot_loads(72, ("SL", 6), "s70", "a") + ([] if F7 else loads7())))
            if F7: side.append((19, sample("S2", "s71")))
        if g < 3: side.append((19, WAIT(f"g2z_r{g}", lg=tags(rd))))
        o += place(ms, side)
    o += TS(7)
    for j in range(cfg.early): o += slot_add(E0, EB + 10 * j)
    for j in range(E, 6):
        o.append(WAIT(f"fin_a{j}", vm=[(("SL", j), 2)])); o += slot_add(E0, 12 * j, r="a")
    YT_ = 56 if F7 else EB
    o.append(WAIT("fin_gl", vm=[("GL", 4)]))
    for t in range(5):
        for rho in range(4): o.append(I(f"v_perm_b32 v{YT_+4*t+rho}, v{YR+2*t+1}, v{YR+2*t}, v{SEL+rho}"))
    if F7:
        o.append(WAIT("fin_s2", vm=["S2"])); o += check("L_sp4") + slot_loads(84, ("SL", 7), "s71", "a")
    for i in range(20): o.append(I(f"v_mul_f32 v{YT_+i}, v{YT_+i}, v{GR+i}"))
    for i in range(20): o.append(I(f"v_sub_f32 v{GR+i}, 1.0, v{GR+i}"))
    o.append(WAIT("fin_6", vm=[(("SL", 6), 2)])); o += slot_add(E0, 72, r="a")
    o.append(WAIT("fin_7", vm=[(("SL", 7), 2)]))
    if F7: return o + slot_add(E0, 84, r="a") + [I("s_nop 3")] + fin_out()
    o += chk7() + T("s_cbranch_vccnz L_sp4\nL_sp4_ret:")
    for i in range(3, 10): o.append(I(f"v_mov_b32 v{T7+i}, v{T7+pos7(i)}"))
    o += T(f"v_mov_b32 v{T7+10}, 0\nv_mov_b32 v{T7+11}, 0")
    o += slot_add(E0, T7)
    o.append(I("s_nop 3"))
    return o + fin_out(YT_)
def g2_last0():
    o = []; p = 8
    fs = fin_setup()
    ad = []
    for j in range(8):
        ad.append([I(f"s_cmp_lt_u32 s6, {j}"), I(f"s_cselect_b32 s{64+j}, {72*SL}, 0"), I(f"s_add_u32 s{64+j}, s{64+j}, s95"), I(f"s_sub_u32 s95, s95, {7*SL}")])
    fs = [I(x.text.replace("s67", "s96").replace("s68", "s62").replace("s69", "s94").replace("s70", "s34")) for x in fs]
    if cfg.chk7: return g2_last2(fs, ad)
    NE = cfg.ne; E = cfg.early
    yg = []
    for t in range(5):
        yg.append([I(f"s_or_b32 s61, s75, {t*4*2560}" if t >= 3 else f"s_mov_b32 s61, {t*4*2560}"), VM(f"buffer_load_dwordx2 v[{YR+2*t}:{YR+2*t+1}], v{V_YA0 if t == 0 else V_YA}, s[16:19], s61 offen sc1", ("YL", t))])
        yg.append(VM(f"buffer_load_dwordx4 v[{GR+4*t}:{GR+4*t+3}], v{V_GA}, s[16:19], {'s75' if t >= 3 else '0'} offen offset:{64*t} sc1", ("GL", t)))
    ld = []
    for j in range(E, NE): ld += slot_loads(12 * j, ("SL", j), f"s{64+j}", "a")
    ld += yg
    for g in range(4):
        ms = group_mfmas(2, range(4 * g, 4 * g + 4), 15); side = []
        rd = []
        if g < 3:
            for s in range(4 * g + 4, 4 * g + 8): rd += trr(2, p, s)
            side += list(zip([1, 2, 4, 5, 6, 7, 9, 10] if g else [9, 10, 11, 12, 13, 14, 15, 16], rd))
        if g == 0:
            pp = p_parts(7)
            side.append((0, sample("S0")))
            side += list(zip([1, 1, 2, 2, 4, 4, 5, 5, 7, 7], pp[0][0] + pp[1][0] + pp[2][0]))
            side += [(3, pp[0][1]), (6, pp[1][1]), (8, pp[2][1])]
            side += spread(ad, list(range(9, 19)))
            side.append((19, I(f"s_mov_b32 s35, {((1 << NE) - (1 << E)) | (0xfffff << 8)}")))
        if g == 1:
            side.append((0, [WAIT("g2z_b1", vm=cover(2, p, 8, 16)), BAR()]))
            side += spread(fs[:24], list(range(1, 12)))
            side.append((12, [WAIT("g2z_s0", vm=["S0"])] + check("L_sp2")))
            side += list(zip(range(13, 20), ld[:7]))
        if g == 2:
            side.append((cfg.stg, [WAIT("g2z_st", vm=[("PST", 7, 2)]), VM(f"buffer_store_dword v{V_TAG}, v{V_FLW}, s[16:19], s78 offen offset:2560 sc1", ("PFL", 7))]))
            side += spread(ld[7:], list(range(cfg.stg + 1, 20)))
            side += spread(fs[24:45], list(range(0, 20)))
        if g == 3:
            side += spread(fs[45:], list(range(0, 19)))
            side.append((19, [I(f"s_mov_b32 s35, {0xff & ~((1 << NE) - 1)}"), I(f"v_mov_b32 v{V_POLL}, v255"), sample("S1")]))
        if g < 3: side.append((19, WAIT(f"g2z_r{g}", lg=tags(rd))))
        o += place(ms, side)
    o += TS(7)
    for j in range(E): o += slot_add(E0, EB + 10 * j)
    for j in range(E, NE):
        o.append(WAIT(f"fin_a{j}", vm=[(("SL", j), 2)])); o += slot_add(E0, 12 * j, r="a")
    o.append(WAIT("fin_s1", vm=["S1"])); o += check("L_sp3")
    for j in range(7, NE - 1, -1): o += slot_loads(12 * j, ("SL", j), f"s{64+j}", "a")
    for t in range(5):
        for rho in range(4): o.append(I(f"v_perm_b32 v{56+4*t+rho}, v{YR+2*t+1}, v{YR+2*t}, v{SEL+rho}"))
    for i in range(20): o.append(I(f"v_mul_f32 v{56+i}, v{56+i}, v{GR+i}"))
    for i in range(20): o.append(I(f"v_sub_f32 v{GR+i}, 1.0, v{GR+i}"))
    for j in range(7, NE - 1, -1):
        o.append(WAIT(f"fin_{j}", vm=[(("SL", j), 2)])); o += slot_add(E0, 12 * j, r="a")
    o.append(I("s_nop 3"))
    return o + fin_out()

def g2_last():
    if not cfg.inloop: return g2_last0()
    o = []; p = 8
    fs = fin_setup()
    yg = []
    for t in range(5):
        yg.append([I(f"s_or_b32 s61, s75, {t*4*2560}" if t >= 3 else f"s_mov_b32 s61, {t*4*2560}"), VM(f"buffer_load_dwordx2 v[{YR+2*t}:{YR+2*t+1}], v{V_YA0 if t == 0 else V_YA}, s[16:19], s61 offen sc1", ("YL", t))])
        yg.append(VM(f"buffer_load_dwordx4 v[{GR+4*t}:{GR+4*t+3}], v{V_GA}, s[16:19], {'s75' if t >= 3 else '0'} offen offset:{64*t} sc1", ("GL", t)))
    for g in range(4):
        ms = group_mfmas(2, range(4 * g, 4 * g + 4), 15); side = []
        if g == 0:
            for t, m in enumerate([m for m in ms if m.text.endswith(", 0")]): m.text = m.text[:-1] + f"v[{SUM+4*t}:{SUM+4*t+3}]"
        rd = []
        if g < 3:
            for s in range(4 * g + 4, 4 * g + 8): rd += trr(2, p, s)
            side += list(zip([1, 2, 4, 5, 6, 7, 9, 10] if g else [9, 10, 11, 12, 13, 14, 15, 16], rd))
        if g == 0:
            pp = p_parts(7)
            side.append((0, sample("S0")))
            side += list(zip([1, 1, 2, 2, 4, 4, 5, 5, 7, 7], pp[0][0] + pp[1][0] + pp[2][0]))
            side += [(3, pp[0][1]), (6, pp[1][1]), (8, pp[2][1])]
            side += spread(fs[:19], list(range(9, 19)))
            side.append((19, I(f"s_mov_b32 s35, {(1 << 5) | (0xfffff << 8)}")))
        if g == 1:
            side.append((0, [WAIT("g2z_b1", vm=cover(2, p, 8, 16)), BAR()]))
            side += spread(fs[19:40], list(range(1, 11)))
            side.append((11, [I(f"v_mov_b32 v{PK+10}, 0"), I(f"v_mov_b32 v{PK+11}, 0")]))
            side.append((12, [WAIT("g2z_s0", vm=["S0"])] + check("L_sp2")))
            side += list(zip([13, 14, 15], slot_loads(PK, "SL5", "s95"))) + list(zip([16, 17, 18, 19], yg[:4]))
        if g == 2:
            side += list(zip([0, 1, 2, 3, 4, 5], yg[4:]))
            side.append((cfg.stg, [WAIT("g2z_st", vm=[("PST", 7, 2)]), VM(f"buffer_store_dword v{V_TAG}, v{V_FLW}, s[16:19], s78 offen offset:2560 sc1", ("PFL", 7))]))
            side.append((11, slot_add(SUM, PBUF, True)))
            sn = slot_next(); side += [(12, sn[0]), (13, sn[1]), (14, I("s_mov_b32 s34, s95"))]
            sn = slot_next(); side += [(15, sn[0]), (16, sn[1]), (17, [I("s_movk_i32 s35, 0xc0"), I(f"v_mov_b32 v{V_POLL}, v255")])]
        if g == 3:
            side += spread(fs[40:], list(range(0, 20)))
            side.append((19, sample("S1")))
        if g < 3: side.append((19, WAIT(f"g2z_r{g}", lg=tags(rd))))
        o += place(ms, side)
    o += TS(7)
    o += T(f"v_mov_b32 v{PB2+10}, 0\nv_mov_b32 v{PB2+11}, 0")
    o.append(WAIT("fin_gl", vm=[("GL", 4)]))
    o += slot_add(SUM, PK)
    for t in range(5):
        for rho in range(4): o.append(I(f"v_perm_b32 v{56+4*t+rho}, v{YR+2*t+1}, v{YR+2*t}, v{SEL+rho}"))
    o.append(WAIT("fin_s1", vm=["S1"])); o += check("L_sp3")
    o += slot_loads(PB2, "SL7", "s95") + slot_loads(PBUF, "SL6", "s34")
    for i in range(20): o.append(I(f"v_add_f32 v{E0+i}, v{E0+i}, v{SUM+i}"))
    for i in range(20): o.append(I(f"v_mul_f32 v{56+i}, v{56+i}, v{GR+i}"))
    for i in range(20): o.append(I(f"v_sub_f32 v{GR+i}, 1.0, v{GR+i}"))
    o.append(WAIT("fin_7", vm=[("SL7", 2)])); o += slot_add(E0, PB2)
    o.append(WAIT("fin_6", vm=[("SL6", 2)])); o += slot_add(E0, PBUF)
    o.append(I("s_nop 3"))
    return o + fin_out()
def fin_out(Y=56):
    OF = ('', ' sc1', ' nt', ' sc0 sc1')[cfg.osc]
    o = []
    for t in range(5):
        for rho in range(4): o.append(I(f"v_fmac_f32 v{Y+4*t+rho}, v{E0+4*t+rho}, v{GR+4*t+rho}"))
        o += T(f"v_cvt_pk_bf16_f32 v{PK+2*t}, v{Y+4*t}, v{Y+4*t+1}\nv_cvt_pk_bf16_f32 v{PK+2*t+1}, v{Y+4*t+2}, v{Y+4*t+3}")
    o += T(f"v_mov_b32 v{PK+10}, 0\nv_mov_b32 v{PK+11}, 0")
    for t in range(5):
        a = V_SELA + (0 if t & 1 else 2); bb = PK + 4 * (t >> 1)
        o.append(mfma(ACC(t), f"v[{bb}:{bb+3}]", f"v[{a}:{a+3}]", "0"))
    o.append(I("s_nop 3"))
    for t in range(5):
        r = 16 + 4 * t
        o += T(f"v_cvt_pk_bf16_f32 v{56+2*t}, v{r}, v{r+1}\nv_cvt_pk_bf16_f32 v{57+2*t}, v{r+2}, v{r+3}")
        o.append(LG(f"ds_write_b64 v{OA}, v[{56+2*t}:{57+2*t}] offset:{2048*t}", ("OW", t), wr=(OUTL, OUTL + 10240)))
    o += [WAIT("out_w", lg="all"), BAR()]
    for k in range(3): o.append(LG(f"ds_read_b128 v[{68+4*k}:{71+4*k}], v{OA+1} offset:{4096*k}", ("OR", k), rd=(OUTL, OUTL + 10240)))
    for k in range(3):
        o += [WAIT(f"out_r{k}", lg=[("OR", k)]), I(f"buffer_store_dwordx4 v[{68+4*k}:{71+4*k}], v{OA+2+k}, s[24:27], 0 offen{OF}")]
    o += T(f"""
    s_or_b32 s68, s2, s3
    s_cmp_eq_u32 s68, 0
    s_cbranch_scc0 L_noepoch
    buffer_store_dword v{V_TAG}, v{V_FL}, s[16:19], 0 offen sc1
    L_noepoch:
    """)
    return o

def T(s): return [I(x.strip()) for x in s.strip().split("\n") if x.strip()]
def rowcalc(o, rho, d, tmp):
    return T(f"""
    v_cmp_eq_u32 vcc, 0, v{o}
    v_mov_b32 v{tmp}, 512
    v_add_u32 v{tmp+1}, 1, v{rho}
    v_cndmask_b32 v{tmp}, v{o}, v{tmp}, vcc
    v_cmp_lt_u32 vcc, 1, v{rho}
    v_sub_u32 v{tmp}, 0, v{tmp}
    v_lshrrev_b32 v{tmp+1}, 1, v{tmp+1}
    v_cndmask_b32 v{tmp}, v{o}, v{tmp}, vcc
    v_lshl_add_u32 v{d}, v{tmp+1}, 10, v{tmp}
    """)

def srd(b, p, n): return T(f"s_mov_b32 s{b}, s{p}\ns_mov_b32 s{b+1}, s{p+1}\ns_mov_b32 s{b+2}, {n}\ns_mov_b32 s{b+3}, 0x20000")

def prologue():
    o = T(f"""
    s_cmp_ge_u32 s2, 256
    s_cbranch_scc1 L_end
    s_load_dwordx16 s[36:51], s[0:1], 0
    s_load_dwordx8 s[52:59], s[0:1], 64
    """) + TS(0) + T(f"""
    v_lshrrev_b32 v4, 6, v0
    v_and_b32 v{V_L}, 63, v0
    v_readfirstlane_b32 s3, v4
    v_and_b32 v{V_C}, 15, v0
    v_bfe_u32 v{V_Q}, v0, 4, 2
    s_and_b32 s60, s2, 3
    s_bfe_u32 s61, s2, 0x10002
    s_lshr_b32 s62, s2, 3
    {"s_and_b32 s63, s2, 7" if cfg.bal else "s_nop 0"}
    {"s_cmp_ge_u32 s63, 6" if cfg.bal else "s_cmp_eq_u32 s60, 3"}
    s_cselect_b32 s63, 30, 29
    s_cmp_ge_u32 s62, s63
    s_cbranch_scc1 L_spare
    """)
    if cfg.map == 0:
        o += T("""
    s_mul_i32 s64, s60, 29
    s_add_u32 s64, s64, s62
    s_mul_i32 s5, s64, 5042
    s_lshr_b32 s5, s5, 16
    s_mul_i32 s65, s5, 13
    s_sub_u32 s64, s64, s65
    s_mul_i32 s4, s61, 13
    s_add_u32 s4, s4, s64
    """)
    elif cfg.map == 1:
        o += T("""
    s_mul_i32 s64, s61, 13
    s_mul_i32 s65, s60, 3
    s_add_u32 s64, s64, s65
    s_add_u32 s64, s64, s62
    s_sub_u32 s64, s64, 26
    s_and_b32 s65, s2, 7
    s_cmp_lt_u32 s62, 26
    s_cselect_b32 s4, s62, s64
    s_cselect_b32 s5, s65, 8
    """)
    else:
        o += T("""
    s_mul_i32 s65, s60, 3
    s_add_u32 s64, s65, s62
    s_sub_u32 s64, s64, 26
    s_lshl_b32 s5, s60, 1
    s_cmp_ge_u32 s62, 13
    s_cselect_b32 s65, 13, 0
    s_cselect_b32 s66, 1, 0
    s_add_u32 s5, s5, s66
    s_sub_u32 s4, s62, s65
    s_cmp_lt_u32 s62, 26
    s_cselect_b32 s4, s4, s64
    s_cselect_b32 s5, s5, 8
    s_mul_i32 s65, s61, 13
    s_add_u32 s4, s4, s65
    """)
        if cfg.bal: o += T("s_cmp_eq_u32 s2, 238\ns_cselect_b32 s4, 12, s4")
    o += T(f"""
    v_lshrrev_b32 v4, 3, v{V_L}
    v_bfe_u32 v5, v{V_L}, 4, 1
    v_lshrrev_b32 v6, 5, v{V_L}
    s_mul_i32 s65, s4, 20
    v_mul_u32_u24 v9, 511, v5
    v_add3_u32 v6, v6, v9, s65
    s_and_b32 s66, s3, 1
    s_lshl_b32 s66, s66, 2
    v_add_u32 v7, s66, v{V_Q}
    v_and_b32 v8, 7, v{V_L}
    v_xor_b32 v7, v7, v8
    v_lshlrev_b32 v7, 4, v7
    s_movk_i32 s67, 1152
    v_and_b32 v9, 3, v4
    v_add_u32 v9, 1, v9
    v_lshrrev_b32 v9, 1, v9
    v_lshlrev_b32 v9, 10, v9
    v_sub_u32 v9, v9, v5
    v_mad_u32_u24 v7, v9, s67, v7
    v_mul_u32_u24 v5, 2304, v5
    v_sub_u32 v5, 1152, v5
    s_bitcmp1_b32 s5, {0 if cfg.rev else 31}
    s_cselect_b32 s92, -1, 1
    s_cselect_b32 s79, 1024, 0
    s_cselect_b32 s34, {8*64*9216}, 0
    s_lshl_b32 s92, s92, 7
    s_lshl_b32 s93, s92, 1
    s_lshl_b32 s82, s3, 10
    s_add_u32 s82, s82, {XB}
    s_lshl_b32 s68, s3, 1
    """)
    for n in range(5):
        if n < 2: o += T(f"s_mov_b32 s{XH+n}, 0\ns_add_u32 s69, s68, {8*n}")
        elif n > 2: o += T(f"s_mov_b32 s{XH+n}, s92\ns_add_u32 s69, s68, {8*n-20}")
        else: o += T(f"s_cmp_ge_u32 s3, 2\ns_cselect_b32 s{XH+n}, s92, 0\ns_cselect_b32 s69, -4, 16\ns_add_u32 s69, s69, s68")
        o += T(f"""
        v_add_u32 v9, s69, v6
        v_and_b32 v9, 511, v9
        v_mad_i32_i24 v{V_XO+n}, v9, v5, v7
        """)
        if cfg.bal: o += T(f"s_add_u32 s69, s69, s65\ns_cmp_ge_u32 s69, 512\ns_cselect_b32 s69, {OOB}, 0\ns_add_u32 s{XH+n}, s{XH+n}, s69")
    o += T("s_waitcnt lgkmcnt(0)") + srd(12, 36, 2359296)
    return o
def setup1():
    return T(f"""
    s_load_dword s7, s[58:59], 0
    s_cmp_lt_u32 s3, 2
    s_cselect_b32 s20, s42, s44
    s_cselect_b32 s21, s43, s45
    s_mov_b32 s22, 663552
    s_mov_b32 s23, 0x20000
    s_and_b32 s68, s3, 1
    s_lshl_b32 s64, s62, 1
    s_add_u32 s64, s64, s68
    s_mul_i32 s64, s64, 15
    v_add_u32 v9, s64, v{V_L}
    s_mul_i32 s64, s60, {64*1152}
    v_lshlrev_b32 v5, 7, v9
    v_add_u32 v6, s64, v5
    v_add_u32 v5, {256*1152 - 576*128}, v5
    v_cmp_gt_u32 vcc, 576, v9
    v_mov_b32 v7, {OOB}
    s_mov_b32 s100, s60
    v_cndmask_b32 v5, v5, v6, vcc
    v_cmp_gt_u32 vcc, 15, v{V_L}
    s_mov_b32 s99, s62
    s_sub_u32 s83, s79, s92
    v_cndmask_b32 v{V_PFD}, v7, v5, vcc
    """)
def setup1b():
    return T(f"""
    s_mul_i32 s35, s92, {64*72}
    s_lshl_b32 s68, s5, 5
    s_lshl_b32 s69, s66, 2
    s_add_u32 s68, s68, s69
    v_add_u32 v9, s68, v4
    v_xor_b32 v7, v{V_Q}, v8
    v_lshlrev_b32 v7, 4, v7
    v_mad_u32_u24 v{V_ABA}, v9, s67, v7
    v_xor_b32 v7, 64, v7
    v_mad_u32_u24 v{V_ABB}, v9, s67, v7
    v_add_u32 v{V_ABB}, {8*1152-1024}, v{V_ABB}
    s_lshl_b32 s60, s3, 11
    """)

def setup2():
    o = srd(8, 48, 5308416) + (lambda x: x if cfg.pf1 & 2 else [])(T(f"""
    s_lshl_b32 s68, s99, 2
    s_add_u32 s68, s68, s3
    s_mul_i32 s68, s68, 5
    v_mul_u32_u24 v5, 43, v{V_L}
    v_lshrrev_b32 v5, 8, v5
    v_mul_u32_u24 v6, 6, v5
    v_sub_u32 v6, v{V_L}, v6
    v_add_u32 v5, s68, v5
    v_lshrrev_b32 v7, 1, v6
    v_and_b32 v6, 1, v6
    s_lshl_b32 s68, s100, 1
    v_cmp_eq_u32 vcc, 2, v7
    v_add_u32 v7, s68, v7
    v_mul_u32_u24 v5, 9216, v5
    v_cndmask_b32 v7, v7, 8, vcc
    v_lshl_add_u32 v5, v6, 7, v5
    v_cmp_gt_u32 vcc, 30, v{V_L}
    v_lshl_add_u32 v5, v7, 10, v5
    v_mov_b32 v6, {OOB}
    v_cndmask_b32 v{V_PF1}, v6, v5, vcc
    """)) + srd(16, 58, WS_SIZE)
    o += T(f"""
    v_lshrrev_b32 v4, 3, v{V_L}
    s_lshl_b32 s68, s3, 4
    v_add_u32 v4, s68, v4
    v_and_b32 v5, 1, v{V_Q}
    v_lshlrev_b32 v5, 1, v5
    v_and_b32 v8, 7, v{V_L}
    v_xor_b32 v5, v5, v8
    v_lshlrev_b32 v5, 4, v5
    v_xor_b32 v6, 64, v5
    s_movk_i32 s68, 9216
    v_mad_u32_u24 v{V_A}, v4, s68, v5
    v_mad_u32_u24 v{V_B}, v4, s68, v6
    v_add_u32 v{V_B}, {8*9216-1024}, v{V_B}
    v_mad_u32_u24 v{V_W2A}, v4, s67, v5
    v_mad_u32_u24 v{V_W2B}, v4, s67, v6
    v_bfe_u32 v4, v{V_L}, 2, 2
    v_and_b32 v5, 3, v{V_L}
    v_and_b32 v6, 1, v{V_Q}
    v_lshlrev_b32 v6, 1, v6
    v_lshrrev_b32 v7, 1, v4
    v_add_u32 v6, v6, v7
    v_xor_b32 v6, s3, v6
    v_lshlrev_b32 v6, 5, v6
    v_lshl_add_u32 v6, v{V_Q}, 10, v6
    v_lshl_add_u32 v6, v4, 7, v6
    v_lshl_add_u32 v{V_TR}, v5, 3, v6
    v_add_u32 v{V_TR2}, 0x10000, v{V_TR}
    v_lshrrev_b32 v4, 1, v{V_C}
    v_xor_b32 v4, v4, v{V_Q}
    v_lshlrev_b32 v4, 4, v4
    v_lshl_add_u32 v4, v{V_C}, 7, v4
    v_add_u32 v{V_XR0}, {XB}, v4
    v_xor_b32 v{V_XR1}, 64, v{V_XR0}
    v_add_u32 v{V_WR0}, s60, v4
    v_xor_b32 v{V_WR1}, 64, v{V_WR0}
    v_mov_b32 v{V_PATCH}, 0xbf803f80
    s_lshl_b32 s68, s5, 2
    s_or_b32 s68, s68, s3
    s_cmp_eq_u32 s68, 2
    s_cselect_b32 s76, 0x00010001, 0
    s_mov_b32 s77, s76
    s_cselect_b32 s69, 1, 0
    s_lshr_b32 s70, s3, 1
    """)
    o += T(f"""
    s_cmp_eq_u32 s70, 0
    s_cselect_b32 s71, 1.0, -1.0
    v_mov_b32 v{V_SIG}, s71
    s_cmp_eq_u32 s69, 1
    s_cselect_b32 s72, 16, 0
    v_cmp_gt_u32 vcc, s72, v{V_L}
    v_mov_b32 v4, 1.0
    v_and_b32 v5, 1, v{V_L}
    v_cndmask_b32 v{V_SIG0}, v{V_SIG}, v4, vcc
    s_cmp_eq_u32 s4, 0
    s_cselect_b32 s72, 4, 0
    v_cmp_gt_u32 vcc, s72, v{V_C}
    s_cselect_b32 s80, 8, 0
    v_lshlrev_b32 v5, 31, v5
    v_cndmask_b32 v{V_SIGT0}, v{V_SIG}, 0, vcc
    v_cndmask_b32 v{V_SIG0T0}, v{V_SIG0}, 0, vcc
    v_or_b32 v{V_TAU}, v4, v5
    s_cmp_eq_u32 s69, 1
    s_cselect_b32 s80, s80, 0
    s_mov_b32 s81, 0
    """)
    o += T(f"""
    v_lshrrev_b32 v4, 2, v{V_C}
    v_and_b32 v5, 3, v{V_C}
    s_mul_i32 s68, s3, 1792
    s_add_u32 s68, s68, {ABL}
    v_and_b32 v6, 1, v4
    v_mul_u32_u24 v6, 320, v6
    v_lshrrev_b32 v7, 1, v4
    v_lshl_add_u32 v6, v7, 5, v6
    v_lshl_add_u32 v9, v{V_Q}, 3, s68
    v_add_u32 v6, v6, v9
    v_add_u32 v7, 640, v6
    v_add_u32 v8, 1344, v9
    v_cmp_eq_u32 vcc, 1, v5
    v_add_u32 v9, 1280, v9
    s_lshl_b32 s71, s70, 1
    v_cndmask_b32 v{V_ABS}, v8, v7, vcc
    v_cmp_eq_u32 vcc, 0, v5
    s_add_u32 s71, s71, 1
    s_nop 0
    v_cndmask_b32 v{V_ABS}, v{V_ABS}, v6, vcc
    v_cndmask_b32 v8, v8, v6, vcc
    v_cmp_eq_u32 vcc, s71, v5
    s_nop 1
    v_cndmask_b32 v8, v8, v7, vcc
    v_cmp_eq_u32 vcc, 2, v5
    s_nop 1
    v_cndmask_b32 v8, v8, v9, vcc
    v_cmp_gt_u32 vcc, s72, v{V_C}
    s_cmp_eq_u32 s4, 25
    s_cselect_b32 s75, {OOB}, 0
    v_cndmask_b32 v{V_ABS0}, v{V_ABS}, v8, vcc
    s_mul_i32 s68, s5, 26
    s_add_u32 s68, s68, s4
    s_lshl_b32 s68, s68, 7
    s_add_u32 s68, s68, {WS_ABFLAG}
    v_cmp_gt_u32 vcc, 32, v0
    v_mov_b32 v8, {OOB}
    v_lshl_add_u32 v9, v0, 2, s68
    v_cndmask_b32 v{V_ABFL}, v8, v9, vcc
    v_cmp_eq_u32 vcc, 0, v{V_L}
    v_lshrrev_b32 v4, 3, v{V_L}
    v_mul_u32_u24 v4, {SL}, v4
    v_and_b32 v5, 7, v{V_L}
    v_lshl_add_u32 v{ABP+14}, v5, 4, v4
    v_cndmask_b32 v{V_FL}, v8, 0, vcc
    """)
    o += T(f"""
    s_mul_i32 s73, s4, {cfg.rot1}
    s_and_b32 s73, s73, 7
    s_mov_b32 s101, s73
    s_lshl_b32 s73, s73, 7
    s_lshl_b32 s74, s5, 10
    s_add_u32 s74, s74, s34
    s_add_u32 s62, s73, s74
    s_mul_i32 s6, s4, {cfg.rot2}
    s_add_u32 s6, s6, s5
    s_mul_i32 s72, s6, 7282
    s_lshr_b32 s72, s72, 16
    s_mul_i32 s72, s72, 9
    s_sub_u32 s6, s6, s72
    s_add_u32 s72, s6, 1
    s_cmp_eq_u32 s72, 9
    s_cselect_b32 s72, 0, s72
    s_mul_i32 s63, s4, 9
    s_add_u32 s63, s63, s72
    s_lshl_b32 s72, s72, 7
    s_mul_i32 s78, s63, {8*SL}
    s_mul_i32 s63, s3, {WSL}
    s_add_u32 s78, s78, s63
    s_add_u32 s78, s78, {WS_PART}
    s_mov_b32 s63, 6
    s_waitcnt lgkmcnt(0)
    s_add_u32 s7, s7, 0x9e3779b9
    v_mov_b32 v{V_TAG}, s7
    v_not_b32 v{ABP+10}, s7
    v_not_b32 v{ABP+11}, s7
    v_not_b32 v{ABP+12}, s7
    v_not_b32 v{ABP+13}, s7
    """)
    return o

def setup3():
    o = srd(24, 54, 2359296) + srd(28, 50, 5308416) + T(f"""
    v_add_u32 v{V_W2B}, {8*1152-1024}, v{V_W2B}
    s_and_b32 s68, s3, 1
    s_lshl_b32 s68, s68, 9
    s_lshr_b32 s70, s3, 1
    s_mul_i32 s71, s70, 5120
    s_add_u32 s68, s68, s71
    s_add_u32 s68, s68, {HB}
    v_lshrrev_b32 v4, 1, v{V_Q}
    v_lshl_add_u32 v4, v4, 4, v{V_C}
    v_lshlrev_b32 v4, 4, v4
    v_and_b32 v5, 1, v{V_Q}
    v_lshl_add_u32 v4, v5, 3, v4
    v_add_u32 v{V_HW}, s68, v4
    v_lshlrev_b32 v{V_P16}, 4, v{V_L}
    v_lshlrev_b32 v{V_P8}, 3, v{V_L}
    v_add_u32 v{V_HR}, {HB}, v{V_P16}
    v_add_u32 v{V_HR2}, {HB+40960}, v{V_P16}
    """)
    o += T("s_lshl_b32 s99, s5, 3")
    for i in range(8):
        o += T(f"""
        s_add_u32 s{64+i}, s101, {i}
        s_and_b32 s{64+i}, s{64+i}, 7
        s_add_u32 s{64+i}, s{64+i}, s99
        s_mul_i32 s{64+i}, s{64+i}, {64*1152}
        """)
    return o

def poll(lab, vaddr, nl):
    return T(f"""
    s_mov_b32 s63, {SPIN}
    v_cmp_le_u32 s[80:81], {nl}, v{V_L}
    {lab}:
    s_sleep {cfg.slp}
    buffer_load_dword v4, v{vaddr}, s[16:19], 0 offen sc1
    s_sub_u32 s63, s63, 1
    s_waitcnt vmcnt(0)
    v_cmp_eq_u32 vcc, s7, v4
    s_cmp_eq_u32 s63, 0
    s_cbranch_scc1 {lab}_out
    s_or_b64 vcc, vcc, s[80:81]
    s_cmp_eq_u64 vcc, -1
    s_cbranch_scc0 {lab}
    {lab}_out:
    """)

def ts_dump(fn=0):
    if not cfg.ts: return []
    if cfg.ts >= 100:
        if fn != (cfg.ts >= 200): return []
        return T("s_waitcnt vmcnt(0)") + TS(8) + (T(f"s_and_b32 s68, s2, 7\ns_cmp_lg_u32 s68, {cfg.hx}\ns_cbranch_scc1 L_end") if cfg.hx >= 0 else []) + T(f"""
        L_hold{fn}:
        s_memrealtime s[100:101]
        s_waitcnt lgkmcnt(0)
        s_sub_u32 s100, s100, s{tsr(cfg.ts % 100)}
        s_cmp_lt_u32 s100, 3000
        s_cbranch_scc1 L_hold{fn}
        """)
    if cfg.ts >= 10:
        return T(f"""
        L_hold{fn}:
        s_memrealtime s[100:101]
        s_waitcnt lgkmcnt(0)
        s_sub_u32 s100, s100, s84
        s_cmp_lt_u32 s100, {cfg.ts*100}
        s_cbranch_scc1 L_hold{fn}
        """)
    o = T("s_waitcnt vmcnt(0)") + TS(8) + T("s_waitcnt lgkmcnt(0)")
    for k in range(9): o.append(I(f"v_mov_b32 v{16+k}, s{tsr(k)}"))
    o += T(f"""
    s_getreg_b32 s68, hwreg(HW_REG_XCC_ID)
    v_mov_b32 v25, s68
    v_mov_b32 v26, 0
    v_mov_b32 v27, 0
    s_lshl_b32 s68, s2, 2
    s_add_u32 s68, s68, s3
    s_lshl_b32 s68, s68, 6
    s_add_u32 s68, s68, {WS_TS}
    v_cmp_eq_u32 vcc, 0, v{V_L}
    v_mov_b32 v4, {OOB}
    s_nop 0
    v_cndmask_b32 v4, v4, 0, vcc
    buffer_store_dwordx4 v[16:19], v4, s[16:19], s68 offen
    buffer_store_dwordx4 v[20:23], v4, s[16:19], s68 offen offset:16
    buffer_store_dwordx4 v[24:27], v4, s[16:19], s68 offen offset:32
    """)
    if cfg.ts == 2 and not fn:
        o += T(f"""
        v_lshlrev_b32 v5, 2, v{V_L}
        v_cmp_gt_u32 vcc, 16, v{V_L}
        v_mov_b32 v4, {OOB}
        s_lshl_b32 s69, s68, 2
        s_sub_u32 s69, s69, {4*WS_TS - WS_TS - 0x300000}
        buffer_store_dword v131, v5, s[16:19], s69 offen
        s_add_u32 s68, s68, 0x100000
        v_cndmask_b32 v4, v4, v5, vcc
        buffer_store_dword v130, v4, s[16:19], s68 offen
        s_add_u32 s68, s68, 0x100000
        buffer_store_dword v131, v4, s[16:19], s68 offen
        """)
    if cfg.ts != 3: return o
    o += T(f"""
    s_waitcnt vmcnt(0)
    v_not_b32 v16, v16
    v_cmp_eq_u32 vcc, 0, v0
    v_mov_b32 v4, {OOB}
    s_sleep 127
    s_sleep 127
    v_cndmask_b32 v4, v4, 0, vcc
    """) + srd(28, 56, 256)
    o.append(I("buffer_atomic_umax v16, v4, s[28:31], 0 offen"))
    for k in range(1, 9 if not fn else 8): o.append(I(f"buffer_atomic_umax v{16+k}, v4, s[28:31], 0 offen offset:{4*(k+8*fn)}"))
    return o

from fnet import fnet_code

def build():
    def dyn(hasx22, ep):
        d = prologue()
        d += ab_pass(hasx22)
        d += TS(2)
        for p in range(8):
            for g in range(6): d += g1_group(p, g, True)
        d += TS(4)
        d += g2_pass0()
        for p in range(1, 8):
            for g in range(4): d += g2_group(p, g, ep)
        d += g2_last()
        return d
    ds = [dyn(True, (3, 4, 5, 6, 7)), dyn(False, (3, 4, 5, 6, 7))] if cfg.ep2 == 2 else [dyn(True, (5, 7)), dyn(False, (6, 7))] if cfg.ep2 else [dyn(True, (5,)), dyn(False, (6,)), dyn(True, (7,))]
    rs = [resolve(d) for d in ds]
    mn = lambda l: None if all(x is None for x in l) else min(x for x in l if x is not None)
    res = {k: (mn([r[k][0] for r in rs]), mn([r[k][1] for r in rs])) for k in rs[0]}
    txt = lambda l: [wait_text(res, it.site) if it.kind == "wait" else it.text for it in l]
    for d in ds:
        check_lds(d, res); check_loads(txt(d)); check_hazards(txt(d)); check_scc(txt(d))
    st = prologue()
    st += ab_pass(True)
    st += TS(2)
    for g in range(6): st += g1_group(0, g)
    st += TS(3) + [I("L_g1:")]
    for g in range(6): st += g1_group(1, g)
    st.append(I("s_cbranch_scc1 L_g1"))
    for g in range(6): st += g1_group(7, g)
    st += TS(4)
    st += g2_pass0() + TS(5) + [I("L_g2:")]
    for g in range(4): st += g2_group(1, g)
    st.append(I("s_cbranch_scc1 L_g2"))
    st += TS(6)
    st += g2_last() + ts_dump() + [I("s_endpgm")] + [I("L_once1:")] + ab_once(1) + [I("s_branch L_once1_ret")] + (spin("L_sp1", "s34") if cfg.inloop else (([I("L_ep0:")] + ep_block(0) + [I("s_branch L_ep0_ret"), I("L_ep1:")] + ep_block(1) + [I("s_branch L_ep1_ret")] + [I(x.text.replace(f"v{V_POLL},", f"v{V_POLLE},")) for x in spin("L_sp1", "s79" if cfg.ep2 == 2 else None)]) if cfg.early else [])) + spin("L_sp2") + (([I(x.text.replace("vcc_lo", "s80").replace("vcc", "s[80:81]")) for x in spin("L_sp3", "s70")] + (spin("L_sp4", "s71") if cfg.chk7 == 2 else spin7())) if cfg.chk7 else spin("L_sp3"))
    fn, idle = fnet_code(sys.modules[__name__])
    check_loads([it.text for it in fn]); check_hazards([it.text for it in fn]); check_scc([it.text for it in fn])
    st += fn + ts_dump(1) + [I("L_end:"), I("s_endpgm")] + idle
    if cfg.trace:
        ns = []; k = 0
        for it in st:
            ns.append(it)
            if it.kind == "wait" and it.site and re.match(r"(ab_rw\d|ab_r\d|ab_x\d|ab_b0|g1_r\d[az]|g20_r\d|g2z_r\d|g2z_st|g2z_s0|fin_)", it.site):
                ns += [I("s_waitcnt lgkmcnt(0)"), I(f"v_writelane_b32 v131, s32, {k}"), I("s_memtime s[32:33]")]; k += 1
                print(k, it.site, file=sys.stderr, end="; ")
            if it.text == "L_noepoch:": ns += [I("s_waitcnt lgkmcnt(0)"), I(f"v_writelane_b32 v131, s32, {k}")]
        st = ns
    if cfg.strip:
        a = [i for i, it in enumerate(st) if it.text == "L_g1:"][0]; b = [i for i, it in enumerate(st) if it.text == "s_cbranch_scc1 L_g2"][0]
        def drop(it):
            t = it.text or ""
            if cfg.strip & 1 and t.endswith(" lds"): return True
            if cfg.strip & 2 and (t.startswith(("v_cvt_pk", "v_pk_max", "ds_write")) or "s78 offen" in t): return True
            if cfg.strip & 4 and t == "s_barrier": return True
            if cfg.strip & 8 and it.kind == "wait" and it.need_vm: return True
            if cfg.strip & 16 and t.startswith("ds_read_b64_tr"): return True
            if cfg.strip & 32 and (t.startswith("ds_write") or "s78 offen" in t): return True
            if cfg.strip & 64 and t.startswith(("v_cvt_pk", "v_pk_max")): return True
            if cfg.strip & 128 and t.startswith("buffer_store_dword "): return True
            if cfg.strip & 1024 and it.kind == "wait" and it.need_lg and it.site not in ("g1_r2", "g2_r1"): return True
            if cfg.strip & 256 and "s78 offen" in t: it.text = t.replace(" sc1", "")
            if cfg.strip & 512 and "s78 offen" in t: it.text = t.replace(" sc1", " sc1 nt")
            return False
        st = st[:a] + [it for it in st[a:b] if not drop(it)] + st[b:]
    head = open("gated_mix__spectral_fnet__dense_activation_relu__prompt.s.ref").read().split("; Override launch")[0]
    out = head + "; @launch grid=(256,1,1) block=(256,1,1) lds=163840\n"
    out += f'.amdgcn_target "amdgcn-amd-amdhsa--gfx950"\n.text\n.globl {NAME}\n.p2align 8\n.type {NAME},@function\n{NAME}:\n'
    out += "\n".join(("" if (x.endswith(":") or x.startswith(".")) else "    ") + x for x in txt(st)) + "\n"
    out += f""".section .rodata,"a"
.p2align 6
.amdhsa_kernel {NAME}
  .amdhsa_next_free_vgpr 512
  .amdhsa_next_free_sgpr 102
  .amdhsa_accum_offset 256
  .amdhsa_group_segment_fixed_size 0
  .amdhsa_kernarg_size 96
  .amdhsa_user_sgpr_count 2
  .amdhsa_user_sgpr_kernarg_segment_ptr 1
  .amdhsa_system_sgpr_workgroup_id_x 1
.end_amdhsa_kernel
"""
    return out, res

if __name__ == "__main__":
    sys.modules["gen"] = sys.modules[__name__]
    outp = sys.argv[1]
    for a in sys.argv[2:]:
        k, v = a.split("="); setattr(cfg, k, int(v))
    out, res = build()
    open(outp, "w").write(out)
    print(res)
```

```python
import sys
from asmlib import *
NAME = "gated_mix__spectral_fnet__dense_activation_relu__prompt_kernel"
WS_PF, WS_ABFLAG, WS_YFLAG, WS_GT, WS_XS = 0x20000, 0x20000, 0xA000, 0x10000, 0x13000
WS_ABF, WS_YT, WS_PART, WS_TS, WS_SIZE = 0x100000, 0x280000, 0x400000, 0x2000000, 0x3000000
OOB = 0x40000000
WSL, SL = 3584, 14336
XB, HB = 71680, 81920
SPIN = 1 << 20

class Cfg:
    ts = False
    L2 = 12
    rot1 = 3
    chain = 0
    strip = 0
    pp = 0
    al = 0
    wsl = 3584
    hx = -1
    slp2 = 2
    g20v = 0
    pfc = 1
    pfo = 0
    gl = 0
    bal = 1
    p0v = 1
    ep2 = 1
    epg = 5
    chk7 = 2
    s6g = 3
    flg = 4
    u0 = 7
    npre = 2
    abv = 0
    early = 3
    epm = 3
    rot2 = 2
    tag7 = 0
    stg = 2
    rdp = 0
    hw = 1
    hg = 9
    ne = 6
    inloop = 0
    osc = 1
    pt = 1
    trace = 0
    slp = 16
    map = 2
    pf1 = 1
    rev = 1
    pf2 = 0
    noab = 0
    pfs = 3
    warmfl = 1
    stspread = 1
    fake = 0
cfg = Cfg()

ACC = lambda t: f"v[{16+4*t}:{19+4*t}]"
EE = lambda t: f"v[{36+4*t}:{39+4*t}]"
E0 = 36
FB = lambda b: 56 + 4 * b
PK = 88
def act(i):
    return f"a[{4*i}:{4*i+3}]" if i < 64 else f"v[{152+4*(i-64)}:{155+4*(i-64)}]"
V_A, V_B = 10, 11
V_W2A, V_W2B = 12, 13
V_TR, V_TR2 = 14, 15
V_XO = 100
V_ABA, V_ABB = 105, 106
V_XR0, V_XR1 = 107, 108
V_WR0, V_WR1 = 109, 110
V_PATCH = 111
V_HW = 112
V_HR, V_HR2 = 113, 114
V_SIG, V_SIG0, V_SIGT0, V_SIG0T0, V_TAU = 115, 116, 117, 118, 119
V_ABS, V_ABS0 = 120, 121
V_ABFL = 122
V_TAG = 123
V_P16, V_P8 = 124, 125
V_FL = 126
V_POLL = 127
V_PFD, V_PF1, V_PF2, V_DUM = 132, 133, 134, 135
XH = 94
V_L, V_C, V_Q = 1, 2, 3

def mfma(d, a, b, c): return I(f"v_mfma_f32_16x16x32_bf16 {d}, {a}, {b}, {c}")
def place(ms, side):
    gaps = [[] for _ in ms]
    for g, it in side:
        gaps[g] += it if isinstance(it, list) else [it]
    out = []
    for m, g in zip(ms, gaps):
        out.append(m); out += g
    return out
def spread(items, gaps):
    n = len(items); k = len(gaps)
    return [(gaps[i * k // n], it) for i, it in enumerate(items)]

tsn = [0]
def tsr(k): return 84 + 2 * k if k < 4 else 36 + 2 * (k - 4)
def TS(k):
    if not cfg.ts: return []
    return [I(f"{'s_memtime' if cfg.ts == 2 else 's_memrealtime'} s[{tsr(k)}:{tsr(k)+1}]")]

def wslot(ph, p, s):
    if ph == 2: return ((p & 1) * 16 + s) * 4096
    return s * 4096
def wdma(ph, p, s):
    P, b = s >> 1, s & 1
    pre = []
    if b == 0:
        pre.append(I(f"s_add_u32 m0, s60, {P*8192}"))
        pre.append(I(f"s_add_u32 s61, s62, s{64+P}" if ph == 2 else ("s_add_u32 s61, s61, s35" if P else "s_mov_b32 s61, s62")))
    lo = wslot(ph, p, 2 * P)
    v, sr = (V_W2A, "s[28:31]") if ph == 2 else (V_A, "s[8:11]")
    return pre, VM(f"buffer_load_dwordx4 v{v+b}, {sr}, s61 offen offset:{1024*b} lds", ("W", ph, p, s), wr=(lo, lo + 8192))
def cover(ph, p, lo, hi): return [("W", ph, p, s) for s in range(lo, hi)]
def nf(ph): return 8 if ph == 2 else 6
def trr(ph, p, s):
    b = FB(s % nf(ph)); o = s * 4096; vr = V_TR
    if o >= 65536: o -= 65536; vr = V_TR2
    lo = wslot(ph, p, s)
    return [LG(f"ds_read_b64_tr_b16 v[{b+2*h}:{b+2*h+1}], v{vr} offset:{o+512*h}", ("R", ph, p, s, h), rd=(lo, lo + 4096)) for h in range(2)]
def group_mfmas(ph, steps, last):
    ms = []
    order = [(t, s) for t in range(5) for s in steps] if cfg.chain else [(t, s) for s in steps for t in range(5)]
    for t, s in order:
        if True:
            d = EE(t) if s == last else ACC(t)
            c = "0" if s == 0 else ACC(t)
            b = FB(s % nf(ph)); w = f"v[{b}:{b+3}]"
            ms.append(mfma(d, act(s * 5 + t), w, c) if ph == 2 else mfma(d, w, act(s * 5 + t), c))
    return ms

def xdma(n):
    pre = [I("s_add_u32 s79, s79, s93")] if (n % 5 == 0 and n) else []
    return pre + [I(f"s_add_u32 m0, s82, {n*4096}"), I(f"s_add_u32 s61, s79, s{XH+n%5}"),
            VM(f"buffer_load_dwordx4 v{V_XO+n%5}, s[12:15], s61 offen lds", ("X", n), wr=(XB + (n // 5) * 20480, min(XB + (n // 5 + 1) * 20480, 163840)))]
def abdma(P):
    lo = P * 8192
    return [I(f"s_add_u32 m0, s60, {lo}"), I("s_add_u32 s83, s83, s92"),
            VM(f"buffer_load_dwordx4 v{V_ABA}, s[20:23], s83 offen lds", ("WAB", P, 0), wr=(lo, lo + 8192)),
            VM(f"buffer_load_dwordx4 v{V_ABB}, s[20:23], s83 offen offset:1024 lds", ("WAB", P, 1), wr=(lo, lo + 8192))]
def wreads(P):
    out = []
    if P == 4: out += [I(f"v_add_u32 v{V_WR0}, 32768, v{V_WR0}"), I(f"v_add_u32 v{V_WR1}, 32768, v{V_WR1}")]
    Pp = P - 4 if P >= 4 else P
    for h in range(2):
        s = 2 * P + h; b = FB(s % 6)
        out.append(LG(f"ds_read_b128 v[{b}:{b+3}], v{V_WR0+h} offset:{Pp*8192}", ("RAB", s)))
    return out
def xreads(P):
    out = []
    if P == 4: out += [I(f"v_add_u32 v{V_XR0}, 40960, v{V_XR0}"), I(f"v_add_u32 v{V_XR1}, 40960, v{V_XR1}")]
    Pp = P - 4 if P >= 4 else P
    for t in range(5):
        for h in range(2):
            s = 2 * P + h; lo = XB + (P * 10 + 2 * t) * 1024
            out.append(LG(f"ds_read_b128 {act(s*5+t)}, v{V_XR0+h} offset:{(Pp*10+2*t)*1024}", ("RX", s, t), rd=(lo, lo + 2048)))
    return out
def patch(P):
    return [I(f"v_cndmask_b32 v{FB(s%6)+e}, v{FB(s%6)+e}, v{V_PATCH}, s[76:77]") for s in (2 * P, 2 * P + 1) for e in range(4)]
def xg(g, lastx): return [("X", n) for n in range(5 * g, min(5 * g + 5, lastx + 1))]

def cut(su, n):
    while su[n].text.startswith(("s_cselect", "v_c")) or su[n - 1].text.startswith(("s_cmp", "s_cselect", "v_c")): n += 1
    return n
def ab_pass(hasx22):
    lastx = 22 if hasx22 else 21
    o = []
    pf = lambda v, sr, off, tag: [VM(f"buffer_load_dword v{V_DUM}, v{v}, {sr}, 0 offen offset:{off}", tag)]
    Xr = lambda a, b: sum((xdma(n) for n in range(a, b)), [])
    TP = lambda n, vm=None: [WAIT(f'ab_x9{n}', vm=vm)] if cfg.trace else []
    if cfg.abv == 2:
        o += Xr(0, 5) + setup1() + setup1b() + abdma(0) + abdma(1)
        if cfg.pf1 & 1: o += pf(V_PFD, "s[20:23]", 0, "PFD")
        o += setup2()
        if cfg.pt & 1: o.append(VM(f"buffer_load_dword v{V_DUM}, v{V_ABFL}, s[16:19], 0 offen sc1", "PT0"))
        return o + ab_tail2(hasx22, Xr)
    o += TP(0) + Xr(0, 5) + setup1()
    if cfg.pf1 & 1: o += pf(V_PFD, "s[20:23]", 0, "PFD")
    o += Xr(5, 8) + TP(1) + setup1b() + setup2() + TP(2)
    if cfg.trace == 2: o += TP(3, [('X', 0)]) + TP(4, [('X', 4)]) + TP(5, [('X', 7)])
    if cfg.pf1 & 2: o += pf(V_PF1, "s[8:11]", 0, "PFA")
    if cfg.pt & 1: o.append(VM(f"buffer_load_dword v{V_DUM}, v{V_ABFL}, s[16:19], 0 offen sc1", "PT0"))
    if cfg.pt & 8:
        o += srd(24, 54, 2359296) + srd(28, 50, 5308416) + T(f"""
        s_lshl_b32 s68, s2, 7
        v_lshl_add_u32 v4, v0, 16, s68
        """) + [VM(f"buffer_load_dword v{V_DUM}, v4, s[24:27], 0 offen", "PT2"), VM(f"buffer_load_dword v{V_DUM}, v4, s[28:31], 0 offen", "PT3")]
    if cfg.pt & 2: o.append(VM(f"buffer_store_dword v{ABP+10}, v{V_ABFL}, s[16:19], 0 offen sc1", "PT1"))
    if cfg.pt & 4: o.append(VM(f"buffer_store_dwordx4 v[{ABP+10}:{ABP+13}], v{ABP+14}, s[16:19], s78 offen offset:2560 sc1", "WARMFL"))
    if cfg.abv == 1: return o + ab_tail1(hasx22, Xr)
    o += Xr(8, 17)
    o += [WAIT("ab_b0", vm=xg(0, lastx)), BAR()] + TS(1) + xreads(0) + Xr(17, 20) + xreads(1)
    o += xdma(20) + xdma(21) + [I("s_cmp_lt_u32 s3, 2"), I("s_cbranch_scc0 L_nox22")] + (xdma(22) if hasx22 else []) + [I("L_nox22:")]
    o += [WAIT("ab_x1", vm=xg(1, lastx)), BAR()] + abdma(0) + xreads(2) + abdma(1) + abdma(2) + xreads(3) + abdma(3) + abdma(4)
    o += [WAIT("ab_x4", vm=xg(4, lastx) + [("WAB", 0, 1)], lg=[("RX", 1, 0)]), BAR()] + wreads(0) + abdma(5)
    o.append(WAIT("ab_r0", lg=[("RAB", 1)])); o += patch(0); o.append(I("s_nop 1"))
    for g in range(9):
        ms = group_mfmas(0, (2 * g, 2 * g + 1), 17)
        side = []
        if g < 8:
            side.append((0, WAIT(f"ab_w{g}", vm=[("WAB", g + 1, 1)])))
            side += spread(wreads(g + 1), [0, 1])
            if g < 5: side += spread(xreads(g + 4), [1, 2, 3, 4, 5, 7, 8, 9])
        else:
            side.append((0, [WAIT("ab_b8", vm=cover(1, 0, 0, 6)), BAR()]))
            side += spread(trr(1, 0, 0) + trr(1, 0, 1) + trr(1, 0, 2), [1, 2, 3, 4, 5, 6])
        d = []
        if g == 0: d = [abdma(6)[:3], abdma(6)[3:], abdma(7)[:3], abdma(7)[3:]]
        if g == 1: d = [abdma(8)[:3], abdma(8)[3:]]
        sl = {0: (), 1: (0, 1), 2: (2, 3, 4), 3: (5, 6, 7), 4: (8, 9), 5: (10, 11), 6: (12, 13), 7: (14,), 8: ()}[g]
        for s in sl:
            pre, dm = wdma(1, 0, s); dm.wr = None
            d.append(pre + [dm])
        if d: side += spread(d, [2, 3, 4, 5])
        if g in (5, 6, 7): side += list(zip([1, 3, 5, 9, 9], ab_gaddr()[(g - 5) * 5:(g - 4) * 5]))
        if g < 8:
            side.append((6, WAIT(f"ab_rw{g}", lg=[("RAB", 2 * g + 3)])))
            side += spread(patch(g + 1), [6, 7, 8])
            side.append((9, I("s_nop 0")))
        else: side.append((9, WAIT(f"ab_r9", lg="all")))
        o += place(ms, side)
    return o

def ab_tail2(hasx22, Xr):
    lastx = 22 if hasx22 else 21
    x22 = [I("s_cmp_lt_u32 s3, 2"), I("s_cbranch_scc0 L_nox22")] + (xdma(22) if hasx22 else []) + [I("L_nox22:")]
    sp = lambda l: [l[:3], l[3:]]
    X = lambda a, b: [xdma(n) for n in range(a, b)]
    q = X(5, 10) + sp(abdma(2)) + sp(abdma(3)) + X(10, 15) + sp(abdma(4)) + sp(abdma(5)) + X(15, 20) + sp(abdma(6)) + sp(abdma(7)) + X(20, 22) + [x22] + sp(abdma(8))
    for s in range(15):
        pre, dm = wdma(1, 0, s); dm.wr = None
        q.append(pre + [dm])
    u0 = cfg.u0
    o = sum(q[:u0], [])
    o += [WAIT("ab_b0", vm=xg(0, lastx) + [("WAB", 0, 1)]), BAR()] + TS(1) + wreads(0) + xreads(0) + sum(q[u0:u0 + 4], [])
    o.append(WAIT("ab_r0", lg="all")); o += patch(0); o.append(I("s_nop 1"))
    rest = q[u0 + 4:]
    per = [len(rest) * (g + 1) // 8 for g in range(8)]
    for g in range(9):
        ms = group_mfmas(0, (2 * g, 2 * g + 1), 17)
        side = []
        if g < 8:
            need = [("WAB", g + 1, 1)]
            if g % 2: side.append((0, [WAIT(f"ab_x{g}", vm=need + xg((g + 1) // 2, lastx)), BAR()]))
            else: side.append((0, WAIT(f"ab_w{g}", vm=need)))
            side += spread(wreads(g + 1), [0, 0]) + spread(xreads(g + 1), [0, 1, 1, 2, 2, 3, 4])
            side += spread(rest[(per[g - 1] if g else 0):per[g]], [3, 4, 5, 6, 7, 8])
            side.append((6, WAIT(f"ab_rw{g}", lg=[("RAB", 2 * g + 3)])))
            side += spread(patch(g + 1), [6, 7, 8])
        else:
            side.append((0, [WAIT("ab_b8", vm=cover(1, 0, 0, 6)), BAR()]))
            side += spread(trr(1, 0, 0) + trr(1, 0, 1) + trr(1, 0, 2), [1, 2, 3, 4, 5, 6])
        if g in (6, 7, 8): side += list(zip([5, 5, 9, 9, 9] if g < 8 else [2, 4, 7, 8, 8], ab_gaddr()[(g - 6) * 5:(g - 5) * 5]))
        side.append((9, WAIT(f"ab_r{g+1}", lg="all")))
        o += place(ms, side)
    return o
def ab_tail1(hasx22, Xr):
    lastx = 22 if hasx22 else 21
    x22 = [I("s_cmp_lt_u32 s3, 2"), I("s_cbranch_scc0 L_nox22")] + (xdma(22) if hasx22 else []) + [I("L_nox22:")]
    o = Xr(8, 10) + abdma(0) + abdma(1) + Xr(10, 15)
    o += [WAIT("ab_b0", vm=xg(0, lastx)), BAR()] + TS(1) + xreads(0) + abdma(2) + abdma(3) + xreads(1) + Xr(15, 18)
    o += [WAIT("ab_x1", vm=xg(1, lastx) + [("WAB", 0, 1)], lg=[("RX", 1, 0)]), BAR()] + wreads(0) + Xr(18, 20)
    o.append(WAIT("ab_r0", lg=[("RAB", 1)])); o += patch(0); o.append(I("s_nop 1"))
    sp = lambda l: [l[:3], l[3:]]
    dl = {0: sp(abdma(4)) + sp(abdma(5)), 1: [xdma(20), xdma(21), x22] + sp(abdma(6)), 2: sp(abdma(7)) + sp(abdma(8))}
    sl = {3: (0, 1, 2, 3), 4: (4, 5, 6, 7), 5: (8, 9, 10), 6: (11, 12, 13), 7: (14,)}
    for g in range(9):
        ms = group_mfmas(0, (2 * g, 2 * g + 1), 17)
        side = []
        if g < 8:
            need = [("WAB", g + 1, 1)]
            if g in (2, 4, 6): side.append((0, [WAIT(f"ab_x{g}", vm=need + xg(g // 2 + 1, lastx)), BAR()]))
            else: side.append((0, WAIT(f"ab_w{g}", vm=need)))
            side += spread(wreads(g + 1), [0, 1])
            if g < 7: side += spread(xreads(g + 2), [1, 2, 3, 4, 5, 7, 8, 9])
        else:
            side.append((0, [WAIT("ab_b8", vm=cover(1, 0, 0, 6)), BAR()]))
            side += spread(trr(1, 0, 0) + trr(1, 0, 1) + trr(1, 0, 2), [1, 2, 3, 4, 5, 6])
        d = list(dl.get(g, []))
        for s in sl.get(g, ()):
            pre, dm = wdma(1, 0, s); dm.wr = None
            d.append(pre + [dm])
        if d: side += spread(d, [2, 3, 4, 5])
        if g in (6, 7, 8): side += list(zip([1, 3, 5, 9, 9] if g < 8 else [2, 4, 7, 8, 8], ab_gaddr()[(g - 6) * 5:(g - 5) * 5]))
        if g < 8:
            side.append((6, WAIT(f"ab_rw{g}", lg=[("RAB", 2 * g + 3)])))
            side += spread(patch(g + 1), [6, 7, 8])
            side.append((9, I("s_nop 0")))
        else: side.append((9, WAIT(f"ab_r9", lg="all")))
        o += place(ms, side)
    return o

ABP = 136
OUTL = 135168
ABL = 73728
V_ABR, V_ABG0, V_ABG1 = 100, 101, 102
def ab_epilogue():
    o = []
    for t in range(5):
        r = E0 + 4 * t
        sg = (V_SIG0T0, V_SIGT0) if t == 0 else (V_SIG0, V_SIG)
        for e in range(4): o.append(I(f"v_fmac_f32_dpp v{r+e}, v{r+e}, v{sg[0] if e == 0 else sg[1]} quad_perm:[3,2,1,0] row_mask:0xf bank_mask:0xf"))
        for e in range(4): o.append(I(f"v_fmac_f32_dpp v{r+e}, v{r+e}, v{V_TAU} quad_perm:[1,0,3,2] row_mask:0xf bank_mask:0xf"))
        if t == 0:
            o.append(I(f"v_mov_b32_dpp v{PK+10}, v{r} quad_perm:[0,1,2,1] row_mask:0xf bank_mask:0xf"))
            o.append(I(f"v_cndmask_b32 v{r}, v{r}, v{PK+10}, s[80:81]"))
        o.append(I(f"v_cvt_pk_bf16_f32 v{ABP+2*t}, v{r}, v{r+1}"))
        o.append(I(f"v_cvt_pk_bf16_f32 v{ABP+2*t+1}, v{r+2}, v{r+3}"))
    return o
def ab_gaddr():
    A = lambda x: T(x)
    return [A(f"s_lshr_b32 s68, s5, 1\ns_lshl_b32 s68, s68, 17\ns_lshr_b32 s70, s3, 1"),
            A(f"s_lshl_b32 s71, s70, 16\ns_add_u32 s68, s68, s71\ns_mul_i32 s71, s4, 320"),
            A(f"s_add_u32 s68, s68, s71\ns_and_b32 s71, s5, 1\ns_lshl_b32 s71, s71, 14"),
            A(f"s_add_u32 s68, s68, s71\ns_and_b32 s71, s3, 1\ns_lshl_b32 s69, s71, 13"),
            A(f"s_add_u32 s68, s68, s69\ns_add_u32 s68, s68, {WS_ABF}\ns_lshl_b32 s71, s71, 5"),
            A(f"s_lshl_b32 s69, s5, 6\ns_add_u32 s69, s69, s71\ns_lshl_b32 s70, s70, 10"),
            A(f"s_add_u32 s69, s69, s70\ns_add_u32 s69, s69, {WS_XS - 320}\nv_mul_u32_u24 v4, 13, v{V_L}"),
            A(f"v_lshrrev_b32 v4, 8, v4\nv_mul_u32_u24 v5, 20, v4\nv_sub_u32 v5, v{V_L}, v5"),
            A(f"v_and_b32 v6, 1, v4\nv_lshlrev_b32 v6, 15, v6\nv_lshrrev_b32 v7, 1, v4\nv_mul_u32_u24 v7, {5*131072}, v7"),
            A(f"v_lshl_add_u32 v6, v5, 4, v6\nv_add3_u32 v6, v6, v7, s68\ns_cmp_eq_u32 s4, 25\ns_cselect_b32 s70, 12, 20"),
            A(f"v_cmp_gt_u32 vcc, s70, v5\nv_mov_b32 v8, {OOB}\nv_lshlrev_b32 v7, 4, v{V_L}\nv_cndmask_b32 v6, v8, v6, vcc"),
            A(f"v_cmp_gt_u32 vcc, 60, v{V_L}\ns_add_u32 s68, s68, {5*131072 + 32768}\nv_add_u32 v9, s68, v7\nv_cndmask_b32 v{V_ABG0}, v8, v6, vcc"),
            A(f"v_cmp_gt_u32 vcc, s70, v{V_L}\nv_add_u32 v6, s69, v7\nv_lshrrev_b32 v5, 1, v{V_L}\nv_cndmask_b32 v9, v8, v9, vcc"),
            A(f"s_cmp_eq_u32 s4, 0\ns_cselect_b32 s70, 10, -1\nv_cmp_eq_u32 vcc, s70, v5\ns_mul_i32 s68, s3, 1792"),
            A(f"s_add_u32 s68, s68, {ABL}\nv_add_u32 v{V_ABR}, s68, v7\nv_cndmask_b32 v{V_ABG1}, v9, v6, vcc")]
def ab_once(which):
    if which == 2:
        return [LG(f"ds_write_b64 v{V_ABS0 if t == 0 else V_ABS}, v[{ABP+2*t}:{ABP+2*t+1}] offset:{64*t}", ("ABW", t)) for t in range(5)]
    if which == 3:
        return [LG(f"ds_read_b128 v[{PK}:{PK+3}], v{V_ABR}", ("ABR", 0)), LG(f"ds_read_b128 v[{PK+4}:{PK+7}], v{V_ABR} offset:960", ("ABR", 1))]
    if which == 0:
        o = [VM(f"buffer_store_dwordx4 v[{PK}:{PK+3}], v{V_ABG0}, s[16:19], 0 offen sc1", ("ABST", 0)),
             VM(f"buffer_store_dwordx4 v[{PK+4}:{PK+7}], v{V_ABG1}, s[16:19], 0 offen sc1", ("ABST", 4))]
        if cfg.warmfl:
            o += [VM(f"buffer_store_dwordx4 v[{ABP+10}:{ABP+13}], v{ABP+14}, s[16:19], s78 offen offset:2560 sc1", "WARMFL")]
        return o
    return [VM(f"buffer_store_dword v{V_TAG}, v{V_ABFL}, s[16:19], 0 offen sc1", "ABFL")]
def h_tile(p, t):
    r = E0 + 4 * t; d = PK + 2 * t
    lo = HB + p * 10240
    return ([I(f"v_cvt_pk_bf16_f32 v{d}, v{r}, v{r+1}"), I(f"v_cvt_pk_bf16_f32 v{d+1}, v{r+2}, v{r+3}")],
            [I(f"v_pk_max_i16 v{d}, v{d}, 0"), I(f"v_pk_max_i16 v{d+1}, v{d+1}, 0")],
            LG(f"ds_write_b64 v{V_HW}, v[{d}:{d+1}] offset:{1024*t}", ("HW", p, t), wr=(lo + (2048 if p < 0 else 0), lo + 10240)))
def p_parts(p):
    cv = [I(f"v_cvt_pk_bf16_f32 v{PK+i}, v{E0+2*i}, v{E0+2*i+1}") for i in range(10)]
    st = [VM(f"buffer_store_dwordx4 v[{PK}:{PK+3}], v{V_P16}, s[16:19], s78 offen sc1", ("PST", p, 0)),
          VM(f"buffer_store_dwordx4 v[{PK+4}:{PK+7}], v{V_P16}, s[16:19], s78 offen offset:1024 sc1", ("PST", p, 1)),
          VM(f"buffer_store_dwordx2 v[{PK+8}:{PK+9}], v{V_P8}, s[16:19], s78 offen offset:2048 sc1", ("PST", p, 2))]
    return [(cv[:4], st[0]), (cv[4:8], st[1]), (cv[8:], st[2])]
def hreads(s):
    o = []
    for t in range(5):
        off = (s * 5 + t) * 1024; vr = V_HR
        if off >= 40960: off -= 40960; vr = V_HR2
        lo = HB + (s * 5 + t) * 1024
        o.append(LG(f"ds_read_b128 {act(s*5+t)}, v{vr} offset:{off}", ("RH", s, t), rd=(lo, lo + 1024)))
    return o
def tags(items): return [it.tag for it in items if it.kind == "lg"]
def cyc_stamp(side, g, g0, gap, v):
    if cfg.ts == 2 and cfg.pp and g == g0: side.append((gap, [I("s_memtime s[32:33]")]))
    if cfg.ts == 2 and cfg.pp and g == g0 + 1: side.append((gap, [I("s_waitcnt lgkmcnt(0)"), I("v_cmp_eq_u32 vcc, s63, v1"), I("v_mov_b32 v9, s32"), I("s_nop 0"), I(f"v_cndmask_b32 v{v}, v{v}, v9, vcc")]))

def g1_group(p, g, dyn=False):
    kind = "a" if p == 0 else ("z" if p == 7 else "")
    ms = group_mfmas(1, range(3 * g, 3 * g + 3), 17)
    side = []
    nph, npp = (1, p + 1) if p < 7 else (2, 0)
    if g % 2 == 1:
        need = cover(1, p, 3 * g + 3, 3 * g + 9) if g < 5 else cover(nph, npp, 0, 6)
        if g == 1 and p == 1: need = need + [("ABST", 4)]
        side.append((0, [WAIT(f"g1_b{g}{kind}", vm=need), BAR()]))
    rd = []
    for s in range(3 * g + 3, 3 * g + 6):
        rd += trr(1, p, s) if s < 18 else trr(nph, npp, s - 18)
    side += list(zip([1, 2, 4, 5, 6, 7] if not cfg.rdp else [0, 1, 2, 4, 5, 6], rd))
    for k, s in enumerate(range(3 * g + 15, 3 * g + 18)):
        pre, dm = wdma(1, p, s) if s < 18 else wdma(nph, npp, s - 18)
        gp = [3, 8, 13][k]
        if pre: side.append((gp - 2, pre[0])); side.append((gp - 1, pre[1]))
        side.append((gp, dm))
    if g == 0:
        if p < 7:
            side.append((11, [I("s_add_u32 s73, s73, 128"), I("s_and_b32 s73, s73, 0x380")])); side.append((12, I("s_add_u32 s62, s73, s74")))
        else:
            side.append((11, I("s_mov_b32 s62, s72")))
    if kind == "z" and cfg.tag7:
        if g == 0: side += [(1, I(f"v_mov_b32 v{ABP}, -1")), (2, I(f"v_mov_b32 v{ABP+1}, -1")), (7, I(f"v_mov_b32 v{ABP+2}, -1")), (10, I(f"v_mov_b32 v{ABP+3}, -1")),
                            (12, I(f"s_add_u32 s34, s78, {7*SL}"))]
        if g == 1: side.append((0, [VM(f"buffer_store_dwordx4 v[{ABP}:{ABP+3}], v{V_P16}, s[16:19], s34 offen sc1", ("POI", 0)),
                                    VM(f"buffer_store_dwordx4 v[{ABP}:{ABP+3}], v{V_P16}, s[16:19], s34 offen offset:1024 sc1", ("POI", 1)),
                                    VM(f"buffer_store_dwordx2 v[{ABP}:{ABP+1}], v{V_P8}, s[16:19], s34 offen offset:2048 sc1", ("POI", 2))]))
        if g == 4: side += [(1, [I(f"v_lshlrev_b32 v4, 2, v{V_L}"), I(f"v_cmp_gt_u32 vcc, 32, v{V_L}")]), (3, I(f"v_mov_b32 v5, {OOB}")), (8, I(f"v_cndmask_b32 v{ABP+4}, v5, v4, vcc"))]
    hr = []
    if kind == "z" and g >= 1:
        hr = hreads(2 * g - 2) + hreads(2 * g - 1)
        side += list(zip([0 if g % 2 == 0 else 1, 2, 4, 5, 6, 7, 9, 9, 11, 12], hr))
    if kind == "a":
        ep = ab_epilogue(); st = ab_once(0); wr = ab_once(2); ag = ab_gaddr()
        if cfg.p0v:
            if g == 0: side += spread(ep[:12], [3, 4, 5, 6, 7]) + [(9, wr[0])] + spread(ep[12:22], [8, 9, 10, 11]) + [(12, wr[1])] + spread(ep[22:28], [12, 13, 14])
            if g == 1: side += spread(ep[28:42], [1, 2, 3, 4, 5, 6, 7, 8]) + [(9, wr[2]), (11, wr[3])] + spread(ep[42:], [10, 11, 12, 13, 14])
        else:
            if g == 0: side += spread(ep[:26], [3, 4, 5, 6, 7, 9, 9, 10, 10, 11, 12, 13, 14])
            if g == 1: side += spread(ep[26:], [1, 2, 3, 4, 5, 6, 7, 9, 11, 12, 13]) + [(9, wr[0]), (10, wr[1]), (12, wr[2]), (14, wr[3])]
        if g == 2:
            r2 = ab_once(3); rd = rd + r2
            side += [(0, wr[4]), (9, r2[0]), (10, r2[1])]
        if g == 3: side += list(zip([0, 1, 2], st))
        if g in (3, 4, 5):
            s3_ = setup3(); n3 = (len(s3_) + 2) // 3
            side += spread(s3_[(g - 3) * n3:(g - 2) * n3], [3, 4, 5, 6, 7, 9, 9, 10, 10, 11, 12, 14])
    if kind == "" and g == 1:
        side.append((9, [I("s_cmp_eq_u32 s63, 6"), I("s_cbranch_scc1 L_once1")] + (ab_once(1) if (dyn and p == 1) else []) + [I("L_once1_ret:")]))
    if kind == "a": pass
    elif g < 5:
        cv, mx, w = h_tile(p - 1, g)
        if kind == "z" and g >= 1:
            side += [(3, cv[0]), (8, cv[1]), (10, mx), (13, w)]
        elif cfg.hw == 1:
            side += [(3, cv[0]), (4, cv[1]), (5, mx[0]), (6, mx[1]), (cfg.hg, w)]
        else:
            side += [(4, cv[0]), (5, cv[1]), (9, mx), (cfg.hg, w)]
    else:
        side.append((10, I(f"v_add_u32 v{V_HW}, 10240, v{V_HW}")))
    if kind == "": cyc_stamp(side, g, 2, 12, 130)
    if g == 5 and kind == "": side.append((13, [I("s_sub_u32 s63, s63, 1"), I("s_cmp_lg_u32 s63, 0")]))
    side.append((14, WAIT(f"g1_r{g}{kind}", lg=tags(rd))))
    return place(ms, side)

def nextcol():
    return [[I("s_add_u32 s62, s62, 128"), I("s_cmp_eq_u32 s62, 1152"), I("s_cselect_b32 s62, 0, s62")],
            [I("s_cmp_eq_u32 s62, s72"), I(f"s_cselect_b32 s62, {OOB}, s62"), I("s_xor_b32 s60, s60, 0x10000")]]
def g2_pass0():
    o = []
    groups = [(0, 1, 2), (3, 4, 5), (6, 7), (8, 9, 10, 11), (12, 13, 14, 15)]
    cuts = [15, 19, 23, 26, 31, 36]
    hsteps = [(10,), (11, 12), (13,), (14, 15), ()]
    htl = [(0, 1), (2, 3), (4,), (), ()]
    if cfg.g20v:
        hsteps = [(10,), (11,), (), (12, 13), (14, 15)]
        htl = [(0,), (1, 2), (3,), (4,), ()]
    for gi, st in enumerate(groups):
        ms = group_mfmas(2, st, 15); n = len(ms); side = []
        hw7 = [("HW", 7, 4)]
        if gi == 1: side.append((0, [WAIT("g20_b1", vm=cover(2, 0, 6, 12)), BAR()]))
        if gi == 3: side.append((0, [WAIT("g20_b3", vm=cover(2, 0, 12, 16), lg=None if cfg.g20v else hw7), BAR()]))
        if gi == 4: side.append((0, [WAIT("g20_b4", vm=cover(2, 1, 0, 8), lg=hw7 if cfg.g20v else None), BAR(), I(f"v_xor_b32 v{V_TR}, 0x10000, v{V_TR}")]))
        dl = list(range(cuts[gi], cuts[gi + 1]))
        dg = [min(n - 1, 2 + (i * (n - 1)) // len(dl)) for i in range(len(dl))]
        for s, gp in zip(dl, dg):
            pre, dm = wdma(2, s // 16, s % 16)
            if s % 16 == 0:
                nc = nextcol(); side.append((gp - 2, nc[0] + nc[1]))
            if pre: side.append((gp - 1, pre))
            side.append((gp, dm))
        free = [x for x in range(1 if gi in (1, 3, 4) else 0, n - 3) if x not in dg]
        rd = []
        for s in (groups[gi + 1] if gi < 4 else range(16, 20)): rd += trr(2, s // 16, s % 16)
        if cfg.g20v and gi == 4:
            h14, h15 = hreads(14), hreads(15)
            side += spread(h14 + h15, [0, 1, 2, 3, 4]) + [(9, WAIT("g20_h14", lg=tags(h14))), (14, WAIT("g20_h15", lg=tags(h15)))]
            free = [x for x in free if x > 4]
        else:
            for s in hsteps[gi]: rd += hreads(s)
        side += spread(rd, free)
        for k, t in enumerate(htl[gi]):
            cv, mx, w = h_tile(7, t)
            b = 3 + 4 * k
            side += [(b, cv[0]), (b + 1, cv[1]), (b + 2, mx[0]), (b + 3, mx[1]), ((8 if (cfg.g20v and gi == 3) else n - 3 + k), w)]
        gp_ = g2_pre()
        k_ = 30 if cfg.inloop else 20
        if gi == 3: side += spread(gp_[:k_], list(range(1, n - 1)))
        if gi == 4: side += spread(gp_[k_:], list(range(1, n - 1)))
        side.append((n - 1, WAIT(f"g20_r{gi}", lg=tags(rd))))
        o += place(ms, side)
    return o
SUM, PBUF, PB2 = 216, 236, 76
V_SELA = 248
V_FLW = 254
V_FLG = 128
V_K0, V_K1 = 129, 130
YR, GR, SEL, OA, V_YA, V_YA0, V_GA = 100, 132, 110, 114, 120, 121, 122
def slot_loads(b, tag, so="s34", r="v"):
    return [VM(f"buffer_load_dwordx4 {r}[{b}:{b+3}], v{V_P16}, s[16:19], {so} offen sc1", (tag, 0)),
            VM(f"buffer_load_dwordx4 {r}[{b+4}:{b+7}], v{V_P16}, s[16:19], {so} offen offset:1024 sc1", (tag, 1)),
            VM(f"buffer_load_dwordx2 {r}[{b+8}:{b+9}], v{V_P8}, s[16:19], {so} offen offset:2048 sc1", (tag, 2))]
def slot_add(d, b, first=False, r="v"):
    o = []
    for t in range(5):
        a = V_SELA + (0 if t & 1 else 2); bb = b + 4 * (t >> 1); D = f"v[{d+4*t}:{d+4*t+3}]"
        o.append(mfma(D, f"v[{a}:{a+3}]", f"{r}[{bb}:{bb+3}]", "0" if first else D))
    return o
def slot_next():
    return [[I("s_cmp_eq_u32 s96, 0"), I(f"s_cselect_b32 s97, {72*SL}, 0"), I("s_add_u32 s95, s95, s97")],
            [I(f"s_sub_u32 s95, s95, {7*SL}"), I("s_sub_u32 s96, s96, 1")]]
def sample(tag, so=None):
    if so: return VM(f"buffer_load_dword v{V_FLG}, v{V_FL}, s[16:19], {so} offen offset:2560 sc1", tag)
    return VM(f"buffer_load_dword v{V_FLG}, v{V_POLL}, s[16:19], 0 offen sc1", tag)
def check(lab):
    return [I(f"v_cmp_eq_u32 vcc, s7, v{V_FLG}"), I("s_and_b32 s97, vcc_lo, s35"), I("s_cmp_eq_u32 s97, s35"), I(f"s_cbranch_scc0 {lab}"), I(f"{lab}_ret:")]
def spin(lab, so=None):
    return T(f"""
    {lab}:
    s_mov_b32 s98, {SPIN}
    {lab}_l:
    {sample(None, so).text}
    s_sub_u32 s98, s98, 1
    s_cmp_eq_u32 s98, 0
    s_cbranch_scc1 {lab}_ret
    s_waitcnt vmcnt(0)
    v_cmp_eq_u32 vcc, s7, v{V_FLG}
    s_and_b32 s97, vcc_lo, s35
    s_cmp_eq_u32 s97, s35
    s_cbranch_scc1 {lab}_ret
    {f"s_sleep {cfg.slp2}" if cfg.slp2 else "s_nop 0"}
    s_branch {lab}_l
    """)
def tagcheck():
    b = PB2
    return T(f"""
    v_max3_u32 v4, v{b}, v{b+1}, v{b+2}
    v_max3_u32 v5, v{b+3}, v{b+4}, v{b+5}
    v_max3_u32 v6, v{b+6}, v{b+7}, v{b+8}
    v_max3_u32 v4, v4, v{b+9}, v5
    v_max_u32 v4, v4, v6
    v_cmp_eq_u32 vcc, -1, v4
    s_nop 4
    """)
def spin_tag():
    return T(f"L_sp3:\ns_mov_b32 s98, {SPIN}\nL_sp3_l:") + slot_loads(PB2, None, "s95") + T("""
    s_sub_u32 s98, s98, 1
    s_waitcnt vmcnt(0)
    s_cmp_eq_u32 s98, 0
    s_cbranch_scc1 L_sp3_ret
    """) + tagcheck() + T("s_cbranch_vccnz L_sp3_l\ns_branch L_sp3_ret")
EB = 216
V_POLLE = 129
EB2 = 132
def ep_block(which, p=None):
    if cfg.ep2 == 2:
        if which == 0: return [sample(("EPS", p), "s79")]
        adr = (94, 96, 34, 100, 101, 101); buf = (EB, EB + 10, EB + 20, EB2, EB2 + 10)
        o = check("L_sp1")
        for j in range(5):
            body = slot_loads(buf[j], ("SL", j), "s79") + [I(f"s_mov_b32 s79, s{adr[j+1]}")]
            head = [I(f"s_cmp_lg_u32 s63, {5-j}"), I(f"s_cbranch_scc1 L_epn{j}")] if j < 4 else []
            if p is None: o += head + body + ([I("s_branch L_ep1_ret"), I(f"L_epn{j}:")] if j < 4 else [])
            elif p == 3 + j: return o + head + body
            else: o += head
        return o
    if which == 0: return [VM(f"buffer_load_dword v{V_FLG}, v{V_POLLE}, s[16:19], 0 offen sc1", ("EPS", p))]
    o = check("L_sp1")
    e1 = []; e2 = []
    for j in range(cfg.early): e1 += slot_loads(EB + 10 * j, ("SL", j), f"s{(94, 96, 34)[j]}")
    if not cfg.ep2: return o + e1
    e1.append(I("s_movk_i32 s35, 0x18"))
    for j in (3, 4): e2 += slot_loads(EB2 + 10 * (j - 3), ("SL", j), f"s{(100, 101)[j - 3]}")
    o += [I("s_cmp_eq_u32 s63, 1"), I("s_cbranch_scc1 L_ep2")]
    if p is None: return o + e1 + [I("s_branch L_ep1_ret"), I("L_ep2:")] + e2
    return o + (e2 if p == 7 else e1)
def g2_group(p, g, ep=()):
    ms = group_mfmas(2, range(4 * g, 4 * g + 4), 15); side = []
    if g in (1, 3):
        need = cover(2, p, 8, 16) if g == 1 else cover(2, p + 1, 0, 8) + [("PST", p - 1, 2)] + (([("SMP", p)] + ([(("SL", p - 1), 2)] if p > 1 else [])) if cfg.inloop else [])
        if g == 3 and p in ep and cfg.early and not cfg.inloop: need = need + [("EPS", p)]
        side.append((0, [WAIT(f"g2_b{g}", vm=need), BAR()] + ([I(f"v_xor_b32 v{V_TR}, 0x10000, v{V_TR}")] if g == 3 else [])))
    rd = []
    for s in range(4 * g + 4, 4 * g + 8): rd += trr(2, p + s // 16, s % 16)
    side += list(zip([1, 2, 4, 5, 6, 7, 9, 10], rd))
    for k, s in enumerate(range(4 * g + 20, 4 * g + 24)):
        pre, dm = wdma(2, p + s // 16, s % 16)
        gp = [3, 8, 13, 18][k]
        if pre: side.append((gp - 2, pre[0])); side.append((gp - 1, pre[1]))
        side.append((gp, dm))
    if g == 0:
        pp = p_parts(p - 1)
        if cfg.inloop: side.append((0, sample(("SMP", p), "s34")))
        side += list(zip([4, 5, 6, 7, 9, 10, 11, 12, 14, 14], pp[0][0] + pp[1][0] + pp[2][0]))
        side += [(15, pp[0][1]), (16, pp[1][1]), (17, pp[2][1])]
    if g == 2:
        nc = nextcol(); side += [(16, nc[0]), (17, nc[1])]
        if cfg.inloop: sn = slot_next(); side += [(14, sn[0]), (15, sn[1])]
    if cfg.early and not cfg.inloop and g in (0, 3):
        w = 0 if g == 0 else 1
        side.append((0 if g == 0 else cfg.epg, [I("s_bitcmp1_b32 s99, s63"), I(f"s_cbranch_scc1 L_ep{w}")] + (ep_block(w, p) if p in ep else []) + [I(f"L_ep{w}_ret:")]))
    if g == 3 and not cfg.inloop:
        side.append((cfg.flg, VM(f"buffer_store_dword v{V_TAG}, v{V_FLW}, s[16:19], s78 offen offset:2560 sc1", ("PFL", p - 1))))
        side.append((16, I(f"s_add_u32 s78, s78, {SL}")))
        side.append((19, [I("s_sub_u32 s63, s63, 1"), I("s_cmp_lg_u32 s63, 0")]))
    if g == 3 and cfg.inloop:
        ad = slot_add(SUM, PBUF); ld = slot_loads(PBUF, ("SL", p)); ck = check("L_sp1")
        side.append((0, [ad[0], VM(f"buffer_store_dword v{V_TAG}, v{V_FLW}, s[16:19], s78 offen offset:2560 sc1", ("PFL", p - 1)),
                         ad[1], ck[0], ad[2]] + ck[1:] + [ad[3], I(f"s_add_u32 s78, s78, {SL}"), ad[4]]))
        side += list(zip([14, 15, 16], ld))
        side.append((17, [I("s_cmp_gt_u32 s63, 6"), I(f"s_cselect_b32 s34, {OOB}, s95"), I("s_cselect_b32 s35, 0, 1")]))
        side.append((18, [I("s_sub_u32 s63, s63, 1"), I("s_cmp_lg_u32 s63, 0")]))
    cyc_stamp(side, g, 1, 19, 152-1 if False else 131)
    side.append((19, WAIT(f"g2_r{g}", lg=tags(rd))))
    return place(ms, side)

def g2_pre():
    o = T(f"""
    v_sub_u32 v5, s6, v{V_L}
    v_add_u32 v6, 9, v5
    v_min_u32 v5, v5, v6
    v_lshl_add_u32 v5, v5, 3, v{V_L}
    s_mul_i32 s95, s4, {72*SL}
    s_mul_i32 s96, s3, {WSL}
    s_add_u32 s95, s95, s96
    s_add_u32 s95, s95, {WS_PART}
    v_mul_u32_u24 v5, {SL}, v5
    s_add_u32 s97, s95, 2560
    v_add_u32 v5, s97, v5
    s_lshl_b32 s97, s4, 7
    s_add_u32 s97, s97, {WS_YFLAG - 32}
    v_lshl_add_u32 v6, v{V_L}, 2, s97
    v_cmp_gt_u32 vcc, 8, v{V_L}
    s_mov_b32 s82, {(0x20 if (cfg.inloop or cfg.ep2) else (1 << cfg.ne) - (1 << cfg.early)) | (0xfffff << 8)}
    s_mul_i32 s97, s6, {8*SL}
    v_cndmask_b32 v5, v6, v5, vcc
    s_mov_b32 s83, 0
    v_mov_b32 v6, {OOB}
    s_add_u32 s95, s95, s97
    v_cndmask_b32 v{V_POLL}, v6, v5, s[82:83]
    s_mov_b32 s82, {0xff & ~((1 << cfg.ne) - 1)}
    s_add_u32 s95, s95, {14*SL if cfg.inloop else 0}
    v_cndmask_b32 v255, v6, v5, s[82:83]
    s_mov_b32 s82, {0x1f if cfg.ep2 else (1 << cfg.early) - 1}
    s_nop 0
    v_cndmask_b32 v{V_POLLE}, v6, v5, s[82:83]
    s_add_u32 s96, s6, 2
    s_mov_b32 s63, 7
    s_mov_b32 s34, {OOB}
    s_mov_b32 s35, 0
    v_lshlrev_b32 v4, 2, v{V_L}
    v_cmp_gt_u32 vcc, 32, v{V_L}
    v_lshlrev_b32 v5, 2, v{V_Q}
    v_sub_u32 v5, v{V_C}, v5
    v_cndmask_b32 v{V_FLW}, v6, v4, vcc
    v_and_b32 v4, 1, v5
    v_lshlrev_b32 v4, 4, v4
    v_mov_b32 v6, 0x3f80
    v_lshlrev_b32 v4, v4, v6
    v_lshrrev_b32 v5, 1, v5
    v_cmp_eq_u32 vcc, 0, v5
    v_mov_b32 v{V_SELA}, 0
    v_mov_b32 v{V_SELA+1}, 0
    v_cndmask_b32 v{V_SELA+2}, 0, v4, vcc
    v_cmp_eq_u32 vcc, 1, v5
    v_mov_b32 v{V_SELA+4}, 0
    v_mov_b32 v{V_SELA+5}, 0
    v_cndmask_b32 v{V_SELA+3}, 0, v4, vcc
    """)
    if cfg.early and not cfg.inloop:
        o += T(f"""
        v_mov_b32 v{EB+30}, 0
        v_mov_b32 v{EB+31}, 0
        s_mov_b32 s35, {(1 << cfg.early) - 1}
        s_mul_i32 s99, s4, 21846
        s_lshr_b32 s99, s99, 16
        s_mul_i32 s99, s99, 3
        s_sub_u32 s99, s4, s99
        s_min_u32 s99, s99, {cfg.epm - 1}
        s_lshl_b32 s99, 2, s99
        s_mov_b32 s94, s95
        """)
        if cfg.ep2:
            o += T("s_and_b32 s99, s4, 1\ns_lshl_b32 s99, 4, s99\ns_or_b32 s99, s99, 2")
            if cfg.ep2 == 2: o += T("s_movk_i32 s99, 0x3e\ns_mov_b32 s35, 1\ns_mov_b32 s79, s95")
            for j in (3, 4): o.append([I(f"s_cmp_lt_u32 s6, {j}"), I(f"s_cselect_b32 s{97+j}, {72*SL}, 0"), I(f"s_add_u32 s{97+j}, s{97+j}, s95"), I(f"s_sub_u32 s{97+j}, s{97+j}, {7*j*SL}")])
        o.append([I("s_cmp_lt_u32 s6, 1"), I(f"s_cselect_b32 s96, {72*SL}, 0"), I("s_add_u32 s96, s96, s95"), I(f"s_sub_u32 s96, s96, {7*SL}")])
        o.append([I("s_cmp_lt_u32 s6, 2"), I(f"s_cselect_b32 s34, {72*SL}, 0"), I("s_add_u32 s34, s34, s95"), I(f"s_sub_u32 s34, s34, {14*SL}")])
    if cfg.inloop:
        for i in range(20): o.append(I(f"v_mov_b32 v{SUM+i}, 0"))
        for i in range(12): o.append(I(f"v_mov_b32 v{PBUF+i}, 0"))
    return o

def fin_setup():
    o = T(f"""
    s_lshl_b32 s68, s6, 6
    s_lshl_b32 s69, s3, 4
    s_add_u32 s68, s68, s69
    v_add_u32 v5, s68, v{V_C}
    v_sub_u32 v6, 576, v5
    v_cmp_lt_u32 s[76:77], v6, v5
    v_min_u32 v6, v5, v6
    s_mul_i32 s69, s4, 20
    v_add_u32 v7, s69, v{V_Q}
    s_movk_i32 s70, 2560
    v_lshlrev_b32 v6, 3, v6
    v_mad_u32_u24 v{V_YA}, v7, s70, v6
    v_add_u32 v{V_YA}, {WS_YT}, v{V_YA}
    v_cmp_eq_u32 s[80:81], 0, v7
    v_add_u32 v9, {512*2560}, v{V_YA}
    s_and_b64 s[82:83], s[80:81], s[76:77]
    v_lshlrev_b32 v{V_GA}, 4, v7
    v_add_u32 v{V_GA}, {WS_GT}, v{V_GA}
    v_cndmask_b32 v{V_YA0}, v{V_YA}, v9, s[82:83]
    """)
    for rho in range(4):
        d = 0x0c0c | ((2 * rho) << 16) | ((2 * rho + 1) << 24); m = 0x0c0c | ((6 - 2 * rho) << 16) | ((7 - 2 * rho) << 24)
        o += T(f"v_mov_b32 v8, {d}\nv_mov_b32 v9, {m}\nv_cndmask_b32 v{SEL+rho}, v8, v9, s[76:77]")
    o += T(f"""
    s_lshl_b32 s68, s3, 1
    v_lshrrev_b32 v5, 1, v{V_Q}
    v_add_u32 v5, s68, v5
    v_and_b32 v6, 7, v{V_C}
    v_xor_b32 v5, v5, v6
    v_lshlrev_b32 v5, 4, v5
    v_lshl_add_u32 v5, v{V_C}, 7, v5
    v_and_b32 v6, 1, v{V_Q}
    v_lshl_add_u32 v5, v6, 3, v5
    v_add_u32 v{OA}, {OUTL}, v5
    v_lshrrev_b32 v5, 3, v{V_L}
    v_and_b32 v6, 7, v{V_L}
    v_xor_b32 v7, v5, v6
    v_lshlrev_b32 v7, 4, v7
    v_lshl_add_u32 v7, v5, 7, v7
    s_lshl_b32 s70, s3, 10
    s_add_u32 s70, s70, {OUTL}
    v_add_u32 v{OA+1}, s70, v7
    s_lshl_b32 s70, s6, 7
    v_lshl_add_u32 v6, v6, 4, s70
    v_and_b32 v5, 3, v5
    v_lshrrev_b32 v7, 5, v{V_L}
    s_add_u32 s68, s68, s69
    v_add_u32 v7, s68, v7
    s_add_u32 s69, s69, 20
    s_min_u32 s69, s69, 512
    s_movk_i32 s67, 1152
    """)
    for k in range(3):
        o += rowcalc(7, 5, OA + 2 + k, 8) + T(f"""
        v_cmp_gt_u32 vcc, s69, v7
        v_mad_u32_u24 v{OA+2+k}, v{OA+2+k}, s67, v6
        v_mov_b32 v8, {OOB}
        v_cndmask_b32 v{OA+2+k}, v8, v{OA+2+k}, vcc
        v_add_u32 v7, 8, v7
        """)
    return o

V_P12, V_FLG2 = 99, 131
T7 = 56
Q7 = 100
def pos7(i): return i + i // 3
def loads7():
    l = [VM(f"buffer_load_dwordx4 v[{T7+4*k}:{T7+4*k+3}], v{V_P16}, s[16:19], s71 offen offset:{1024*k} sc1", (("SL", 7), 5 + k)) for k in range(3)]
    return l + [VM(f"buffer_load_dwordx2 v[{T7+12}:{T7+13}], v{V_P8}, s[16:19], s71 offen offset:3072 sc1", (("SL", 7), 2))]
def chk7():
    return T(f"""
    v_xor_b32 v4, s7, v{T7+3}
    v_xor_b32 v5, s7, v{T7+7}
    v_xor_b32 v6, s7, v{T7+11}
    v_xor_b32 v7, s7, v{T7+13}
    v_or3_b32 v4, v4, v5, v6
    v_or_b32 v4, v4, v7
    v_cmp_ne_u32 vcc, 0, v4
    s_nop 4
    """)
def spin7():
    return T(f"L_sp4:\ns_mov_b32 s98, {SPIN}\nL_sp4_l:") + loads7() + T("""
    s_sub_u32 s98, s98, 1
    s_waitcnt vmcnt(0)
    s_cmp_eq_u32 s98, 0
    s_cbranch_scc1 L_sp4_ret
    """) + chk7() + T("s_cbranch_vccnz L_sp4_l\ns_branch L_sp4_ret")
def g2_last2(fs, ad):
    o = []; p = 8; E = 5 if cfg.ep2 else cfg.early; F7 = cfg.chk7 == 2
    yg = []
    for t in range(5):
        yg.append([I(f"s_or_b32 s61, s75, {t*4*2560}" if t >= 3 else f"s_mov_b32 s61, {t*4*2560}"), VM(f"buffer_load_dwordx2 v[{YR+2*t}:{YR+2*t+1}], v{V_YA0 if t == 0 else V_YA}, s[16:19], s61 offen sc1", ("YL", t))])
        yg.append(VM(f"buffer_load_dwordx4 v[{GR+4*t}:{GR+4*t+3}], v{V_GA}, s[16:19], {'s75' if t >= 3 else '0'} offen offset:{64*t} sc1", ("GL", t)))
    ld = []
    for j in range(E, 6): ld += slot_loads(12 * j, ("SL", j), f"s{64+j}", "a")
    ld += yg
    for g in range(4):
        ms = group_mfmas(2, range(4 * g, 4 * g + 4), 15); side = []
        rd = []
        if g < 3:
            for s in range(4 * g + 4, 4 * g + 8): rd += trr(2, p, s)
            side += list(zip([1, 2, 4, 5, 6, 7, 9, 10] if g else [10, 11, 12, 13, 14, 15, 16, 17], rd))
        if g == 0:
            side.append((0, sample("S0")))
            if F7:
                pp = p_parts(7)
                side += list(zip([1, 1, 2, 2, 4, 4, 5, 5, 7, 7], pp[0][0] + pp[1][0] + pp[2][0]))
                side += [(3, pp[0][1]), (6, pp[1][1]), (8, pp[2][1])]
            else:
                cv = [I(f"v_cvt_pk_bf16_f32 v{Q7+pos7(i)}, v{E0+2*i}, v{E0+2*i+1}") for i in range(10)]
                st = [VM(f"buffer_store_dwordx4 v[{Q7+4*k}:{Q7+4*k+3}], v{V_P16}, s[16:19], s78 offen offset:{1024*k} sc1", ("PST", 7, k)) for k in range(3)]
                st.append(VM(f"buffer_store_dwordx2 v[{Q7+12}:{Q7+13}], v{V_P8}, s[16:19], s78 offen offset:3072 sc1", ("PST", 7, 3)))
                side += list(zip([1, 1, 2, 3, 4, 4, 5, 6, 6, 7], cv)) + list(zip([2, 4, 7, 8], st))
            side += spread(ad, list(range(10, 19)))
            side.append((19, I(f"s_mov_b32 s35, {((1 << 6) - (1 << E)) | (0xfffff << 8)}")))
        if g == 1:
            side.append((0, [WAIT("g2z_b1", vm=cover(2, p, 8, 16)), BAR()]))
            side += spread(fs[:24], list(range(1, 12)))
            side.append((12, [WAIT("g2z_s0", vm=["S0"])] + check("L_sp2") + [I("s_mov_b32 s35, 1"), sample("S1", "s70")]))
            if cfg.ep2:
                ld = ld[:3] + yg[0::2] + yg[1::2]
                side.append((14, slot_add(16, EB2) + slot_add(16, EB2 + 10)))
            side += list(zip(range(13, 20), ld[:7]))
        if g == 2:
            if F7: side.append((0, [WAIT("g2z_st", vm=[("PST", 7, 2)]), VM(f"buffer_store_dword v{V_TAG}, v{V_FLW}, s[16:19], s78 offen offset:2560 sc1", ("PFL", 7))]))
            side += spread(ld[7:], list(range(0, 6 if cfg.ep2 else 16)))
            side += spread(fs[24:45], list(range(0, 20)))
        if g == 3:
            side += spread(fs[45:], [x for x in range(0, 20) if x < cfg.s6g - 1 or x > cfg.s6g])
            ck = [I(x.text.replace("vcc_lo", "s80").replace("vcc", "s[80:81]")) for x in check("L_sp3")]
            side.append((cfg.s6g, [WAIT("g2z_s1", vm=["S1"])] + ck + slot_loads(72, ("SL", 6), "s70", "a") + ([] if F7 else loads7())))
            if F7: side.append((19, sample("S2", "s71")))
        if g < 3: side.append((19, WAIT(f"g2z_r{g}", lg=tags(rd))))
        o += place(ms, side)
    o += TS(7)
    for j in range(cfg.early): o += slot_add(E0, EB + 10 * j)
    for j in range(E, 6):
        o.append(WAIT(f"fin_a{j}", vm=[(("SL", j), 2)])); o += slot_add(E0, 12 * j, r="a")
    YT_ = 56 if F7 else EB
    o.append(WAIT("fin_gl", vm=[("GL", 4)]))
    for t in range(5):
        for rho in range(4): o.append(I(f"v_perm_b32 v{YT_+4*t+rho}, v{YR+2*t+1}, v{YR+2*t}, v{SEL+rho}"))
    if F7:
        o.append(WAIT("fin_s2", vm=["S2"])); o += check("L_sp4") + slot_loads(84, ("SL", 7), "s71", "a")
    for i in range(20): o.append(I(f"v_mul_f32 v{YT_+i}, v{YT_+i}, v{GR+i}"))
    for i in range(20): o.append(I(f"v_sub_f32 v{GR+i}, 1.0, v{GR+i}"))
    o.append(WAIT("fin_6", vm=[(("SL", 6), 2)])); o += slot_add(E0, 72, r="a")
    o.append(WAIT("fin_7", vm=[(("SL", 7), 2)]))
    if F7: return o + slot_add(E0, 84, r="a") + [I("s_nop 3")] + fin_out()
    o += chk7() + T("s_cbranch_vccnz L_sp4\nL_sp4_ret:")
    for i in range(3, 10): o.append(I(f"v_mov_b32 v{T7+i}, v{T7+pos7(i)}"))
    o += T(f"v_mov_b32 v{T7+10}, 0\nv_mov_b32 v{T7+11}, 0")
    o += slot_add(E0, T7)
    o.append(I("s_nop 3"))
    return o + fin_out(YT_)
def g2_last0():
    o = []; p = 8
    fs = fin_setup()
    ad = []
    for j in range(8):
        ad.append([I(f"s_cmp_lt_u32 s6, {j}"), I(f"s_cselect_b32 s{64+j}, {72*SL}, 0"), I(f"s_add_u32 s{64+j}, s{64+j}, s95"), I(f"s_sub_u32 s95, s95, {7*SL}")])
    fs = [I(x.text.replace("s67", "s96").replace("s68", "s62").replace("s69", "s94").replace("s70", "s34")) for x in fs]
    if cfg.chk7: return g2_last2(fs, ad)
    NE = cfg.ne; E = cfg.early
    yg = []
    for t in range(5):
        yg.append([I(f"s_or_b32 s61, s75, {t*4*2560}" if t >= 3 else f"s_mov_b32 s61, {t*4*2560}"), VM(f"buffer_load_dwordx2 v[{YR+2*t}:{YR+2*t+1}], v{V_YA0 if t == 0 else V_YA}, s[16:19], s61 offen sc1", ("YL", t))])
        yg.append(VM(f"buffer_load_dwordx4 v[{GR+4*t}:{GR+4*t+3}], v{V_GA}, s[16:19], {'s75' if t >= 3 else '0'} offen offset:{64*t} sc1", ("GL", t)))
    ld = []
    for j in range(E, NE): ld += slot_loads(12 * j, ("SL", j), f"s{64+j}", "a")
    ld += yg
    for g in range(4):
        ms = group_mfmas(2, range(4 * g, 4 * g + 4), 15); side = []
        rd = []
        if g < 3:
            for s in range(4 * g + 4, 4 * g + 8): rd += trr(2, p, s)
            side += list(zip([1, 2, 4, 5, 6, 7, 9, 10] if g else [9, 10, 11, 12, 13, 14, 15, 16], rd))
        if g == 0:
            pp = p_parts(7)
            side.append((0, sample("S0")))
            side += list(zip([1, 1, 2, 2, 4, 4, 5, 5, 7, 7], pp[0][0] + pp[1][0] + pp[2][0]))
            side += [(3, pp[0][1]), (6, pp[1][1]), (8, pp[2][1])]
            side += spread(ad, list(range(9, 19)))
            side.append((19, I(f"s_mov_b32 s35, {((1 << NE) - (1 << E)) | (0xfffff << 8)}")))
        if g == 1:
            side.append((0, [WAIT("g2z_b1", vm=cover(2, p, 8, 16)), BAR()]))
            side += spread(fs[:24], list(range(1, 12)))
            side.append((12, [WAIT("g2z_s0", vm=["S0"])] + check("L_sp2")))
            side += list(zip(range(13, 20), ld[:7]))
        if g == 2:
            side.append((cfg.stg, [WAIT("g2z_st", vm=[("PST", 7, 2)]), VM(f"buffer_store_dword v{V_TAG}, v{V_FLW}, s[16:19], s78 offen offset:2560 sc1", ("PFL", 7))]))
            side += spread(ld[7:], list(range(cfg.stg + 1, 20)))
            side += spread(fs[24:45], list(range(0, 20)))
        if g == 3:
            side += spread(fs[45:], list(range(0, 19)))
            side.append((19, [I(f"s_mov_b32 s35, {0xff & ~((1 << NE) - 1)}"), I(f"v_mov_b32 v{V_POLL}, v255"), sample("S1")]))
        if g < 3: side.append((19, WAIT(f"g2z_r{g}", lg=tags(rd))))
        o += place(ms, side)
    o += TS(7)
    for j in range(E): o += slot_add(E0, EB + 10 * j)
    for j in range(E, NE):
        o.append(WAIT(f"fin_a{j}", vm=[(("SL", j), 2)])); o += slot_add(E0, 12 * j, r="a")
    o.append(WAIT("fin_s1", vm=["S1"])); o += check("L_sp3")
    for j in range(7, NE - 1, -1): o += slot_loads(12 * j, ("SL", j), f"s{64+j}", "a")
    for t in range(5):
        for rho in range(4): o.append(I(f"v_perm_b32 v{56+4*t+rho}, v{YR+2*t+1}, v{YR+2*t}, v{SEL+rho}"))
    for i in range(20): o.append(I(f"v_mul_f32 v{56+i}, v{56+i}, v{GR+i}"))
    for i in range(20): o.append(I(f"v_sub_f32 v{GR+i}, 1.0, v{GR+i}"))
    for j in range(7, NE - 1, -1):
        o.append(WAIT(f"fin_{j}", vm=[(("SL", j), 2)])); o += slot_add(E0, 12 * j, r="a")
    o.append(I("s_nop 3"))
    return o + fin_out()

def g2_last():
    if not cfg.inloop: return g2_last0()
    o = []; p = 8
    fs = fin_setup()
    yg = []
    for t in range(5):
        yg.append([I(f"s_or_b32 s61, s75, {t*4*2560}" if t >= 3 else f"s_mov_b32 s61, {t*4*2560}"), VM(f"buffer_load_dwordx2 v[{YR+2*t}:{YR+2*t+1}], v{V_YA0 if t == 0 else V_YA}, s[16:19], s61 offen sc1", ("YL", t))])
        yg.append(VM(f"buffer_load_dwordx4 v[{GR+4*t}:{GR+4*t+3}], v{V_GA}, s[16:19], {'s75' if t >= 3 else '0'} offen offset:{64*t} sc1", ("GL", t)))
    for g in range(4):
        ms = group_mfmas(2, range(4 * g, 4 * g + 4), 15); side = []
        if g == 0:
            for t, m in enumerate([m for m in ms if m.text.endswith(", 0")]): m.text = m.text[:-1] + f"v[{SUM+4*t}:{SUM+4*t+3}]"
        rd = []
        if g < 3:
            for s in range(4 * g + 4, 4 * g + 8): rd += trr(2, p, s)
            side += list(zip([1, 2, 4, 5, 6, 7, 9, 10] if g else [9, 10, 11, 12, 13, 14, 15, 16], rd))
        if g == 0:
            pp = p_parts(7)
            side.append((0, sample("S0")))
            side += list(zip([1, 1, 2, 2, 4, 4, 5, 5, 7, 7], pp[0][0] + pp[1][0] + pp[2][0]))
            side += [(3, pp[0][1]), (6, pp[1][1]), (8, pp[2][1])]
            side += spread(fs[:19], list(range(9, 19)))
            side.append((19, I(f"s_mov_b32 s35, {(1 << 5) | (0xfffff << 8)}")))
        if g == 1:
            side.append((0, [WAIT("g2z_b1", vm=cover(2, p, 8, 16)), BAR()]))
            side += spread(fs[19:40], list(range(1, 11)))
            side.append((11, [I(f"v_mov_b32 v{PK+10}, 0"), I(f"v_mov_b32 v{PK+11}, 0")]))
            side.append((12, [WAIT("g2z_s0", vm=["S0"])] + check("L_sp2")))
            side += list(zip([13, 14, 15], slot_loads(PK, "SL5", "s95"))) + list(zip([16, 17, 18, 19], yg[:4]))
        if g == 2:
            side += list(zip([0, 1, 2, 3, 4, 5], yg[4:]))
            side.append((cfg.stg, [WAIT("g2z_st", vm=[("PST", 7, 2)]), VM(f"buffer_store_dword v{V_TAG}, v{V_FLW}, s[16:19], s78 offen offset:2560 sc1", ("PFL", 7))]))
            side.append((11, slot_add(SUM, PBUF, True)))
            sn = slot_next(); side += [(12, sn[0]), (13, sn[1]), (14, I("s_mov_b32 s34, s95"))]
            sn = slot_next(); side += [(15, sn[0]), (16, sn[1]), (17, [I("s_movk_i32 s35, 0xc0"), I(f"v_mov_b32 v{V_POLL}, v255")])]
        if g == 3:
            side += spread(fs[40:], list(range(0, 20)))
            side.append((19, sample("S1")))
        if g < 3: side.append((19, WAIT(f"g2z_r{g}", lg=tags(rd))))
        o += place(ms, side)
    o += TS(7)
    o += T(f"v_mov_b32 v{PB2+10}, 0\nv_mov_b32 v{PB2+11}, 0")
    o.append(WAIT("fin_gl", vm=[("GL", 4)]))
    o += slot_add(SUM, PK)
    for t in range(5):
        for rho in range(4): o.append(I(f"v_perm_b32 v{56+4*t+rho}, v{YR+2*t+1}, v{YR+2*t}, v{SEL+rho}"))
    o.append(WAIT("fin_s1", vm=["S1"])); o += check("L_sp3")
    o += slot_loads(PB2, "SL7", "s95") + slot_loads(PBUF, "SL6", "s34")
    for i in range(20): o.append(I(f"v_add_f32 v{E0+i}, v{E0+i}, v{SUM+i}"))
    for i in range(20): o.append(I(f"v_mul_f32 v{56+i}, v{56+i}, v{GR+i}"))
    for i in range(20): o.append(I(f"v_sub_f32 v{GR+i}, 1.0, v{GR+i}"))
    o.append(WAIT("fin_7", vm=[("SL7", 2)])); o += slot_add(E0, PB2)
    o.append(WAIT("fin_6", vm=[("SL6", 2)])); o += slot_add(E0, PBUF)
    o.append(I("s_nop 3"))
    return o + fin_out()
def fin_out(Y=56):
    OF = ('', ' sc1', ' nt', ' sc0 sc1')[cfg.osc]
    o = []
    for t in range(5):
        for rho in range(4): o.append(I(f"v_fmac_f32 v{Y+4*t+rho}, v{E0+4*t+rho}, v{GR+4*t+rho}"))
        o += T(f"v_cvt_pk_bf16_f32 v{PK+2*t}, v{Y+4*t}, v{Y+4*t+1}\nv_cvt_pk_bf16_f32 v{PK+2*t+1}, v{Y+4*t+2}, v{Y+4*t+3}")
    o += T(f"v_mov_b32 v{PK+10}, 0\nv_mov_b32 v{PK+11}, 0")
    for t in range(5):
        a = V_SELA + (0 if t & 1 else 2); bb = PK + 4 * (t >> 1)
        o.append(mfma(ACC(t), f"v[{bb}:{bb+3}]", f"v[{a}:{a+3}]", "0"))
    o.append(I("s_nop 3"))
    for t in range(5):
        r = 16 + 4 * t
        o += T(f"v_cvt_pk_bf16_f32 v{56+2*t}, v{r}, v{r+1}\nv_cvt_pk_bf16_f32 v{57+2*t}, v{r+2}, v{r+3}")
        o.append(LG(f"ds_write_b64 v{OA}, v[{56+2*t}:{57+2*t}] offset:{2048*t}", ("OW", t), wr=(OUTL, OUTL + 10240)))
    o += [WAIT("out_w", lg="all"), BAR()]
    for k in range(3): o.append(LG(f"ds_read_b128 v[{68+4*k}:{71+4*k}], v{OA+1} offset:{4096*k}", ("OR", k), rd=(OUTL, OUTL + 10240)))
    for k in range(3):
        o += [WAIT(f"out_r{k}", lg=[("OR", k)]), I(f"buffer_store_dwordx4 v[{68+4*k}:{71+4*k}], v{OA+2+k}, s[24:27], 0 offen{OF}")]
    o += T(f"""
    s_or_b32 s68, s2, s3
    s_cmp_eq_u32 s68, 0
    s_cbranch_scc0 L_noepoch
    buffer_store_dword v{V_TAG}, v{V_FL}, s[16:19], 0 offen sc1
    L_noepoch:
    """)
    return o

def T(s): return [I(x.strip()) for x in s.strip().split("\n") if x.strip()]
def rowcalc(o, rho, d, tmp):
    return T(f"""
    v_cmp_eq_u32 vcc, 0, v{o}
    v_mov_b32 v{tmp}, 512
    v_add_u32 v{tmp+1}, 1, v{rho}
    v_cndmask_b32 v{tmp}, v{o}, v{tmp}, vcc
    v_cmp_lt_u32 vcc, 1, v{rho}
    v_sub_u32 v{tmp}, 0, v{tmp}
    v_lshrrev_b32 v{tmp+1}, 1, v{tmp+1}
    v_cndmask_b32 v{tmp}, v{o}, v{tmp}, vcc
    v_lshl_add_u32 v{d}, v{tmp+1}, 10, v{tmp}
    """)

def srd(b, p, n): return T(f"s_mov_b32 s{b}, s{p}\ns_mov_b32 s{b+1}, s{p+1}\ns_mov_b32 s{b+2}, {n}\ns_mov_b32 s{b+3}, 0x20000")

def prologue():
    o = T(f"""
    s_cmp_ge_u32 s2, 256
    s_cbranch_scc1 L_end
    s_load_dwordx16 s[36:51], s[0:1], 0
    s_load_dwordx8 s[52:59], s[0:1], 64
    """) + TS(0) + T(f"""
    v_lshrrev_b32 v4, 6, v0
    v_and_b32 v{V_L}, 63, v0
    v_readfirstlane_b32 s3, v4
    v_and_b32 v{V_C}, 15, v0
    v_bfe_u32 v{V_Q}, v0, 4, 2
    s_and_b32 s60, s2, 3
    s_bfe_u32 s61, s2, 0x10002
    s_lshr_b32 s62, s2, 3
    {"s_and_b32 s63, s2, 7" if cfg.bal else "s_nop 0"}
    {"s_cmp_ge_u32 s63, 6" if cfg.bal else "s_cmp_eq_u32 s60, 3"}
    s_cselect_b32 s63, 30, 29
    s_cmp_ge_u32 s62, s63
    s_cbranch_scc1 L_spare
    """)
    if cfg.map == 0:
        o += T("""
    s_mul_i32 s64, s60, 29
    s_add_u32 s64, s64, s62
    s_mul_i32 s5, s64, 5042
    s_lshr_b32 s5, s5, 16
    s_mul_i32 s65, s5, 13
    s_sub_u32 s64, s64, s65
    s_mul_i32 s4, s61, 13
    s_add_u32 s4, s4, s64
    """)
    elif cfg.map == 1:
        o += T("""
    s_mul_i32 s64, s61, 13
    s_mul_i32 s65, s60, 3
    s_add_u32 s64, s64, s65
    s_add_u32 s64, s64, s62
    s_sub_u32 s64, s64, 26
    s_and_b32 s65, s2, 7
    s_cmp_lt_u32 s62, 26
    s_cselect_b32 s4, s62, s64
    s_cselect_b32 s5, s65, 8
    """)
    else:
        o += T("""
    s_mul_i32 s65, s60, 3
    s_add_u32 s64, s65, s62
    s_sub_u32 s64, s64, 26
    s_lshl_b32 s5, s60, 1
    s_cmp_ge_u32 s62, 13
    s_cselect_b32 s65, 13, 0
    s_cselect_b32 s66, 1, 0
    s_add_u32 s5, s5, s66
    s_sub_u32 s4, s62, s65
    s_cmp_lt_u32 s62, 26
    s_cselect_b32 s4, s4, s64
    s_cselect_b32 s5, s5, 8
    s_mul_i32 s65, s61, 13
    s_add_u32 s4, s4, s65
    """)
        if cfg.bal: o += T("s_cmp_eq_u32 s2, 238\ns_cselect_b32 s4, 12, s4")
    o += T(f"""
    v_lshrrev_b32 v4, 3, v{V_L}
    v_bfe_u32 v5, v{V_L}, 4, 1
    v_lshrrev_b32 v6, 5, v{V_L}
    s_mul_i32 s65, s4, 20
    v_mul_u32_u24 v9, 511, v5
    v_add3_u32 v6, v6, v9, s65
    s_and_b32 s66, s3, 1
    s_lshl_b32 s66, s66, 2
    v_add_u32 v7, s66, v{V_Q}
    v_and_b32 v8, 7, v{V_L}
    v_xor_b32 v7, v7, v8
    v_lshlrev_b32 v7, 4, v7
    s_movk_i32 s67, 1152
    v_and_b32 v9, 3, v4
    v_add_u32 v9, 1, v9
    v_lshrrev_b32 v9, 1, v9
    v_lshlrev_b32 v9, 10, v9
    v_sub_u32 v9, v9, v5
    v_mad_u32_u24 v7, v9, s67, v7
    v_mul_u32_u24 v5, 2304, v5
    v_sub_u32 v5, 1152, v5
    s_bitcmp1_b32 s5, {0 if cfg.rev else 31}
    s_cselect_b32 s92, -1, 1
    s_cselect_b32 s79, 1024, 0
    s_cselect_b32 s34, {8*64*9216}, 0
    s_lshl_b32 s92, s92, 7
    s_lshl_b32 s93, s92, 1
    s_lshl_b32 s82, s3, 10
    s_add_u32 s82, s82, {XB}
    s_lshl_b32 s68, s3, 1
    """)
    for n in range(5):
        if n < 2: o += T(f"s_mov_b32 s{XH+n}, 0\ns_add_u32 s69, s68, {8*n}")
        elif n > 2: o += T(f"s_mov_b32 s{XH+n}, s92\ns_add_u32 s69, s68, {8*n-20}")
        else: o += T(f"s_cmp_ge_u32 s3, 2\ns_cselect_b32 s{XH+n}, s92, 0\ns_cselect_b32 s69, -4, 16\ns_add_u32 s69, s69, s68")
        o += T(f"""
        v_add_u32 v9, s69, v6
        v_and_b32 v9, 511, v9
        v_mad_i32_i24 v{V_XO+n}, v9, v5, v7
        """)
        if cfg.bal: o += T(f"s_add_u32 s69, s69, s65\ns_cmp_ge_u32 s69, 512\ns_cselect_b32 s69, {OOB}, 0\ns_add_u32 s{XH+n}, s{XH+n}, s69")
    o += T("s_waitcnt lgkmcnt(0)") + srd(12, 36, 2359296)
    return o
def setup1():
    return T(f"""
    s_load_dword s7, s[58:59], 0
    s_cmp_lt_u32 s3, 2
    s_cselect_b32 s20, s42, s44
    s_cselect_b32 s21, s43, s45
    s_mov_b32 s22, 663552
    s_mov_b32 s23, 0x20000
    s_and_b32 s68, s3, 1
    s_lshl_b32 s64, s62, 1
    s_add_u32 s64, s64, s68
    s_mul_i32 s64, s64, 15
    v_add_u32 v9, s64, v{V_L}
    s_mul_i32 s64, s60, {64*1152}
    v_lshlrev_b32 v5, 7, v9
    v_add_u32 v6, s64, v5
    v_add_u32 v5, {256*1152 - 576*128}, v5
    v_cmp_gt_u32 vcc, 576, v9
    v_mov_b32 v7, {OOB}
    s_mov_b32 s100, s60
    v_cndmask_b32 v5, v5, v6, vcc
    v_cmp_gt_u32 vcc, 15, v{V_L}
    s_mov_b32 s99, s62
    s_sub_u32 s83, s79, s92
    v_cndmask_b32 v{V_PFD}, v7, v5, vcc
    """)
def setup1b():
    return T(f"""
    s_mul_i32 s35, s92, {64*72}
    s_lshl_b32 s68, s5, 5
    s_lshl_b32 s69, s66, 2
    s_add_u32 s68, s68, s69
    v_add_u32 v9, s68, v4
    v_xor_b32 v7, v{V_Q}, v8
    v_lshlrev_b32 v7, 4, v7
    v_mad_u32_u24 v{V_ABA}, v9, s67, v7
    v_xor_b32 v7, 64, v7
    v_mad_u32_u24 v{V_ABB}, v9, s67, v7
    v_add_u32 v{V_ABB}, {8*1152-1024}, v{V_ABB}
    s_lshl_b32 s60, s3, 11
    """)

def setup2():
    o = srd(8, 48, 5308416) + (lambda x: x if cfg.pf1 & 2 else [])(T(f"""
    s_lshl_b32 s68, s99, 2
    s_add_u32 s68, s68, s3
    s_mul_i32 s68, s68, 5
    v_mul_u32_u24 v5, 43, v{V_L}
    v_lshrrev_b32 v5, 8, v5
    v_mul_u32_u24 v6, 6, v5
    v_sub_u32 v6, v{V_L}, v6
    v_add_u32 v5, s68, v5
    v_lshrrev_b32 v7, 1, v6
    v_and_b32 v6, 1, v6
    s_lshl_b32 s68, s100, 1
    v_cmp_eq_u32 vcc, 2, v7
    v_add_u32 v7, s68, v7
    v_mul_u32_u24 v5, 9216, v5
    v_cndmask_b32 v7, v7, 8, vcc
    v_lshl_add_u32 v5, v6, 7, v5
    v_cmp_gt_u32 vcc, 30, v{V_L}
    v_lshl_add_u32 v5, v7, 10, v5
    v_mov_b32 v6, {OOB}
    v_cndmask_b32 v{V_PF1}, v6, v5, vcc
    """)) + srd(16, 58, WS_SIZE)
    o += T(f"""
    v_lshrrev_b32 v4, 3, v{V_L}
    s_lshl_b32 s68, s3, 4
    v_add_u32 v4, s68, v4
    v_and_b32 v5, 1, v{V_Q}
    v_lshlrev_b32 v5, 1, v5
    v_and_b32 v8, 7, v{V_L}
    v_xor_b32 v5, v5, v8
    v_lshlrev_b32 v5, 4, v5
    v_xor_b32 v6, 64, v5
    s_movk_i32 s68, 9216
    v_mad_u32_u24 v{V_A}, v4, s68, v5
    v_mad_u32_u24 v{V_B}, v4, s68, v6
    v_add_u32 v{V_B}, {8*9216-1024}, v{V_B}
    v_mad_u32_u24 v{V_W2A}, v4, s67, v5
    v_mad_u32_u24 v{V_W2B}, v4, s67, v6
    v_bfe_u32 v4, v{V_L}, 2, 2
    v_and_b32 v5, 3, v{V_L}
    v_and_b32 v6, 1, v{V_Q}
    v_lshlrev_b32 v6, 1, v6
    v_lshrrev_b32 v7, 1, v4
    v_add_u32 v6, v6, v7
    v_xor_b32 v6, s3, v6
    v_lshlrev_b32 v6, 5, v6
    v_lshl_add_u32 v6, v{V_Q}, 10, v6
    v_lshl_add_u32 v6, v4, 7, v6
    v_lshl_add_u32 v{V_TR}, v5, 3, v6
    v_add_u32 v{V_TR2}, 0x10000, v{V_TR}
    v_lshrrev_b32 v4, 1, v{V_C}
    v_xor_b32 v4, v4, v{V_Q}
    v_lshlrev_b32 v4, 4, v4
    v_lshl_add_u32 v4, v{V_C}, 7, v4
    v_add_u32 v{V_XR0}, {XB}, v4
    v_xor_b32 v{V_XR1}, 64, v{V_XR0}
    v_add_u32 v{V_WR0}, s60, v4
    v_xor_b32 v{V_WR1}, 64, v{V_WR0}
    v_mov_b32 v{V_PATCH}, 0xbf803f80
    s_lshl_b32 s68, s5, 2
    s_or_b32 s68, s68, s3
    s_cmp_eq_u32 s68, 2
    s_cselect_b32 s76, 0x00010001, 0
    s_mov_b32 s77, s76
    s_cselect_b32 s69, 1, 0
    s_lshr_b32 s70, s3, 1
    """)
    o += T(f"""
    s_cmp_eq_u32 s70, 0
    s_cselect_b32 s71, 1.0, -1.0
    v_mov_b32 v{V_SIG}, s71
    s_cmp_eq_u32 s69, 1
    s_cselect_b32 s72, 16, 0
    v_cmp_gt_u32 vcc, s72, v{V_L}
    v_mov_b32 v4, 1.0
    v_and_b32 v5, 1, v{V_L}
    v_cndmask_b32 v{V_SIG0}, v{V_SIG}, v4, vcc
    s_cmp_eq_u32 s4, 0
    s_cselect_b32 s72, 4, 0
    v_cmp_gt_u32 vcc, s72, v{V_C}
    s_cselect_b32 s80, 8, 0
    v_lshlrev_b32 v5, 31, v5
    v_cndmask_b32 v{V_SIGT0}, v{V_SIG}, 0, vcc
    v_cndmask_b32 v{V_SIG0T0}, v{V_SIG0}, 0, vcc
    v_or_b32 v{V_TAU}, v4, v5
    s_cmp_eq_u32 s69, 1
    s_cselect_b32 s80, s80, 0
    s_mov_b32 s81, 0
    """)
    o += T(f"""
    v_lshrrev_b32 v4, 2, v{V_C}
    v_and_b32 v5, 3, v{V_C}
    s_mul_i32 s68, s3, 1792
    s_add_u32 s68, s68, {ABL}
    v_and_b32 v6, 1, v4
    v_mul_u32_u24 v6, 320, v6
    v_lshrrev_b32 v7, 1, v4
    v_lshl_add_u32 v6, v7, 5, v6
    v_lshl_add_u32 v9, v{V_Q}, 3, s68
    v_add_u32 v6, v6, v9
    v_add_u32 v7, 640, v6
    v_add_u32 v8, 1344, v9
    v_cmp_eq_u32 vcc, 1, v5
    v_add_u32 v9, 1280, v9
    s_lshl_b32 s71, s70, 1
    v_cndmask_b32 v{V_ABS}, v8, v7, vcc
    v_cmp_eq_u32 vcc, 0, v5
    s_add_u32 s71, s71, 1
    s_nop 0
    v_cndmask_b32 v{V_ABS}, v{V_ABS}, v6, vcc
    v_cndmask_b32 v8, v8, v6, vcc
    v_cmp_eq_u32 vcc, s71, v5
    s_nop 1
    v_cndmask_b32 v8, v8, v7, vcc
    v_cmp_eq_u32 vcc, 2, v5
    s_nop 1
    v_cndmask_b32 v8, v8, v9, vcc
    v_cmp_gt_u32 vcc, s72, v{V_C}
    s_cmp_eq_u32 s4, 25
    s_cselect_b32 s75, {OOB}, 0
    v_cndmask_b32 v{V_ABS0}, v{V_ABS}, v8, vcc
    s_mul_i32 s68, s5, 26
    s_add_u32 s68, s68, s4
    s_lshl_b32 s68, s68, 7
    s_add_u32 s68, s68, {WS_ABFLAG}
    v_cmp_gt_u32 vcc, 32, v0
    v_mov_b32 v8, {OOB}
    v_lshl_add_u32 v9, v0, 2, s68
    v_cndmask_b32 v{V_ABFL}, v8, v9, vcc
    v_cmp_eq_u32 vcc, 0, v{V_L}
    v_lshrrev_b32 v4, 3, v{V_L}
    v_mul_u32_u24 v4, {SL}, v4
    v_and_b32 v5, 7, v{V_L}
    v_lshl_add_u32 v{ABP+14}, v5, 4, v4
    v_cndmask_b32 v{V_FL}, v8, 0, vcc
    """)
    o += T(f"""
    s_mul_i32 s73, s4, {cfg.rot1}
    s_and_b32 s73, s73, 7
    s_mov_b32 s101, s73
    s_lshl_b32 s73, s73, 7
    s_lshl_b32 s74, s5, 10
    s_add_u32 s74, s74, s34
    s_add_u32 s62, s73, s74
    s_mul_i32 s6, s4, {cfg.rot2}
    s_add_u32 s6, s6, s5
    s_mul_i32 s72, s6, 7282
    s_lshr_b32 s72, s72, 16
    s_mul_i32 s72, s72, 9
    s_sub_u32 s6, s6, s72
    s_add_u32 s72, s6, 1
    s_cmp_eq_u32 s72, 9
    s_cselect_b32 s72, 0, s72
    s_mul_i32 s63, s4, 9
    s_add_u32 s63, s63, s72
    s_lshl_b32 s72, s72, 7
    s_mul_i32 s78, s63, {8*SL}
    s_mul_i32 s63, s3, {WSL}
    s_add_u32 s78, s78, s63
    s_add_u32 s78, s78, {WS_PART}
    s_mov_b32 s63, 6
    s_waitcnt lgkmcnt(0)
    s_add_u32 s7, s7, 0x9e3779b9
    v_mov_b32 v{V_TAG}, s7
    v_not_b32 v{ABP+10}, s7
    v_not_b32 v{ABP+11}, s7
    v_not_b32 v{ABP+12}, s7
    v_not_b32 v{ABP+13}, s7
    """)
    return o

def setup3():
    o = srd(24, 54, 2359296) + srd(28, 50, 5308416) + T(f"""
    v_add_u32 v{V_W2B}, {8*1152-1024}, v{V_W2B}
    s_and_b32 s68, s3, 1
    s_lshl_b32 s68, s68, 9
    s_lshr_b32 s70, s3, 1
    s_mul_i32 s71, s70, 5120
    s_add_u32 s68, s68, s71
    s_add_u32 s68, s68, {HB}
    v_lshrrev_b32 v4, 1, v{V_Q}
    v_lshl_add_u32 v4, v4, 4, v{V_C}
    v_lshlrev_b32 v4, 4, v4
    v_and_b32 v5, 1, v{V_Q}
    v_lshl_add_u32 v4, v5, 3, v4
    v_add_u32 v{V_HW}, s68, v4
    v_lshlrev_b32 v{V_P16}, 4, v{V_L}
    v_lshlrev_b32 v{V_P8}, 3, v{V_L}
    v_add_u32 v{V_HR}, {HB}, v{V_P16}
    v_add_u32 v{V_HR2}, {HB+40960}, v{V_P16}
    """)
    o += T("s_lshl_b32 s99, s5, 3")
    for i in range(8):
        o += T(f"""
        s_add_u32 s{64+i}, s101, {i}
        s_and_b32 s{64+i}, s{64+i}, 7
        s_add_u32 s{64+i}, s{64+i}, s99
        s_mul_i32 s{64+i}, s{64+i}, {64*1152}
        """)
    return o

def poll(lab, vaddr, nl):
    return T(f"""
    s_mov_b32 s63, {SPIN}
    v_cmp_le_u32 s[80:81], {nl}, v{V_L}
    {lab}:
    s_sleep {cfg.slp}
    buffer_load_dword v4, v{vaddr}, s[16:19], 0 offen sc1
    s_sub_u32 s63, s63, 1
    s_waitcnt vmcnt(0)
    v_cmp_eq_u32 vcc, s7, v4
    s_cmp_eq_u32 s63, 0
    s_cbranch_scc1 {lab}_out
    s_or_b64 vcc, vcc, s[80:81]
    s_cmp_eq_u64 vcc, -1
    s_cbranch_scc0 {lab}
    {lab}_out:
    """)

def ts_dump(fn=0):
    if not cfg.ts: return []
    if cfg.ts >= 100:
        if fn != (cfg.ts >= 200): return []
        return T("s_waitcnt vmcnt(0)") + TS(8) + (T(f"s_and_b32 s68, s2, 7\ns_cmp_lg_u32 s68, {cfg.hx}\ns_cbranch_scc1 L_end") if cfg.hx >= 0 else []) + T(f"""
        L_hold{fn}:
        s_memrealtime s[100:101]
        s_waitcnt lgkmcnt(0)
        s_sub_u32 s100, s100, s{tsr(cfg.ts % 100)}
        s_cmp_lt_u32 s100, 3000
        s_cbranch_scc1 L_hold{fn}
        """)
    if cfg.ts >= 10:
        return T(f"""
        L_hold{fn}:
        s_memrealtime s[100:101]
        s_waitcnt lgkmcnt(0)
        s_sub_u32 s100, s100, s84
        s_cmp_lt_u32 s100, {cfg.ts*100}
        s_cbranch_scc1 L_hold{fn}
        """)
    o = T("s_waitcnt vmcnt(0)") + TS(8) + T("s_waitcnt lgkmcnt(0)")
    for k in range(9): o.append(I(f"v_mov_b32 v{16+k}, s{tsr(k)}"))
    o += T(f"""
    s_getreg_b32 s68, hwreg(HW_REG_XCC_ID)
    v_mov_b32 v25, s68
    v_mov_b32 v26, 0
    v_mov_b32 v27, 0
    s_lshl_b32 s68, s2, 2
    s_add_u32 s68, s68, s3
    s_lshl_b32 s68, s68, 6
    s_add_u32 s68, s68, {WS_TS}
    v_cmp_eq_u32 vcc, 0, v{V_L}
    v_mov_b32 v4, {OOB}
    s_nop 0
    v_cndmask_b32 v4, v4, 0, vcc
    buffer_store_dwordx4 v[16:19], v4, s[16:19], s68 offen
    buffer_store_dwordx4 v[20:23], v4, s[16:19], s68 offen offset:16
    buffer_store_dwordx4 v[24:27], v4, s[16:19], s68 offen offset:32
    """)
    if cfg.ts == 2 and not fn:
        o += T(f"""
        v_lshlrev_b32 v5, 2, v{V_L}
        v_cmp_gt_u32 vcc, 16, v{V_L}
        v_mov_b32 v4, {OOB}
        s_lshl_b32 s69, s68, 2
        s_sub_u32 s69, s69, {4*WS_TS - WS_TS - 0x300000}
        buffer_store_dword v131, v5, s[16:19], s69 offen
        s_add_u32 s68, s68, 0x100000
        v_cndmask_b32 v4, v4, v5, vcc
        buffer_store_dword v130, v4, s[16:19], s68 offen
        s_add_u32 s68, s68, 0x100000
        buffer_store_dword v131, v4, s[16:19], s68 offen
        """)
    if cfg.ts != 3: return o
    o += T(f"""
    s_waitcnt vmcnt(0)
    v_not_b32 v16, v16
    v_cmp_eq_u32 vcc, 0, v0
    v_mov_b32 v4, {OOB}
    s_sleep 127
    s_sleep 127
    v_cndmask_b32 v4, v4, 0, vcc
    """) + srd(28, 56, 256)
    o.append(I("buffer_atomic_umax v16, v4, s[28:31], 0 offen"))
    for k in range(1, 9 if not fn else 8): o.append(I(f"buffer_atomic_umax v{16+k}, v4, s[28:31], 0 offen offset:{4*(k+8*fn)}"))
    return o

from fnet import fnet_code

def AL():
    if not cfg.al: return []
    return [I(f".p2alignl {(6, 6, 3, 5)[cfg.al - 1]}, 0xbf800000")] + ([I("s_nop 0")] if cfg.al == 2 else [])
def build():
    def dyn(hasx22, ep):
        d = prologue()
        d += ab_pass(hasx22)
        d += TS(2)
        for p in range(8):
            for g in range(6): d += g1_group(p, g, True)
        d += TS(4)
        d += g2_pass0()
        for p in range(1, 8):
            for g in range(4): d += g2_group(p, g, ep)
        d += g2_last()
        return d
    ds = [dyn(True, (3, 4, 5, 6, 7)), dyn(False, (3, 4, 5, 6, 7))] if cfg.ep2 == 2 else [dyn(True, (5, 7)), dyn(False, (6, 7))] if cfg.ep2 else [dyn(True, (5,)), dyn(False, (6,)), dyn(True, (7,))]
    rs = [resolve(d) for d in ds]
    mn = lambda l: None if all(x is None for x in l) else min(x for x in l if x is not None)
    res = {k: (mn([r[k][0] for r in rs]), mn([r[k][1] for r in rs])) for k in rs[0]}
    txt = lambda l: [wait_text(res, it.site) if it.kind == "wait" else it.text for it in l]
    for d in ds:
        check_lds(d, res); check_loads(txt(d)); check_hazards(txt(d)); check_scc(txt(d))
    st = prologue()
    st += ab_pass(True)
    st += TS(2)
    for g in range(6): st += g1_group(0, g)
    st += TS(3) + AL() + [I("L_g1:")]
    for g in range(6): st += g1_group(1, g)
    st.append(I("s_cbranch_scc1 L_g1"))
    for g in range(6): st += g1_group(7, g)
    st += TS(4)
    st += g2_pass0() + TS(5) + AL() + [I("L_g2:")]
    for g in range(4): st += g2_group(1, g)
    st.append(I("s_cbranch_scc1 L_g2"))
    st += TS(6)
    st += g2_last() + ts_dump() + [I("s_endpgm")] + [I("L_once1:")] + ab_once(1) + [I("s_branch L_once1_ret")] + (spin("L_sp1", "s34") if cfg.inloop else (([I("L_ep0:")] + ep_block(0) + [I("s_branch L_ep0_ret"), I("L_ep1:")] + ep_block(1) + [I("s_branch L_ep1_ret")] + [I(x.text.replace(f"v{V_POLL},", f"v{V_POLLE},")) for x in spin("L_sp1", "s79" if cfg.ep2 == 2 else None)]) if cfg.early else [])) + spin("L_sp2") + (([I(x.text.replace("vcc_lo", "s80").replace("vcc", "s[80:81]")) for x in spin("L_sp3", "s70")] + (spin("L_sp4", "s71") if cfg.chk7 == 2 else spin7())) if cfg.chk7 else spin("L_sp3"))
    fn, idle = fnet_code(sys.modules[__name__])
    check_loads([it.text for it in fn]); check_hazards([it.text for it in fn]); check_scc([it.text for it in fn])
    st += fn + ts_dump(1) + [I("L_end:"), I("s_endpgm")] + idle
    if cfg.trace:
        ns = []; k = 0
        for it in st:
            ns.append(it)
            if it.kind == "wait" and it.site and re.match(r"(ab_rw\d|ab_r\d|ab_x\d|ab_b0|g1_r\d[az]|g20_r\d|g2z_r\d|g2z_st|g2z_s0|fin_)", it.site):
                ns += [I("s_waitcnt lgkmcnt(0)"), I(f"v_writelane_b32 v131, s32, {k}"), I("s_memtime s[32:33]")]; k += 1
                print(k, it.site, file=sys.stderr, end="; ")
            if it.text == "L_noepoch:": ns += [I("s_waitcnt lgkmcnt(0)"), I(f"v_writelane_b32 v131, s32, {k}")]
        st = ns
    if cfg.strip:
        a = [i for i, it in enumerate(st) if it.text == "L_g1:"][0]; b = [i for i, it in enumerate(st) if it.text == "s_cbranch_scc1 L_g2"][0]
        def drop(it):
            t = it.text or ""
            if cfg.strip & 1 and t.endswith(" lds"): return True
            if cfg.strip & 2 and (t.startswith(("v_cvt_pk", "v_pk_max", "ds_write")) or "s78 offen" in t): return True
            if cfg.strip & 4 and t == "s_barrier": return True
            if cfg.strip & 8 and it.kind == "wait" and it.need_vm: return True
            if cfg.strip & 16 and t.startswith("ds_read_b64_tr"): return True
            if cfg.strip & 32 and (t.startswith("ds_write") or "s78 offen" in t): return True
            if cfg.strip & 64 and t.startswith(("v_cvt_pk", "v_pk_max")): return True
            if cfg.strip & 128 and t.startswith("buffer_store_dword "): return True
            if cfg.strip & 1024 and it.kind == "wait" and it.need_lg and it.site not in ("g1_r2", "g2_r1"): return True
            if cfg.strip & 256 and "s78 offen" in t: it.text = t.replace(" sc1", "")
            if cfg.strip & 512 and "s78 offen" in t: it.text = t.replace(" sc1", " sc1 nt")
            return False
        st = st[:a] + [it for it in st[a:b] if not drop(it)] + st[b:]
    head = open("gated_mix__spectral_fnet__dense_activation_relu__prompt.s.ref").read().split("; Override launch")[0]
    out = head + "; @launch grid=(256,1,1) block=(256,1,1) lds=163840\n"
    out += f'.amdgcn_target "amdgcn-amd-amdhsa--gfx950"\n.text\n.globl {NAME}\n.p2align 8\n.type {NAME},@function\n{NAME}:\n'
    out += "\n".join(("" if (x.endswith(":") or x.startswith(".")) else "    ") + x for x in txt(st)) + "\n"
    out += f""".section .rodata,"a"
.p2align 6
.amdhsa_kernel {NAME}
  .amdhsa_next_free_vgpr 512
  .amdhsa_next_free_sgpr 102
  .amdhsa_accum_offset 256
  .amdhsa_group_segment_fixed_size 0
  .amdhsa_kernarg_size 96
  .amdhsa_user_sgpr_count 2
  .amdhsa_user_sgpr_kernarg_segment_ptr 1
  .amdhsa_system_sgpr_workgroup_id_x 1
.end_amdhsa_kernel
"""
    return out, res

if __name__ == "__main__":
    sys.modules["gen"] = sys.modules[__name__]
    outp = sys.argv[1]
    for a in sys.argv[2:]:
        k, v = a.split("="); setattr(cfg, k, int(v))
    WSL = cfg.wsl; SL = 4 * WSL
    out, res = build()
    open(outp, "w").write(out)
    print(res)
```

```python
from asmlib import *
def fnet_code(g):
    T, TS, srd = g.T, g.TS, g.srd
    V_L, V_C, V_Q, OOB = g.V_L, g.V_C, g.V_Q, g.OOB
    MF = lambda d, a, b, c: I(f"v_mfma_f32_16x16x32_bf16 {d}, {a}, {b}, {c}")
    def pf1():
        return T("buffer_load_dword v254, v253, s[12:15], s76 offen\ns_add_u32 s76, s76, 128") if g.cfg.pfs & 1 else []
    def pf2():
        if g.cfg.rot2 == 0:
            return T("""
            v_add_u32 v252, 128, v252
            v_subrev_u32 v59, 1152, v252
            v_min_u32 v252, v252, v59
            v_add_u32 v59, v252, v255
            buffer_load_dword v254, v59, s[8:11], 0 offen
            """)
        return T(f"buffer_load_dword v254, v255, s[8:11], s75 offen\ns_add_u32 s75, s75, {22*256*128}") if g.cfg.pfs & 2 else []
    o = T(f"""
    L_spare:
    """) + (g.code_pf("a") if g.cfg.pfc == 1 else []) + T(f"""
    s_sub_u32 s62, s62, s63
    """) + (T("""
    s_and_b32 s65, s2, 7
    s_mul_i32 s64, s65, 3
    s_add_u32 s64, s64, s62
    s_lshl_b32 s62, s62, 1
    s_add_u32 s62, s62, s65
    s_add_u32 s62, s62, 12
    s_cmp_ge_u32 s65, 6
    s_cselect_b32 s64, s62, s64
    """) if g.cfg.bal else T("""
    s_mul_i32 s64, s61, 11
    s_mul_i32 s65, s60, 3
    s_add_u32 s64, s64, s65
    s_add_u32 s64, s64, s62
    """)) + T(f"""
    s_waitcnt lgkmcnt(0)
    """) + srd(8, 50, 5308416) + srd(12, 48, 5308416) + T(f"""
    s_lshl_b32 s65, s64, 8
    v_add_u32 v4, s65, v0
    {"v_mul_u32_u24 v255, 1152, v4" if g.cfg.rot2 == 0 else "v_lshlrev_b32 v255, 7, v4"}
    v_lshrrev_b32 v252, 9, v4
    v_lshlrev_b32 v252, 7, v252
    v_lshlrev_b32 v253, 10, v4
    s_mov_b32 s75, 0
    s_mov_b32 s76, 0
    """) + (pf1() + pf1() if g.cfg.pfo != 1 else []) + T(f"""
    s_cmp_ge_u32 s64, 20
    s_cbranch_scc1 L_idle
    s_cmp_ge_u32 s64, 10
    s_cselect_b32 s4, 1, 0
    s_cselect_b32 s65, 10, 0
    s_sub_u32 s65, s64, s65
    s_cmp_ge_u32 s65, 5
    s_cselect_b32 s5, 1, 0
    s_cselect_b32 s66, 5, 0
    s_sub_u32 s6, s65, s66
    s_waitcnt lgkmcnt(0)
    s_load_dword s7, s[58:59], 0
    """)
    o += srd(16, 58, g.WS_SIZE) + srd(20, 36, 2359296) + srd(24, 52, 1152)
    o += T(f"""
    s_lshl_b32 s66, s5, 7
    s_lshl_b32 s67, s3, 5
    s_add_u32 s66, s66, s67
    s_lshl_b32 s66, s66, 1
    s_add_u32 s66, s66, s4
    v_lshl_add_u32 v4, v{V_C}, 1, s66
    v_cmp_eq_u32 vcc, 0, v4
    v_mov_b32 v5, 512
    v_add_u32 v6, 32, v4
    v_cndmask_b32 v5, v4, v5, vcc
    v_cvt_f32_u32 v10, v4
    v_cvt_f32_u32 v11, v6
    v_cvt_f32_u32 v12, v5
    v_lshlrev_b32 v7, 4, v{V_Q}
    v_cvt_f32_u32 v7, v7
    v_mul_f32 v10, 0xba000000, v10
    v_mul_f32 v11, 0xba000000, v11
    v_mul_f32 v12, 0xba000000, v12
    s_mul_i32 s70, s4, 0xffff
    v_mov_b32 v8, s70
    v_cmp_eq_u32 vcc, 0, v{V_Q}
    v_and_b32 v9, 1, v{V_C}
    v_lshlrev_b32 v9, 15, v9
    v_cndmask_b32 v8, 0, v8, vcc
    v_xor_b32 v9, 0xbf80, v9
    v_mul_f32 v16, v7, v11
    v_mul_f32 v17, 0x42400000, v11
    s_mov_b32 s63, 0
    L_trig:
    """)
    o += T("""
    s_cmp_eq_u32 s63, 0
    s_cselect_b64 vcc, -1, 0
    v_cndmask_b32 v19, v12, v11, vcc
    v_mul_f32 v18, v7, v19
    v_mul_f32 v20, 0x42400000, v19
    """)
    for j in range(8):
        for i in range(4):
            for e in range(4):
                o += T(f"v_cos_f32 v{24+e}, v16\nv_sin_f32 v{28+e}, v18\nv_add_f32 v16, v16, v11\nv_add_f32 v18, v18, v19")
            c0 = 120 + j * 8; s0 = 120 + (8 + j) * 8
            o += T(f"""
            v_cvt_pk_bf16_f32 v{c0+i}, v24, v26
            v_cvt_pk_bf16_f32 v{c0+4+i}, v25, v27
            v_cvt_pk_bf16_f32 v{s0+i}, v28, v30
            v_cvt_pk_bf16_f32 v{s0+4+i}, v29, v31
            """)
        o += T("v_add_f32 v16, v16, v17\nv_add_f32 v18, v18, v20")
        if g.cfg.pfo == 0 and j in (1, 4, 7): o += pf1()
        if g.cfg.pfo and j in (1, 3, 5, 7): o += pf2()
    o += T("""
    v_bfi_b32 v184, v8, v9, v184
    s_cmp_eq_u32 s63, 1
    s_cbranch_scc1 L_trigdone
    """)
    for i in range(128): o.append(I(f"v_accvgpr_write_b32 a{i}, v{120+i}"))
    o += T("""
    v_mov_b32 v11, v10
    v_mul_f32 v16, v7, v10
    v_mul_f32 v17, 0x42400000, v10
    s_mov_b32 s63, 1
    s_branch L_trig
    L_trigdone:
    """)
    if not g.cfg.gl: o += gate_code(g)
    o += T(f"""
    v_and_b32 v5, 1, v{V_Q}
    v_lshlrev_b32 v5, 7, v5
    v_lshlrev_b32 v4, 4, v{V_L}
    v_xor_b32 v4, v4, v5
    s_mul_i32 s70, s4, 5
    s_add_u32 s70, s70, s6
    s_lshl_b32 s70, s70, 17
    s_add_u32 s70, s70, {g.WS_ABF}
    s_lshl_b32 s71, s3, 13
    s_add_u32 s70, s70, s71
    s_lshl_b32 s71, s6, 2
    s_add_u32 s71, s71, s3
    s_cmp_ge_u32 s71, 18
    s_cselect_b32 s71, {4*131072 - 65536 + 16384}, 0
    s_sub_u32 s70, s70, s71
    v_add_u32 v13, s70, v4
    v_lshlrev_b32 v4, 3, v{V_C}
    v_lshl_add_u32 v4, v{V_Q}, 8, v4
    v_add_u32 v15, v4, v5
    s_lshl_b32 s72, s6, 6
    v_add_u32 v116, s72, v{V_C}
    v_lshl_add_u32 v4, v{V_Q}, 3, s66
    s_movk_i32 s70, 2560
    v_lshlrev_b32 v5, 3, v116
    v_mad_u32_u24 v117, v4, s70, v5
    v_add_u32 v117, {g.WS_YT}, v117
    v_cmp_eq_u32 s[82:83], 0, v4
    v_add_u32 v5, {512*2560}, v117
    v_mov_b32 v6, {OOB}
    v_cndmask_b32 v118, v6, v5, s[82:83]
    v_cmp_eq_u32 vcc, 0, v{V_C}
    v_mov_b32 v5, 0xbf803f80
    s_mul_i32 s73, s4, 0x80008000
    v_cndmask_b32 v60, 0, v5, vcc
    s_sub_u32 s74, s4, 1
    v_mov_b32 v61, v60
    v_mov_b32 v62, v60
    v_mov_b32 v63, v60
    s_lshl_b32 s70, s6, 1
    s_add_u32 s71, s70, 1
    s_cmp_eq_u32 s71, 9
    s_cselect_b32 s71, 0, s71
    s_bitcmp1_b32 s3, 1
    s_cselect_b32 s70, s71, s70
    s_lshl_b32 s70, s70, 1
    s_and_b32 s71, s3, 1
    s_add_u32 s70, s70, s71
    s_mul_i32 s70, s70, {13*128}
    s_add_u32 s70, s70, {g.WS_ABFLAG}
    v_lshl_add_u32 v5, v{V_L}, 7, s70
    v_cmp_gt_u32 vcc, 13, v{V_L}
    s_nop 1
    v_cndmask_b32 v119, v6, v5, vcc
    s_lshl_b32 s60, s3, 15
    s_waitcnt lgkmcnt(0)
    s_add_u32 s7, s7, 0x9e3779b9
    """)
    A = lambda tl, mat, sp, j: (f"a[{(mat*8+j)*8+4*sp}:{(mat*8+j)*8+4*sp+3}]" if tl else f"v[{120+(mat*8+j)*8+4*sp}:{120+(mat*8+j)*8+4*sp+3}]")
    if not g.cfg.pfo: o += pf2() * g.cfg.npre
    if g.cfg.pfc2 & 1: o += g.code_pf('b')
    o += TS(1) + g.poll("L_pollAB", 119, 13) + T("s_barrier") + TS(2)
    for P in range(8):
        o += T(f"s_add_u32 m0, s60, {P*4096}\ns_mov_b32 s61, {(P//2)*32768 + (P%2)*4096}")
        for i in range(4): o.append(I(f"buffer_load_dwordx4 v13, s[16:19], s61 offen offset:{1024*i} sc1 lds"))
    for ct in range(4):
        o += T(f"""
        v_add_u32 v4, {16*ct}, v116
        v_cmp_eq_u32 vcc, 288, v4
        v_mov_b32 v5, 512
        s_mov_b32 s61, {g.WS_XS}
        v_cndmask_b32 v4, v4, v5, vcc
        v_lshlrev_b32 v4, 1, v4
        buffer_load_ushort v{248+ct}, v4, s[16:19], s61 offen sc1
        """)
    o += T("s_waitcnt vmcnt(0)\ns_barrier") + TS(3) + (pf2() * ((8 if g.cfg.gl else 4) - g.cfg.npre) if not g.cfg.pfo else [])
    for ct in range(4): o += T(f"v_lshlrev_b32 v{248+ct}, 16, v{248+ct}\nv_and_b32 v{248+ct}, s74, v{248+ct}")
    AC = lambda tl, gr: f"v[{64+(tl*4+gr)*4}:{67+(tl*4+gr)*4}]"
    o += T(f"""
    s_mov_b32 s63, 0
    L_ct:
    s_lshl_b32 s70, s63, 15
    v_add_u32 v16, s70, v15
    v_xor_b32 v17, 128, v16
    v_xor_b32 v18, 0x80000000, v248
    """)
    def rd(ks):
        b = 100 + 4 * (ks % 4)
        return [I(f"ds_read_b64_tr_b16 v[{b}:{b+1}], v16 offset:{ks*1024}"), I(f"ds_read_b64_tr_b16 v[{b+2}:{b+3}], v17 offset:{ks*1024}")]
    o += rd(0) + rd(1) + rd(2) + (pf2() if not (g.cfg.pfo or g.cfg.gl) else [])
    for tl in range(2):
        for r in range(4): o.append(I(f"v_mov_b32 v{64+tl*16+r}, v{18 if r & 1 else 248}"))
    for r in range(4): o.append(I(f"v_mov_b32 v{96+r}, v248"))
    for ks in range(32):
        gr, j = ks // 8, ks % 8; b = 100 + 4 * (ks % 4); B = f"v[{b}:{b+3}]"
        o.append(I(f"s_waitcnt lgkmcnt({min(4, 2*(31-ks))})"))
        nx = rd(ks + 3) if ks + 3 < 32 else [None, None]
        for tl in range(2):
            o.append(MF(AC(tl, gr), A(tl, gr >> 1, gr & 1, j), B, AC(tl, gr) if (j or gr == 0) else "0"))
            if nx[tl]: o.append(nx[tl])
        if gr == 0: o.append(MF("v[96:99]", "v[60:63]", B, "v[96:99]"))
    o += T(f"""
    v_cmp_eq_u32 vcc, 0, v116
    v_mov_b32 v4, 288
    v_cmp_eq_u32 s[80:81], v4, v116
    v_mov_b32 v248, v249
    v_mov_b32 v249, v250
    v_mov_b32 v250, v251
    s_or_b64 vcc, vcc, s[80:81]
    s_nop 1
    """)
    for tl in range(2):
        for r in range(4):
            pe, po, qe, qo = (64 + (tl * 4 + k) * 4 + r for k in range(4))
            d = 32 + 2 * (tl * 4 + r)
            o += T(f"""
            v_cndmask_b32 v{qe}, v{qe}, 0, vcc
            v_cndmask_b32 v{qo}, v{qo}, 0, vcc
            v_add_f32 v20, v{pe}, v{po}
            v_sub_f32 v21, v{pe}, v{po}
            v_add_f32 v22, v{qe}, v{qo}
            v_sub_f32 v23, v{qo}, v{qe}
            v_sub_f32 v24, v20, v22
            v_add_f32 v25, v21, v23
            v_sub_f32 v26, v21, v23
            v_add_f32 v27, v20, v22
            """)
            if tl == 0 and r == 0:
                o += T(f"""
                v_sub_f32 v28, v96, v{qo}
                v_add_f32 v29, v96, v{qo}
                v_cndmask_b32 v24, v24, v20, s[82:83]
                v_cndmask_b32 v25, v25, v21, s[82:83]
                v_cndmask_b32 v26, v26, v28, s[82:83]
                v_cndmask_b32 v27, v27, v29, s[82:83]
                v_cvt_pk_bf16_f32 v30, v26, v27
                v_cvt_pk_bf16_f32 v31, v25, v24
                buffer_store_dwordx2 v[30:31], v118, s[16:19], 0 offen sc1
                """)
            o += T(f"""
            v_cvt_pk_bf16_f32 v{d}, v24, v25
            v_cvt_pk_bf16_f32 v{d+1}, v26, v27
            s_mov_b32 s70, {tl*81920 + r*5120}
            v_xor_b32 v{d}, s73, v{d}
            v_xor_b32 v{d+1}, s73, v{d+1}
            buffer_store_dwordx2 v[{d}:{d+1}], v117, s[16:19], s70 offen sc1
            """)
    o += T(f"""
    v_add_u32 v116, 16, v116
    v_add_u32 v117, 128, v117
    v_add_u32 v118, 128, v118
    s_add_u32 s63, s63, 1
    s_cmp_lt_u32 s63, 4
    s_cbranch_scc1 L_ct
    """) + TS(4)
    if g.cfg.pfc2 & 2: o += g.code_pf('c')
    if g.cfg.gl: o += gate_code(g)
    if g.cfg.rot2 == 0: o += pf2()
    o += TS(5)
    o += T(f"""
    s_waitcnt vmcnt(0)
    s_barrier
    s_lshl_b32 s70, s64, 2
    s_add_u32 s70, s70, {g.WS_YFLAG}
    v_cmp_gt_u32 vcc, 26, v0
    v_mov_b32 v4, {OOB}
    v_lshlrev_b32 v6, 7, v0
    v_mov_b32 v5, s7
    v_cndmask_b32 v4, v4, v6, vcc
    buffer_store_dword v5, v4, s[16:19], s70 offen sc1
    """) + TS(6) + TS(7)
    idle = [I("L_idle:")] + (pf1() * 6 if not g.cfg.pfo else []) + pf2() * (9 if g.cfg.rot2 == 0 else 8) + [I("s_endpgm")]
    return o, idle

def gate_code(g):
    T = g.T; V_L, OOB = g.V_L, g.OOB
    o = T(f"""
    v_and_b32 v4, 7, v{V_L}
    v_lshlrev_b32 v32, 4, v4
    v_bfe_u32 v33, v{V_L}, 3, 2
    v_lshrrev_b32 v34, 5, v{V_L}
    s_lshl_b32 s70, s64, 2
    s_add_u32 s70, s70, s3
    s_lshl_b32 s70, s70, 1
    v_add_u32 v34, s70, v34
    s_movk_i32 s67, 1152
    v_mov_b32 v35, {OOB}
    """)
    for j in range(9): o.append(I(f"buffer_load_dwordx4 v[{44+4*j}:{47+4*j}], v32, s[24:27], 0 offen offset:{128*j}"))
    for it in range(4):
        o += g.rowcalc(34, 33, 36, 37) + T(f"""
        v_cmp_gt_u32 vcc, 512, v34
        v_mad_u32_u24 v36, v36, s67, v32
        v_lshl_add_u32 v37, v34, 2, v33
        v_cndmask_b32 v36, v35, v36, vcc
        v_lshlrev_b32 v37, 2, v37
        v_cndmask_b32 v{20+it}, v35, v37, vcc
        v_add_u32 v34, 160, v34
        """)
        for j in range(9):
            d = f"v[{80+4*j}:{83+4*j}]" if it == 0 else f"a[{92+36*it+4*j}:{95+36*it+4*j}]"
            o.append(I(f"buffer_load_dwordx4 {d}, v36, s[20:23], 0 offen offset:{128*j}"))
    for it in range(4):
        o += T(f"v_mov_b32 v{24+it}, 0\nv_mov_b32 v28, 0\ns_waitcnt vmcnt({9*(3-it)})")
        if it:
            for k in range(36): o.append(I(f"v_accvgpr_read_b32 v{80+k}, a{92+36*it+k}"))
        for k in range(36):
            d = 28 if k & 1 else 24 + it
            o.append(I(f"v_dot2_f32_bf16 v{d}, v{80+k}, v{44+k}, v{d}"))
        o += T(f"s_nop 2\nv_add_f32 v{24+it}, v{24+it}, v28")
    o.append(I("s_nop 1"))
    for perm in ("quad_perm:[1,0,3,2]", "quad_perm:[2,3,0,1]", "row_half_mirror"):
        for it in range(4): o.append(I(f"v_add_f32_dpp v{24+it}, v{24+it}, v{24+it} {perm} row_mask:0xf bank_mask:0xf"))
    for it in range(4): o.append(I(f"v_mul_f32 v{24+it}, 0xbfb8aa3b, v{24+it}"))
    for it in range(4): o.append(I(f"v_exp_f32 v{24+it}, v{24+it}"))
    for it in range(4): o.append(I(f"v_add_f32 v{24+it}, 1.0, v{24+it}"))
    for it in range(4): o.append(I(f"v_rcp_f32 v{24+it}, v{24+it}"))
    o += T(f"""
    v_cmp_eq_u32 vcc, 0, v32
    s_mov_b32 s70, {g.WS_GT}
    s_nop 0
    """)
    for it in range(4): o.append(I(f"v_cndmask_b32 v{20+it}, v35, v{20+it}, vcc"))
    for it in range(4): o.append(I(f"buffer_store_dword v{24+it}, v{20+it}, s[16:19], s70 offen sc1"))
    return o
```

```python
import sys
from asmlib import *
NAME = "gated_mix__spectral_fnet__dense_activation_relu__prompt_kernel"
WS_PF, WS_ABFLAG, WS_YFLAG, WS_GT, WS_XS = 0x20000, 0x20000, 0xA000, 0x10000, 0x13000
WS_ABF, WS_YT, WS_PART, WS_TS, WS_SIZE = 0x100000, 0x280000, 0x400000, 0x2000000, 0x3000000
OOB = 0x40000000
WSL, SL = 3584, 14336
XB, HB = 71680, 81920
SPIN = 1 << 20

class Cfg:
    ts = False
    L2 = 12
    rot1 = 3
    chain = 0
    strip = 0
    pp = 0
    g2t = 3
    fse = 0
    st1 = 0
    s2g = 19
    fg1 = 9
    fgg = 1
    w0 = 0
    rmask = 7
    r8 = 0
    krot = 0
    pfc2 = 0
    al = 0
    wsl = 3584
    hx = -1
    slp2 = 2
    g20v = 0
    pfc = 1
    pfo = 0
    gl = 0
    bal = 1
    p0v = 1
    ep2 = 1
    epg = 5
    chk7 = 2
    s6g = 3
    flg = 4
    u0 = 7
    npre = 2
    abv = 0
    early = 3
    epm = 3
    rot2 = 2
    tag7 = 0
    stg = 2
    rdp = 0
    hw = 1
    hg = 9
    ne = 6
    inloop = 0
    osc = 1
    pt = 1
    trace = 0
    slp = 16
    map = 2
    pf1 = 1
    rev = 1
    pf2 = 0
    noab = 0
    pfs = 3
    warmfl = 1
    stspread = 1
    fake = 0
cfg = Cfg()

ACC = lambda t: f"v[{16+4*t}:{19+4*t}]"
EE = lambda t: f"v[{36+4*t}:{39+4*t}]"
E0 = 36
FB = lambda b: 56 + 4 * b
PK = 88
def act(i):
    return f"a[{4*i}:{4*i+3}]" if i < 64 else f"v[{152+4*(i-64)}:{155+4*(i-64)}]"
V_A, V_B = 10, 11
V_W2A, V_W2B = 12, 13
V_TR, V_TR2 = 14, 15
V_XO = 100
V_ABA, V_ABB = 105, 106
V_XR0, V_XR1 = 107, 108
V_WR0, V_WR1 = 109, 110
V_PATCH = 111
V_HW = 112
V_HR, V_HR2 = 113, 114
V_SIG, V_SIG0, V_SIGT0, V_SIG0T0, V_TAU = 115, 116, 117, 118, 119
V_ABS, V_ABS0 = 120, 121
V_ABFL = 122
V_TAG = 123
V_P16, V_P8 = 124, 125
V_FL = 126
V_POLL = 127
V_PFD, V_PF1, V_PF2, V_DUM = 132, 133, 134, 135
XH = 94
V_L, V_C, V_Q = 1, 2, 3

def mfma(d, a, b, c): return I(f"v_mfma_f32_16x16x32_bf16 {d}, {a}, {b}, {c}")
def place(ms, side):
    gaps = [[] for _ in ms]
    for g, it in side:
        gaps[g] += it if isinstance(it, list) else [it]
    out = []
    for m, g in zip(ms, gaps):
        out.append(m); out += g
    return out
def spread(items, gaps):
    n = len(items); k = len(gaps)
    return [(gaps[i * k // n], it) for i, it in enumerate(items)]

tsn = [0]
def tsr(k): return 84 + 2 * k if k < 4 else 36 + 2 * (k - 4)
def TS(k):
    if not cfg.ts: return []
    return [I(f"{'s_memtime' if cfg.ts == 2 else 's_memrealtime'} s[{tsr(k)}:{tsr(k)+1}]")]

def wslot(ph, p, s):
    if ph == 2: return ((p & 1) * 16 + s) * 4096
    return s * 4096
def wdma(ph, p, s):
    P, b = s >> 1, s & 1
    pre = []
    if b == 0:
        pre.append(I(f"s_add_u32 m0, s60, {P*8192}"))
        pre.append(I(f"s_add_u32 s61, s62, s{64+P}" if ph == 2 else ("s_add_u32 s61, s61, s35" if P else "s_mov_b32 s61, s62")))
    lo = wslot(ph, p, 2 * P)
    v, sr = (V_W2A, "s[28:31]") if ph == 2 else (V_A, "s[8:11]")
    return pre, VM(f"buffer_load_dwordx4 v{v+b}, {sr}, s61 offen offset:{1024*b} lds", ("W", ph, p, s), wr=(lo, lo + 8192))
def cover(ph, p, lo, hi): return [("W", ph, p, s) for s in range(lo, hi)]
def nf(ph): return 8 if ph == 2 else 6
def trr(ph, p, s):
    b = FB(s % nf(ph)); o = s * 4096; vr = V_TR
    if o >= 65536: o -= 65536; vr = V_TR2
    lo = wslot(ph, p, s)
    return [LG(f"ds_read_b64_tr_b16 v[{b+2*h}:{b+2*h+1}], v{vr} offset:{o+512*h}", ("R", ph, p, s, h), rd=(lo, lo + 4096)) for h in range(2)]
def group_mfmas(ph, steps, last):
    ms = []
    order = [(t, s) for t in range(5) for s in steps] if cfg.chain else [(t, s) for s in steps for t in range(5)]
    for t, s in order:
        if True:
            d = EE(t) if s == last else ACC(t)
            c = "0" if s == 0 else ACC(t)
            b = FB(s % nf(ph)); w = f"v[{b}:{b+3}]"
            ms.append(mfma(d, act(s * 5 + t), w, c) if ph == 2 else mfma(d, w, act(s * 5 + t), c))
    return ms

def xdma(n):
    pre = [I("s_add_u32 s79, s79, s93")] if (n % 5 == 0 and n) else []
    return pre + [I(f"s_add_u32 m0, s82, {n*4096}"), I(f"s_add_u32 s61, s79, s{XH+n%5}"),
            VM(f"buffer_load_dwordx4 v{V_XO+n%5}, s[12:15], s61 offen lds", ("X", n), wr=(XB + (n // 5) * 20480, min(XB + (n // 5 + 1) * 20480, 163840)))]
def abdma(P):
    lo = P * 8192
    return [I(f"s_add_u32 m0, s60, {lo}"), I("s_add_u32 s83, s83, s92"),
            VM(f"buffer_load_dwordx4 v{V_ABA}, s[20:23], s83 offen lds", ("WAB", P, 0), wr=(lo, lo + 8192)),
            VM(f"buffer_load_dwordx4 v{V_ABB}, s[20:23], s83 offen offset:1024 lds", ("WAB", P, 1), wr=(lo, lo + 8192))]
def wreads(P):
    out = []
    if P == 4: out += [I(f"v_add_u32 v{V_WR0}, 32768, v{V_WR0}"), I(f"v_add_u32 v{V_WR1}, 32768, v{V_WR1}")]
    Pp = P - 4 if P >= 4 else P
    for h in range(2):
        s = 2 * P + h; b = FB(s % 6)
        out.append(LG(f"ds_read_b128 v[{b}:{b+3}], v{V_WR0+h} offset:{Pp*8192}", ("RAB", s)))
    return out
def xreads(P):
    out = []
    if P == 4: out += [I(f"v_add_u32 v{V_XR0}, 40960, v{V_XR0}"), I(f"v_add_u32 v{V_XR1}, 40960, v{V_XR1}")]
    Pp = P - 4 if P >= 4 else P
    for t in range(5):
        for h in range(2):
            s = 2 * P + h; lo = XB + (P * 10 + 2 * t) * 1024
            out.append(LG(f"ds_read_b128 {act(s*5+t)}, v{V_XR0+h} offset:{(Pp*10+2*t)*1024}", ("RX", s, t), rd=(lo, lo + 2048)))
    return out
def patch(P):
    return [I(f"v_cndmask_b32 v{FB(s%6)+e}, v{FB(s%6)+e}, v{V_PATCH}, s[76:77]") for s in (2 * P, 2 * P + 1) for e in range(4)]
def xg(g, lastx): return [("X", n) for n in range(5 * g, min(5 * g + 5, lastx + 1))]

def cut(su, n):
    while su[n].text.startswith(("s_cselect", "v_c")) or su[n - 1].text.startswith(("s_cmp", "s_cselect", "v_c")): n += 1
    return n
def ab_pass(hasx22):
    lastx = 22 if hasx22 else 21
    o = []
    pf = lambda v, sr, off, tag: [VM(f"buffer_load_dword v{V_DUM}, v{v}, {sr}, 0 offen offset:{off}", tag)]
    Xr = lambda a, b: sum((xdma(n) for n in range(a, b)), [])
    TP = lambda n, vm=None: [WAIT(f'ab_x9{n}', vm=vm)] if cfg.trace else []
    if cfg.abv == 2:
        o += Xr(0, 5) + setup1() + setup1b() + abdma(0) + abdma(1)
        if cfg.pf1 & 1: o += pf(V_PFD, "s[20:23]", 0, "PFD")
        o += setup2()
        if cfg.pt & 1: o.append(VM(f"buffer_load_dword v{V_DUM}, v{V_ABFL}, s[16:19], 0 offen sc1", "PT0"))
        return o + ab_tail2(hasx22, Xr)
    o += TP(0) + Xr(0, 5) + setup1()
    if cfg.pf1 & 1: o += pf(V_PFD, "s[20:23]", 0, "PFD")
    o += Xr(5, 8) + TP(1) + setup1b() + setup2() + TP(2)
    if cfg.trace == 2: o += TP(3, [('X', 0)]) + TP(4, [('X', 4)]) + TP(5, [('X', 7)])
    if cfg.pf1 & 2: o += pf(V_PF1, "s[8:11]", 0, "PFA")
    if cfg.pt & 1: o.append(VM(f"buffer_load_dword v{V_DUM}, v{V_ABFL}, s[16:19], 0 offen sc1", "PT0"))
    if cfg.pt & 8:
        o += srd(24, 54, 2359296) + srd(28, 50, 5308416) + T(f"""
        s_lshl_b32 s68, s2, 7
        v_lshl_add_u32 v4, v0, 16, s68
        """) + [VM(f"buffer_load_dword v{V_DUM}, v4, s[24:27], 0 offen", "PT2"), VM(f"buffer_load_dword v{V_DUM}, v4, s[28:31], 0 offen", "PT3")]
    if cfg.pt & 2: o.append(VM(f"buffer_store_dword v{ABP+10}, v{V_ABFL}, s[16:19], 0 offen sc1", "PT1"))
    if cfg.pt & 4: o.append(VM(f"buffer_store_dwordx4 v[{ABP+10}:{ABP+13}], v{ABP+14}, s[16:19], s78 offen offset:2560 sc1", "WARMFL"))
    if cfg.abv == 1: return o + ab_tail1(hasx22, Xr)
    o += Xr(8, 17)
    o += [WAIT("ab_b0", vm=xg(0, lastx)), BAR()] + TS(1) + xreads(0) + Xr(17, 20) + xreads(1)
    o += xdma(20) + xdma(21) + [I("s_cmp_lt_u32 s3, 2"), I("s_cbranch_scc0 L_nox22")] + (xdma(22) if hasx22 else []) + [I("L_nox22:")]
    o += [WAIT("ab_x1", vm=xg(1, lastx)), BAR()] + abdma(0) + xreads(2) + abdma(1) + abdma(2) + xreads(3) + abdma(3) + abdma(4)
    o += [WAIT("ab_x4", vm=xg(4, lastx) + [("WAB", 0, 1)], lg=[("RX", 1, 0)]), BAR()] + wreads(0) + abdma(5)
    o.append(WAIT("ab_r0", lg=[("RAB", 1)])); o += patch(0); o.append(I("s_nop 1"))
    for g in range(9):
        ms = group_mfmas(0, (2 * g, 2 * g + 1), 17)
        side = []
        if g < 8:
            side.append((0, WAIT(f"ab_w{g}", vm=[("WAB", g + 1, 1)])))
            side += spread(wreads(g + 1), [0, 1])
            if g < 5: side += spread(xreads(g + 4), [1, 2, 3, 4, 5, 7, 8, 9])
        else:
            side.append((0, [WAIT("ab_b8", vm=cover(1, 0, 0, 6)), BAR()]))
            side += spread(trr(1, 0, 0) + trr(1, 0, 1) + trr(1, 0, 2), [1, 2, 3, 4, 5, 6])
        d = []
        if g == 0: d = [abdma(6)[:3], abdma(6)[3:], abdma(7)[:3], abdma(7)[3:]]
        if g == 1: d = [abdma(8)[:3], abdma(8)[3:]]
        sl = {0: (), 1: (0, 1), 2: (2, 3, 4), 3: (5, 6, 7), 4: (8, 9), 5: (10, 11), 6: (12, 13), 7: (14,), 8: ()}[g]
        for s in sl:
            pre, dm = wdma(1, 0, s); dm.wr = None
            d.append(pre + [dm])
        if d: side += spread(d, [2, 3, 4, 5])
        if g in (5, 6, 7): side += list(zip([1, 3, 5, 9, 9], ab_gaddr()[(g - 5) * 5:(g - 4) * 5]))
        if g < 8:
            side.append((6, WAIT(f"ab_rw{g}", lg=[("RAB", 2 * g + 3)])))
            side += spread(patch(g + 1), [6, 7, 8])
            side.append((9, I("s_nop 0")))
        else: side.append((9, WAIT(f"ab_r9", lg="all")))
        o += place(ms, side)
    return o

def ab_tail2(hasx22, Xr):
    lastx = 22 if hasx22 else 21
    x22 = [I("s_cmp_lt_u32 s3, 2"), I("s_cbranch_scc0 L_nox22")] + (xdma(22) if hasx22 else []) + [I("L_nox22:")]
    sp = lambda l: [l[:3], l[3:]]
    X = lambda a, b: [xdma(n) for n in range(a, b)]
    q = X(5, 10) + sp(abdma(2)) + sp(abdma(3)) + X(10, 15) + sp(abdma(4)) + sp(abdma(5)) + X(15, 20) + sp(abdma(6)) + sp(abdma(7)) + X(20, 22) + [x22] + sp(abdma(8))
    for s in range(15):
        pre, dm = wdma(1, 0, s); dm.wr = None
        q.append(pre + [dm])
    u0 = cfg.u0
    o = sum(q[:u0], [])
    o += [WAIT("ab_b0", vm=xg(0, lastx) + [("WAB", 0, 1)]), BAR()] + TS(1) + wreads(0) + xreads(0) + sum(q[u0:u0 + 4], [])
    o.append(WAIT("ab_r0", lg="all")); o += patch(0); o.append(I("s_nop 1"))
    rest = q[u0 + 4:]
    per = [len(rest) * (g + 1) // 8 for g in range(8)]
    for g in range(9):
        ms = group_mfmas(0, (2 * g, 2 * g + 1), 17)
        side = []
        if g < 8:
            need = [("WAB", g + 1, 1)]
            if g % 2: side.append((0, [WAIT(f"ab_x{g}", vm=need + xg((g + 1) // 2, lastx)), BAR()]))
            else: side.append((0, WAIT(f"ab_w{g}", vm=need)))
            side += spread(wreads(g + 1), [0, 0]) + spread(xreads(g + 1), [0, 1, 1, 2, 2, 3, 4])
            side += spread(rest[(per[g - 1] if g else 0):per[g]], [3, 4, 5, 6, 7, 8])
            side.append((6, WAIT(f"ab_rw{g}", lg=[("RAB", 2 * g + 3)])))
            side += spread(patch(g + 1), [6, 7, 8])
        else:
            side.append((0, [WAIT("ab_b8", vm=cover(1, 0, 0, 6)), BAR()]))
            side += spread(trr(1, 0, 0) + trr(1, 0, 1) + trr(1, 0, 2), [1, 2, 3, 4, 5, 6])
        if g in (6, 7, 8): side += list(zip([5, 5, 9, 9, 9] if g < 8 else [2, 4, 7, 8, 8], ab_gaddr()[(g - 6) * 5:(g - 5) * 5]))
        side.append((9, WAIT(f"ab_r{g+1}", lg="all")))
        o += place(ms, side)
    return o
def ab_tail1(hasx22, Xr):
    lastx = 22 if hasx22 else 21
    x22 = [I("s_cmp_lt_u32 s3, 2"), I("s_cbranch_scc0 L_nox22")] + (xdma(22) if hasx22 else []) + [I("L_nox22:")]
    o = Xr(8, 10) + abdma(0) + abdma(1) + Xr(10, 15)
    o += [WAIT("ab_b0", vm=xg(0, lastx)), BAR()] + TS(1) + xreads(0) + abdma(2) + abdma(3) + xreads(1) + Xr(15, 18)
    o += [WAIT("ab_x1", vm=xg(1, lastx) + [("WAB", 0, 1)], lg=[("RX", 1, 0)]), BAR()] + wreads(0) + Xr(18, 20)
    o.append(WAIT("ab_r0", lg=[("RAB", 1)])); o += patch(0); o.append(I("s_nop 1"))
    sp = lambda l: [l[:3], l[3:]]
    dl = {0: sp(abdma(4)) + sp(abdma(5)), 1: [xdma(20), xdma(21), x22] + sp(abdma(6)), 2: sp(abdma(7)) + sp(abdma(8))}
    sl = {3: (0, 1, 2, 3), 4: (4, 5, 6, 7), 5: (8, 9, 10), 6: (11, 12, 13), 7: (14,)}
    for g in range(9):
        ms = group_mfmas(0, (2 * g, 2 * g + 1), 17)
        side = []
        if g < 8:
            need = [("WAB", g + 1, 1)]
            if g in (2, 4, 6): side.append((0, [WAIT(f"ab_x{g}", vm=need + xg(g // 2 + 1, lastx)), BAR()]))
            else: side.append((0, WAIT(f"ab_w{g}", vm=need)))
            side += spread(wreads(g + 1), [0, 1])
            if g < 7: side += spread(xreads(g + 2), [1, 2, 3, 4, 5, 7, 8, 9])
        else:
            side.append((0, [WAIT("ab_b8", vm=cover(1, 0, 0, 6)), BAR()]))
            side += spread(trr(1, 0, 0) + trr(1, 0, 1) + trr(1, 0, 2), [1, 2, 3, 4, 5, 6])
        d = list(dl.get(g, []))
        for s in sl.get(g, ()):
            pre, dm = wdma(1, 0, s); dm.wr = None
            d.append(pre + [dm])
        if d: side += spread(d, [2, 3, 4, 5])
        if g in (6, 7, 8): side += list(zip([1, 3, 5, 9, 9] if g < 8 else [2, 4, 7, 8, 8], ab_gaddr()[(g - 6) * 5:(g - 5) * 5]))
        if g < 8:
            side.append((6, WAIT(f"ab_rw{g}", lg=[("RAB", 2 * g + 3)])))
            side += spread(patch(g + 1), [6, 7, 8])
            side.append((9, I("s_nop 0")))
        else: side.append((9, WAIT(f"ab_r9", lg="all")))
        o += place(ms, side)
    return o

ABP = 136
OUTL = 135168
ABL = 73728
V_ABR, V_ABG0, V_ABG1 = 100, 101, 102
def ab_epilogue():
    o = []
    for t in range(5):
        r = E0 + 4 * t
        sg = (V_SIG0T0, V_SIGT0) if t == 0 else (V_SIG0, V_SIG)
        for e in range(4): o.append(I(f"v_fmac_f32_dpp v{r+e}, v{r+e}, v{sg[0] if e == 0 else sg[1]} quad_perm:[3,2,1,0] row_mask:0xf bank_mask:0xf"))
        for e in range(4): o.append(I(f"v_fmac_f32_dpp v{r+e}, v{r+e}, v{V_TAU} quad_perm:[1,0,3,2] row_mask:0xf bank_mask:0xf"))
        if t == 0:
            o.append(I(f"v_mov_b32_dpp v{PK+10}, v{r} quad_perm:[0,1,2,1] row_mask:0xf bank_mask:0xf"))
            o.append(I(f"v_cndmask_b32 v{r}, v{r}, v{PK+10}, s[80:81]"))
        o.append(I(f"v_cvt_pk_bf16_f32 v{ABP+2*t}, v{r}, v{r+1}"))
        o.append(I(f"v_cvt_pk_bf16_f32 v{ABP+2*t+1}, v{r+2}, v{r+3}"))
    return o
def ab_gaddr():
    A = lambda x: T(x)
    return [A(f"s_lshr_b32 s68, s5, 1\ns_lshl_b32 s68, s68, 17\ns_lshr_b32 s70, s3, 1"),
            A(f"s_lshl_b32 s71, s70, 16\ns_add_u32 s68, s68, s71\ns_mul_i32 s71, s4, 320"),
            A(f"s_add_u32 s68, s68, s71\ns_and_b32 s71, s5, 1\ns_lshl_b32 s71, s71, 14"),
            A(f"s_add_u32 s68, s68, s71\ns_and_b32 s71, s3, 1\ns_lshl_b32 s69, s71, 13"),
            A(f"s_add_u32 s68, s68, s69\ns_add_u32 s68, s68, {WS_ABF}\ns_lshl_b32 s71, s71, 5"),
            A(f"s_lshl_b32 s69, s5, 6\ns_add_u32 s69, s69, s71\ns_lshl_b32 s70, s70, 10"),
            A(f"s_add_u32 s69, s69, s70\ns_add_u32 s69, s69, {WS_XS - 320}\nv_mul_u32_u24 v4, 13, v{V_L}"),
            A(f"v_lshrrev_b32 v4, 8, v4\nv_mul_u32_u24 v5, 20, v4\nv_sub_u32 v5, v{V_L}, v5"),
            A(f"v_and_b32 v6, 1, v4\nv_lshlrev_b32 v6, 15, v6\nv_lshrrev_b32 v7, 1, v4\nv_mul_u32_u24 v7, {5*131072}, v7"),
            A(f"v_lshl_add_u32 v6, v5, 4, v6\nv_add3_u32 v6, v6, v7, s68\ns_cmp_eq_u32 s4, 25\ns_cselect_b32 s70, 12, 20"),
            A(f"v_cmp_gt_u32 vcc, s70, v5\nv_mov_b32 v8, {OOB}\nv_lshlrev_b32 v7, 4, v{V_L}\nv_cndmask_b32 v6, v8, v6, vcc"),
            A(f"v_cmp_gt_u32 vcc, 60, v{V_L}\ns_add_u32 s68, s68, {5*131072 + 32768}\nv_add_u32 v9, s68, v7\nv_cndmask_b32 v{V_ABG0}, v8, v6, vcc"),
            A(f"v_cmp_gt_u32 vcc, s70, v{V_L}\nv_add_u32 v6, s69, v7\nv_lshrrev_b32 v5, 1, v{V_L}\nv_cndmask_b32 v9, v8, v9, vcc"),
            A(f"s_cmp_eq_u32 s4, 0\ns_cselect_b32 s70, 10, -1\nv_cmp_eq_u32 vcc, s70, v5\ns_mul_i32 s68, s3, 1792"),
            A(f"s_add_u32 s68, s68, {ABL}\nv_add_u32 v{V_ABR}, s68, v7\nv_cndmask_b32 v{V_ABG1}, v9, v6, vcc")]
def ab_once(which):
    if which == 2:
        return [LG(f"ds_write_b64 v{V_ABS0 if t == 0 else V_ABS}, v[{ABP+2*t}:{ABP+2*t+1}] offset:{64*t}", ("ABW", t)) for t in range(5)]
    if which == 3:
        return [LG(f"ds_read_b128 v[{PK}:{PK+3}], v{V_ABR}", ("ABR", 0)), LG(f"ds_read_b128 v[{PK+4}:{PK+7}], v{V_ABR} offset:960", ("ABR", 1))]
    if which == 0:
        o = [VM(f"buffer_store_dwordx4 v[{PK}:{PK+3}], v{V_ABG0}, s[16:19], 0 offen sc1", ("ABST", 0)),
             VM(f"buffer_store_dwordx4 v[{PK+4}:{PK+7}], v{V_ABG1}, s[16:19], 0 offen sc1", ("ABST", 4))]
        if cfg.warmfl:
            o += [VM(f"buffer_store_dwordx4 v[{ABP+10}:{ABP+13}], v{ABP+14}, s[16:19], s78 offen offset:2560 sc1", "WARMFL")]
        return o
    return [VM(f"buffer_store_dword v{V_TAG}, v{V_ABFL}, s[16:19], 0 offen sc1", "ABFL")]
def h_tile(p, t):
    r = E0 + 4 * t; d = PK + 2 * t
    lo = HB + p * 10240
    return ([I(f"v_cvt_pk_bf16_f32 v{d}, v{r}, v{r+1}"), I(f"v_cvt_pk_bf16_f32 v{d+1}, v{r+2}, v{r+3}")],
            [I(f"v_pk_max_i16 v{d}, v{d}, 0"), I(f"v_pk_max_i16 v{d+1}, v{d+1}, 0")],
            LG(f"ds_write_b64 v{V_HW}, v[{d}:{d+1}] offset:{1024*t}", ("HW", p, t), wr=(lo + (2048 if p < 0 else 0), lo + 10240)))
def p_parts(p):
    cv = [I(f"v_cvt_pk_bf16_f32 v{PK+i}, v{E0+2*i}, v{E0+2*i+1}") for i in range(10)]
    st = [VM(f"buffer_store_dwordx4 v[{PK}:{PK+3}], v{V_P16}, s[16:19], s78 offen sc1", ("PST", p, 0)),
          VM(f"buffer_store_dwordx4 v[{PK+4}:{PK+7}], v{V_P16}, s[16:19], s78 offen offset:1024 sc1", ("PST", p, 1)),
          VM(f"buffer_store_dwordx2 v[{PK+8}:{PK+9}], v{V_P8}, s[16:19], s78 offen offset:2048 sc1", ("PST", p, 2))]
    return [(cv[:4], st[0]), (cv[4:8], st[1]), (cv[8:], st[2])]
def hreads(s):
    o = []
    for t in range(5):
        off = (s * 5 + t) * 1024; vr = V_HR
        if off >= 40960: off -= 40960; vr = V_HR2
        lo = HB + (s * 5 + t) * 1024
        o.append(LG(f"ds_read_b128 {act(s*5+t)}, v{vr} offset:{off}", ("RH", s, t), rd=(lo, lo + 1024)))
    return o
def tags(items): return [it.tag for it in items if it.kind == "lg"]
def cyc_stamp(side, g, g0, gap, v):
    if cfg.ts == 2 and cfg.pp and g == g0: side.append((gap, [I("s_memtime s[90:91]")]))
    if cfg.ts == 2 and cfg.pp and g == g0 + 1: side.append((gap, [I("s_waitcnt lgkmcnt(0)"), I("v_cmp_eq_u32 vcc, s63, v1"), I("v_mov_b32 v9, s90"), I("s_nop 0"), I(f"v_cndmask_b32 v{v}, v{v}, v9, vcc")]))

def g1_group(p, g, dyn=False):
    kind = "a" if p == 0 else ("z" if p == 7 else "")
    ms = group_mfmas(1, range(3 * g, 3 * g + 3), 17)
    side = []
    nph, npp = (1, p + 1) if p < 7 else (2, 0)
    if g % 2 == 1:
        need = cover(1, p, 3 * g + 3, 3 * g + 9) if g < 5 else cover(nph, npp, 0, 6)
        if g == 1 and p == 1: need = need + [("ABST", 4)]
        side.append((0, [WAIT(f"g1_b{g}{kind}", vm=need), BAR()]))
    rd = []
    for s in range(3 * g + 3, 3 * g + 6):
        rd += trr(1, p, s) if s < 18 else trr(nph, npp, s - 18)
    side += list(zip([1, 2, 4, 5, 6, 7] if not cfg.rdp else [0, 1, 2, 4, 5, 6], rd))
    for k, s in enumerate(range(3 * g + 15, 3 * g + 18)):
        pre, dm = wdma(1, p, s) if s < 18 else wdma(nph, npp, s - 18)
        gp = [3, 8, 13][k]
        if pre: side.append((gp - 2, pre[0])); side.append((gp - 1, pre[1]))
        side.append((gp, dm))
    if g == 0:
        if p < 7:
            side.append((11, [I("s_add_u32 s73, s73, 128"), I("s_and_b32 s73, s73, 0x380")])); side.append((12, I("s_add_u32 s62, s73, s74")))
        else:
            side.append((11, I("s_mov_b32 s62, s72")))
    if kind == "z" and cfg.tag7:
        if g == 0: side += [(1, I(f"v_mov_b32 v{ABP}, -1")), (2, I(f"v_mov_b32 v{ABP+1}, -1")), (7, I(f"v_mov_b32 v{ABP+2}, -1")), (10, I(f"v_mov_b32 v{ABP+3}, -1")),
                            (12, I(f"s_add_u32 s34, s78, {7*SL}"))]
        if g == 1: side.append((0, [VM(f"buffer_store_dwordx4 v[{ABP}:{ABP+3}], v{V_P16}, s[16:19], s34 offen sc1", ("POI", 0)),
                                    VM(f"buffer_store_dwordx4 v[{ABP}:{ABP+3}], v{V_P16}, s[16:19], s34 offen offset:1024 sc1", ("POI", 1)),
                                    VM(f"buffer_store_dwordx2 v[{ABP}:{ABP+1}], v{V_P8}, s[16:19], s34 offen offset:2048 sc1", ("POI", 2))]))
        if g == 4: side += [(1, [I(f"v_lshlrev_b32 v4, 2, v{V_L}"), I(f"v_cmp_gt_u32 vcc, 32, v{V_L}")]), (3, I(f"v_mov_b32 v5, {OOB}")), (8, I(f"v_cndmask_b32 v{ABP+4}, v5, v4, vcc"))]
    hr = []
    if kind == "z" and g >= 1:
        hr = hreads(2 * g - 2) + hreads(2 * g - 1)
        side += list(zip([0 if g % 2 == 0 else 1, 2, 4, 5, 6, 7, 9, 9, 11, 12], hr))
    if kind == "a":
        ep = ab_epilogue(); st = ab_once(0); wr = ab_once(2); ag = ab_gaddr()
        if cfg.p0v:
            if g == 0: side += spread(ep[:12], [3, 4, 5, 6, 7]) + [(9, wr[0])] + spread(ep[12:22], [8, 9, 10, 11]) + [(12, wr[1])] + spread(ep[22:28], [12, 13, 14])
            if g == 1: side += spread(ep[28:42], [1, 2, 3, 4, 5, 6, 7, 8]) + [(9, wr[2]), (11, wr[3])] + spread(ep[42:], [10, 11, 12, 13, 14])
        else:
            if g == 0: side += spread(ep[:26], [3, 4, 5, 6, 7, 9, 9, 10, 10, 11, 12, 13, 14])
            if g == 1: side += spread(ep[26:], [1, 2, 3, 4, 5, 6, 7, 9, 11, 12, 13]) + [(9, wr[0]), (10, wr[1]), (12, wr[2]), (14, wr[3])]
        if g == 2:
            r2 = ab_once(3); rd = rd + r2
            side += [(0, wr[4]), (9, r2[0]), (10, r2[1])]
        if g == 3: side += list(zip([0, 1, 2], st))
        if g in (3, 4, 5):
            s3_ = setup3(); n3 = (len(s3_) + 2) // 3
            side += spread(s3_[(g - 3) * n3:(g - 2) * n3], [3, 4, 5, 6, 7, 9, 9, 10, 10, 11, 12, 14])
    if kind == "" and g == cfg.fgg:
        side.append((cfg.fg1, [I("s_cmp_eq_u32 s63, s33" if cfg.w0 else "s_cmp_eq_u32 s63, 6"), I("s_cbranch_scc1 L_once1")] + (ab_once(1) if (dyn and p == 1) else []) + [I("L_once1_ret:")]))
    if kind == "a": pass
    elif g < 5:
        cv, mx, w = h_tile(p - 1, g)
        if kind == "z" and g >= 1:
            side += [(3, cv[0]), (8, cv[1]), (10, mx), (13, w)]
        elif cfg.hw == 1:
            side += [(3, cv[0]), (4, cv[1]), (5, mx[0]), (6, mx[1]), (cfg.hg, w)]
        else:
            side += [(4, cv[0]), (5, cv[1]), (9, mx), (cfg.hg, w)]
    else:
        if cfg.krot and kind == "":
            side += [(4, [I("s_add_u32 s100, s100, 10240"), I("s_cmp_eq_u32 s100, 61440"), I("s_cselect_b32 s100, 0, s100")]),
                     (9, [I("s_cmp_eq_u32 s63, 1"), I("s_cselect_b32 s100, 61440, s100")]), (10, I(f"v_add_u32 v{V_HW}, s100, v{V_PF2}"))]
        else: side.append((10, I(f"v_add_u32 v{V_HW}, 10240, v{V_HW}")))
    if kind == "": cyc_stamp(side, g, 2, 12, 130)
    if g == 5 and kind == "": side.append((13, [I("s_sub_u32 s63, s63, 1"), I("s_cmp_lg_u32 s63, 0")]))
    side.append((14, WAIT(f"g1_r{g}{kind}", lg=tags(rd))))
    return place(ms, side)

def nextcol():
    return [[I("s_add_u32 s62, s62, 128"), I("s_cmp_eq_u32 s62, 1152"), I("s_cselect_b32 s62, 0, s62")],
            [I("s_cmp_eq_u32 s62, s72"), I(f"s_cselect_b32 s62, {OOB}, s62"), I("s_xor_b32 s60, s60, 0x10000")]]
def g2_pass0():
    o = []
    groups = [(0, 1, 2), (3, 4, 5), (6, 7), (8, 9, 10, 11), (12, 13, 14, 15)]
    cuts = [15, 19, 23, 26, 31, 36]
    hsteps = [(10,), (11, 12), (13,), (14, 15), ()]
    htl = [(0, 1), (2, 3), (4,), (), ()]
    if cfg.g20v:
        hsteps = [(10,), (11,), (), (12, 13), (14, 15)]
        htl = [(0,), (1, 2), (3,), (4,), ()]
    for gi, st in enumerate(groups):
        ms = group_mfmas(2, st, 15); n = len(ms); side = []
        hw7 = [("HW", 7, 4)]
        if gi == 1: side.append((0, [WAIT("g20_b1", vm=cover(2, 0, 6, 12)), BAR()]))
        if gi == 3: side.append((0, [WAIT("g20_b3", vm=cover(2, 0, 12, 16), lg=None if cfg.g20v else hw7), BAR()]))
        if gi == 4: side.append((0, [WAIT("g20_b4", vm=cover(2, 1, 0, 8), lg=hw7 if cfg.g20v else None), BAR(), I(f"v_xor_b32 v{V_TR}, 0x10000, v{V_TR}")]))
        dl = list(range(cuts[gi], cuts[gi + 1]))
        dg = [min(n - 1, 2 + (i * (n - 1)) // len(dl)) for i in range(len(dl))]
        for s, gp in zip(dl, dg):
            pre, dm = wdma(2, s // 16, s % 16)
            if s % 16 == 0:
                nc = nextcol(); side.append((gp - 2, nc[0] + nc[1]))
            if pre: side.append((gp - 1, pre))
            side.append((gp, dm))
        free = [x for x in range(1 if gi in (1, 3, 4) else 0, n - 3) if x not in dg]
        rd = []
        for s in (groups[gi + 1] if gi < 4 else range(16, 20)): rd += trr(2, s // 16, s % 16)
        if cfg.g20v and gi == 4:
            h14, h15 = hreads(14), hreads(15)
            side += spread(h14 + h15, [0, 1, 2, 3, 4]) + [(9, WAIT("g20_h14", lg=tags(h14))), (14, WAIT("g20_h15", lg=tags(h15)))]
            free = [x for x in free if x > 4]
        else:
            for s in hsteps[gi]: rd += hreads(s)
        side += spread(rd, free)
        for k, t in enumerate(htl[gi]):
            cv, mx, w = h_tile(7, t)
            b = 3 + 4 * k
            side += [(b, cv[0]), (b + 1, cv[1]), (b + 2, mx[0]), (b + 3, mx[1]), ((8 if (cfg.g20v and gi == 3) else n - 3 + k), w)]
        gp_ = g2_pre()
        k_ = 30 if cfg.inloop else 20
        if gi == 3: side += spread(gp_[:k_], list(range(1, n - 1)))
        if gi == 4: side += spread(gp_[k_:], list(range(1, n - 1)))
        side.append((n - 1, WAIT(f"g20_r{gi}", lg=tags(rd))))
        o += place(ms, side)
    return o
SUM, PBUF, PB2 = 216, 236, 76
V_SELA = 248
V_FLW = 254
V_FLG = 128
V_K0, V_K1 = 129, 130
YR, GR, SEL, OA, V_YA, V_YA0, V_GA = 100, 132, 110, 114, 120, 121, 122
def slot_loads(b, tag, so="s34", r="v"):
    return [VM(f"buffer_load_dwordx4 {r}[{b}:{b+3}], v{V_P16}, s[16:19], {so} offen sc1", (tag, 0)),
            VM(f"buffer_load_dwordx4 {r}[{b+4}:{b+7}], v{V_P16}, s[16:19], {so} offen offset:1024 sc1", (tag, 1)),
            VM(f"buffer_load_dwordx2 {r}[{b+8}:{b+9}], v{V_P8}, s[16:19], {so} offen offset:2048 sc1", (tag, 2))]
def slot_add(d, b, first=False, r="v"):
    o = []
    for t in range(5):
        a = V_SELA + (0 if t & 1 else 2); bb = b + 4 * (t >> 1); D = f"v[{d+4*t}:{d+4*t+3}]"
        o.append(mfma(D, f"v[{a}:{a+3}]", f"{r}[{bb}:{bb+3}]", "0" if first else D))
    return o
def slot_next():
    return [[I("s_cmp_eq_u32 s96, 0"), I(f"s_cselect_b32 s97, {72*SL}, 0"), I("s_add_u32 s95, s95, s97")],
            [I(f"s_sub_u32 s95, s95, {7*SL}"), I("s_sub_u32 s96, s96, 1")]]
def sample(tag, so=None):
    if so: return VM(f"buffer_load_dword v{V_FLG}, v{V_FL}, s[16:19], {so} offen offset:2560 sc1", tag)
    return VM(f"buffer_load_dword v{V_FLG}, v{V_POLL}, s[16:19], 0 offen sc1", tag)
def check(lab):
    return [I(f"v_cmp_eq_u32 vcc, s7, v{V_FLG}"), I("s_and_b32 s97, vcc_lo, s35"), I("s_cmp_eq_u32 s97, s35"), I(f"s_cbranch_scc0 {lab}"), I(f"{lab}_ret:")]
def spin(lab, so=None):
    return T(f"""
    {lab}:
    s_mov_b32 s98, {SPIN}
    {lab}_l:
    {sample(None, so).text}
    s_sub_u32 s98, s98, 1
    s_cmp_eq_u32 s98, 0
    s_cbranch_scc1 {lab}_ret
    s_waitcnt vmcnt(0)
    v_cmp_eq_u32 vcc, s7, v{V_FLG}
    s_and_b32 s97, vcc_lo, s35
    s_cmp_eq_u32 s97, s35
    s_cbranch_scc1 {lab}_ret
    {f"s_sleep {cfg.slp2}" if cfg.slp2 else "s_nop 0"}
    s_branch {lab}_l
    """)
def tagcheck():
    b = PB2
    return T(f"""
    v_max3_u32 v4, v{b}, v{b+1}, v{b+2}
    v_max3_u32 v5, v{b+3}, v{b+4}, v{b+5}
    v_max3_u32 v6, v{b+6}, v{b+7}, v{b+8}
    v_max3_u32 v4, v4, v{b+9}, v5
    v_max_u32 v4, v4, v6
    v_cmp_eq_u32 vcc, -1, v4
    s_nop 4
    """)
def spin_tag():
    return T(f"L_sp3:\ns_mov_b32 s98, {SPIN}\nL_sp3_l:") + slot_loads(PB2, None, "s95") + T("""
    s_sub_u32 s98, s98, 1
    s_waitcnt vmcnt(0)
    s_cmp_eq_u32 s98, 0
    s_cbranch_scc1 L_sp3_ret
    """) + tagcheck() + T("s_cbranch_vccnz L_sp3_l\ns_branch L_sp3_ret")
EB = 216
V_POLLE = 129
EB2 = 132
def ep_block(which, p=None):
    if cfg.ep2 == 2:
        if which == 0: return [sample(("EPS", p), "s79")]
        adr = (94, 96, 34, 100, 101, 101); buf = (EB, EB + 10, EB + 20, EB2, EB2 + 10)
        o = check("L_sp1")
        for j in range(5):
            body = slot_loads(buf[j], ("SL", j), "s79") + [I(f"s_mov_b32 s79, s{adr[j+1]}")]
            head = [I(f"s_cmp_lg_u32 s63, {5-j}"), I(f"s_cbranch_scc1 L_epn{j}")] if j < 4 else []
            if p is None: o += head + body + ([I("s_branch L_ep1_ret"), I(f"L_epn{j}:")] if j < 4 else [])
            elif p == 3 + j: return o + head + body
            else: o += head
        return o
    if which == 0: return [VM(f"buffer_load_dword v{V_FLG}, v{V_POLLE}, s[16:19], 0 offen sc1", ("EPS", p))]
    o = check("L_sp1")
    e1 = []; e2 = []
    for j in range(cfg.early): e1 += slot_loads(EB + 10 * j, ("SL", j), f"s{(94, 96, 34)[j]}")
    if not cfg.ep2: return o + e1
    e1.append(I("s_movk_i32 s35, 0x18"))
    for j in (3, 4): e2 += slot_loads(EB2 + 10 * (j - 3), ("SL", j), f"s{(100, 101)[j - 3]}")
    o += [I("s_cmp_eq_u32 s63, 1"), I("s_cbranch_scc1 L_ep2")]
    if p is None: return o + e1 + [I("s_branch L_ep1_ret"), I("L_ep2:")] + e2
    return o + (e2 if p == 7 else e1)
def fs_block():
    o = [I(x.text.replace("s67", "s33").replace("s68", "s73").replace("s69", "s74").replace("s70", "s79")) for x in fin_setup()]
    for j, d in ((5, 92), (6, 93), (7, 95)):
        o += [I(f"s_cmp_lt_u32 s6, {j}"), I(f"s_cselect_b32 s33, {72*SL}, 0"), I(f"s_add_u32 s33, s33, s95"), I(f"s_sub_u32 s{d}, s33, {7*j*SL}")]
    return o
def g2_group(p, g, ep=()):
    ms = group_mfmas(2, range(4 * g, 4 * g + 4), 15); side = []
    if g in (1, 3):
        need = cover(2, p, 8, 16) if g == 1 else cover(2, p + 1, 0, 8) + [("PST", p - 1, 2)] + (([("SMP", p)] + ([(("SL", p - 1), 2)] if p > 1 else [])) if cfg.inloop else [])
        if g == 3 and p in ep and cfg.early and not cfg.inloop: need = need + [("EPS", p)]
        side.append((0, [WAIT(f"g2_b{g}", vm=need), BAR()] + ([I(f"v_xor_b32 v{V_TR}, 0x10000, v{V_TR}")] if g == 3 else [])))
    rd = []
    for s in range(4 * g + 4, 4 * g + 8): rd += trr(2, p + s // 16, s % 16)
    side += list(zip([1, 2, 4, 5, 6, 7, 9, 10], rd))
    for k, s in enumerate(range(4 * g + 20, 4 * g + 24)):
        pre, dm = wdma(2, p + s // 16, s % 16)
        gp = [3, 8, 13, 18][k]
        if pre: side.append((gp - 2, pre[0])); side.append((gp - 1, pre[1]))
        side.append((gp, dm))
    if g == 0:
        pp = p_parts(p - 1)
        if cfg.inloop: side.append((0, sample(("SMP", p), "s34")))
        if cfg.g2t == 3:
            side = [(g_, it) for (g_, it) in side if not (isinstance(it, Item) and it in rd)]
            side += list(zip([1, 2, 4, 5, 7, 9, 11, 12], rd))
            side += list(zip([3, 4, 4, 5, 7, 8, 9, 9, 13, 14], pp[0][0] + pp[1][0] + pp[2][0]))
            side += [(6, pp[0][1]), (10, pp[1][1]), (15, pp[2][1])]
        elif cfg.g2t == 2:
            side += list(zip([3, 4, 5, 6, 7, 8, 9, 10, 12, 13], pp[0][0] + pp[1][0] + pp[2][0]))
            side += [(11, pp[0][1]), (14, pp[1][1]), (16, pp[2][1])]
        else:
            side += list(zip([4, 5, 6, 7, 9, 10, 11, 12, 14, 14], pp[0][0] + pp[1][0] + pp[2][0]))
            side += [(15, pp[0][1]), (16, pp[1][1]), (17, pp[2][1])]
    if g == 2:
        nc = nextcol()
        side += [(14, [nc[0][0], nc[1][2]]), (15, nc[0][1:]), (16, nc[1][:2])] if cfg.g2t else [(16, nc[0]), (17, nc[1])]
        if cfg.inloop: sn = slot_next(); side += [(14, sn[0]), (15, sn[1])]
    if cfg.early and not cfg.inloop and g in (0, 3):
        w = 0 if g == 0 else 1
        side.append((0 if g == 0 else cfg.epg, [I("s_bitcmp1_b32 s99, s63"), I(f"s_cbranch_scc1 L_ep{w}")] + (ep_block(w, p) if p in ep else []) + [I(f"L_ep{w}_ret:")]))
    if cfg.fse and g == 1:
        side.append((cfg.fse, [I("s_cmp_eq_u32 s63, 6"), I("s_cbranch_scc1 L_fs")] + (fs_block() if (ep and p == 2) else []) + [I("L_fs_ret:")]))
    if g == 3 and not cfg.inloop:
        side.append((cfg.flg, VM(f"buffer_store_dword v{V_TAG}, v{V_FLW}, s[16:19], s78 offen offset:2560 sc1", ("PFL", p - 1))))
        side.append((16, I(f"s_add_u32 s78, s78, {SL}")))
        side.append((17 if cfg.g2t else 19, [I("s_sub_u32 s63, s63, 1"), I("s_cmp_lg_u32 s63, 0")]))
    if g == 3 and cfg.inloop:
        ad = slot_add(SUM, PBUF); ld = slot_loads(PBUF, ("SL", p)); ck = check("L_sp1")
        side.append((0, [ad[0], VM(f"buffer_store_dword v{V_TAG}, v{V_FLW}, s[16:19], s78 offen offset:2560 sc1", ("PFL", p - 1)),
                         ad[1], ck[0], ad[2]] + ck[1:] + [ad[3], I(f"s_add_u32 s78, s78, {SL}"), ad[4]]))
        side += list(zip([14, 15, 16], ld))
        side.append((17, [I("s_cmp_gt_u32 s63, 6"), I(f"s_cselect_b32 s34, {OOB}, s95"), I("s_cselect_b32 s35, 0, 1")]))
        side.append((18, [I("s_sub_u32 s63, s63, 1"), I("s_cmp_lg_u32 s63, 0")]))
    cyc_stamp(side, g, 1, 19, 152-1 if False else 131)
    side.append((19, WAIT(f"g2_r{g}", lg=tags(rd))))
    return place(ms, side)

def g2_pre():
    o = T(f"""
    v_sub_u32 v5, s6, v{V_L}
    v_add_u32 v6, 9, v5
    v_min_u32 v5, v5, v6
    v_lshl_add_u32 v5, v5, 3, v{V_L}
    s_mul_i32 s95, s4, {72*SL}
    s_mul_i32 s96, s3, {WSL}
    s_add_u32 s95, s95, s96
    s_add_u32 s95, s95, {WS_PART}
    v_mul_u32_u24 v5, {SL}, v5
    s_add_u32 s97, s95, 2560
    v_add_u32 v5, s97, v5
    s_lshl_b32 s97, s4, 7
    s_add_u32 s97, s97, {WS_YFLAG - 32}
    v_lshl_add_u32 v6, v{V_L}, 2, s97
    v_cmp_gt_u32 vcc, 8, v{V_L}
    s_mov_b32 s82, {(0x20 if (cfg.inloop or cfg.ep2) else (1 << cfg.ne) - (1 << cfg.early)) | (0xfffff << 8)}
    s_mul_i32 s97, s6, {8*SL}
    v_cndmask_b32 v5, v6, v5, vcc
    s_mov_b32 s83, 0
    v_mov_b32 v6, {OOB}
    s_add_u32 s95, s95, s97
    v_cndmask_b32 v{V_POLL}, v6, v5, s[82:83]
    s_mov_b32 s82, {0xff & ~((1 << cfg.ne) - 1)}
    s_add_u32 s95, s95, {14*SL if cfg.inloop else 0}
    v_cndmask_b32 v255, v6, v5, s[82:83]
    s_mov_b32 s82, {0x1f if cfg.ep2 else (1 << cfg.early) - 1}
    s_nop 0
    v_cndmask_b32 v{V_POLLE}, v6, v5, s[82:83]
    s_add_u32 s96, s6, 2
    s_mov_b32 s63, 7
    s_mov_b32 s34, {OOB}
    s_mov_b32 s35, 0
    v_lshlrev_b32 v4, 2, v{V_L}
    v_cmp_gt_u32 vcc, 32, v{V_L}
    v_lshlrev_b32 v5, 2, v{V_Q}
    v_sub_u32 v5, v{V_C}, v5
    v_cndmask_b32 v{V_FLW}, v6, v4, vcc
    v_and_b32 v4, 1, v5
    v_lshlrev_b32 v4, 4, v4
    v_mov_b32 v6, 0x3f80
    v_lshlrev_b32 v4, v4, v6
    v_lshrrev_b32 v5, 1, v5
    v_cmp_eq_u32 vcc, 0, v5
    v_mov_b32 v{V_SELA}, 0
    v_mov_b32 v{V_SELA+1}, 0
    v_cndmask_b32 v{V_SELA+2}, 0, v4, vcc
    v_cmp_eq_u32 vcc, 1, v5
    v_mov_b32 v{V_SELA+4}, 0
    v_mov_b32 v{V_SELA+5}, 0
    v_cndmask_b32 v{V_SELA+3}, 0, v4, vcc
    """)
    if cfg.early and not cfg.inloop:
        o += T(f"""
        v_mov_b32 v{EB+30}, 0
        v_mov_b32 v{EB+31}, 0
        s_mov_b32 s35, {(1 << cfg.early) - 1}
        s_mul_i32 s99, s4, 21846
        s_lshr_b32 s99, s99, 16
        s_mul_i32 s99, s99, 3
        s_sub_u32 s99, s4, s99
        s_min_u32 s99, s99, {cfg.epm - 1}
        s_lshl_b32 s99, 2, s99
        s_mov_b32 s94, s95
        """)
        if cfg.ep2:
            o += T("s_and_b32 s99, s4, 1\ns_lshl_b32 s99, 4, s99\ns_or_b32 s99, s99, 2")
            if cfg.ep2 == 2: o += T("s_movk_i32 s99, 0x3e\ns_mov_b32 s35, 1\ns_mov_b32 s79, s95")
            for j in (3, 4): o.append([I(f"s_cmp_lt_u32 s6, {j}"), I(f"s_cselect_b32 s{97+j}, {72*SL}, 0"), I(f"s_add_u32 s{97+j}, s{97+j}, s95"), I(f"s_sub_u32 s{97+j}, s{97+j}, {7*j*SL}")])
        o.append([I("s_cmp_lt_u32 s6, 1"), I(f"s_cselect_b32 s96, {72*SL}, 0"), I("s_add_u32 s96, s96, s95"), I(f"s_sub_u32 s96, s96, {7*SL}")])
        o.append([I("s_cmp_lt_u32 s6, 2"), I(f"s_cselect_b32 s34, {72*SL}, 0"), I("s_add_u32 s34, s34, s95"), I(f"s_sub_u32 s34, s34, {14*SL}")])
    if cfg.inloop:
        for i in range(20): o.append(I(f"v_mov_b32 v{SUM+i}, 0"))
        for i in range(12): o.append(I(f"v_mov_b32 v{PBUF+i}, 0"))
    return o

def fin_setup():
    o = T(f"""
    s_lshl_b32 s68, s6, 6
    s_lshl_b32 s69, s3, 4
    s_add_u32 s68, s68, s69
    v_add_u32 v5, s68, v{V_C}
    v_sub_u32 v6, 576, v5
    v_cmp_lt_u32 s[76:77], v6, v5
    v_min_u32 v6, v5, v6
    s_mul_i32 s69, s4, 20
    v_add_u32 v7, s69, v{V_Q}
    s_movk_i32 s70, 2560
    v_lshlrev_b32 v6, 3, v6
    v_mad_u32_u24 v{V_YA}, v7, s70, v6
    v_add_u32 v{V_YA}, {WS_YT}, v{V_YA}
    v_cmp_eq_u32 s[80:81], 0, v7
    v_add_u32 v9, {512*2560}, v{V_YA}
    s_and_b64 s[82:83], s[80:81], s[76:77]
    v_lshlrev_b32 v{V_GA}, 4, v7
    v_add_u32 v{V_GA}, {WS_GT}, v{V_GA}
    v_cndmask_b32 v{V_YA0}, v{V_YA}, v9, s[82:83]
    """)
    for rho in range(4):
        d = 0x0c0c | ((2 * rho) << 16) | ((2 * rho + 1) << 24); m = 0x0c0c | ((6 - 2 * rho) << 16) | ((7 - 2 * rho) << 24)
        o += T(f"v_mov_b32 v8, {d}\nv_mov_b32 v9, {m}\nv_cndmask_b32 v{SEL+rho}, v8, v9, s[76:77]")
    o += T(f"""
    s_lshl_b32 s68, s3, 1
    v_lshrrev_b32 v5, 1, v{V_Q}
    v_add_u32 v5, s68, v5
    v_and_b32 v6, 7, v{V_C}
    v_xor_b32 v5, v5, v6
    v_lshlrev_b32 v5, 4, v5
    v_lshl_add_u32 v5, v{V_C}, 7, v5
    v_and_b32 v6, 1, v{V_Q}
    v_lshl_add_u32 v5, v6, 3, v5
    v_add_u32 v{OA}, {OUTL}, v5
    v_lshrrev_b32 v5, 3, v{V_L}
    v_and_b32 v6, 7, v{V_L}
    v_xor_b32 v7, v5, v6
    v_lshlrev_b32 v7, 4, v7
    v_lshl_add_u32 v7, v5, 7, v7
    s_lshl_b32 s70, s3, 10
    s_add_u32 s70, s70, {OUTL}
    v_add_u32 v{OA+1}, s70, v7
    s_lshl_b32 s70, s6, 7
    v_lshl_add_u32 v6, v6, 4, s70
    v_and_b32 v5, 3, v5
    v_lshrrev_b32 v7, 5, v{V_L}
    s_add_u32 s68, s68, s69
    v_add_u32 v7, s68, v7
    s_add_u32 s69, s69, 20
    s_min_u32 s69, s69, 512
    s_movk_i32 s67, 1152
    """)
    for k in range(3):
        o += rowcalc(7, 5, OA + 2 + k, 8) + T(f"""
        v_cmp_gt_u32 vcc, s69, v7
        v_mad_u32_u24 v{OA+2+k}, v{OA+2+k}, s67, v6
        v_mov_b32 v8, {OOB}
        v_cndmask_b32 v{OA+2+k}, v8, v{OA+2+k}, vcc
        v_add_u32 v7, 8, v7
        """)
    return o

V_P12, V_FLG2 = 99, 131
T7 = 56
Q7 = 100
def pos7(i): return i + i // 3
def loads7():
    l = [VM(f"buffer_load_dwordx4 v[{T7+4*k}:{T7+4*k+3}], v{V_P16}, s[16:19], s71 offen offset:{1024*k} sc1", (("SL", 7), 5 + k)) for k in range(3)]
    return l + [VM(f"buffer_load_dwordx2 v[{T7+12}:{T7+13}], v{V_P8}, s[16:19], s71 offen offset:3072 sc1", (("SL", 7), 2))]
def chk7():
    return T(f"""
    v_xor_b32 v4, s7, v{T7+3}
    v_xor_b32 v5, s7, v{T7+7}
    v_xor_b32 v6, s7, v{T7+11}
    v_xor_b32 v7, s7, v{T7+13}
    v_or3_b32 v4, v4, v5, v6
    v_or_b32 v4, v4, v7
    v_cmp_ne_u32 vcc, 0, v4
    s_nop 4
    """)
def spin7():
    return T(f"L_sp4:\ns_mov_b32 s98, {SPIN}\nL_sp4_l:") + loads7() + T("""
    s_sub_u32 s98, s98, 1
    s_waitcnt vmcnt(0)
    s_cmp_eq_u32 s98, 0
    s_cbranch_scc1 L_sp4_ret
    """) + chk7() + T("s_cbranch_vccnz L_sp4_l\ns_branch L_sp4_ret")
def g2_last2(fs, ad):
    o = []; p = 8; E = 5 if cfg.ep2 else cfg.early; F7 = cfg.chk7 == 2
    yg = []
    for t in range(5):
        yg.append([I(f"s_or_b32 s61, s75, {t*4*2560}" if t >= 3 else f"s_mov_b32 s61, {t*4*2560}"), VM(f"buffer_load_dwordx2 v[{YR+2*t}:{YR+2*t+1}], v{V_YA0 if t == 0 else V_YA}, s[16:19], s61 offen sc1", ("YL", t))])
        yg.append(VM(f"buffer_load_dwordx4 v[{GR+4*t}:{GR+4*t+3}], v{V_GA}, s[16:19], {'s75' if t >= 3 else '0'} offen offset:{64*t} sc1", ("GL", t)))
    ld = []
    for j in range(E, 6): ld += slot_loads(12 * j, ("SL", j), f"s{64+j}", "a")
    ld += yg
    for g in range(4):
        ms = group_mfmas(2, range(4 * g, 4 * g + 4), 15); side = []
        rd = []
        if g < 3:
            for s in range(4 * g + 4, 4 * g + 8): rd += trr(2, p, s)
            side += list(zip([1, 2, 4, 5, 6, 7, 9, 10] if g else [10, 11, 12, 13, 14, 15, 16, 17], rd))
        if g == 0:
            side.append((0, sample("S0")))
            if F7:
                pp = p_parts(7)
                side += list(zip([1, 1, 2, 2, 4, 4, 5, 5, 7, 7], pp[0][0] + pp[1][0] + pp[2][0]))
                side += [(3, pp[0][1]), (6, pp[1][1]), (8, pp[2][1])]
            else:
                cv = [I(f"v_cvt_pk_bf16_f32 v{Q7+pos7(i)}, v{E0+2*i}, v{E0+2*i+1}") for i in range(10)]
                st = [VM(f"buffer_store_dwordx4 v[{Q7+4*k}:{Q7+4*k+3}], v{V_P16}, s[16:19], s78 offen offset:{1024*k} sc1", ("PST", 7, k)) for k in range(3)]
                st.append(VM(f"buffer_store_dwordx2 v[{Q7+12}:{Q7+13}], v{V_P8}, s[16:19], s78 offen offset:3072 sc1", ("PST", 7, 3)))
                side += list(zip([1, 1, 2, 3, 4, 4, 5, 6, 6, 7], cv)) + list(zip([2, 4, 7, 8], st))
            side += spread(ad, list(range(10, 19)))
            side.append((19, I(f"s_mov_b32 s35, {((1 << 6) - (1 << E)) | (0xfffff << 8)}")))
        if g == 1:
            side.append((0, [WAIT("g2z_b1", vm=cover(2, p, 8, 16)), BAR()]))
            side += spread(fs[:24], list(range(1, 12)))
            side.append((12, [WAIT("g2z_s0", vm=["S0"])] + check("L_sp2") + [I("s_mov_b32 s35, 1"), sample("S1", "s70")]))
            pfl7 = [WAIT("g2z_st", vm=[("PST", 7, 2)]), VM(f"buffer_store_dword v{V_TAG}, v{V_FLW}, s[16:19], s78 offen offset:2560 sc1", ("PFL", 7))]
            if cfg.ep2:
                ld = ld[:3] + yg[0::2] + yg[1::2]
                side.append((19 if cfg.st1 else 14, slot_add(16, EB2) + slot_add(16, EB2 + 10)))
            if cfg.st1:
                side += list(zip([12, 12, 12, 14, 15, 16, 17], ld[:7])); side.append((cfg.st1, pfl7))
            else: side += list(zip(range(13, 20), ld[:7]))
        if g == 2:
            if F7 and not cfg.st1: side.append((0, pfl7))
            side += spread(ld[7:], list(range(0, 6 if cfg.ep2 else 16)))
            side += spread(fs[24:45], list(range(0, 20)))
        if g == 3:
            side += spread(fs[45:], [x for x in range(0, 20) if x < cfg.s6g - 1 or x > cfg.s6g])
            ck = [I(x.text.replace("vcc_lo", "s80").replace("vcc", "s[80:81]")) for x in check("L_sp3")]
            side.append((cfg.s6g, [WAIT("g2z_s1", vm=["S1"])] + ck + slot_loads(72, ("SL", 6), "s70", "a") + ([] if F7 else loads7())))
            if F7: side.append((cfg.s2g, sample("S2", "s71")))
        if g < 3: side.append((19, WAIT(f"g2z_r{g}", lg=tags(rd))))
        o += place(ms, side)
    o += TS(7)
    for j in range(cfg.early): o += slot_add(E0, EB + 10 * j)
    for j in range(E, 6):
        o.append(WAIT(f"fin_a{j}", vm=[(("SL", j), 2)])); o += slot_add(E0, 12 * j, r="a")
    YT_ = 56 if F7 else EB
    o.append(WAIT("fin_gl", vm=[("GL", 4)]))
    for t in range(5):
        for rho in range(4): o.append(I(f"v_perm_b32 v{YT_+4*t+rho}, v{YR+2*t+1}, v{YR+2*t}, v{SEL+rho}"))
    if F7:
        o.append(WAIT("fin_s2", vm=["S2"])); o += check("L_sp4") + slot_loads(84, ("SL", 7), "s71", "a")
    for i in range(20): o.append(I(f"v_mul_f32 v{YT_+i}, v{YT_+i}, v{GR+i}"))
    for i in range(20): o.append(I(f"v_sub_f32 v{GR+i}, 1.0, v{GR+i}"))
    o.append(WAIT("fin_6", vm=[(("SL", 6), 2)])); o += slot_add(E0, 72, r="a")
    o.append(WAIT("fin_7", vm=[(("SL", 7), 2)]))
    if F7: return o + slot_add(E0, 84, r="a") + [I("s_nop 3")] + fin_out()
    o += chk7() + T("s_cbranch_vccnz L_sp4\nL_sp4_ret:")
    for i in range(3, 10): o.append(I(f"v_mov_b32 v{T7+i}, v{T7+pos7(i)}"))
    o += T(f"v_mov_b32 v{T7+10}, 0\nv_mov_b32 v{T7+11}, 0")
    o += slot_add(E0, T7)
    o.append(I("s_nop 3"))
    return o + fin_out(YT_)
def g2_last0():
    o = []; p = 8
    fs = fin_setup()
    ad = []
    for j in range(8):
        ad.append([I(f"s_cmp_lt_u32 s6, {j}"), I(f"s_cselect_b32 s{64+j}, {72*SL}, 0"), I(f"s_add_u32 s{64+j}, s{64+j}, s95"), I(f"s_sub_u32 s95, s95, {7*SL}")])
    fs = [I(x.text.replace("s67", "s96").replace("s68", "s62").replace("s69", "s94").replace("s70", "s34")) for x in fs]
    if cfg.chk7 and cfg.fse:
        assert cfg.ep2 == 1 and cfg.chk7 == 2
        o = g2_last2([], [])
        for it in o:
            if it.text: it.text = it.text.replace("s69 offen", "s92 offen").replace("s70 offen", "s93 offen").replace("s71 offen", "s95 offen")
        return o
    if cfg.chk7: return g2_last2(fs, ad)
    NE = cfg.ne; E = cfg.early
    yg = []
    for t in range(5):
        yg.append([I(f"s_or_b32 s61, s75, {t*4*2560}" if t >= 3 else f"s_mov_b32 s61, {t*4*2560}"), VM(f"buffer_load_dwordx2 v[{YR+2*t}:{YR+2*t+1}], v{V_YA0 if t == 0 else V_YA}, s[16:19], s61 offen sc1", ("YL", t))])
        yg.append(VM(f"buffer_load_dwordx4 v[{GR+4*t}:{GR+4*t+3}], v{V_GA}, s[16:19], {'s75' if t >= 3 else '0'} offen offset:{64*t} sc1", ("GL", t)))
    ld = []
    for j in range(E, NE): ld += slot_loads(12 * j, ("SL", j), f"s{64+j}", "a")
    ld += yg
    for g in range(4):
        ms = group_mfmas(2, range(4 * g, 4 * g + 4), 15); side = []
        rd = []
        if g < 3:
            for s in range(4 * g + 4, 4 * g + 8): rd += trr(2, p, s)
            side += list(zip([1, 2, 4, 5, 6, 7, 9, 10] if g else [9, 10, 11, 12, 13, 14, 15, 16], rd))
        if g == 0:
            pp = p_parts(7)
            side.append((0, sample("S0")))
            side += list(zip([1, 1, 2, 2, 4, 4, 5, 5, 7, 7], pp[0][0] + pp[1][0] + pp[2][0]))
            side += [(3, pp[0][1]), (6, pp[1][1]), (8, pp[2][1])]
            side += spread(ad, list(range(9, 19)))
            side.append((19, I(f"s_mov_b32 s35, {((1 << NE) - (1 << E)) | (0xfffff << 8)}")))
        if g == 1:
            side.append((0, [WAIT("g2z_b1", vm=cover(2, p, 8, 16)), BAR()]))
            side += spread(fs[:24], list(range(1, 12)))
            side.append((12, [WAIT("g2z_s0", vm=["S0"])] + check("L_sp2")))
            side += list(zip(range(13, 20), ld[:7]))
        if g == 2:
            side.append((cfg.stg, [WAIT("g2z_st", vm=[("PST", 7, 2)]), VM(f"buffer_store_dword v{V_TAG}, v{V_FLW}, s[16:19], s78 offen offset:2560 sc1", ("PFL", 7))]))
            side += spread(ld[7:], list(range(cfg.stg + 1, 20)))
            side += spread(fs[24:45], list(range(0, 20)))
        if g == 3:
            side += spread(fs[45:], list(range(0, 19)))
            side.append((19, [I(f"s_mov_b32 s35, {0xff & ~((1 << NE) - 1)}"), I(f"v_mov_b32 v{V_POLL}, v255"), sample("S1")]))
        if g < 3: side.append((19, WAIT(f"g2z_r{g}", lg=tags(rd))))
        o += place(ms, side)
    o += TS(7)
    for j in range(E): o += slot_add(E0, EB + 10 * j)
    for j in range(E, NE):
        o.append(WAIT(f"fin_a{j}", vm=[(("SL", j), 2)])); o += slot_add(E0, 12 * j, r="a")
    o.append(WAIT("fin_s1", vm=["S1"])); o += check("L_sp3")
    for j in range(7, NE - 1, -1): o += slot_loads(12 * j, ("SL", j), f"s{64+j}", "a")
    for t in range(5):
        for rho in range(4): o.append(I(f"v_perm_b32 v{56+4*t+rho}, v{YR+2*t+1}, v{YR+2*t}, v{SEL+rho}"))
    for i in range(20): o.append(I(f"v_mul_f32 v{56+i}, v{56+i}, v{GR+i}"))
    for i in range(20): o.append(I(f"v_sub_f32 v{GR+i}, 1.0, v{GR+i}"))
    for j in range(7, NE - 1, -1):
        o.append(WAIT(f"fin_{j}", vm=[(("SL", j), 2)])); o += slot_add(E0, 12 * j, r="a")
    o.append(I("s_nop 3"))
    return o + fin_out()

def g2_last():
    if not cfg.inloop: return g2_last0()
    o = []; p = 8
    fs = fin_setup()
    yg = []
    for t in range(5):
        yg.append([I(f"s_or_b32 s61, s75, {t*4*2560}" if t >= 3 else f"s_mov_b32 s61, {t*4*2560}"), VM(f"buffer_load_dwordx2 v[{YR+2*t}:{YR+2*t+1}], v{V_YA0 if t == 0 else V_YA}, s[16:19], s61 offen sc1", ("YL", t))])
        yg.append(VM(f"buffer_load_dwordx4 v[{GR+4*t}:{GR+4*t+3}], v{V_GA}, s[16:19], {'s75' if t >= 3 else '0'} offen offset:{64*t} sc1", ("GL", t)))
    for g in range(4):
        ms = group_mfmas(2, range(4 * g, 4 * g + 4), 15); side = []
        if g == 0:
            for t, m in enumerate([m for m in ms if m.text.endswith(", 0")]): m.text = m.text[:-1] + f"v[{SUM+4*t}:{SUM+4*t+3}]"
        rd = []
        if g < 3:
            for s in range(4 * g + 4, 4 * g + 8): rd += trr(2, p, s)
            side += list(zip([1, 2, 4, 5, 6, 7, 9, 10] if g else [9, 10, 11, 12, 13, 14, 15, 16], rd))
        if g == 0:
            pp = p_parts(7)
            side.append((0, sample("S0")))
            side += list(zip([1, 1, 2, 2, 4, 4, 5, 5, 7, 7], pp[0][0] + pp[1][0] + pp[2][0]))
            side += [(3, pp[0][1]), (6, pp[1][1]), (8, pp[2][1])]
            side += spread(fs[:19], list(range(9, 19)))
            side.append((19, I(f"s_mov_b32 s35, {(1 << 5) | (0xfffff << 8)}")))
        if g == 1:
            side.append((0, [WAIT("g2z_b1", vm=cover(2, p, 8, 16)), BAR()]))
            side += spread(fs[19:40], list(range(1, 11)))
            side.append((11, [I(f"v_mov_b32 v{PK+10}, 0"), I(f"v_mov_b32 v{PK+11}, 0")]))
            side.append((12, [WAIT("g2z_s0", vm=["S0"])] + check("L_sp2")))
            side += list(zip([13, 14, 15], slot_loads(PK, "SL5", "s95"))) + list(zip([16, 17, 18, 19], yg[:4]))
        if g == 2:
            side += list(zip([0, 1, 2, 3, 4, 5], yg[4:]))
            side.append((cfg.stg, [WAIT("g2z_st", vm=[("PST", 7, 2)]), VM(f"buffer_store_dword v{V_TAG}, v{V_FLW}, s[16:19], s78 offen offset:2560 sc1", ("PFL", 7))]))
            side.append((11, slot_add(SUM, PBUF, True)))
            sn = slot_next(); side += [(12, sn[0]), (13, sn[1]), (14, I("s_mov_b32 s34, s95"))]
            sn = slot_next(); side += [(15, sn[0]), (16, sn[1]), (17, [I("s_movk_i32 s35, 0xc0"), I(f"v_mov_b32 v{V_POLL}, v255")])]
        if g == 3:
            side += spread(fs[40:], list(range(0, 20)))
            side.append((19, sample("S1")))
        if g < 3: side.append((19, WAIT(f"g2z_r{g}", lg=tags(rd))))
        o += place(ms, side)
    o += TS(7)
    o += T(f"v_mov_b32 v{PB2+10}, 0\nv_mov_b32 v{PB2+11}, 0")
    o.append(WAIT("fin_gl", vm=[("GL", 4)]))
    o += slot_add(SUM, PK)
    for t in range(5):
        for rho in range(4): o.append(I(f"v_perm_b32 v{56+4*t+rho}, v{YR+2*t+1}, v{YR+2*t}, v{SEL+rho}"))
    o.append(WAIT("fin_s1", vm=["S1"])); o += check("L_sp3")
    o += slot_loads(PB2, "SL7", "s95") + slot_loads(PBUF, "SL6", "s34")
    for i in range(20): o.append(I(f"v_add_f32 v{E0+i}, v{E0+i}, v{SUM+i}"))
    for i in range(20): o.append(I(f"v_mul_f32 v{56+i}, v{56+i}, v{GR+i}"))
    for i in range(20): o.append(I(f"v_sub_f32 v{GR+i}, 1.0, v{GR+i}"))
    o.append(WAIT("fin_7", vm=[("SL7", 2)])); o += slot_add(E0, PB2)
    o.append(WAIT("fin_6", vm=[("SL6", 2)])); o += slot_add(E0, PBUF)
    o.append(I("s_nop 3"))
    return o + fin_out()
def fin_out(Y=56):
    OF = ('', ' sc1', ' nt', ' sc0 sc1')[cfg.osc]
    o = []
    for t in range(5):
        for rho in range(4): o.append(I(f"v_fmac_f32 v{Y+4*t+rho}, v{E0+4*t+rho}, v{GR+4*t+rho}"))
        o += T(f"v_cvt_pk_bf16_f32 v{PK+2*t}, v{Y+4*t}, v{Y+4*t+1}\nv_cvt_pk_bf16_f32 v{PK+2*t+1}, v{Y+4*t+2}, v{Y+4*t+3}")
    o += T(f"v_mov_b32 v{PK+10}, 0\nv_mov_b32 v{PK+11}, 0")
    for t in range(5):
        a = V_SELA + (0 if t & 1 else 2); bb = PK + 4 * (t >> 1)
        o.append(mfma(ACC(t), f"v[{bb}:{bb+3}]", f"v[{a}:{a+3}]", "0"))
    o.append(I("s_nop 3"))
    for t in range(5):
        r = 16 + 4 * t
        o += T(f"v_cvt_pk_bf16_f32 v{56+2*t}, v{r}, v{r+1}\nv_cvt_pk_bf16_f32 v{57+2*t}, v{r+2}, v{r+3}")
        o.append(LG(f"ds_write_b64 v{OA}, v[{56+2*t}:{57+2*t}] offset:{2048*t}", ("OW", t), wr=(OUTL, OUTL + 10240)))
    o += [WAIT("out_w", lg="all"), BAR()]
    for k in range(3): o.append(LG(f"ds_read_b128 v[{68+4*k}:{71+4*k}], v{OA+1} offset:{4096*k}", ("OR", k), rd=(OUTL, OUTL + 10240)))
    for k in range(3):
        o += [WAIT(f"out_r{k}", lg=[("OR", k)]), I(f"buffer_store_dwordx4 v[{68+4*k}:{71+4*k}], v{OA+2+k}, s[24:27], 0 offen{OF}")]
    o += T(f"""
    s_or_b32 s68, s2, s3
    s_cmp_eq_u32 s68, 0
    s_cbranch_scc0 L_noepoch
    buffer_store_dword v{V_TAG}, v{V_FL}, s[16:19], 0 offen sc1
    L_noepoch:
    """)
    return o

def T(s): return [I(x.strip()) for x in s.strip().split("\n") if x.strip()]
def rowcalc(o, rho, d, tmp):
    return T(f"""
    v_cmp_eq_u32 vcc, 0, v{o}
    v_mov_b32 v{tmp}, 512
    v_add_u32 v{tmp+1}, 1, v{rho}
    v_cndmask_b32 v{tmp}, v{o}, v{tmp}, vcc
    v_cmp_lt_u32 vcc, 1, v{rho}
    v_sub_u32 v{tmp}, 0, v{tmp}
    v_lshrrev_b32 v{tmp+1}, 1, v{tmp+1}
    v_cndmask_b32 v{tmp}, v{o}, v{tmp}, vcc
    v_lshl_add_u32 v{d}, v{tmp+1}, 10, v{tmp}
    """)

def srd(b, p, n): return T(f"s_mov_b32 s{b}, s{p}\ns_mov_b32 s{b+1}, s{p+1}\ns_mov_b32 s{b+2}, {n}\ns_mov_b32 s{b+3}, 0x20000")

def code_pf(k):
    return T(f"""
    s_getpc_b64 s[68:69]
    L_pc{k}:
    s_sub_u32 s68, s68, L_pc{k}-{NAME}
    s_subb_u32 s69, s69, 0
    v_lshlrev_b32 v4, 7, v0
    v_min_u32 v4, L_end-{NAME}, v4
    v_mov_b32 v5, s69
    v_add_co_u32 v4, vcc, s68, v4
    s_nop 1
    v_addc_co_u32 v5, vcc, 0, v5, vcc
    global_load_dword v254, v[4:5], off
    """)
def prologue(dyn=False):
    o = T(f"""
    s_cmp_ge_u32 s2, 256
    s_cbranch_scc1 L_end
    s_load_dwordx16 s[36:51], s[0:1], 0
    s_load_dwordx8 s[52:59], s[0:1], 64
    """) + ((T("s_cmp_lt_u32 s2, 240\ns_cbranch_scc1 L_nopc") + ([] if dyn else code_pf("a")) + T("L_nopc:")) if cfg.pfc == 2 else []) + TS(0) + T(f"""
    v_lshrrev_b32 v4, 6, v0
    v_and_b32 v{V_L}, 63, v0
    v_readfirstlane_b32 s3, v4
    v_and_b32 v{V_C}, 15, v0
    v_bfe_u32 v{V_Q}, v0, 4, 2
    s_and_b32 s60, s2, 3
    s_bfe_u32 s61, s2, 0x10002
    s_lshr_b32 s62, s2, 3
    {"s_and_b32 s63, s2, 7" if cfg.bal else "s_nop 0"}
    {"s_cmp_ge_u32 s63, 6" if cfg.bal else "s_cmp_eq_u32 s60, 3"}
    s_cselect_b32 s63, 30, 29
    s_cmp_ge_u32 s62, s63
    s_cbranch_scc1 L_spare
    """)
    if cfg.map == 0:
        o += T("""
    s_mul_i32 s64, s60, 29
    s_add_u32 s64, s64, s62
    s_mul_i32 s5, s64, 5042
    s_lshr_b32 s5, s5, 16
    s_mul_i32 s65, s5, 13
    s_sub_u32 s64, s64, s65
    s_mul_i32 s4, s61, 13
    s_add_u32 s4, s4, s64
    """)
    elif cfg.map == 1:
        o += T("""
    s_mul_i32 s64, s61, 13
    s_mul_i32 s65, s60, 3
    s_add_u32 s64, s64, s65
    s_add_u32 s64, s64, s62
    s_sub_u32 s64, s64, 26
    s_and_b32 s65, s2, 7
    s_cmp_lt_u32 s62, 26
    s_cselect_b32 s4, s62, s64
    s_cselect_b32 s5, s65, 8
    """)
    else:
        o += T("""
    s_mul_i32 s65, s60, 3
    s_add_u32 s64, s65, s62
    s_sub_u32 s64, s64, 26
    s_lshl_b32 s5, s60, 1
    s_cmp_ge_u32 s62, 13
    s_cselect_b32 s65, 13, 0
    s_cselect_b32 s66, 1, 0
    s_add_u32 s5, s5, s66
    s_sub_u32 s4, s62, s65
    s_cmp_lt_u32 s62, 26
    s_cselect_b32 s4, s4, s64
    s_cselect_b32 s5, s5, 8
    s_mul_i32 s65, s61, 13
    s_add_u32 s4, s4, s65
    """)
        if cfg.bal: o += T("s_cmp_eq_u32 s2, 238\ns_cselect_b32 s4, 12, s4")
    o += T(f"""
    v_lshrrev_b32 v4, 3, v{V_L}
    v_bfe_u32 v5, v{V_L}, 4, 1
    v_lshrrev_b32 v6, 5, v{V_L}
    s_mul_i32 s65, s4, 20
    v_mul_u32_u24 v9, 511, v5
    v_add3_u32 v6, v6, v9, s65
    s_and_b32 s66, s3, 1
    s_lshl_b32 s66, s66, 2
    v_add_u32 v7, s66, v{V_Q}
    v_and_b32 v8, 7, v{V_L}
    v_xor_b32 v7, v7, v8
    v_lshlrev_b32 v7, 4, v7
    s_movk_i32 s67, 1152
    v_and_b32 v9, 3, v4
    v_add_u32 v9, 1, v9
    v_lshrrev_b32 v9, 1, v9
    v_lshlrev_b32 v9, 10, v9
    v_sub_u32 v9, v9, v5
    v_mad_u32_u24 v7, v9, s67, v7
    v_mul_u32_u24 v5, 2304, v5
    v_sub_u32 v5, 1152, v5
    s_bitcmp1_b32 s5, {0 if cfg.rev else 31}
    s_cselect_b32 s92, -1, 1
    s_cselect_b32 s79, 1024, 0
    s_cselect_b32 s34, {8*64*9216}, 0
    s_lshl_b32 s92, s92, 7
    s_lshl_b32 s93, s92, 1
    s_lshl_b32 s82, s3, 10
    s_add_u32 s82, s82, {XB}
    s_lshl_b32 s68, s3, 1
    """)
    for n in range(5):
        if n < 2: o += T(f"s_mov_b32 s{XH+n}, 0\ns_add_u32 s69, s68, {8*n}")
        elif n > 2: o += T(f"s_mov_b32 s{XH+n}, s92\ns_add_u32 s69, s68, {8*n-20}")
        else: o += T(f"s_cmp_ge_u32 s3, 2\ns_cselect_b32 s{XH+n}, s92, 0\ns_cselect_b32 s69, -4, 16\ns_add_u32 s69, s69, s68")
        o += T(f"""
        v_add_u32 v9, s69, v6
        v_and_b32 v9, 511, v9
        v_mad_i32_i24 v{V_XO+n}, v9, v5, v7
        """)
        if cfg.bal: o += T(f"s_add_u32 s69, s69, s65\ns_cmp_ge_u32 s69, 512\ns_cselect_b32 s69, {OOB}, 0\ns_add_u32 s{XH+n}, s{XH+n}, s69")
    o += T("s_waitcnt lgkmcnt(0)") + srd(12, 36, 2359296)
    return o
def setup1():
    return T(f"""
    s_load_dword s7, s[58:59], 0
    s_cmp_lt_u32 s3, 2
    s_cselect_b32 s20, s42, s44
    s_cselect_b32 s21, s43, s45
    s_mov_b32 s22, 663552
    s_mov_b32 s23, 0x20000
    s_and_b32 s68, s3, 1
    s_lshl_b32 s64, s62, 1
    s_add_u32 s64, s64, s68
    s_mul_i32 s64, s64, 15
    v_add_u32 v9, s64, v{V_L}
    s_mul_i32 s64, s60, {64*1152}
    v_lshlrev_b32 v5, 7, v9
    v_add_u32 v6, s64, v5
    v_add_u32 v5, {256*1152 - 576*128}, v5
    v_cmp_gt_u32 vcc, 576, v9
    v_mov_b32 v7, {OOB}
    s_mov_b32 s100, s60
    v_cndmask_b32 v5, v5, v6, vcc
    v_cmp_gt_u32 vcc, 15, v{V_L}
    s_mov_b32 s99, s62
    s_sub_u32 s83, s79, s92
    v_cndmask_b32 v{V_PFD}, v7, v5, vcc
    """)
def setup1b():
    return T(f"""
    s_mul_i32 s35, s92, {64*72}
    s_lshl_b32 s68, s5, 5
    s_lshl_b32 s69, s66, 2
    s_add_u32 s68, s68, s69
    v_add_u32 v9, s68, v4
    v_xor_b32 v7, v{V_Q}, v8
    v_lshlrev_b32 v7, 4, v7
    v_mad_u32_u24 v{V_ABA}, v9, s67, v7
    v_xor_b32 v7, 64, v7
    v_mad_u32_u24 v{V_ABB}, v9, s67, v7
    v_add_u32 v{V_ABB}, {8*1152-1024}, v{V_ABB}
    s_lshl_b32 s60, s3, 11
    """)

def setup2():
    o = srd(8, 48, 5308416) + (lambda x: x if cfg.pf1 & 2 else [])(T(f"""
    s_lshl_b32 s68, s99, 2
    s_add_u32 s68, s68, s3
    s_mul_i32 s68, s68, 5
    v_mul_u32_u24 v5, 43, v{V_L}
    v_lshrrev_b32 v5, 8, v5
    v_mul_u32_u24 v6, 6, v5
    v_sub_u32 v6, v{V_L}, v6
    v_add_u32 v5, s68, v5
    v_lshrrev_b32 v7, 1, v6
    v_and_b32 v6, 1, v6
    s_lshl_b32 s68, s100, 1
    v_cmp_eq_u32 vcc, 2, v7
    v_add_u32 v7, s68, v7
    v_mul_u32_u24 v5, 9216, v5
    v_cndmask_b32 v7, v7, 8, vcc
    v_lshl_add_u32 v5, v6, 7, v5
    v_cmp_gt_u32 vcc, 30, v{V_L}
    v_lshl_add_u32 v5, v7, 10, v5
    v_mov_b32 v6, {OOB}
    v_cndmask_b32 v{V_PF1}, v6, v5, vcc
    """)) + srd(16, 58, WS_SIZE)
    o += T(f"""
    v_lshrrev_b32 v4, 3, v{V_L}
    s_lshl_b32 s68, s3, 4
    v_add_u32 v4, s68, v4
    v_and_b32 v5, 1, v{V_Q}
    v_lshlrev_b32 v5, 1, v5
    v_and_b32 v8, 7, v{V_L}
    v_xor_b32 v5, v5, v8
    v_lshlrev_b32 v5, 4, v5
    v_xor_b32 v6, 64, v5
    s_movk_i32 s68, 9216
    v_mad_u32_u24 v{V_A}, v4, s68, v5
    v_mad_u32_u24 v{V_B}, v4, s68, v6
    v_add_u32 v{V_B}, {8*9216-1024}, v{V_B}
    v_mad_u32_u24 v{V_W2A}, v4, s67, v5
    v_mad_u32_u24 v{V_W2B}, v4, s67, v6
    v_bfe_u32 v4, v{V_L}, 2, 2
    v_and_b32 v5, 3, v{V_L}
    v_and_b32 v6, 1, v{V_Q}
    v_lshlrev_b32 v6, 1, v6
    v_lshrrev_b32 v7, 1, v4
    v_add_u32 v6, v6, v7
    v_xor_b32 v6, s3, v6
    v_lshlrev_b32 v6, 5, v6
    v_lshl_add_u32 v6, v{V_Q}, 10, v6
    v_lshl_add_u32 v6, v4, 7, v6
    v_lshl_add_u32 v{V_TR}, v5, 3, v6
    v_add_u32 v{V_TR2}, 0x10000, v{V_TR}
    v_lshrrev_b32 v4, 1, v{V_C}
    v_xor_b32 v4, v4, v{V_Q}
    v_lshlrev_b32 v4, 4, v4
    v_lshl_add_u32 v4, v{V_C}, 7, v4
    v_add_u32 v{V_XR0}, {XB}, v4
    v_xor_b32 v{V_XR1}, 64, v{V_XR0}
    v_add_u32 v{V_WR0}, s60, v4
    v_xor_b32 v{V_WR1}, 64, v{V_WR0}
    v_mov_b32 v{V_PATCH}, 0xbf803f80
    s_lshl_b32 s68, s5, 2
    s_or_b32 s68, s68, s3
    s_cmp_eq_u32 s68, 2
    s_cselect_b32 s76, 0x00010001, 0
    s_mov_b32 s77, s76
    s_cselect_b32 s69, 1, 0
    s_lshr_b32 s70, s3, 1
    """)
    o += T(f"""
    s_cmp_eq_u32 s70, 0
    s_cselect_b32 s71, 1.0, -1.0
    v_mov_b32 v{V_SIG}, s71
    s_cmp_eq_u32 s69, 1
    s_cselect_b32 s72, 16, 0
    v_cmp_gt_u32 vcc, s72, v{V_L}
    v_mov_b32 v4, 1.0
    v_and_b32 v5, 1, v{V_L}
    v_cndmask_b32 v{V_SIG0}, v{V_SIG}, v4, vcc
    s_cmp_eq_u32 s4, 0
    s_cselect_b32 s72, 4, 0
    v_cmp_gt_u32 vcc, s72, v{V_C}
    s_cselect_b32 s80, 8, 0
    v_lshlrev_b32 v5, 31, v5
    v_cndmask_b32 v{V_SIGT0}, v{V_SIG}, 0, vcc
    v_cndmask_b32 v{V_SIG0T0}, v{V_SIG0}, 0, vcc
    v_or_b32 v{V_TAU}, v4, v5
    s_cmp_eq_u32 s69, 1
    s_cselect_b32 s80, s80, 0
    s_mov_b32 s81, 0
    """)
    o += T(f"""
    v_lshrrev_b32 v4, 2, v{V_C}
    v_and_b32 v5, 3, v{V_C}
    s_mul_i32 s68, s3, 1792
    s_add_u32 s68, s68, {ABL}
    v_and_b32 v6, 1, v4
    v_mul_u32_u24 v6, 320, v6
    v_lshrrev_b32 v7, 1, v4
    v_lshl_add_u32 v6, v7, 5, v6
    v_lshl_add_u32 v9, v{V_Q}, 3, s68
    v_add_u32 v6, v6, v9
    v_add_u32 v7, 640, v6
    v_add_u32 v8, 1344, v9
    v_cmp_eq_u32 vcc, 1, v5
    v_add_u32 v9, 1280, v9
    s_lshl_b32 s71, s70, 1
    v_cndmask_b32 v{V_ABS}, v8, v7, vcc
    v_cmp_eq_u32 vcc, 0, v5
    s_add_u32 s71, s71, 1
    s_nop 0
    v_cndmask_b32 v{V_ABS}, v{V_ABS}, v6, vcc
    v_cndmask_b32 v8, v8, v6, vcc
    v_cmp_eq_u32 vcc, s71, v5
    s_nop 1
    v_cndmask_b32 v8, v8, v7, vcc
    v_cmp_eq_u32 vcc, 2, v5
    s_nop 1
    v_cndmask_b32 v8, v8, v9, vcc
    v_cmp_gt_u32 vcc, s72, v{V_C}
    s_cmp_eq_u32 s4, 25
    s_cselect_b32 s75, {OOB}, 0
    v_cndmask_b32 v{V_ABS0}, v{V_ABS}, v8, vcc
    s_mul_i32 s68, s5, 26
    s_add_u32 s68, s68, s4
    s_lshl_b32 s68, s68, 7
    s_add_u32 s68, s68, {WS_ABFLAG}
    v_cmp_gt_u32 vcc, 32, v0
    v_mov_b32 v8, {OOB}
    v_lshl_add_u32 v9, v0, 2, s68
    v_cndmask_b32 v{V_ABFL}, v8, v9, vcc
    v_cmp_eq_u32 vcc, 0, v{V_L}
    v_lshrrev_b32 v4, 3, v{V_L}
    v_mul_u32_u24 v4, {SL}, v4
    v_and_b32 v5, 7, v{V_L}
    v_lshl_add_u32 v{ABP+14}, v5, 4, v4
    v_cndmask_b32 v{V_FL}, v8, 0, vcc
    """)
    o += T(f"""
    s_mul_i32 s73, s4, {cfg.rot1}
    s_and_b32 s73, s73, {cfg.rmask}
    s_mov_b32 s101, s73
    s_lshl_b32 s73, s73, 7
    s_lshl_b32 s74, s5, 10
    s_add_u32 s74, s74, s34
    s_add_u32 s62, s73, s74
    s_mul_i32 s6, s4, {cfg.rot2}
    s_add_u32 s6, s6, s5
    s_mul_i32 s72, s6, 7282
    s_lshr_b32 s72, s72, 16
    s_mul_i32 s72, s72, 9
    s_sub_u32 s6, s6, s72
    s_add_u32 s72, s6, 1
    s_cmp_eq_u32 s72, 9
    s_cselect_b32 s72, 0, s72
    s_mul_i32 s63, s4, 9
    s_add_u32 s63, s63, s72
    s_lshl_b32 s72, s72, 7
    s_mul_i32 s78, s63, {8*SL}
    s_mul_i32 s63, s3, {WSL}
    s_add_u32 s78, s78, s63
    s_add_u32 s78, s78, {WS_PART}
    s_mov_b32 s63, 6
    s_waitcnt lgkmcnt(0)
    s_add_u32 s7, s7, 0x9e3779b9
    v_mov_b32 v{V_TAG}, s7
    v_not_b32 v{ABP+10}, s7
    v_not_b32 v{ABP+11}, s7
    v_not_b32 v{ABP+12}, s7
    v_not_b32 v{ABP+13}, s7
    """)
    return o

def setup3():
    o = srd(24, 54, 2359296) + srd(28, 50, 5308416) + T(f"""
    v_add_u32 v{V_W2B}, {8*1152-1024}, v{V_W2B}
    s_and_b32 s68, s3, 1
    s_lshl_b32 s68, s68, 9
    s_lshr_b32 s70, s3, 1
    s_mul_i32 s71, s70, 5120
    s_add_u32 s68, s68, s71
    s_add_u32 s68, s68, {HB}
    v_lshrrev_b32 v4, 1, v{V_Q}
    v_lshl_add_u32 v4, v4, 4, v{V_C}
    v_lshlrev_b32 v4, 4, v4
    v_and_b32 v5, 1, v{V_Q}
    v_lshl_add_u32 v4, v5, 3, v4
    v_add_u32 v{V_HW}, s68, v4
    v_lshlrev_b32 v{V_P16}, 4, v{V_L}
    v_lshlrev_b32 v{V_P8}, 3, v{V_L}
    v_add_u32 v{V_HR}, {HB}, v{V_P16}
    v_add_u32 v{V_HR2}, {HB+40960}, v{V_P16}
    """)
    o += T("s_lshl_b32 s99, s5, 3")
    if cfg.w0: o.append([I("s_cmp_eq_u32 s3, 0"), I("s_cselect_b32 s33, 6, -1")])
    if cfg.krot:
        o += T(f"""
        s_mul_i32 s94, s4, 43
        s_lshr_b32 s94, s94, 8
        s_mul_i32 s94, s94, 6
        s_sub_u32 s94, s4, s94
        s_mul_i32 s100, s94, 10240
        v_mov_b32 v{V_PF2}, v{V_HW}
        v_add_u32 v{V_HW}, s100, v{V_HW}
        s_sub_u32 s95, s101, s94
        """)
    for i in range(8):
        if cfg.krot and i < 6:
            o.append([I(f"s_cmp_gt_u32 s94, {i}"), I(f"s_cselect_b32 s{64+i}, {i+6}, {i}"), I(f"s_add_u32 s{64+i}, s{64+i}, s95")])
        else: o.append(I(f"s_add_u32 s{64+i}, s101, {i}"))
        o += T(f"""
        s_and_b32 s{64+i}, s{64+i}, 7
        s_add_u32 s{64+i}, s{64+i}, s99
        s_mul_i32 s{64+i}, s{64+i}, {64*1152}
        """)
    return o

def poll(lab, vaddr, nl):
    return T(f"""
    s_mov_b32 s63, {SPIN}
    v_cmp_le_u32 s[80:81], {nl}, v{V_L}
    {lab}:
    s_sleep {cfg.slp}
    buffer_load_dword v4, v{vaddr}, s[16:19], 0 offen sc1
    s_sub_u32 s63, s63, 1
    s_waitcnt vmcnt(0)
    v_cmp_eq_u32 vcc, s7, v4
    s_cmp_eq_u32 s63, 0
    s_cbranch_scc1 {lab}_out
    s_or_b64 vcc, vcc, s[80:81]
    s_cmp_eq_u64 vcc, -1
    s_cbranch_scc0 {lab}
    {lab}_out:
    """)

def ts_dump(fn=0):
    if not cfg.ts: return []
    if cfg.ts >= 100:
        if fn != (cfg.ts >= 200): return []
        return T("s_waitcnt vmcnt(0)") + TS(8) + (T(f"s_and_b32 s68, s2, 7\ns_cmp_lg_u32 s68, {cfg.hx}\ns_cbranch_scc1 L_end") if cfg.hx >= 0 else []) + T(f"""
        L_hold{fn}:
        s_memrealtime s[100:101]
        s_waitcnt lgkmcnt(0)
        s_sub_u32 s100, s100, s{tsr(cfg.ts % 100)}
        s_cmp_lt_u32 s100, 3000
        s_cbranch_scc1 L_hold{fn}
        """)
    if cfg.ts >= 10:
        return T(f"""
        L_hold{fn}:
        s_memrealtime s[100:101]
        s_waitcnt lgkmcnt(0)
        s_sub_u32 s100, s100, s84
        s_cmp_lt_u32 s100, {cfg.ts*100}
        s_cbranch_scc1 L_hold{fn}
        """)
    o = T("s_waitcnt vmcnt(0)") + TS(8) + T("s_waitcnt lgkmcnt(0)")
    for k in range(9): o.append(I(f"v_mov_b32 v{16+k}, s{tsr(k)}"))
    o += T(f"""
    s_getreg_b32 s68, hwreg(HW_REG_XCC_ID)
    v_mov_b32 v25, s68
    v_mov_b32 v26, 0
    v_mov_b32 v27, 0
    s_lshl_b32 s68, s2, 2
    s_add_u32 s68, s68, s3
    s_lshl_b32 s68, s68, 6
    s_add_u32 s68, s68, {WS_TS}
    v_cmp_eq_u32 vcc, 0, v{V_L}
    v_mov_b32 v4, {OOB}
    s_nop 0
    v_cndmask_b32 v4, v4, 0, vcc
    buffer_store_dwordx4 v[16:19], v4, s[16:19], s68 offen
    buffer_store_dwordx4 v[20:23], v4, s[16:19], s68 offen offset:16
    buffer_store_dwordx4 v[24:27], v4, s[16:19], s68 offen offset:32
    """)
    if cfg.ts == 2 and not fn:
        o += T(f"""
        v_lshlrev_b32 v5, 2, v{V_L}
        v_cmp_gt_u32 vcc, 16, v{V_L}
        v_mov_b32 v4, {OOB}
        s_lshl_b32 s69, s68, 2
        s_sub_u32 s69, s69, {4*WS_TS - WS_TS - 0x300000}
        buffer_store_dword v131, v5, s[16:19], s69 offen
        s_add_u32 s68, s68, 0x100000
        v_cndmask_b32 v4, v4, v5, vcc
        buffer_store_dword v130, v4, s[16:19], s68 offen
        s_add_u32 s68, s68, 0x100000
        buffer_store_dword v131, v4, s[16:19], s68 offen
        """)
    if cfg.ts != 3: return o
    o += T(f"""
    s_waitcnt vmcnt(0)
    v_not_b32 v16, v16
    v_cmp_eq_u32 vcc, 0, v0
    v_mov_b32 v4, {OOB}
    s_sleep 127
    s_sleep 127
    v_cndmask_b32 v4, v4, 0, vcc
    """) + srd(28, 56, 256)
    o.append(I("buffer_atomic_umax v16, v4, s[28:31], 0 offen"))
    for k in range(1, 9 if not fn else 8): o.append(I(f"buffer_atomic_umax v{16+k}, v4, s[28:31], 0 offen offset:{4*(k+8*fn)}"))
    return o

from fnet import fnet_code

def AL():
    if not cfg.al: return []
    return [I(f".p2alignl {(6, 6, 3, 5)[cfg.al - 1]}, 0xbf800000")] + ([I("s_nop 0")] if cfg.al == 2 else [])
def build():
    def dyn(hasx22, ep):
        d = prologue(True)
        d += ab_pass(hasx22)
        d += TS(2)
        for p in range(8):
            for g in range(6): d += g1_group(p, g, True)
        d += TS(4)
        d += g2_pass0()
        for p in range(1, 8):
            for g in range(4): d += g2_group(p, g, ep)
        d += g2_last()
        return d
    ds = [dyn(True, (3, 4, 5, 6, 7)), dyn(False, (3, 4, 5, 6, 7))] if cfg.ep2 == 2 else [dyn(True, (5, 7)), dyn(False, (6, 7))] if cfg.ep2 else [dyn(True, (5,)), dyn(False, (6,)), dyn(True, (7,))]
    rs = [resolve(d) for d in ds]
    mn = lambda l: None if all(x is None for x in l) else min(x for x in l if x is not None)
    res = {k: (mn([r[k][0] for r in rs]), mn([r[k][1] for r in rs])) for k in rs[0]}
    txt = lambda l: [wait_text(res, it.site) if it.kind == "wait" else it.text for it in l]
    for d in ds:
        check_lds(d, res); check_loads(txt(d)); check_hazards(txt(d)); check_scc(txt(d))
    st = prologue()
    st += ab_pass(True)
    st += TS(2)
    for g in range(6): st += g1_group(0, g)
    st += TS(3) + AL() + [I("L_g1:")]
    for g in range(6): st += g1_group(1, g)
    st.append(I("s_cbranch_scc1 L_g1"))
    for g in range(6): st += g1_group(7, g)
    st += TS(4)
    st += g2_pass0() + TS(5) + AL() + [I("L_g2:")]
    for g in range(4): st += g2_group(1, g)
    st.append(I("s_cbranch_scc1 L_g2"))
    st += TS(6)
    st += g2_last() + ts_dump() + [I("s_endpgm")] + (([I("L_fs:")] + fs_block() + [I("s_branch L_fs_ret")]) if cfg.fse else []) + [I("L_once1:")] + ab_once(1) + [I("s_branch L_once1_ret")] + (spin("L_sp1", "s34") if cfg.inloop else (([I("L_ep0:")] + ep_block(0) + [I("s_branch L_ep0_ret"), I("L_ep1:")] + ep_block(1) + [I("s_branch L_ep1_ret")] + [I(x.text.replace(f"v{V_POLL},", f"v{V_POLLE},")) for x in spin("L_sp1", "s79" if cfg.ep2 == 2 else None)]) if cfg.early else [])) + spin("L_sp2") + (([I(x.text.replace("vcc_lo", "s80").replace("vcc", "s[80:81]")) for x in spin("L_sp3", "s93" if cfg.fse else "s70")] + (spin("L_sp4", "s95" if cfg.fse else "s71") if cfg.chk7 == 2 else spin7())) if cfg.chk7 else spin("L_sp3"))
    fn, idle = fnet_code(sys.modules[__name__])
    check_loads([it.text for it in fn]); check_hazards([it.text for it in fn]); check_scc([it.text for it in fn])
    st += fn + ts_dump(1) + [I("L_end:"), I("s_endpgm")] + idle
    if cfg.trace:
        ns = []; k = 0
        for it in st:
            ns.append(it)
            if it.kind == "wait" and it.site and re.match(r"(ab_rw\d|ab_r\d|ab_x\d|ab_b0|g1_r\d[az]|g20_r\d|g2z_r\d|g2z_st|g2z_s0|fin_)", it.site):
                ns += [I("s_waitcnt lgkmcnt(0)"), I(f"v_writelane_b32 v131, s32, {k}"), I("s_memtime s[32:33]")]; k += 1
                print(k, it.site, file=sys.stderr, end="; ")
            if it.text == "L_noepoch:": ns += [I("s_waitcnt lgkmcnt(0)"), I(f"v_writelane_b32 v131, s32, {k}")]
        st = ns
    if cfg.strip:
        a = [i for i, it in enumerate(st) if it.text == "L_g1:"][0]; b = [i for i, it in enumerate(st) if it.text == "s_cbranch_scc1 L_g2"][0]
        def drop(it):
            t = it.text or ""
            if cfg.strip & 1 and t.endswith(" lds"): return True
            if cfg.strip & 2 and (t.startswith(("v_cvt_pk", "v_pk_max", "ds_write")) or "s78 offen" in t): return True
            if cfg.strip & 4 and t == "s_barrier": return True
            if cfg.strip & 8 and it.kind == "wait" and it.need_vm: return True
            if cfg.strip & 16 and t.startswith("ds_read_b64_tr"): return True
            if cfg.strip & 32 and (t.startswith("ds_write") or "s78 offen" in t): return True
            if cfg.strip & 64 and t.startswith(("v_cvt_pk", "v_pk_max")): return True
            if cfg.strip & 128 and t.startswith("buffer_store_dword "): return True
            if cfg.strip & 1024 and it.kind == "wait" and it.need_lg and it.site not in ("g1_r2", "g2_r1"): return True
            if cfg.strip & 256 and "s78 offen" in t: it.text = t.replace(" sc1", "")
            if cfg.strip & 512 and "s78 offen" in t: it.text = t.replace(" sc1", " sc1 nt")
            return False
        st = st[:a] + [it for it in st[a:b] if not drop(it)] + st[b:]
    head = open("gated_mix__spectral_fnet__dense_activation_relu__prompt.s.ref").read().split("; Override launch")[0]
    out = head + "; @launch grid=(256,1,1) block=(256,1,1) lds=163840\n"
    out += f'.amdgcn_target "amdgcn-amd-amdhsa--gfx950"\n.text\n.globl {NAME}\n.p2align 8\n.type {NAME},@function\n{NAME}:\n'
    out += "\n".join(("" if (x.endswith(":") or x.startswith(".")) else "    ") + x for x in txt(st)) + "\n"
    out += f""".section .rodata,"a"
.p2align 6
.amdhsa_kernel {NAME}
  .amdhsa_next_free_vgpr 512
  .amdhsa_next_free_sgpr 102
  .amdhsa_accum_offset 256
  .amdhsa_group_segment_fixed_size 0
  .amdhsa_kernarg_size 96
  .amdhsa_user_sgpr_count 2
  .amdhsa_user_sgpr_kernarg_segment_ptr 1
  .amdhsa_system_sgpr_workgroup_id_x 1
.end_amdhsa_kernel
"""
    return out, res

if __name__ == "__main__":
    sys.modules["gen"] = sys.modules[__name__]
    outp = sys.argv[1]
    for a in sys.argv[2:]:
        k, v = a.split("="); setattr(cfg, k, int(v))
    WSL = cfg.wsl; SL = 4 * WSL
    out, res = build()
    open(outp, "w").write(out)
    print(res)
```

```python
import sys
from asmlib import *
NAME = "gated_mix__spectral_fnet__dense_activation_relu__prompt_kernel"
WS_PF, WS_ABFLAG, WS_YFLAG, WS_GT, WS_XS = 0x20000, 0x20000, 0xA000, 0x10000, 0x13000
WS_ABF, WS_YT, WS_PART, WS_TS, WS_SIZE = 0x100000, 0x280000, 0x400000, 0x2000000, 0x3000000
OOB = 0x40000000
WSL, SL = 3584, 14336
XB, HB = 71680, 81920
SPIN = 1 << 20

class Cfg:
    ts = False
    L2 = 12
    rot1 = 3
    chain = 0
    strip = 0
    pp = 0
    fse = 0
    st1 = 0
    s2g = 19
    fg1 = 9
    fgg = 1
    w0 = 0
    rmask = 7
    r8 = 0
    krot = 0
    pfc2 = 0
    al = 0
    wsl = 3584
    hx = -1
    slp2 = 2
    g20v = 0
    pfc = 1
    pfo = 0
    gl = 0
    bal = 1
    p0v = 1
    ep2 = 1
    epg = 5
    chk7 = 2
    s6g = 3
    flg = 4
    u0 = 7
    npre = 2
    abv = 0
    early = 3
    epm = 3
    rot2 = 2
    tag7 = 0
    stg = 2
    rdp = 0
    hw = 1
    hg = 9
    ne = 6
    inloop = 0
    osc = 1
    pt = 1
    trace = 0
    slp = 16
    map = 2
    pf1 = 1
    rev = 1
    pf2 = 0
    noab = 0
    pfs = 3
    warmfl = 1
    stspread = 1
    fake = 0
cfg = Cfg()

ACC = lambda t: f"v[{16+4*t}:{19+4*t}]"
EE = lambda t: f"v[{36+4*t}:{39+4*t}]"
E0 = 36
FB = lambda b: 56 + 4 * b
PK = 88
def act(i):
    return f"a[{4*i}:{4*i+3}]" if i < 64 else f"v[{152+4*(i-64)}:{155+4*(i-64)}]"
V_A, V_B = 10, 11
V_W2A, V_W2B = 12, 13
V_TR, V_TR2 = 14, 15
V_XO = 100
V_ABA, V_ABB = 105, 106
V_XR0, V_XR1 = 107, 108
V_WR0, V_WR1 = 109, 110
V_PATCH = 111
V_HW = 112
V_HR, V_HR2 = 113, 114
V_SIG, V_SIG0, V_SIGT0, V_SIG0T0, V_TAU = 115, 116, 117, 118, 119
V_ABS, V_ABS0 = 120, 121
V_ABFL = 122
V_TAG = 123
V_P16, V_P8 = 124, 125
V_FL = 126
V_POLL = 127
V_PFD, V_PF1, V_PF2, V_DUM = 132, 133, 134, 135
XH = 94
V_L, V_C, V_Q = 1, 2, 3

def mfma(d, a, b, c): return I(f"v_mfma_f32_16x16x32_bf16 {d}, {a}, {b}, {c}")
def place(ms, side):
    gaps = [[] for _ in ms]
    for g, it in side:
        gaps[g] += it if isinstance(it, list) else [it]
    out = []
    for m, g in zip(ms, gaps):
        out.append(m); out += g
    return out
def spread(items, gaps):
    n = len(items); k = len(gaps)
    return [(gaps[i * k // n], it) for i, it in enumerate(items)]

tsn = [0]
def tsr(k): return 84 + 2 * k if k < 4 else 36 + 2 * (k - 4)
def TS(k):
    if not cfg.ts: return []
    return [I(f"{'s_memtime' if cfg.ts == 2 else 's_memrealtime'} s[{tsr(k)}:{tsr(k)+1}]")]

def wslot(ph, p, s):
    if ph == 2: return ((p & 1) * 16 + s) * 4096
    return s * 4096
def wdma(ph, p, s):
    P, b = s >> 1, s & 1
    pre = []
    if b == 0:
        pre.append(I(f"s_add_u32 m0, s60, {P*8192}"))
        pre.append(I(f"s_add_u32 s61, s62, s{64+P}" if ph == 2 else ("s_add_u32 s61, s61, s35" if P else "s_mov_b32 s61, s62")))
    lo = wslot(ph, p, 2 * P)
    v, sr = (V_W2A, "s[28:31]") if ph == 2 else (V_A, "s[8:11]")
    return pre, VM(f"buffer_load_dwordx4 v{v+b}, {sr}, s61 offen offset:{1024*b} lds", ("W", ph, p, s), wr=(lo, lo + 8192))
def cover(ph, p, lo, hi): return [("W", ph, p, s) for s in range(lo, hi)]
def nf(ph): return 8 if ph == 2 else 6
def trr(ph, p, s):
    b = FB(s % nf(ph)); o = s * 4096; vr = V_TR
    if o >= 65536: o -= 65536; vr = V_TR2
    lo = wslot(ph, p, s)
    return [LG(f"ds_read_b64_tr_b16 v[{b+2*h}:{b+2*h+1}], v{vr} offset:{o+512*h}", ("R", ph, p, s, h), rd=(lo, lo + 4096)) for h in range(2)]
def group_mfmas(ph, steps, last):
    ms = []
    order = [(t, s) for t in range(5) for s in steps] if cfg.chain else [(t, s) for s in steps for t in range(5)]
    for t, s in order:
        if True:
            d = EE(t) if s == last else ACC(t)
            c = "0" if s == 0 else ACC(t)
            b = FB(s % nf(ph)); w = f"v[{b}:{b+3}]"
            ms.append(mfma(d, act(s * 5 + t), w, c) if ph == 2 else mfma(d, w, act(s * 5 + t), c))
    return ms

def xdma(n):
    pre = [I("s_add_u32 s79, s79, s93")] if (n % 5 == 0 and n) else []
    return pre + [I(f"s_add_u32 m0, s82, {n*4096}"), I(f"s_add_u32 s61, s79, s{XH+n%5}"),
            VM(f"buffer_load_dwordx4 v{V_XO+n%5}, s[12:15], s61 offen lds", ("X", n), wr=(XB + (n // 5) * 20480, min(XB + (n // 5 + 1) * 20480, 163840)))]
def abdma(P):
    lo = P * 8192
    return [I(f"s_add_u32 m0, s60, {lo}"), I("s_add_u32 s83, s83, s92"),
            VM(f"buffer_load_dwordx4 v{V_ABA}, s[20:23], s83 offen lds", ("WAB", P, 0), wr=(lo, lo + 8192)),
            VM(f"buffer_load_dwordx4 v{V_ABB}, s[20:23], s83 offen offset:1024 lds", ("WAB", P, 1), wr=(lo, lo + 8192))]
def wreads(P):
    out = []
    if P == 4: out += [I(f"v_add_u32 v{V_WR0}, 32768, v{V_WR0}"), I(f"v_add_u32 v{V_WR1}, 32768, v{V_WR1}")]
    Pp = P - 4 if P >= 4 else P
    for h in range(2):
        s = 2 * P + h; b = FB(s % 6)
        out.append(LG(f"ds_read_b128 v[{b}:{b+3}], v{V_WR0+h} offset:{Pp*8192}", ("RAB", s)))
    return out
def xreads(P):
    out = []
    if P == 4: out += [I(f"v_add_u32 v{V_XR0}, 40960, v{V_XR0}"), I(f"v_add_u32 v{V_XR1}, 40960, v{V_XR1}")]
    Pp = P - 4 if P >= 4 else P
    for t in range(5):
        for h in range(2):
            s = 2 * P + h; lo = XB + (P * 10 + 2 * t) * 1024
            out.append(LG(f"ds_read_b128 {act(s*5+t)}, v{V_XR0+h} offset:{(Pp*10+2*t)*1024}", ("RX", s, t), rd=(lo, lo + 2048)))
    return out
def patch(P):
    return [I(f"v_cndmask_b32 v{FB(s%6)+e}, v{FB(s%6)+e}, v{V_PATCH}, s[76:77]") for s in (2 * P, 2 * P + 1) for e in range(4)]
def xg(g, lastx): return [("X", n) for n in range(5 * g, min(5 * g + 5, lastx + 1))]

def cut(su, n):
    while su[n].text.startswith(("s_cselect", "v_c")) or su[n - 1].text.startswith(("s_cmp", "s_cselect", "v_c")): n += 1
    return n
def ab_pass(hasx22):
    lastx = 22 if hasx22 else 21
    o = []
    pf = lambda v, sr, off, tag: [VM(f"buffer_load_dword v{V_DUM}, v{v}, {sr}, 0 offen offset:{off}", tag)]
    Xr = lambda a, b: sum((xdma(n) for n in range(a, b)), [])
    TP = lambda n, vm=None: [WAIT(f'ab_x9{n}', vm=vm)] if cfg.trace else []
    if cfg.abv == 2:
        o += Xr(0, 5) + setup1() + setup1b() + abdma(0) + abdma(1)
        if cfg.pf1 & 1: o += pf(V_PFD, "s[20:23]", 0, "PFD")
        o += setup2()
        if cfg.pt & 1: o.append(VM(f"buffer_load_dword v{V_DUM}, v{V_ABFL}, s[16:19], 0 offen sc1", "PT0"))
        return o + ab_tail2(hasx22, Xr)
    o += TP(0) + Xr(0, 5) + setup1()
    if cfg.pf1 & 1: o += pf(V_PFD, "s[20:23]", 0, "PFD")
    o += Xr(5, 8) + TP(1) + setup1b() + setup2() + TP(2)
    if cfg.trace == 2: o += TP(3, [('X', 0)]) + TP(4, [('X', 4)]) + TP(5, [('X', 7)])
    if cfg.pf1 & 2: o += pf(V_PF1, "s[8:11]", 0, "PFA")
    if cfg.pt & 1: o.append(VM(f"buffer_load_dword v{V_DUM}, v{V_ABFL}, s[16:19], 0 offen sc1", "PT0"))
    if cfg.pt & 8:
        o += srd(24, 54, 2359296) + srd(28, 50, 5308416) + T(f"""
        s_lshl_b32 s68, s2, 7
        v_lshl_add_u32 v4, v0, 16, s68
        """) + [VM(f"buffer_load_dword v{V_DUM}, v4, s[24:27], 0 offen", "PT2"), VM(f"buffer_load_dword v{V_DUM}, v4, s[28:31], 0 offen", "PT3")]
    if cfg.pt & 2: o.append(VM(f"buffer_store_dword v{ABP+10}, v{V_ABFL}, s[16:19], 0 offen sc1", "PT1"))
    if cfg.pt & 4: o.append(VM(f"buffer_store_dwordx4 v[{ABP+10}:{ABP+13}], v{ABP+14}, s[16:19], s78 offen offset:2560 sc1", "WARMFL"))
    if cfg.abv == 1: return o + ab_tail1(hasx22, Xr)
    o += Xr(8, 17)
    o += [WAIT("ab_b0", vm=xg(0, lastx)), BAR()] + TS(1) + xreads(0) + Xr(17, 20) + xreads(1)
    o += xdma(20) + xdma(21) + [I("s_cmp_lt_u32 s3, 2"), I("s_cbranch_scc0 L_nox22")] + (xdma(22) if hasx22 else []) + [I("L_nox22:")]
    o += [WAIT("ab_x1", vm=xg(1, lastx)), BAR()] + abdma(0) + xreads(2) + abdma(1) + abdma(2) + xreads(3) + abdma(3) + abdma(4)
    o += [WAIT("ab_x4", vm=xg(4, lastx) + [("WAB", 0, 1)], lg=[("RX", 1, 0)]), BAR()] + wreads(0) + abdma(5)
    o.append(WAIT("ab_r0", lg=[("RAB", 1)])); o += patch(0); o.append(I("s_nop 1"))
    for g in range(9):
        ms = group_mfmas(0, (2 * g, 2 * g + 1), 17)
        side = []
        if g < 8:
            side.append((0, WAIT(f"ab_w{g}", vm=[("WAB", g + 1, 1)])))
            side += spread(wreads(g + 1), [0, 1])
            if g < 5: side += spread(xreads(g + 4), [1, 2, 3, 4, 5, 7, 8, 9])
        else:
            side.append((0, [WAIT("ab_b8", vm=cover(1, 0, 0, 6)), BAR()]))
            side += spread(trr(1, 0, 0) + trr(1, 0, 1) + trr(1, 0, 2), [1, 2, 3, 4, 5, 6])
        d = []
        if g == 0: d = [abdma(6)[:3], abdma(6)[3:], abdma(7)[:3], abdma(7)[3:]]
        if g == 1: d = [abdma(8)[:3], abdma(8)[3:]]
        sl = {0: (), 1: (0, 1), 2: (2, 3, 4), 3: (5, 6, 7), 4: (8, 9), 5: (10, 11), 6: (12, 13), 7: (14,), 8: ()}[g]
        for s in sl:
            pre, dm = wdma(1, 0, s); dm.wr = None
            d.append(pre + [dm])
        if d: side += spread(d, [2, 3, 4, 5])
        if g in (5, 6, 7): side += list(zip([1, 3, 5, 9, 9], ab_gaddr()[(g - 5) * 5:(g - 4) * 5]))
        if g < 8:
            side.append((6, WAIT(f"ab_rw{g}", lg=[("RAB", 2 * g + 3)])))
            side += spread(patch(g + 1), [6, 7, 8])
            side.append((9, I("s_nop 0")))
        else: side.append((9, WAIT(f"ab_r9", lg="all")))
        o += place(ms, side)
    return o

def ab_tail2(hasx22, Xr):
    lastx = 22 if hasx22 else 21
    x22 = [I("s_cmp_lt_u32 s3, 2"), I("s_cbranch_scc0 L_nox22")] + (xdma(22) if hasx22 else []) + [I("L_nox22:")]
    sp = lambda l: [l[:3], l[3:]]
    X = lambda a, b: [xdma(n) for n in range(a, b)]
    q = X(5, 10) + sp(abdma(2)) + sp(abdma(3)) + X(10, 15) + sp(abdma(4)) + sp(abdma(5)) + X(15, 20) + sp(abdma(6)) + sp(abdma(7)) + X(20, 22) + [x22] + sp(abdma(8))
    for s in range(15):
        pre, dm = wdma(1, 0, s); dm.wr = None
        q.append(pre + [dm])
    u0 = cfg.u0
    o = sum(q[:u0], [])
    o += [WAIT("ab_b0", vm=xg(0, lastx) + [("WAB", 0, 1)]), BAR()] + TS(1) + wreads(0) + xreads(0) + sum(q[u0:u0 + 4], [])
    o.append(WAIT("ab_r0", lg="all")); o += patch(0); o.append(I("s_nop 1"))
    rest = q[u0 + 4:]
    per = [len(rest) * (g + 1) // 8 for g in range(8)]
    for g in range(9):
        ms = group_mfmas(0, (2 * g, 2 * g + 1), 17)
        side = []
        if g < 8:
            need = [("WAB", g + 1, 1)]
            if g % 2: side.append((0, [WAIT(f"ab_x{g}", vm=need + xg((g + 1) // 2, lastx)), BAR()]))
            else: side.append((0, WAIT(f"ab_w{g}", vm=need)))
            side += spread(wreads(g + 1), [0, 0]) + spread(xreads(g + 1), [0, 1, 1, 2, 2, 3, 4])
            side += spread(rest[(per[g - 1] if g else 0):per[g]], [3, 4, 5, 6, 7, 8])
            side.append((6, WAIT(f"ab_rw{g}", lg=[("RAB", 2 * g + 3)])))
            side += spread(patch(g + 1), [6, 7, 8])
        else:
            side.append((0, [WAIT("ab_b8", vm=cover(1, 0, 0, 6)), BAR()]))
            side += spread(trr(1, 0, 0) + trr(1, 0, 1) + trr(1, 0, 2), [1, 2, 3, 4, 5, 6])
        if g in (6, 7, 8): side += list(zip([5, 5, 9, 9, 9] if g < 8 else [2, 4, 7, 8, 8], ab_gaddr()[(g - 6) * 5:(g - 5) * 5]))
        side.append((9, WAIT(f"ab_r{g+1}", lg="all")))
        o += place(ms, side)
    return o
def ab_tail1(hasx22, Xr):
    lastx = 22 if hasx22 else 21
    x22 = [I("s_cmp_lt_u32 s3, 2"), I("s_cbranch_scc0 L_nox22")] + (xdma(22) if hasx22 else []) + [I("L_nox22:")]
    o = Xr(8, 10) + abdma(0) + abdma(1) + Xr(10, 15)
    o += [WAIT("ab_b0", vm=xg(0, lastx)), BAR()] + TS(1) + xreads(0) + abdma(2) + abdma(3) + xreads(1) + Xr(15, 18)
    o += [WAIT("ab_x1", vm=xg(1, lastx) + [("WAB", 0, 1)], lg=[("RX", 1, 0)]), BAR()] + wreads(0) + Xr(18, 20)
    o.append(WAIT("ab_r0", lg=[("RAB", 1)])); o += patch(0); o.append(I("s_nop 1"))
    sp = lambda l: [l[:3], l[3:]]
    dl = {0: sp(abdma(4)) + sp(abdma(5)), 1: [xdma(20), xdma(21), x22] + sp(abdma(6)), 2: sp(abdma(7)) + sp(abdma(8))}
    sl = {3: (0, 1, 2, 3), 4: (4, 5, 6, 7), 5: (8, 9, 10), 6: (11, 12, 13), 7: (14,)}
    for g in range(9):
        ms = group_mfmas(0, (2 * g, 2 * g + 1), 17)
        side = []
        if g < 8:
            need = [("WAB", g + 1, 1)]
            if g in (2, 4, 6): side.append((0, [WAIT(f"ab_x{g}", vm=need + xg(g // 2 + 1, lastx)), BAR()]))
            else: side.append((0, WAIT(f"ab_w{g}", vm=need)))
            side += spread(wreads(g + 1), [0, 1])
            if g < 7: side += spread(xreads(g + 2), [1, 2, 3, 4, 5, 7, 8, 9])
        else:
            side.append((0, [WAIT("ab_b8", vm=cover(1, 0, 0, 6)), BAR()]))
            side += spread(trr(1, 0, 0) + trr(1, 0, 1) + trr(1, 0, 2), [1, 2, 3, 4, 5, 6])
        d = list(dl.get(g, []))
        for s in sl.get(g, ()):
            pre, dm = wdma(1, 0, s); dm.wr = None
            d.append(pre + [dm])
        if d: side += spread(d, [2, 3, 4, 5])
        if g in (6, 7, 8): side += list(zip([1, 3, 5, 9, 9] if g < 8 else [2, 4, 7, 8, 8], ab_gaddr()[(g - 6) * 5:(g - 5) * 5]))
        if g < 8:
            side.append((6, WAIT(f"ab_rw{g}", lg=[("RAB", 2 * g + 3)])))
            side += spread(patch(g + 1), [6, 7, 8])
            side.append((9, I("s_nop 0")))
        else: side.append((9, WAIT(f"ab_r9", lg="all")))
        o += place(ms, side)
    return o

ABP = 136
OUTL = 135168
ABL = 73728
V_ABR, V_ABG0, V_ABG1 = 100, 101, 102
def ab_epilogue():
    o = []
    for t in range(5):
        r = E0 + 4 * t
        sg = (V_SIG0T0, V_SIGT0) if t == 0 else (V_SIG0, V_SIG)
        for e in range(4): o.append(I(f"v_fmac_f32_dpp v{r+e}, v{r+e}, v{sg[0] if e == 0 else sg[1]} quad_perm:[3,2,1,0] row_mask:0xf bank_mask:0xf"))
        for e in range(4): o.append(I(f"v_fmac_f32_dpp v{r+e}, v{r+e}, v{V_TAU} quad_perm:[1,0,3,2] row_mask:0xf bank_mask:0xf"))
        if t == 0:
            o.append(I(f"v_mov_b32_dpp v{PK+10}, v{r} quad_perm:[0,1,2,1] row_mask:0xf bank_mask:0xf"))
            o.append(I(f"v_cndmask_b32 v{r}, v{r}, v{PK+10}, s[80:81]"))
        o.append(I(f"v_cvt_pk_bf16_f32 v{ABP+2*t}, v{r}, v{r+1}"))
        o.append(I(f"v_cvt_pk_bf16_f32 v{ABP+2*t+1}, v{r+2}, v{r+3}"))
    return o
def ab_gaddr():
    A = lambda x: T(x)
    return [A(f"s_lshr_b32 s68, s5, 1\ns_lshl_b32 s68, s68, 17\ns_lshr_b32 s70, s3, 1"),
            A(f"s_lshl_b32 s71, s70, 16\ns_add_u32 s68, s68, s71\ns_mul_i32 s71, s4, 320"),
            A(f"s_add_u32 s68, s68, s71\ns_and_b32 s71, s5, 1\ns_lshl_b32 s71, s71, 14"),
            A(f"s_add_u32 s68, s68, s71\ns_and_b32 s71, s3, 1\ns_lshl_b32 s69, s71, 13"),
            A(f"s_add_u32 s68, s68, s69\ns_add_u32 s68, s68, {WS_ABF}\ns_lshl_b32 s71, s71, 5"),
            A(f"s_lshl_b32 s69, s5, 6\ns_add_u32 s69, s69, s71\ns_lshl_b32 s70, s70, 10"),
            A(f"s_add_u32 s69, s69, s70\ns_add_u32 s69, s69, {WS_XS - 320}\nv_mul_u32_u24 v4, 13, v{V_L}"),
            A(f"v_lshrrev_b32 v4, 8, v4\nv_mul_u32_u24 v5, 20, v4\nv_sub_u32 v5, v{V_L}, v5"),
            A(f"v_and_b32 v6, 1, v4\nv_lshlrev_b32 v6, 15, v6\nv_lshrrev_b32 v7, 1, v4\nv_mul_u32_u24 v7, {5*131072}, v7"),
            A(f"v_lshl_add_u32 v6, v5, 4, v6\nv_add3_u32 v6, v6, v7, s68\ns_cmp_eq_u32 s4, 25\ns_cselect_b32 s70, 12, 20"),
            A(f"v_cmp_gt_u32 vcc, s70, v5\nv_mov_b32 v8, {OOB}\nv_lshlrev_b32 v7, 4, v{V_L}\nv_cndmask_b32 v6, v8, v6, vcc"),
            A(f"v_cmp_gt_u32 vcc, 60, v{V_L}\ns_add_u32 s68, s68, {5*131072 + 32768}\nv_add_u32 v9, s68, v7\nv_cndmask_b32 v{V_ABG0}, v8, v6, vcc"),
            A(f"v_cmp_gt_u32 vcc, s70, v{V_L}\nv_add_u32 v6, s69, v7\nv_lshrrev_b32 v5, 1, v{V_L}\nv_cndmask_b32 v9, v8, v9, vcc"),
            A(f"s_cmp_eq_u32 s4, 0\ns_cselect_b32 s70, 10, -1\nv_cmp_eq_u32 vcc, s70, v5\ns_mul_i32 s68, s3, 1792"),
            A(f"s_add_u32 s68, s68, {ABL}\nv_add_u32 v{V_ABR}, s68, v7\nv_cndmask_b32 v{V_ABG1}, v9, v6, vcc")]
def ab_once(which):
    if which == 2:
        return [LG(f"ds_write_b64 v{V_ABS0 if t == 0 else V_ABS}, v[{ABP+2*t}:{ABP+2*t+1}] offset:{64*t}", ("ABW", t)) for t in range(5)]
    if which == 3:
        return [LG(f"ds_read_b128 v[{PK}:{PK+3}], v{V_ABR}", ("ABR", 0)), LG(f"ds_read_b128 v[{PK+4}:{PK+7}], v{V_ABR} offset:960", ("ABR", 1))]
    if which == 0:
        o = [VM(f"buffer_store_dwordx4 v[{PK}:{PK+3}], v{V_ABG0}, s[16:19], 0 offen sc1", ("ABST", 0)),
             VM(f"buffer_store_dwordx4 v[{PK+4}:{PK+7}], v{V_ABG1}, s[16:19], 0 offen sc1", ("ABST", 4))]
        if cfg.warmfl:
            o += [VM(f"buffer_store_dwordx4 v[{ABP+10}:{ABP+13}], v{ABP+14}, s[16:19], s78 offen offset:2560 sc1", "WARMFL")]
        return o
    return [VM(f"buffer_store_dword v{V_TAG}, v{V_ABFL}, s[16:19], 0 offen sc1", "ABFL")]
def h_tile(p, t):
    r = E0 + 4 * t; d = PK + 2 * t
    lo = HB + p * 10240
    return ([I(f"v_cvt_pk_bf16_f32 v{d}, v{r}, v{r+1}"), I(f"v_cvt_pk_bf16_f32 v{d+1}, v{r+2}, v{r+3}")],
            [I(f"v_pk_max_i16 v{d}, v{d}, 0"), I(f"v_pk_max_i16 v{d+1}, v{d+1}, 0")],
            LG(f"ds_write_b64 v{V_HW}, v[{d}:{d+1}] offset:{1024*t}", ("HW", p, t), wr=(lo + (2048 if p < 0 else 0), lo + 10240)))
def p_parts(p):
    cv = [I(f"v_cvt_pk_bf16_f32 v{PK+i}, v{E0+2*i}, v{E0+2*i+1}") for i in range(10)]
    st = [VM(f"buffer_store_dwordx4 v[{PK}:{PK+3}], v{V_P16}, s[16:19], s78 offen sc1", ("PST", p, 0)),
          VM(f"buffer_store_dwordx4 v[{PK+4}:{PK+7}], v{V_P16}, s[16:19], s78 offen offset:1024 sc1", ("PST", p, 1)),
          VM(f"buffer_store_dwordx2 v[{PK+8}:{PK+9}], v{V_P8}, s[16:19], s78 offen offset:2048 sc1", ("PST", p, 2))]
    return [(cv[:4], st[0]), (cv[4:8], st[1]), (cv[8:], st[2])]
def hreads(s):
    o = []
    for t in range(5):
        off = (s * 5 + t) * 1024; vr = V_HR
        if off >= 40960: off -= 40960; vr = V_HR2
        lo = HB + (s * 5 + t) * 1024
        o.append(LG(f"ds_read_b128 {act(s*5+t)}, v{vr} offset:{off}", ("RH", s, t), rd=(lo, lo + 1024)))
    return o
def tags(items): return [it.tag for it in items if it.kind == "lg"]
def cyc_stamp(side, g, g0, gap, v):
    if cfg.ts == 2 and cfg.pp and g == g0: side.append((gap, [I("s_memtime s[90:91]")]))
    if cfg.ts == 2 and cfg.pp and g == g0 + 1: side.append((gap, [I("s_waitcnt lgkmcnt(0)"), I("v_cmp_eq_u32 vcc, s63, v1"), I("v_mov_b32 v9, s90"), I("s_nop 0"), I(f"v_cndmask_b32 v{v}, v{v}, v9, vcc")]))

def g1_group(p, g, dyn=False):
    kind = "a" if p == 0 else ("z" if p == 7 else "")
    ms = group_mfmas(1, range(3 * g, 3 * g + 3), 17)
    side = []
    nph, npp = (1, p + 1) if p < 7 else (2, 0)
    if g % 2 == 1:
        need = cover(1, p, 3 * g + 3, 3 * g + 9) if g < 5 else cover(nph, npp, 0, 6)
        if g == 1 and p == 1: need = need + [("ABST", 4)]
        side.append((0, [WAIT(f"g1_b{g}{kind}", vm=need), BAR()]))
    rd = []
    for s in range(3 * g + 3, 3 * g + 6):
        rd += trr(1, p, s) if s < 18 else trr(nph, npp, s - 18)
    side += list(zip([1, 2, 4, 5, 6, 7] if not cfg.rdp else [0, 1, 2, 4, 5, 6], rd))
    for k, s in enumerate(range(3 * g + 15, 3 * g + 18)):
        pre, dm = wdma(1, p, s) if s < 18 else wdma(nph, npp, s - 18)
        gp = [3, 8, 13][k]
        if pre: side.append((gp - 2, pre[0])); side.append((gp - 1, pre[1]))
        side.append((gp, dm))
    if g == 0:
        if p < 7:
            side.append((11, [I("s_add_u32 s73, s73, 128"), I("s_and_b32 s73, s73, 0x380")])); side.append((12, I("s_add_u32 s62, s73, s74")))
        else:
            side.append((11, I("s_mov_b32 s62, s72")))
    if kind == "z" and cfg.tag7:
        if g == 0: side += [(1, I(f"v_mov_b32 v{ABP}, -1")), (2, I(f"v_mov_b32 v{ABP+1}, -1")), (7, I(f"v_mov_b32 v{ABP+2}, -1")), (10, I(f"v_mov_b32 v{ABP+3}, -1")),
                            (12, I(f"s_add_u32 s34, s78, {7*SL}"))]
        if g == 1: side.append((0, [VM(f"buffer_store_dwordx4 v[{ABP}:{ABP+3}], v{V_P16}, s[16:19], s34 offen sc1", ("POI", 0)),
                                    VM(f"buffer_store_dwordx4 v[{ABP}:{ABP+3}], v{V_P16}, s[16:19], s34 offen offset:1024 sc1", ("POI", 1)),
                                    VM(f"buffer_store_dwordx2 v[{ABP}:{ABP+1}], v{V_P8}, s[16:19], s34 offen offset:2048 sc1", ("POI", 2))]))
        if g == 4: side += [(1, [I(f"v_lshlrev_b32 v4, 2, v{V_L}"), I(f"v_cmp_gt_u32 vcc, 32, v{V_L}")]), (3, I(f"v_mov_b32 v5, {OOB}")), (8, I(f"v_cndmask_b32 v{ABP+4}, v5, v4, vcc"))]
    hr = []
    if kind == "z" and g >= 1:
        hr = hreads(2 * g - 2) + hreads(2 * g - 1)
        side += list(zip([0 if g % 2 == 0 else 1, 2, 4, 5, 6, 7, 9, 9, 11, 12], hr))
    if kind == "a":
        ep = ab_epilogue(); st = ab_once(0); wr = ab_once(2); ag = ab_gaddr()
        if cfg.p0v:
            if g == 0: side += spread(ep[:12], [3, 4, 5, 6, 7]) + [(9, wr[0])] + spread(ep[12:22], [8, 9, 10, 11]) + [(12, wr[1])] + spread(ep[22:28], [12, 13, 14])
            if g == 1: side += spread(ep[28:42], [1, 2, 3, 4, 5, 6, 7, 8]) + [(9, wr[2]), (11, wr[3])] + spread(ep[42:], [10, 11, 12, 13, 14])
        else:
            if g == 0: side += spread(ep[:26], [3, 4, 5, 6, 7, 9, 9, 10, 10, 11, 12, 13, 14])
            if g == 1: side += spread(ep[26:], [1, 2, 3, 4, 5, 6, 7, 9, 11, 12, 13]) + [(9, wr[0]), (10, wr[1]), (12, wr[2]), (14, wr[3])]
        if g == 2:
            r2 = ab_once(3); rd = rd + r2
            side += [(0, wr[4]), (9, r2[0]), (10, r2[1])]
        if g == 3: side += list(zip([0, 1, 2], st))
        if g in (3, 4, 5):
            s3_ = setup3(); n3 = (len(s3_) + 2) // 3
            side += spread(s3_[(g - 3) * n3:(g - 2) * n3], [3, 4, 5, 6, 7, 9, 9, 10, 10, 11, 12, 14])
    if kind == "" and g == cfg.fgg:
        side.append((cfg.fg1, [I("s_cmp_eq_u32 s63, s33" if cfg.w0 else "s_cmp_eq_u32 s63, 6"), I("s_cbranch_scc1 L_once1")] + (ab_once(1) if (dyn and p == 1) else []) + [I("L_once1_ret:")]))
    if kind == "a": pass
    elif g < 5:
        cv, mx, w = h_tile(p - 1, g)
        if kind == "z" and g >= 1:
            side += [(3, cv[0]), (8, cv[1]), (10, mx), (13, w)]
        elif cfg.hw == 1:
            side += [(3, cv[0]), (4, cv[1]), (5, mx[0]), (6, mx[1]), (cfg.hg, w)]
        else:
            side += [(4, cv[0]), (5, cv[1]), (9, mx), (cfg.hg, w)]
    else:
        if cfg.krot and kind == "":
            side += [(4, [I("s_add_u32 s100, s100, 10240"), I("s_cmp_eq_u32 s100, 61440"), I("s_cselect_b32 s100, 0, s100")]),
                     (9, [I("s_cmp_eq_u32 s63, 1"), I("s_cselect_b32 s100, 61440, s100")]), (10, I(f"v_add_u32 v{V_HW}, s100, v{V_PF2}"))]
        else: side.append((10, I(f"v_add_u32 v{V_HW}, 10240, v{V_HW}")))
    if kind == "": cyc_stamp(side, g, 2, 12, 130)
    if g == 5 and kind == "": side.append((13, [I("s_sub_u32 s63, s63, 1"), I("s_cmp_lg_u32 s63, 0")]))
    side.append((14, WAIT(f"g1_r{g}{kind}", lg=tags(rd))))
    return place(ms, side)

def nextcol():
    return [[I("s_add_u32 s62, s62, 128"), I("s_cmp_eq_u32 s62, 1152"), I("s_cselect_b32 s62, 0, s62")],
            [I("s_cmp_eq_u32 s62, s72"), I(f"s_cselect_b32 s62, {OOB}, s62"), I("s_xor_b32 s60, s60, 0x10000")]]
def g2_pass0():
    o = []
    groups = [(0, 1, 2), (3, 4, 5), (6, 7), (8, 9, 10, 11), (12, 13, 14, 15)]
    cuts = [15, 19, 23, 26, 31, 36]
    hsteps = [(10,), (11, 12), (13,), (14, 15), ()]
    htl = [(0, 1), (2, 3), (4,), (), ()]
    if cfg.g20v:
        hsteps = [(10,), (11,), (), (12, 13), (14, 15)]
        htl = [(0,), (1, 2), (3,), (4,), ()]
    for gi, st in enumerate(groups):
        ms = group_mfmas(2, st, 15); n = len(ms); side = []
        hw7 = [("HW", 7, 4)]
        if gi == 1: side.append((0, [WAIT("g20_b1", vm=cover(2, 0, 6, 12)), BAR()]))
        if gi == 3: side.append((0, [WAIT("g20_b3", vm=cover(2, 0, 12, 16), lg=None if cfg.g20v else hw7), BAR()]))
        if gi == 4: side.append((0, [WAIT("g20_b4", vm=cover(2, 1, 0, 8), lg=hw7 if cfg.g20v else None), BAR(), I(f"v_xor_b32 v{V_TR}, 0x10000, v{V_TR}")]))
        dl = list(range(cuts[gi], cuts[gi + 1]))
        dg = [min(n - 1, 2 + (i * (n - 1)) // len(dl)) for i in range(len(dl))]
        for s, gp in zip(dl, dg):
            pre, dm = wdma(2, s // 16, s % 16)
            if s % 16 == 0:
                nc = nextcol(); side.append((gp - 2, nc[0] + nc[1]))
            if pre: side.append((gp - 1, pre))
            side.append((gp, dm))
        free = [x for x in range(1 if gi in (1, 3, 4) else 0, n - 3) if x not in dg]
        rd = []
        for s in (groups[gi + 1] if gi < 4 else range(16, 20)): rd += trr(2, s // 16, s % 16)
        if cfg.g20v and gi == 4:
            h14, h15 = hreads(14), hreads(15)
            side += spread(h14 + h15, [0, 1, 2, 3, 4]) + [(9, WAIT("g20_h14", lg=tags(h14))), (14, WAIT("g20_h15", lg=tags(h15)))]
            free = [x for x in free if x > 4]
        else:
            for s in hsteps[gi]: rd += hreads(s)
        side += spread(rd, free)
        for k, t in enumerate(htl[gi]):
            cv, mx, w = h_tile(7, t)
            b = 3 + 4 * k
            side += [(b, cv[0]), (b + 1, cv[1]), (b + 2, mx[0]), (b + 3, mx[1]), ((8 if (cfg.g20v and gi == 3) else n - 3 + k), w)]
        gp_ = g2_pre()
        k_ = 30 if cfg.inloop else 20
        if gi == 3: side += spread(gp_[:k_], list(range(1, n - 1)))
        if gi == 4: side += spread(gp_[k_:], list(range(1, n - 1)))
        side.append((n - 1, WAIT(f"g20_r{gi}", lg=tags(rd))))
        o += place(ms, side)
    return o
SUM, PBUF, PB2 = 216, 236, 76
V_SELA = 248
V_FLW = 254
V_FLG = 128
V_K0, V_K1 = 129, 130
YR, GR, SEL, OA, V_YA, V_YA0, V_GA = 100, 132, 110, 114, 120, 121, 122
def slot_loads(b, tag, so="s34", r="v"):
    return [VM(f"buffer_load_dwordx4 {r}[{b}:{b+3}], v{V_P16}, s[16:19], {so} offen sc1", (tag, 0)),
            VM(f"buffer_load_dwordx4 {r}[{b+4}:{b+7}], v{V_P16}, s[16:19], {so} offen offset:1024 sc1", (tag, 1)),
            VM(f"buffer_load_dwordx2 {r}[{b+8}:{b+9}], v{V_P8}, s[16:19], {so} offen offset:2048 sc1", (tag, 2))]
def slot_add(d, b, first=False, r="v"):
    o = []
    for t in range(5):
        a = V_SELA + (0 if t & 1 else 2); bb = b + 4 * (t >> 1); D = f"v[{d+4*t}:{d+4*t+3}]"
        o.append(mfma(D, f"v[{a}:{a+3}]", f"{r}[{bb}:{bb+3}]", "0" if first else D))
    return o
def slot_next():
    return [[I("s_cmp_eq_u32 s96, 0"), I(f"s_cselect_b32 s97, {72*SL}, 0"), I("s_add_u32 s95, s95, s97")],
            [I(f"s_sub_u32 s95, s95, {7*SL}"), I("s_sub_u32 s96, s96, 1")]]
def sample(tag, so=None):
    if so: return VM(f"buffer_load_dword v{V_FLG}, v{V_FL}, s[16:19], {so} offen offset:2560 sc1", tag)
    return VM(f"buffer_load_dword v{V_FLG}, v{V_POLL}, s[16:19], 0 offen sc1", tag)
def check(lab):
    return [I(f"v_cmp_eq_u32 vcc, s7, v{V_FLG}"), I("s_and_b32 s97, vcc_lo, s35"), I("s_cmp_eq_u32 s97, s35"), I(f"s_cbranch_scc0 {lab}"), I(f"{lab}_ret:")]
def spin(lab, so=None):
    return T(f"""
    {lab}:
    s_mov_b32 s98, {SPIN}
    {lab}_l:
    {sample(None, so).text}
    s_sub_u32 s98, s98, 1
    s_cmp_eq_u32 s98, 0
    s_cbranch_scc1 {lab}_ret
    s_waitcnt vmcnt(0)
    v_cmp_eq_u32 vcc, s7, v{V_FLG}
    s_and_b32 s97, vcc_lo, s35
    s_cmp_eq_u32 s97, s35
    s_cbranch_scc1 {lab}_ret
    {f"s_sleep {cfg.slp2}" if cfg.slp2 else "s_nop 0"}
    s_branch {lab}_l
    """)
def tagcheck():
    b = PB2
    return T(f"""
    v_max3_u32 v4, v{b}, v{b+1}, v{b+2}
    v_max3_u32 v5, v{b+3}, v{b+4}, v{b+5}
    v_max3_u32 v6, v{b+6}, v{b+7}, v{b+8}
    v_max3_u32 v4, v4, v{b+9}, v5
    v_max_u32 v4, v4, v6
    v_cmp_eq_u32 vcc, -1, v4
    s_nop 4
    """)
def spin_tag():
    return T(f"L_sp3:\ns_mov_b32 s98, {SPIN}\nL_sp3_l:") + slot_loads(PB2, None, "s95") + T("""
    s_sub_u32 s98, s98, 1
    s_waitcnt vmcnt(0)
    s_cmp_eq_u32 s98, 0
    s_cbranch_scc1 L_sp3_ret
    """) + tagcheck() + T("s_cbranch_vccnz L_sp3_l\ns_branch L_sp3_ret")
EB = 216
V_POLLE = 129
EB2 = 132
def ep_block(which, p=None):
    if cfg.ep2 == 2:
        if which == 0: return [sample(("EPS", p), "s79")]
        adr = (94, 96, 34, 100, 101, 101); buf = (EB, EB + 10, EB + 20, EB2, EB2 + 10)
        o = check("L_sp1")
        for j in range(5):
            body = slot_loads(buf[j], ("SL", j), "s79") + [I(f"s_mov_b32 s79, s{adr[j+1]}")]
            head = [I(f"s_cmp_lg_u32 s63, {5-j}"), I(f"s_cbranch_scc1 L_epn{j}")] if j < 4 else []
            if p is None: o += head + body + ([I("s_branch L_ep1_ret"), I(f"L_epn{j}:")] if j < 4 else [])
            elif p == 3 + j: return o + head + body
            else: o += head
        return o
    if which == 0: return [VM(f"buffer_load_dword v{V_FLG}, v{V_POLLE}, s[16:19], 0 offen sc1", ("EPS", p))]
    o = check("L_sp1")
    e1 = []; e2 = []
    for j in range(cfg.early): e1 += slot_loads(EB + 10 * j, ("SL", j), f"s{(94, 96, 34)[j]}")
    if not cfg.ep2: return o + e1
    e1.append(I("s_movk_i32 s35, 0x18"))
    for j in (3, 4): e2 += slot_loads(EB2 + 10 * (j - 3), ("SL", j), f"s{(100, 101)[j - 3]}")
    o += [I("s_cmp_eq_u32 s63, 1"), I("s_cbranch_scc1 L_ep2")]
    if p is None: return o + e1 + [I("s_branch L_ep1_ret"), I("L_ep2:")] + e2
    return o + (e2 if p == 7 else e1)
def fs_block():
    o = [I(x.text.replace("s67", "s33").replace("s68", "s73").replace("s69", "s74").replace("s70", "s79")) for x in fin_setup()]
    for j, d in ((5, 92), (6, 93), (7, 95)):
        o += [I(f"s_cmp_lt_u32 s6, {j}"), I(f"s_cselect_b32 s33, {72*SL}, 0"), I(f"s_add_u32 s33, s33, s95"), I(f"s_sub_u32 s{d}, s33, {7*j*SL}")]
    return o
def g2_group(p, g, ep=()):
    ms = group_mfmas(2, range(4 * g, 4 * g + 4), 15); side = []
    if g in (1, 3):
        need = cover(2, p, 8, 16) if g == 1 else cover(2, p + 1, 0, 8) + [("PST", p - 1, 2)] + (([("SMP", p)] + ([(("SL", p - 1), 2)] if p > 1 else [])) if cfg.inloop else [])
        if g == 3 and p in ep and cfg.early and not cfg.inloop: need = need + [("EPS", p)]
        side.append((0, [WAIT(f"g2_b{g}", vm=need), BAR()] + ([I(f"v_xor_b32 v{V_TR}, 0x10000, v{V_TR}")] if g == 3 else [])))
    rd = []
    for s in range(4 * g + 4, 4 * g + 8): rd += trr(2, p + s // 16, s % 16)
    side += list(zip([1, 2, 4, 5, 6, 7, 9, 10], rd))
    for k, s in enumerate(range(4 * g + 20, 4 * g + 24)):
        pre, dm = wdma(2, p + s // 16, s % 16)
        gp = [3, 8, 13, 18][k]
        if pre: side.append((gp - 2, pre[0])); side.append((gp - 1, pre[1]))
        side.append((gp, dm))
    if g == 0:
        pp = p_parts(p - 1)
        if cfg.inloop: side.append((0, sample(("SMP", p), "s34")))
        side += list(zip([4, 5, 6, 7, 9, 10, 11, 12, 14, 14], pp[0][0] + pp[1][0] + pp[2][0]))
        side += [(15, pp[0][1]), (16, pp[1][1]), (17, pp[2][1])]
    if g == 2:
        nc = nextcol(); side += [(16, nc[0]), (17, nc[1])]
        if cfg.inloop: sn = slot_next(); side += [(14, sn[0]), (15, sn[1])]
    if cfg.early and not cfg.inloop and g in (0, 3):
        w = 0 if g == 0 else 1
        side.append((0 if g == 0 else cfg.epg, [I("s_bitcmp1_b32 s99, s63"), I(f"s_cbranch_scc1 L_ep{w}")] + (ep_block(w, p) if p in ep else []) + [I(f"L_ep{w}_ret:")]))
    if cfg.fse and g == 1:
        side.append((cfg.fse, [I("s_cmp_eq_u32 s63, 6"), I("s_cbranch_scc1 L_fs")] + (fs_block() if (ep and p == 2) else []) + [I("L_fs_ret:")]))
    if g == 3 and not cfg.inloop:
        side.append((cfg.flg, VM(f"buffer_store_dword v{V_TAG}, v{V_FLW}, s[16:19], s78 offen offset:2560 sc1", ("PFL", p - 1))))
        side.append((16, I(f"s_add_u32 s78, s78, {SL}")))
        side.append((19, [I("s_sub_u32 s63, s63, 1"), I("s_cmp_lg_u32 s63, 0")]))
    if g == 3 and cfg.inloop:
        ad = slot_add(SUM, PBUF); ld = slot_loads(PBUF, ("SL", p)); ck = check("L_sp1")
        side.append((0, [ad[0], VM(f"buffer_store_dword v{V_TAG}, v{V_FLW}, s[16:19], s78 offen offset:2560 sc1", ("PFL", p - 1)),
                         ad[1], ck[0], ad[2]] + ck[1:] + [ad[3], I(f"s_add_u32 s78, s78, {SL}"), ad[4]]))
        side += list(zip([14, 15, 16], ld))
        side.append((17, [I("s_cmp_gt_u32 s63, 6"), I(f"s_cselect_b32 s34, {OOB}, s95"), I("s_cselect_b32 s35, 0, 1")]))
        side.append((18, [I("s_sub_u32 s63, s63, 1"), I("s_cmp_lg_u32 s63, 0")]))
    cyc_stamp(side, g, 1, 19, 152-1 if False else 131)
    side.append((19, WAIT(f"g2_r{g}", lg=tags(rd))))
    return place(ms, side)

def g2_pre():
    o = T(f"""
    v_sub_u32 v5, s6, v{V_L}
    v_add_u32 v6, 9, v5
    v_min_u32 v5, v5, v6
    v_lshl_add_u32 v5, v5, 3, v{V_L}
    s_mul_i32 s95, s4, {72*SL}
    s_mul_i32 s96, s3, {WSL}
    s_add_u32 s95, s95, s96
    s_add_u32 s95, s95, {WS_PART}
    v_mul_u32_u24 v5, {SL}, v5
    s_add_u32 s97, s95, 2560
    v_add_u32 v5, s97, v5
    s_lshl_b32 s97, s4, 7
    s_add_u32 s97, s97, {WS_YFLAG - 32}
    v_lshl_add_u32 v6, v{V_L}, 2, s97
    v_cmp_gt_u32 vcc, 8, v{V_L}
    s_mov_b32 s82, {(0x20 if (cfg.inloop or cfg.ep2) else (1 << cfg.ne) - (1 << cfg.early)) | (0xfffff << 8)}
    s_mul_i32 s97, s6, {8*SL}
    v_cndmask_b32 v5, v6, v5, vcc
    s_mov_b32 s83, 0
    v_mov_b32 v6, {OOB}
    s_add_u32 s95, s95, s97
    v_cndmask_b32 v{V_POLL}, v6, v5, s[82:83]
    s_mov_b32 s82, {0xff & ~((1 << cfg.ne) - 1)}
    s_add_u32 s95, s95, {14*SL if cfg.inloop else 0}
    v_cndmask_b32 v255, v6, v5, s[82:83]
    s_mov_b32 s82, {0x1f if cfg.ep2 else (1 << cfg.early) - 1}
    s_nop 0
    v_cndmask_b32 v{V_POLLE}, v6, v5, s[82:83]
    s_add_u32 s96, s6, 2
    s_mov_b32 s63, 7
    s_mov_b32 s34, {OOB}
    s_mov_b32 s35, 0
    v_lshlrev_b32 v4, 2, v{V_L}
    v_cmp_gt_u32 vcc, 32, v{V_L}
    v_lshlrev_b32 v5, 2, v{V_Q}
    v_sub_u32 v5, v{V_C}, v5
    v_cndmask_b32 v{V_FLW}, v6, v4, vcc
    v_and_b32 v4, 1, v5
    v_lshlrev_b32 v4, 4, v4
    v_mov_b32 v6, 0x3f80
    v_lshlrev_b32 v4, v4, v6
    v_lshrrev_b32 v5, 1, v5
    v_cmp_eq_u32 vcc, 0, v5
    v_mov_b32 v{V_SELA}, 0
    v_mov_b32 v{V_SELA+1}, 0
    v_cndmask_b32 v{V_SELA+2}, 0, v4, vcc
    v_cmp_eq_u32 vcc, 1, v5
    v_mov_b32 v{V_SELA+4}, 0
    v_mov_b32 v{V_SELA+5}, 0
    v_cndmask_b32 v{V_SELA+3}, 0, v4, vcc
    """)
    if cfg.early and not cfg.inloop:
        o += T(f"""
        v_mov_b32 v{EB+30}, 0
        v_mov_b32 v{EB+31}, 0
        s_mov_b32 s35, {(1 << cfg.early) - 1}
        s_mul_i32 s99, s4, 21846
        s_lshr_b32 s99, s99, 16
        s_mul_i32 s99, s99, 3
        s_sub_u32 s99, s4, s99
        s_min_u32 s99, s99, {cfg.epm - 1}
        s_lshl_b32 s99, 2, s99
        s_mov_b32 s94, s95
        """)
        if cfg.ep2:
            o += T("s_and_b32 s99, s4, 1\ns_lshl_b32 s99, 4, s99\ns_or_b32 s99, s99, 2")
            if cfg.ep2 == 2: o += T("s_movk_i32 s99, 0x3e\ns_mov_b32 s35, 1\ns_mov_b32 s79, s95")
            for j in (3, 4): o.append([I(f"s_cmp_lt_u32 s6, {j}"), I(f"s_cselect_b32 s{97+j}, {72*SL}, 0"), I(f"s_add_u32 s{97+j}, s{97+j}, s95"), I(f"s_sub_u32 s{97+j}, s{97+j}, {7*j*SL}")])
        o.append([I("s_cmp_lt_u32 s6, 1"), I(f"s_cselect_b32 s96, {72*SL}, 0"), I("s_add_u32 s96, s96, s95"), I(f"s_sub_u32 s96, s96, {7*SL}")])
        o.append([I("s_cmp_lt_u32 s6, 2"), I(f"s_cselect_b32 s34, {72*SL}, 0"), I("s_add_u32 s34, s34, s95"), I(f"s_sub_u32 s34, s34, {14*SL}")])
    if cfg.inloop:
        for i in range(20): o.append(I(f"v_mov_b32 v{SUM+i}, 0"))
        for i in range(12): o.append(I(f"v_mov_b32 v{PBUF+i}, 0"))
    return o

def fin_setup():
    o = T(f"""
    s_lshl_b32 s68, s6, 6
    s_lshl_b32 s69, s3, 4
    s_add_u32 s68, s68, s69
    v_add_u32 v5, s68, v{V_C}
    v_sub_u32 v6, 576, v5
    v_cmp_lt_u32 s[76:77], v6, v5
    v_min_u32 v6, v5, v6
    s_mul_i32 s69, s4, 20
    v_add_u32 v7, s69, v{V_Q}
    s_movk_i32 s70, 2560
    v_lshlrev_b32 v6, 3, v6
    v_mad_u32_u24 v{V_YA}, v7, s70, v6
    v_add_u32 v{V_YA}, {WS_YT}, v{V_YA}
    v_cmp_eq_u32 s[80:81], 0, v7
    v_add_u32 v9, {512*2560}, v{V_YA}
    s_and_b64 s[82:83], s[80:81], s[76:77]
    v_lshlrev_b32 v{V_GA}, 4, v7
    v_add_u32 v{V_GA}, {WS_GT}, v{V_GA}
    v_cndmask_b32 v{V_YA0}, v{V_YA}, v9, s[82:83]
    """)
    for rho in range(4):
        d = 0x0c0c | ((2 * rho) << 16) | ((2 * rho + 1) << 24); m = 0x0c0c | ((6 - 2 * rho) << 16) | ((7 - 2 * rho) << 24)
        o += T(f"v_mov_b32 v8, {d}\nv_mov_b32 v9, {m}\nv_cndmask_b32 v{SEL+rho}, v8, v9, s[76:77]")
    o += T(f"""
    s_lshl_b32 s68, s3, 1
    v_lshrrev_b32 v5, 1, v{V_Q}
    v_add_u32 v5, s68, v5
    v_and_b32 v6, 7, v{V_C}
    v_xor_b32 v5, v5, v6
    v_lshlrev_b32 v5, 4, v5
    v_lshl_add_u32 v5, v{V_C}, 7, v5
    v_and_b32 v6, 1, v{V_Q}
    v_lshl_add_u32 v5, v6, 3, v5
    v_add_u32 v{OA}, {OUTL}, v5
    v_lshrrev_b32 v5, 3, v{V_L}
    v_and_b32 v6, 7, v{V_L}
    v_xor_b32 v7, v5, v6
    v_lshlrev_b32 v7, 4, v7
    v_lshl_add_u32 v7, v5, 7, v7
    s_lshl_b32 s70, s3, 10
    s_add_u32 s70, s70, {OUTL}
    v_add_u32 v{OA+1}, s70, v7
    s_lshl_b32 s70, s6, 7
    v_lshl_add_u32 v6, v6, 4, s70
    v_and_b32 v5, 3, v5
    v_lshrrev_b32 v7, 5, v{V_L}
    s_add_u32 s68, s68, s69
    v_add_u32 v7, s68, v7
    s_add_u32 s69, s69, 20
    s_min_u32 s69, s69, 512
    s_movk_i32 s67, 1152
    """)
    for k in range(3):
        o += rowcalc(7, 5, OA + 2 + k, 8) + T(f"""
        v_cmp_gt_u32 vcc, s69, v7
        v_mad_u32_u24 v{OA+2+k}, v{OA+2+k}, s67, v6
        v_mov_b32 v8, {OOB}
        v_cndmask_b32 v{OA+2+k}, v8, v{OA+2+k}, vcc
        v_add_u32 v7, 8, v7
        """)
    return o

V_P12, V_FLG2 = 99, 131
T7 = 56
Q7 = 100
def pos7(i): return i + i // 3
def loads7():
    l = [VM(f"buffer_load_dwordx4 v[{T7+4*k}:{T7+4*k+3}], v{V_P16}, s[16:19], s71 offen offset:{1024*k} sc1", (("SL", 7), 5 + k)) for k in range(3)]
    return l + [VM(f"buffer_load_dwordx2 v[{T7+12}:{T7+13}], v{V_P8}, s[16:19], s71 offen offset:3072 sc1", (("SL", 7), 2))]
def chk7():
    return T(f"""
    v_xor_b32 v4, s7, v{T7+3}
    v_xor_b32 v5, s7, v{T7+7}
    v_xor_b32 v6, s7, v{T7+11}
    v_xor_b32 v7, s7, v{T7+13}
    v_or3_b32 v4, v4, v5, v6
    v_or_b32 v4, v4, v7
    v_cmp_ne_u32 vcc, 0, v4
    s_nop 4
    """)
def spin7():
    return T(f"L_sp4:\ns_mov_b32 s98, {SPIN}\nL_sp4_l:") + loads7() + T("""
    s_sub_u32 s98, s98, 1
    s_waitcnt vmcnt(0)
    s_cmp_eq_u32 s98, 0
    s_cbranch_scc1 L_sp4_ret
    """) + chk7() + T("s_cbranch_vccnz L_sp4_l\ns_branch L_sp4_ret")
def g2_last2(fs, ad):
    o = []; p = 8; E = 5 if cfg.ep2 else cfg.early; F7 = cfg.chk7 == 2
    yg = []
    for t in range(5):
        yg.append([I(f"s_or_b32 s61, s75, {t*4*2560}" if t >= 3 else f"s_mov_b32 s61, {t*4*2560}"), VM(f"buffer_load_dwordx2 v[{YR+2*t}:{YR+2*t+1}], v{V_YA0 if t == 0 else V_YA}, s[16:19], s61 offen sc1", ("YL", t))])
        yg.append(VM(f"buffer_load_dwordx4 v[{GR+4*t}:{GR+4*t+3}], v{V_GA}, s[16:19], {'s75' if t >= 3 else '0'} offen offset:{64*t} sc1", ("GL", t)))
    ld = []
    for j in range(E, 6): ld += slot_loads(12 * j, ("SL", j), f"s{64+j}", "a")
    ld += yg
    for g in range(4):
        ms = group_mfmas(2, range(4 * g, 4 * g + 4), 15); side = []
        rd = []
        if g < 3:
            for s in range(4 * g + 4, 4 * g + 8): rd += trr(2, p, s)
            side += list(zip([1, 2, 4, 5, 6, 7, 9, 10] if g else [10, 11, 12, 13, 14, 15, 16, 17], rd))
        if g == 0:
            side.append((0, sample("S0")))
            if F7:
                pp = p_parts(7)
                side += list(zip([1, 1, 2, 2, 4, 4, 5, 5, 7, 7], pp[0][0] + pp[1][0] + pp[2][0]))
                side += [(3, pp[0][1]), (6, pp[1][1]), (8, pp[2][1])]
            else:
                cv = [I(f"v_cvt_pk_bf16_f32 v{Q7+pos7(i)}, v{E0+2*i}, v{E0+2*i+1}") for i in range(10)]
                st = [VM(f"buffer_store_dwordx4 v[{Q7+4*k}:{Q7+4*k+3}], v{V_P16}, s[16:19], s78 offen offset:{1024*k} sc1", ("PST", 7, k)) for k in range(3)]
                st.append(VM(f"buffer_store_dwordx2 v[{Q7+12}:{Q7+13}], v{V_P8}, s[16:19], s78 offen offset:3072 sc1", ("PST", 7, 3)))
                side += list(zip([1, 1, 2, 3, 4, 4, 5, 6, 6, 7], cv)) + list(zip([2, 4, 7, 8], st))
            side += spread(ad, list(range(10, 19)))
            side.append((19, I(f"s_mov_b32 s35, {((1 << 6) - (1 << E)) | (0xfffff << 8)}")))
        if g == 1:
            side.append((0, [WAIT("g2z_b1", vm=cover(2, p, 8, 16)), BAR()]))
            side += spread(fs[:24], list(range(1, 12)))
            side.append((12, [WAIT("g2z_s0", vm=["S0"])] + check("L_sp2") + [I("s_mov_b32 s35, 1"), sample("S1", "s70")]))
            pfl7 = [WAIT("g2z_st", vm=[("PST", 7, 2)]), VM(f"buffer_store_dword v{V_TAG}, v{V_FLW}, s[16:19], s78 offen offset:2560 sc1", ("PFL", 7))]
            if cfg.ep2:
                ld = ld[:3] + yg[0::2] + yg[1::2]
                side.append((19 if cfg.st1 else 14, slot_add(16, EB2) + slot_add(16, EB2 + 10)))
            if cfg.st1:
                side += list(zip([12, 12, 12, 14, 15, 16, 17], ld[:7])); side.append((cfg.st1, pfl7))
            else: side += list(zip(range(13, 20), ld[:7]))
        if g == 2:
            if F7 and not cfg.st1: side.append((0, pfl7))
            side += spread(ld[7:], list(range(0, 6 if cfg.ep2 else 16)))
            side += spread(fs[24:45], list(range(0, 20)))
        if g == 3:
            side += spread(fs[45:], [x for x in range(0, 20) if x < cfg.s6g - 1 or x > cfg.s6g])
            ck = [I(x.text.replace("vcc_lo", "s80").replace("vcc", "s[80:81]")) for x in check("L_sp3")]
            side.append((cfg.s6g, [WAIT("g2z_s1", vm=["S1"])] + ck + slot_loads(72, ("SL", 6), "s70", "a") + ([] if F7 else loads7())))
            if F7: side.append((cfg.s2g, sample("S2", "s71")))
        if g < 3: side.append((19, WAIT(f"g2z_r{g}", lg=tags(rd))))
        o += place(ms, side)
    o += TS(7)
    for j in range(cfg.early): o += slot_add(E0, EB + 10 * j)
    for j in range(E, 6):
        o.append(WAIT(f"fin_a{j}", vm=[(("SL", j), 2)])); o += slot_add(E0, 12 * j, r="a")
    YT_ = 56 if F7 else EB
    o.append(WAIT("fin_gl", vm=[("GL", 4)]))
    for t in range(5):
        for rho in range(4): o.append(I(f"v_perm_b32 v{YT_+4*t+rho}, v{YR+2*t+1}, v{YR+2*t}, v{SEL+rho}"))
    if F7:
        o.append(WAIT("fin_s2", vm=["S2"])); o += check("L_sp4") + slot_loads(84, ("SL", 7), "s71", "a")
    for i in range(20): o.append(I(f"v_mul_f32 v{YT_+i}, v{YT_+i}, v{GR+i}"))
    for i in range(20): o.append(I(f"v_sub_f32 v{GR+i}, 1.0, v{GR+i}"))
    o.append(WAIT("fin_6", vm=[(("SL", 6), 2)])); o += slot_add(E0, 72, r="a")
    o.append(WAIT("fin_7", vm=[(("SL", 7), 2)]))
    if F7: return o + slot_add(E0, 84, r="a") + [I("s_nop 3")] + fin_out()
    o += chk7() + T("s_cbranch_vccnz L_sp4\nL_sp4_ret:")
    for i in range(3, 10): o.append(I(f"v_mov_b32 v{T7+i}, v{T7+pos7(i)}"))
    o += T(f"v_mov_b32 v{T7+10}, 0\nv_mov_b32 v{T7+11}, 0")
    o += slot_add(E0, T7)
    o.append(I("s_nop 3"))
    return o + fin_out(YT_)
def g2_last0():
    o = []; p = 8
    fs = fin_setup()
    ad = []
    for j in range(8):
        ad.append([I(f"s_cmp_lt_u32 s6, {j}"), I(f"s_cselect_b32 s{64+j}, {72*SL}, 0"), I(f"s_add_u32 s{64+j}, s{64+j}, s95"), I(f"s_sub_u32 s95, s95, {7*SL}")])
    fs = [I(x.text.replace("s67", "s96").replace("s68", "s62").replace("s69", "s94").replace("s70", "s34")) for x in fs]
    if cfg.chk7 and cfg.fse:
        assert cfg.ep2 == 1 and cfg.chk7 == 2
        o = g2_last2([], [])
        for it in o:
            if it.text: it.text = it.text.replace("s69 offen", "s92 offen").replace("s70 offen", "s93 offen").replace("s71 offen", "s95 offen")
        return o
    if cfg.chk7: return g2_last2(fs, ad)
    NE = cfg.ne; E = cfg.early
    yg = []
    for t in range(5):
        yg.append([I(f"s_or_b32 s61, s75, {t*4*2560}" if t >= 3 else f"s_mov_b32 s61, {t*4*2560}"), VM(f"buffer_load_dwordx2 v[{YR+2*t}:{YR+2*t+1}], v{V_YA0 if t == 0 else V_YA}, s[16:19], s61 offen sc1", ("YL", t))])
        yg.append(VM(f"buffer_load_dwordx4 v[{GR+4*t}:{GR+4*t+3}], v{V_GA}, s[16:19], {'s75' if t >= 3 else '0'} offen offset:{64*t} sc1", ("GL", t)))
    ld = []
    for j in range(E, NE): ld += slot_loads(12 * j, ("SL", j), f"s{64+j}", "a")
    ld += yg
    for g in range(4):
        ms = group_mfmas(2, range(4 * g, 4 * g + 4), 15); side = []
        rd = []
        if g < 3:
            for s in range(4 * g + 4, 4 * g + 8): rd += trr(2, p, s)
            side += list(zip([1, 2, 4, 5, 6, 7, 9, 10] if g else [9, 10, 11, 12, 13, 14, 15, 16], rd))
        if g == 0:
            pp = p_parts(7)
            side.append((0, sample("S0")))
            side += list(zip([1, 1, 2, 2, 4, 4, 5, 5, 7, 7], pp[0][0] + pp[1][0] + pp[2][0]))
            side += [(3, pp[0][1]), (6, pp[1][1]), (8, pp[2][1])]
            side += spread(ad, list(range(9, 19)))
            side.append((19, I(f"s_mov_b32 s35, {((1 << NE) - (1 << E)) | (0xfffff << 8)}")))
        if g == 1:
            side.append((0, [WAIT("g2z_b1", vm=cover(2, p, 8, 16)), BAR()]))
            side += spread(fs[:24], list(range(1, 12)))
            side.append((12, [WAIT("g2z_s0", vm=["S0"])] + check("L_sp2")))
            side += list(zip(range(13, 20), ld[:7]))
        if g == 2:
            side.append((cfg.stg, [WAIT("g2z_st", vm=[("PST", 7, 2)]), VM(f"buffer_store_dword v{V_TAG}, v{V_FLW}, s[16:19], s78 offen offset:2560 sc1", ("PFL", 7))]))
            side += spread(ld[7:], list(range(cfg.stg + 1, 20)))
            side += spread(fs[24:45], list(range(0, 20)))
        if g == 3:
            side += spread(fs[45:], list(range(0, 19)))
            side.append((19, [I(f"s_mov_b32 s35, {0xff & ~((1 << NE) - 1)}"), I(f"v_mov_b32 v{V_POLL}, v255"), sample("S1")]))
        if g < 3: side.append((19, WAIT(f"g2z_r{g}", lg=tags(rd))))
        o += place(ms, side)
    o += TS(7)
    for j in range(E): o += slot_add(E0, EB + 10 * j)
    for j in range(E, NE):
        o.append(WAIT(f"fin_a{j}", vm=[(("SL", j), 2)])); o += slot_add(E0, 12 * j, r="a")
    o.append(WAIT("fin_s1", vm=["S1"])); o += check("L_sp3")
    for j in range(7, NE - 1, -1): o += slot_loads(12 * j, ("SL", j), f"s{64+j}", "a")
    for t in range(5):
        for rho in range(4): o.append(I(f"v_perm_b32 v{56+4*t+rho}, v{YR+2*t+1}, v{YR+2*t}, v{SEL+rho}"))
    for i in range(20): o.append(I(f"v_mul_f32 v{56+i}, v{56+i}, v{GR+i}"))
    for i in range(20): o.append(I(f"v_sub_f32 v{GR+i}, 1.0, v{GR+i}"))
    for j in range(7, NE - 1, -1):
        o.append(WAIT(f"fin_{j}", vm=[(("SL", j), 2)])); o += slot_add(E0, 12 * j, r="a")
    o.append(I("s_nop 3"))
    return o + fin_out()

def g2_last():
    if not cfg.inloop: return g2_last0()
    o = []; p = 8
    fs = fin_setup()
    yg = []
    for t in range(5):
        yg.append([I(f"s_or_b32 s61, s75, {t*4*2560}" if t >= 3 else f"s_mov_b32 s61, {t*4*2560}"), VM(f"buffer_load_dwordx2 v[{YR+2*t}:{YR+2*t+1}], v{V_YA0 if t == 0 else V_YA}, s[16:19], s61 offen sc1", ("YL", t))])
        yg.append(VM(f"buffer_load_dwordx4 v[{GR+4*t}:{GR+4*t+3}], v{V_GA}, s[16:19], {'s75' if t >= 3 else '0'} offen offset:{64*t} sc1", ("GL", t)))
    for g in range(4):
        ms = group_mfmas(2, range(4 * g, 4 * g + 4), 15); side = []
        if g == 0:
            for t, m in enumerate([m for m in ms if m.text.endswith(", 0")]): m.text = m.text[:-1] + f"v[{SUM+4*t}:{SUM+4*t+3}]"
        rd = []
        if g < 3:
            for s in range(4 * g + 4, 4 * g + 8): rd += trr(2, p, s)
            side += list(zip([1, 2, 4, 5, 6, 7, 9, 10] if g else [9, 10, 11, 12, 13, 14, 15, 16], rd))
        if g == 0:
            pp = p_parts(7)
            side.append((0, sample("S0")))
            side += list(zip([1, 1, 2, 2, 4, 4, 5, 5, 7, 7], pp[0][0] + pp[1][0] + pp[2][0]))
            side += [(3, pp[0][1]), (6, pp[1][1]), (8, pp[2][1])]
            side += spread(fs[:19], list(range(9, 19)))
            side.append((19, I(f"s_mov_b32 s35, {(1 << 5) | (0xfffff << 8)}")))
        if g == 1:
            side.append((0, [WAIT("g2z_b1", vm=cover(2, p, 8, 16)), BAR()]))
            side += spread(fs[19:40], list(range(1, 11)))
            side.append((11, [I(f"v_mov_b32 v{PK+10}, 0"), I(f"v_mov_b32 v{PK+11}, 0")]))
            side.append((12, [WAIT("g2z_s0", vm=["S0"])] + check("L_sp2")))
            side += list(zip([13, 14, 15], slot_loads(PK, "SL5", "s95"))) + list(zip([16, 17, 18, 19], yg[:4]))
        if g == 2:
            side += list(zip([0, 1, 2, 3, 4, 5], yg[4:]))
            side.append((cfg.stg, [WAIT("g2z_st", vm=[("PST", 7, 2)]), VM(f"buffer_store_dword v{V_TAG}, v{V_FLW}, s[16:19], s78 offen offset:2560 sc1", ("PFL", 7))]))
            side.append((11, slot_add(SUM, PBUF, True)))
            sn = slot_next(); side += [(12, sn[0]), (13, sn[1]), (14, I("s_mov_b32 s34, s95"))]
            sn = slot_next(); side += [(15, sn[0]), (16, sn[1]), (17, [I("s_movk_i32 s35, 0xc0"), I(f"v_mov_b32 v{V_POLL}, v255")])]
        if g == 3:
            side += spread(fs[40:], list(range(0, 20)))
            side.append((19, sample("S1")))
        if g < 3: side.append((19, WAIT(f"g2z_r{g}", lg=tags(rd))))
        o += place(ms, side)
    o += TS(7)
    o += T(f"v_mov_b32 v{PB2+10}, 0\nv_mov_b32 v{PB2+11}, 0")
    o.append(WAIT("fin_gl", vm=[("GL", 4)]))
    o += slot_add(SUM, PK)
    for t in range(5):
        for rho in range(4): o.append(I(f"v_perm_b32 v{56+4*t+rho}, v{YR+2*t+1}, v{YR+2*t}, v{SEL+rho}"))
    o.append(WAIT("fin_s1", vm=["S1"])); o += check("L_sp3")
    o += slot_loads(PB2, "SL7", "s95") + slot_loads(PBUF, "SL6", "s34")
    for i in range(20): o.append(I(f"v_add_f32 v{E0+i}, v{E0+i}, v{SUM+i}"))
    for i in range(20): o.append(I(f"v_mul_f32 v{56+i}, v{56+i}, v{GR+i}"))
    for i in range(20): o.append(I(f"v_sub_f32 v{GR+i}, 1.0, v{GR+i}"))
    o.append(WAIT("fin_7", vm=[("SL7", 2)])); o += slot_add(E0, PB2)
    o.append(WAIT("fin_6", vm=[("SL6", 2)])); o += slot_add(E0, PBUF)
    o.append(I("s_nop 3"))
    return o + fin_out()
def fin_out(Y=56):
    OF = ('', ' sc1', ' nt', ' sc0 sc1')[cfg.osc]
    o = []
    for t in range(5):
        for rho in range(4): o.append(I(f"v_fmac_f32 v{Y+4*t+rho}, v{E0+4*t+rho}, v{GR+4*t+rho}"))
        o += T(f"v_cvt_pk_bf16_f32 v{PK+2*t}, v{Y+4*t}, v{Y+4*t+1}\nv_cvt_pk_bf16_f32 v{PK+2*t+1}, v{Y+4*t+2}, v{Y+4*t+3}")
    o += T(f"v_mov_b32 v{PK+10}, 0\nv_mov_b32 v{PK+11}, 0")
    for t in range(5):
        a = V_SELA + (0 if t & 1 else 2); bb = PK + 4 * (t >> 1)
        o.append(mfma(ACC(t), f"v[{bb}:{bb+3}]", f"v[{a}:{a+3}]", "0"))
    o.append(I("s_nop 3"))
    for t in range(5):
        r = 16 + 4 * t
        o += T(f"v_cvt_pk_bf16_f32 v{56+2*t}, v{r}, v{r+1}\nv_cvt_pk_bf16_f32 v{57+2*t}, v{r+2}, v{r+3}")
        o.append(LG(f"ds_write_b64 v{OA}, v[{56+2*t}:{57+2*t}] offset:{2048*t}", ("OW", t), wr=(OUTL, OUTL + 10240)))
    o += [WAIT("out_w", lg="all"), BAR()]
    for k in range(3): o.append(LG(f"ds_read_b128 v[{68+4*k}:{71+4*k}], v{OA+1} offset:{4096*k}", ("OR", k), rd=(OUTL, OUTL + 10240)))
    for k in range(3):
        o += [WAIT(f"out_r{k}", lg=[("OR", k)]), I(f"buffer_store_dwordx4 v[{68+4*k}:{71+4*k}], v{OA+2+k}, s[24:27], 0 offen{OF}")]
    o += T(f"""
    s_or_b32 s68, s2, s3
    s_cmp_eq_u32 s68, 0
    s_cbranch_scc0 L_noepoch
    buffer_store_dword v{V_TAG}, v{V_FL}, s[16:19], 0 offen sc1
    L_noepoch:
    """)
    return o

def T(s): return [I(x.strip()) for x in s.strip().split("\n") if x.strip()]
def rowcalc(o, rho, d, tmp):
    return T(f"""
    v_cmp_eq_u32 vcc, 0, v{o}
    v_mov_b32 v{tmp}, 512
    v_add_u32 v{tmp+1}, 1, v{rho}
    v_cndmask_b32 v{tmp}, v{o}, v{tmp}, vcc
    v_cmp_lt_u32 vcc, 1, v{rho}
    v_sub_u32 v{tmp}, 0, v{tmp}
    v_lshrrev_b32 v{tmp+1}, 1, v{tmp+1}
    v_cndmask_b32 v{tmp}, v{o}, v{tmp}, vcc
    v_lshl_add_u32 v{d}, v{tmp+1}, 10, v{tmp}
    """)

def srd(b, p, n): return T(f"s_mov_b32 s{b}, s{p}\ns_mov_b32 s{b+1}, s{p+1}\ns_mov_b32 s{b+2}, {n}\ns_mov_b32 s{b+3}, 0x20000")

def code_pf(k):
    return T(f"""
    s_getpc_b64 s[68:69]
    L_pc{k}:
    s_sub_u32 s68, s68, L_pc{k}-{NAME}
    s_subb_u32 s69, s69, 0
    v_lshlrev_b32 v4, 7, v0
    v_min_u32 v4, L_end-{NAME}, v4
    v_mov_b32 v5, s69
    v_add_co_u32 v4, vcc, s68, v4
    s_nop 1
    v_addc_co_u32 v5, vcc, 0, v5, vcc
    global_load_dword v254, v[4:5], off
    """)
def prologue(dyn=False):
    o = T(f"""
    s_cmp_ge_u32 s2, 256
    s_cbranch_scc1 L_end
    s_load_dwordx16 s[36:51], s[0:1], 0
    s_load_dwordx8 s[52:59], s[0:1], 64
    """) + ((T("s_cmp_lt_u32 s2, 240\ns_cbranch_scc1 L_nopc") + ([] if dyn else code_pf("a")) + T("L_nopc:")) if cfg.pfc == 2 else []) + TS(0) + T(f"""
    v_lshrrev_b32 v4, 6, v0
    v_and_b32 v{V_L}, 63, v0
    v_readfirstlane_b32 s3, v4
    v_and_b32 v{V_C}, 15, v0
    v_bfe_u32 v{V_Q}, v0, 4, 2
    s_and_b32 s60, s2, 3
    s_bfe_u32 s61, s2, 0x10002
    s_lshr_b32 s62, s2, 3
    {"s_and_b32 s63, s2, 7" if cfg.bal else "s_nop 0"}
    {"s_cmp_ge_u32 s63, 6" if cfg.bal else "s_cmp_eq_u32 s60, 3"}
    s_cselect_b32 s63, 30, 29
    s_cmp_ge_u32 s62, s63
    s_cbranch_scc1 L_spare
    """)
    if cfg.map == 0:
        o += T("""
    s_mul_i32 s64, s60, 29
    s_add_u32 s64, s64, s62
    s_mul_i32 s5, s64, 5042
    s_lshr_b32 s5, s5, 16
    s_mul_i32 s65, s5, 13
    s_sub_u32 s64, s64, s65
    s_mul_i32 s4, s61, 13
    s_add_u32 s4, s4, s64
    """)
    elif cfg.map == 1:
        o += T("""
    s_mul_i32 s64, s61, 13
    s_mul_i32 s65, s60, 3
    s_add_u32 s64, s64, s65
    s_add_u32 s64, s64, s62
    s_sub_u32 s64, s64, 26
    s_and_b32 s65, s2, 7
    s_cmp_lt_u32 s62, 26
    s_cselect_b32 s4, s62, s64
    s_cselect_b32 s5, s65, 8
    """)
    else:
        o += T("""
    s_mul_i32 s65, s60, 3
    s_add_u32 s64, s65, s62
    s_sub_u32 s64, s64, 26
    s_lshl_b32 s5, s60, 1
    s_cmp_ge_u32 s62, 13
    s_cselect_b32 s65, 13, 0
    s_cselect_b32 s66, 1, 0
    s_add_u32 s5, s5, s66
    s_sub_u32 s4, s62, s65
    s_cmp_lt_u32 s62, 26
    s_cselect_b32 s4, s4, s64
    s_cselect_b32 s5, s5, 8
    s_mul_i32 s65, s61, 13
    s_add_u32 s4, s4, s65
    """)
        if cfg.bal: o += T("s_cmp_eq_u32 s2, 238\ns_cselect_b32 s4, 12, s4")
    o += T(f"""
    v_lshrrev_b32 v4, 3, v{V_L}
    v_bfe_u32 v5, v{V_L}, 4, 1
    v_lshrrev_b32 v6, 5, v{V_L}
    s_mul_i32 s65, s4, 20
    v_mul_u32_u24 v9, 511, v5
    v_add3_u32 v6, v6, v9, s65
    s_and_b32 s66, s3, 1
    s_lshl_b32 s66, s66, 2
    v_add_u32 v7, s66, v{V_Q}
    v_and_b32 v8, 7, v{V_L}
    v_xor_b32 v7, v7, v8
    v_lshlrev_b32 v7, 4, v7
    s_movk_i32 s67, 1152
    v_and_b32 v9, 3, v4
    v_add_u32 v9, 1, v9
    v_lshrrev_b32 v9, 1, v9
    v_lshlrev_b32 v9, 10, v9
    v_sub_u32 v9, v9, v5
    v_mad_u32_u24 v7, v9, s67, v7
    v_mul_u32_u24 v5, 2304, v5
    v_sub_u32 v5, 1152, v5
    s_bitcmp1_b32 s5, {0 if cfg.rev else 31}
    s_cselect_b32 s92, -1, 1
    s_cselect_b32 s79, 1024, 0
    s_cselect_b32 s34, {8*64*9216}, 0
    s_lshl_b32 s92, s92, 7
    s_lshl_b32 s93, s92, 1
    s_lshl_b32 s82, s3, 10
    s_add_u32 s82, s82, {XB}
    s_lshl_b32 s68, s3, 1
    """)
    for n in range(5):
        if n < 2: o += T(f"s_mov_b32 s{XH+n}, 0\ns_add_u32 s69, s68, {8*n}")
        elif n > 2: o += T(f"s_mov_b32 s{XH+n}, s92\ns_add_u32 s69, s68, {8*n-20}")
        else: o += T(f"s_cmp_ge_u32 s3, 2\ns_cselect_b32 s{XH+n}, s92, 0\ns_cselect_b32 s69, -4, 16\ns_add_u32 s69, s69, s68")
        o += T(f"""
        v_add_u32 v9, s69, v6
        v_and_b32 v9, 511, v9
        v_mad_i32_i24 v{V_XO+n}, v9, v5, v7
        """)
        if cfg.bal: o += T(f"s_add_u32 s69, s69, s65\ns_cmp_ge_u32 s69, 512\ns_cselect_b32 s69, {OOB}, 0\ns_add_u32 s{XH+n}, s{XH+n}, s69")
    o += T("s_waitcnt lgkmcnt(0)") + srd(12, 36, 2359296)
    return o
def setup1():
    return T(f"""
    s_load_dword s7, s[58:59], 0
    s_cmp_lt_u32 s3, 2
    s_cselect_b32 s20, s42, s44
    s_cselect_b32 s21, s43, s45
    s_mov_b32 s22, 663552
    s_mov_b32 s23, 0x20000
    s_and_b32 s68, s3, 1
    s_lshl_b32 s64, s62, 1
    s_add_u32 s64, s64, s68
    s_mul_i32 s64, s64, 15
    v_add_u32 v9, s64, v{V_L}
    s_mul_i32 s64, s60, {64*1152}
    v_lshlrev_b32 v5, 7, v9
    v_add_u32 v6, s64, v5
    v_add_u32 v5, {256*1152 - 576*128}, v5
    v_cmp_gt_u32 vcc, 576, v9
    v_mov_b32 v7, {OOB}
    s_mov_b32 s100, s60
    v_cndmask_b32 v5, v5, v6, vcc
    v_cmp_gt_u32 vcc, 15, v{V_L}
    s_mov_b32 s99, s62
    s_sub_u32 s83, s79, s92
    v_cndmask_b32 v{V_PFD}, v7, v5, vcc
    """)
def setup1b():
    return T(f"""
    s_mul_i32 s35, s92, {64*72}
    s_lshl_b32 s68, s5, 5
    s_lshl_b32 s69, s66, 2
    s_add_u32 s68, s68, s69
    v_add_u32 v9, s68, v4
    v_xor_b32 v7, v{V_Q}, v8
    v_lshlrev_b32 v7, 4, v7
    v_mad_u32_u24 v{V_ABA}, v9, s67, v7
    v_xor_b32 v7, 64, v7
    v_mad_u32_u24 v{V_ABB}, v9, s67, v7
    v_add_u32 v{V_ABB}, {8*1152-1024}, v{V_ABB}
    s_lshl_b32 s60, s3, 11
    """)

def setup2():
    o = srd(8, 48, 5308416) + (lambda x: x if cfg.pf1 & 2 else [])(T(f"""
    s_lshl_b32 s68, s99, 2
    s_add_u32 s68, s68, s3
    s_mul_i32 s68, s68, 5
    v_mul_u32_u24 v5, 43, v{V_L}
    v_lshrrev_b32 v5, 8, v5
    v_mul_u32_u24 v6, 6, v5
    v_sub_u32 v6, v{V_L}, v6
    v_add_u32 v5, s68, v5
    v_lshrrev_b32 v7, 1, v6
    v_and_b32 v6, 1, v6
    s_lshl_b32 s68, s100, 1
    v_cmp_eq_u32 vcc, 2, v7
    v_add_u32 v7, s68, v7
    v_mul_u32_u24 v5, 9216, v5
    v_cndmask_b32 v7, v7, 8, vcc
    v_lshl_add_u32 v5, v6, 7, v5
    v_cmp_gt_u32 vcc, 30, v{V_L}
    v_lshl_add_u32 v5, v7, 10, v5
    v_mov_b32 v6, {OOB}
    v_cndmask_b32 v{V_PF1}, v6, v5, vcc
    """)) + srd(16, 58, WS_SIZE)
    o += T(f"""
    v_lshrrev_b32 v4, 3, v{V_L}
    s_lshl_b32 s68, s3, 4
    v_add_u32 v4, s68, v4
    v_and_b32 v5, 1, v{V_Q}
    v_lshlrev_b32 v5, 1, v5
    v_and_b32 v8, 7, v{V_L}
    v_xor_b32 v5, v5, v8
    v_lshlrev_b32 v5, 4, v5
    v_xor_b32 v6, 64, v5
    s_movk_i32 s68, 9216
    v_mad_u32_u24 v{V_A}, v4, s68, v5
    v_mad_u32_u24 v{V_B}, v4, s68, v6
    v_add_u32 v{V_B}, {8*9216-1024}, v{V_B}
    v_mad_u32_u24 v{V_W2A}, v4, s67, v5
    v_mad_u32_u24 v{V_W2B}, v4, s67, v6
    v_bfe_u32 v4, v{V_L}, 2, 2
    v_and_b32 v5, 3, v{V_L}
    v_and_b32 v6, 1, v{V_Q}
    v_lshlrev_b32 v6, 1, v6
    v_lshrrev_b32 v7, 1, v4
    v_add_u32 v6, v6, v7
    v_xor_b32 v6, s3, v6
    v_lshlrev_b32 v6, 5, v6
    v_lshl_add_u32 v6, v{V_Q}, 10, v6
    v_lshl_add_u32 v6, v4, 7, v6
    v_lshl_add_u32 v{V_TR}, v5, 3, v6
    v_add_u32 v{V_TR2}, 0x10000, v{V_TR}
    v_lshrrev_b32 v4, 1, v{V_C}
    v_xor_b32 v4, v4, v{V_Q}
    v_lshlrev_b32 v4, 4, v4
    v_lshl_add_u32 v4, v{V_C}, 7, v4
    v_add_u32 v{V_XR0}, {XB}, v4
    v_xor_b32 v{V_XR1}, 64, v{V_XR0}
    v_add_u32 v{V_WR0}, s60, v4
    v_xor_b32 v{V_WR1}, 64, v{V_WR0}
    v_mov_b32 v{V_PATCH}, 0xbf803f80
    s_lshl_b32 s68, s5, 2
    s_or_b32 s68, s68, s3
    s_cmp_eq_u32 s68, 2
    s_cselect_b32 s76, 0x00010001, 0
    s_mov_b32 s77, s76
    s_cselect_b32 s69, 1, 0
    s_lshr_b32 s70, s3, 1
    """)
    o += T(f"""
    s_cmp_eq_u32 s70, 0
    s_cselect_b32 s71, 1.0, -1.0
    v_mov_b32 v{V_SIG}, s71
    s_cmp_eq_u32 s69, 1
    s_cselect_b32 s72, 16, 0
    v_cmp_gt_u32 vcc, s72, v{V_L}
    v_mov_b32 v4, 1.0
    v_and_b32 v5, 1, v{V_L}
    v_cndmask_b32 v{V_SIG0}, v{V_SIG}, v4, vcc
    s_cmp_eq_u32 s4, 0
    s_cselect_b32 s72, 4, 0
    v_cmp_gt_u32 vcc, s72, v{V_C}
    s_cselect_b32 s80, 8, 0
    v_lshlrev_b32 v5, 31, v5
    v_cndmask_b32 v{V_SIGT0}, v{V_SIG}, 0, vcc
    v_cndmask_b32 v{V_SIG0T0}, v{V_SIG0}, 0, vcc
    v_or_b32 v{V_TAU}, v4, v5
    s_cmp_eq_u32 s69, 1
    s_cselect_b32 s80, s80, 0
    s_mov_b32 s81, 0
    """)
    o += T(f"""
    v_lshrrev_b32 v4, 2, v{V_C}
    v_and_b32 v5, 3, v{V_C}
    s_mul_i32 s68, s3, 1792
    s_add_u32 s68, s68, {ABL}
    v_and_b32 v6, 1, v4
    v_mul_u32_u24 v6, 320, v6
    v_lshrrev_b32 v7, 1, v4
    v_lshl_add_u32 v6, v7, 5, v6
    v_lshl_add_u32 v9, v{V_Q}, 3, s68
    v_add_u32 v6, v6, v9
    v_add_u32 v7, 640, v6
    v_add_u32 v8, 1344, v9
    v_cmp_eq_u32 vcc, 1, v5
    v_add_u32 v9, 1280, v9
    s_lshl_b32 s71, s70, 1
    v_cndmask_b32 v{V_ABS}, v8, v7, vcc
    v_cmp_eq_u32 vcc, 0, v5
    s_add_u32 s71, s71, 1
    s_nop 0
    v_cndmask_b32 v{V_ABS}, v{V_ABS}, v6, vcc
    v_cndmask_b32 v8, v8, v6, vcc
    v_cmp_eq_u32 vcc, s71, v5
    s_nop 1
    v_cndmask_b32 v8, v8, v7, vcc
    v_cmp_eq_u32 vcc, 2, v5
    s_nop 1
    v_cndmask_b32 v8, v8, v9, vcc
    v_cmp_gt_u32 vcc, s72, v{V_C}
    s_cmp_eq_u32 s4, 25
    s_cselect_b32 s75, {OOB}, 0
    v_cndmask_b32 v{V_ABS0}, v{V_ABS}, v8, vcc
    s_mul_i32 s68, s5, 26
    s_add_u32 s68, s68, s4
    s_lshl_b32 s68, s68, 7
    s_add_u32 s68, s68, {WS_ABFLAG}
    v_cmp_gt_u32 vcc, 32, v0
    v_mov_b32 v8, {OOB}
    v_lshl_add_u32 v9, v0, 2, s68
    v_cndmask_b32 v{V_ABFL}, v8, v9, vcc
    v_cmp_eq_u32 vcc, 0, v{V_L}
    v_lshrrev_b32 v4, 3, v{V_L}
    v_mul_u32_u24 v4, {SL}, v4
    v_and_b32 v5, 7, v{V_L}
    v_lshl_add_u32 v{ABP+14}, v5, 4, v4
    v_cndmask_b32 v{V_FL}, v8, 0, vcc
    """)
    o += T(f"""
    s_mul_i32 s73, s4, {cfg.rot1}
    s_and_b32 s73, s73, {cfg.rmask}
    s_mov_b32 s101, s73
    s_lshl_b32 s73, s73, 7
    s_lshl_b32 s74, s5, 10
    s_add_u32 s74, s74, s34
    s_add_u32 s62, s73, s74
    s_mul_i32 s6, s4, {cfg.rot2}
    s_add_u32 s6, s6, s5
    s_mul_i32 s72, s6, 7282
    s_lshr_b32 s72, s72, 16
    s_mul_i32 s72, s72, 9
    s_sub_u32 s6, s6, s72
    s_add_u32 s72, s6, 1
    s_cmp_eq_u32 s72, 9
    s_cselect_b32 s72, 0, s72
    s_mul_i32 s63, s4, 9
    s_add_u32 s63, s63, s72
    s_lshl_b32 s72, s72, 7
    s_mul_i32 s78, s63, {8*SL}
    s_mul_i32 s63, s3, {WSL}
    s_add_u32 s78, s78, s63
    s_add_u32 s78, s78, {WS_PART}
    s_mov_b32 s63, 6
    s_waitcnt lgkmcnt(0)
    s_add_u32 s7, s7, 0x9e3779b9
    v_mov_b32 v{V_TAG}, s7
    v_not_b32 v{ABP+10}, s7
    v_not_b32 v{ABP+11}, s7
    v_not_b32 v{ABP+12}, s7
    v_not_b32 v{ABP+13}, s7
    """)
    return o

def setup3():
    o = srd(24, 54, 2359296) + srd(28, 50, 5308416) + T(f"""
    v_add_u32 v{V_W2B}, {8*1152-1024}, v{V_W2B}
    s_and_b32 s68, s3, 1
    s_lshl_b32 s68, s68, 9
    s_lshr_b32 s70, s3, 1
    s_mul_i32 s71, s70, 5120
    s_add_u32 s68, s68, s71
    s_add_u32 s68, s68, {HB}
    v_lshrrev_b32 v4, 1, v{V_Q}
    v_lshl_add_u32 v4, v4, 4, v{V_C}
    v_lshlrev_b32 v4, 4, v4
    v_and_b32 v5, 1, v{V_Q}
    v_lshl_add_u32 v4, v5, 3, v4
    v_add_u32 v{V_HW}, s68, v4
    v_lshlrev_b32 v{V_P16}, 4, v{V_L}
    v_lshlrev_b32 v{V_P8}, 3, v{V_L}
    v_add_u32 v{V_HR}, {HB}, v{V_P16}
    v_add_u32 v{V_HR2}, {HB+40960}, v{V_P16}
    """)
    o += T("s_lshl_b32 s99, s5, 3")
    if cfg.w0: o.append([I("s_cmp_eq_u32 s3, 0"), I("s_cselect_b32 s33, 6, -1")])
    if cfg.krot:
        o += T(f"""
        s_mul_i32 s94, s4, 43
        s_lshr_b32 s94, s94, 8
        s_mul_i32 s94, s94, 6
        s_sub_u32 s94, s4, s94
        s_mul_i32 s100, s94, 10240
        v_mov_b32 v{V_PF2}, v{V_HW}
        v_add_u32 v{V_HW}, s100, v{V_HW}
        s_sub_u32 s95, s101, s94
        """)
    for i in range(8):
        if cfg.krot and i < 6:
            o.append([I(f"s_cmp_gt_u32 s94, {i}"), I(f"s_cselect_b32 s{64+i}, {i+6}, {i}"), I(f"s_add_u32 s{64+i}, s{64+i}, s95")])
        else: o.append(I(f"s_add_u32 s{64+i}, s101, {i}"))
        o += T(f"""
        s_and_b32 s{64+i}, s{64+i}, 7
        s_add_u32 s{64+i}, s{64+i}, s99
        s_mul_i32 s{64+i}, s{64+i}, {64*1152}
        """)
    return o

def poll(lab, vaddr, nl):
    return T(f"""
    s_mov_b32 s63, {SPIN}
    v_cmp_le_u32 s[80:81], {nl}, v{V_L}
    {lab}:
    s_sleep {cfg.slp}
    buffer_load_dword v4, v{vaddr}, s[16:19], 0 offen sc1
    s_sub_u32 s63, s63, 1
    s_waitcnt vmcnt(0)
    v_cmp_eq_u32 vcc, s7, v4
    s_cmp_eq_u32 s63, 0
    s_cbranch_scc1 {lab}_out
    s_or_b64 vcc, vcc, s[80:81]
    s_cmp_eq_u64 vcc, -1
    s_cbranch_scc0 {lab}
    {lab}_out:
    """)

def ts_dump(fn=0):
    if not cfg.ts: return []
    if cfg.ts >= 100:
        if fn != (cfg.ts >= 200): return []
        return T("s_waitcnt vmcnt(0)") + TS(8) + (T(f"s_and_b32 s68, s2, 7\ns_cmp_lg_u32 s68, {cfg.hx}\ns_cbranch_scc1 L_end") if cfg.hx >= 0 else []) + T(f"""
        L_hold{fn}:
        s_memrealtime s[100:101]
        s_waitcnt lgkmcnt(0)
        s_sub_u32 s100, s100, s{tsr(cfg.ts % 100)}
        s_cmp_lt_u32 s100, 3000
        s_cbranch_scc1 L_hold{fn}
        """)
    if cfg.ts >= 10:
        return T(f"""
        L_hold{fn}:
        s_memrealtime s[100:101]
        s_waitcnt lgkmcnt(0)
        s_sub_u32 s100, s100, s84
        s_cmp_lt_u32 s100, {cfg.ts*100}
        s_cbranch_scc1 L_hold{fn}
        """)
    o = T("s_waitcnt vmcnt(0)") + TS(8) + T("s_waitcnt lgkmcnt(0)")
    for k in range(9): o.append(I(f"v_mov_b32 v{16+k}, s{tsr(k)}"))
    o += T(f"""
    s_getreg_b32 s68, hwreg(HW_REG_XCC_ID)
    v_mov_b32 v25, s68
    v_mov_b32 v26, 0
    v_mov_b32 v27, 0
    s_lshl_b32 s68, s2, 2
    s_add_u32 s68, s68, s3
    s_lshl_b32 s68, s68, 6
    s_add_u32 s68, s68, {WS_TS}
    v_cmp_eq_u32 vcc, 0, v{V_L}
    v_mov_b32 v4, {OOB}
    s_nop 0
    v_cndmask_b32 v4, v4, 0, vcc
    buffer_store_dwordx4 v[16:19], v4, s[16:19], s68 offen
    buffer_store_dwordx4 v[20:23], v4, s[16:19], s68 offen offset:16
    buffer_store_dwordx4 v[24:27], v4, s[16:19], s68 offen offset:32
    """)
    if cfg.ts == 2 and not fn:
        o += T(f"""
        v_lshlrev_b32 v5, 2, v{V_L}
        v_cmp_gt_u32 vcc, 16, v{V_L}
        v_mov_b32 v4, {OOB}
        s_lshl_b32 s69, s68, 2
        s_sub_u32 s69, s69, {4*WS_TS - WS_TS - 0x300000}
        buffer_store_dword v131, v5, s[16:19], s69 offen
        s_add_u32 s68, s68, 0x100000
        v_cndmask_b32 v4, v4, v5, vcc
        buffer_store_dword v130, v4, s[16:19], s68 offen
        s_add_u32 s68, s68, 0x100000
        buffer_store_dword v131, v4, s[16:19], s68 offen
        """)
    if cfg.ts != 3: return o
    o += T(f"""
    s_waitcnt vmcnt(0)
    v_not_b32 v16, v16
    v_cmp_eq_u32 vcc, 0, v0
    v_mov_b32 v4, {OOB}
    s_sleep 127
    s_sleep 127
    v_cndmask_b32 v4, v4, 0, vcc
    """) + srd(28, 56, 256)
    o.append(I("buffer_atomic_umax v16, v4, s[28:31], 0 offen"))
    for k in range(1, 9 if not fn else 8): o.append(I(f"buffer_atomic_umax v{16+k}, v4, s[28:31], 0 offen offset:{4*(k+8*fn)}"))
    return o

from fnet import fnet_code

def AL():
    if not cfg.al: return []
    return [I(f".p2alignl {(6, 6, 3, 5)[cfg.al - 1]}, 0xbf800000")] + ([I("s_nop 0")] if cfg.al == 2 else [])
def build():
    def dyn(hasx22, ep):
        d = prologue(True)
        d += ab_pass(hasx22)
        d += TS(2)
        for p in range(8):
            for g in range(6): d += g1_group(p, g, True)
        d += TS(4)
        d += g2_pass0()
        for p in range(1, 8):
            for g in range(4): d += g2_group(p, g, ep)
        d += g2_last()
        return d
    ds = [dyn(True, (3, 4, 5, 6, 7)), dyn(False, (3, 4, 5, 6, 7))] if cfg.ep2 == 2 else [dyn(True, (5, 7)), dyn(False, (6, 7))] if cfg.ep2 else [dyn(True, (5,)), dyn(False, (6,)), dyn(True, (7,))]
    rs = [resolve(d) for d in ds]
    mn = lambda l: None if all(x is None for x in l) else min(x for x in l if x is not None)
    res = {k: (mn([r[k][0] for r in rs]), mn([r[k][1] for r in rs])) for k in rs[0]}
    txt = lambda l: [wait_text(res, it.site) if it.kind == "wait" else it.text for it in l]
    for d in ds:
        check_lds(d, res); check_loads(txt(d)); check_hazards(txt(d)); check_scc(txt(d))
    st = prologue()
    st += ab_pass(True)
    st += TS(2)
    for g in range(6): st += g1_group(0, g)
    st += TS(3) + AL() + [I("L_g1:")]
    for g in range(6): st += g1_group(1, g)
    st.append(I("s_cbranch_scc1 L_g1"))
    for g in range(6): st += g1_group(7, g)
    st += TS(4)
    st += g2_pass0() + TS(5) + AL() + [I("L_g2:")]
    for g in range(4): st += g2_group(1, g)
    st.append(I("s_cbranch_scc1 L_g2"))
    st += TS(6)
    st += g2_last() + ts_dump() + [I("s_endpgm")] + (([I("L_fs:")] + fs_block() + [I("s_branch L_fs_ret")]) if cfg.fse else []) + [I("L_once1:")] + ab_once(1) + [I("s_branch L_once1_ret")] + (spin("L_sp1", "s34") if cfg.inloop else (([I("L_ep0:")] + ep_block(0) + [I("s_branch L_ep0_ret"), I("L_ep1:")] + ep_block(1) + [I("s_branch L_ep1_ret")] + [I(x.text.replace(f"v{V_POLL},", f"v{V_POLLE},")) for x in spin("L_sp1", "s79" if cfg.ep2 == 2 else None)]) if cfg.early else [])) + spin("L_sp2") + (([I(x.text.replace("vcc_lo", "s80").replace("vcc", "s[80:81]")) for x in spin("L_sp3", "s93" if cfg.fse else "s70")] + (spin("L_sp4", "s95" if cfg.fse else "s71") if cfg.chk7 == 2 else spin7())) if cfg.chk7 else spin("L_sp3"))
    fn, idle = fnet_code(sys.modules[__name__])
    check_loads([it.text for it in fn]); check_hazards([it.text for it in fn]); check_scc([it.text for it in fn])
    st += fn + ts_dump(1) + [I("L_end:"), I("s_endpgm")] + idle
    if cfg.trace:
        ns = []; k = 0
        for it in st:
            ns.append(it)
            if it.kind == "wait" and it.site and re.match(r"(ab_rw\d|ab_r\d|ab_x\d|ab_b0|g1_r\d[az]|g20_r\d|g2z_r\d|g2z_st|g2z_s0|fin_)", it.site):
                ns += [I("s_waitcnt lgkmcnt(0)"), I(f"v_writelane_b32 v131, s32, {k}"), I("s_memtime s[32:33]")]; k += 1
                print(k, it.site, file=sys.stderr, end="; ")
            if it.text == "L_noepoch:": ns += [I("s_waitcnt lgkmcnt(0)"), I(f"v_writelane_b32 v131, s32, {k}")]
        st = ns
    if cfg.strip:
        a = [i for i, it in enumerate(st) if it.text == "L_g1:"][0]; b = [i for i, it in enumerate(st) if it.text == "s_cbranch_scc1 L_g2"][0]
        def drop(it):
            t = it.text or ""
            if cfg.strip & 1 and t.endswith(" lds"): return True
            if cfg.strip & 2 and (t.startswith(("v_cvt_pk", "v_pk_max", "ds_write")) or "s78 offen" in t): return True
            if cfg.strip & 4 and t == "s_barrier": return True
            if cfg.strip & 8 and it.kind == "wait" and it.need_vm: return True
            if cfg.strip & 16 and t.startswith("ds_read_b64_tr"): return True
            if cfg.strip & 32 and (t.startswith("ds_write") or "s78 offen" in t): return True
            if cfg.strip & 64 and t.startswith(("v_cvt_pk", "v_pk_max")): return True
            if cfg.strip & 128 and t.startswith("buffer_store_dword "): return True
            if cfg.strip & 1024 and it.kind == "wait" and it.need_lg and it.site not in ("g1_r2", "g2_r1"): return True
            if cfg.strip & 256 and "s78 offen" in t: it.text = t.replace(" sc1", "")
            if cfg.strip & 512 and "s78 offen" in t: it.text = t.replace(" sc1", " sc1 nt")
            return False
        st = st[:a] + [it for it in st[a:b] if not drop(it)] + st[b:]
    head = open("gated_mix__spectral_fnet__dense_activation_relu__prompt.s.ref").read().split("; Override launch")[0]
    out = head + "; @launch grid=(256,1,1) block=(256,1,1) lds=163840\n"
    out += f'.amdgcn_target "amdgcn-amd-amdhsa--gfx950"\n.text\n.globl {NAME}\n.p2align 8\n.type {NAME},@function\n{NAME}:\n'
    out += "\n".join(("" if (x.endswith(":") or x.startswith(".")) else "    ") + x for x in txt(st)) + "\n"
    out += f""".section .rodata,"a"
.p2align 6
.amdhsa_kernel {NAME}
  .amdhsa_next_free_vgpr 512
  .amdhsa_next_free_sgpr 102
  .amdhsa_accum_offset 256
  .amdhsa_group_segment_fixed_size 0
  .amdhsa_kernarg_size 96
  .amdhsa_user_sgpr_count 2
  .amdhsa_user_sgpr_kernarg_segment_ptr 1
  .amdhsa_system_sgpr_workgroup_id_x 1
.end_amdhsa_kernel
"""
    return out, res

if __name__ == "__main__":
    sys.modules["gen"] = sys.modules[__name__]
    outp = sys.argv[1]
    for a in sys.argv[2:]:
        k, v = a.split("="); setattr(cfg, k, int(v))
    WSL = cfg.wsl; SL = 4 * WSL
    out, res = build()
    open(outp, "w").write(out)
    print(res)
```

```python
import sys
from asmlib import *
NAME = "gated_mix__spectral_fnet__dense_activation_relu__prompt_kernel"
WS_PF, WS_ABFLAG, WS_YFLAG, WS_GT, WS_XS = 0x20000, 0x20000, 0xA000, 0x10000, 0x13000
WS_ABF, WS_YT, WS_PART, WS_TS, WS_SIZE = 0x100000, 0x280000, 0x400000, 0x2000000, 0x3000000
OOB = 0x40000000
WSL, SL = 3584, 14336
XB, HB = 71680, 81920
SPIN = 1 << 20

class Cfg:
    ts = False
    L2 = 12
    rot1 = 3
    chain = 0
    strip = 0
    pp = 0
    g2t = 3
    fse = 0
    st1 = 0
    s2g = 19
    fg1 = 9
    fgg = 1
    w0 = 0
    rmask = 7
    r8 = 0
    krot = 0
    pfc2 = 0
    al = 0
    wsl = 3584
    hx = -1
    slp2 = 2
    g20v = 0
    pfc = 1
    pfo = 0
    gl = 0
    bal = 1
    p0v = 1
    ep2 = 1
    epg = 5
    chk7 = 2
    s6g = 3
    flg = 4
    u0 = 7
    npre = 2
    abv = 0
    early = 3
    epm = 3
    rot2 = 2
    tag7 = 0
    stg = 2
    rdp = 0
    hw = 1
    hg = 9
    ne = 6
    inloop = 0
    osc = 1
    pt = 1
    trace = 0
    slp = 16
    map = 2
    pf1 = 1
    rev = 1
    pf2 = 0
    noab = 0
    pfs = 3
    warmfl = 1
    stspread = 1
    fake = 0
cfg = Cfg()

ACC = lambda t: f"v[{16+4*t}:{19+4*t}]"
EE = lambda t: f"v[{36+4*t}:{39+4*t}]"
E0 = 36
FB = lambda b: 56 + 4 * b
PK = 88
def act(i):
    return f"a[{4*i}:{4*i+3}]" if i < 64 else f"v[{152+4*(i-64)}:{155+4*(i-64)}]"
V_A, V_B = 10, 11
V_W2A, V_W2B = 12, 13
V_TR, V_TR2 = 14, 15
V_XO = 100
V_ABA, V_ABB = 105, 106
V_XR0, V_XR1 = 107, 108
V_WR0, V_WR1 = 109, 110
V_PATCH = 111
V_HW = 112
V_HR, V_HR2 = 113, 114
V_SIG, V_SIG0, V_SIGT0, V_SIG0T0, V_TAU = 115, 116, 117, 118, 119
V_ABS, V_ABS0 = 120, 121
V_ABFL = 122
V_TAG = 123
V_P16, V_P8 = 124, 125
V_FL = 126
V_POLL = 127
V_PFD, V_PF1, V_PF2, V_DUM = 132, 133, 134, 135
XH = 94
V_L, V_C, V_Q = 1, 2, 3

def mfma(d, a, b, c): return I(f"v_mfma_f32_16x16x32_bf16 {d}, {a}, {b}, {c}")
def place(ms, side):
    gaps = [[] for _ in ms]
    for g, it in side:
        gaps[g] += it if isinstance(it, list) else [it]
    out = []
    for m, g in zip(ms, gaps):
        out.append(m); out += g
    return out
def spread(items, gaps):
    n = len(items); k = len(gaps)
    return [(gaps[i * k // n], it) for i, it in enumerate(items)]

tsn = [0]
def tsr(k): return 84 + 2 * k if k < 4 else 36 + 2 * (k - 4)
def TS(k):
    if not cfg.ts: return []
    return [I(f"{'s_memtime' if cfg.ts == 2 else 's_memrealtime'} s[{tsr(k)}:{tsr(k)+1}]")]

def wslot(ph, p, s):
    if ph == 2: return ((p & 1) * 16 + s) * 4096
    return s * 4096
def wdma(ph, p, s):
    P, b = s >> 1, s & 1
    pre = []
    if b == 0:
        pre.append(I(f"s_add_u32 m0, s60, {P*8192}"))
        pre.append(I(f"s_add_u32 s61, s62, s{64+P}" if ph == 2 else ("s_add_u32 s61, s61, s35" if P else "s_mov_b32 s61, s62")))
    lo = wslot(ph, p, 2 * P)
    v, sr = (V_W2A, "s[28:31]") if ph == 2 else (V_A, "s[8:11]")
    return pre, VM(f"buffer_load_dwordx4 v{v+b}, {sr}, s61 offen offset:{1024*b} lds", ("W", ph, p, s), wr=(lo, lo + 8192))
def cover(ph, p, lo, hi): return [("W", ph, p, s) for s in range(lo, hi)]
def nf(ph): return 8 if ph == 2 else 6
def trr(ph, p, s):
    b = FB(s % nf(ph)); o = s * 4096; vr = V_TR
    if o >= 65536: o -= 65536; vr = V_TR2
    lo = wslot(ph, p, s)
    return [LG(f"ds_read_b64_tr_b16 v[{b+2*h}:{b+2*h+1}], v{vr} offset:{o+512*h}", ("R", ph, p, s, h), rd=(lo, lo + 4096)) for h in range(2)]
def group_mfmas(ph, steps, last):
    ms = []
    order = [(t, s) for t in range(5) for s in steps] if cfg.chain else [(t, s) for s in steps for t in range(5)]
    for t, s in order:
        if True:
            d = EE(t) if s == last else ACC(t)
            c = "0" if s == 0 else ACC(t)
            b = FB(s % nf(ph)); w = f"v[{b}:{b+3}]"
            ms.append(mfma(d, act(s * 5 + t), w, c) if ph == 2 else mfma(d, w, act(s * 5 + t), c))
    return ms

def xdma(n):
    pre = [I("s_add_u32 s79, s79, s93")] if (n % 5 == 0 and n) else []
    return pre + [I(f"s_add_u32 m0, s82, {n*4096}"), I(f"s_add_u32 s61, s79, s{XH+n%5}"),
            VM(f"buffer_load_dwordx4 v{V_XO+n%5}, s[12:15], s61 offen lds", ("X", n), wr=(XB + (n // 5) * 20480, min(XB + (n // 5 + 1) * 20480, 163840)))]
def abdma(P):
    lo = P * 8192
    return [I(f"s_add_u32 m0, s60, {lo}"), I("s_add_u32 s83, s83, s92"),
            VM(f"buffer_load_dwordx4 v{V_ABA}, s[20:23], s83 offen lds", ("WAB", P, 0), wr=(lo, lo + 8192)),
            VM(f"buffer_load_dwordx4 v{V_ABB}, s[20:23], s83 offen offset:1024 lds", ("WAB", P, 1), wr=(lo, lo + 8192))]
def wreads(P):
    out = []
    if P == 4: out += [I(f"v_add_u32 v{V_WR0}, 32768, v{V_WR0}"), I(f"v_add_u32 v{V_WR1}, 32768, v{V_WR1}")]
    Pp = P - 4 if P >= 4 else P
    for h in range(2):
        s = 2 * P + h; b = FB(s % 6)
        out.append(LG(f"ds_read_b128 v[{b}:{b+3}], v{V_WR0+h} offset:{Pp*8192}", ("RAB", s)))
    return out
def xreads(P):
    out = []
    if P == 4: out += [I(f"v_add_u32 v{V_XR0}, 40960, v{V_XR0}"), I(f"v_add_u32 v{V_XR1}, 40960, v{V_XR1}")]
    Pp = P - 4 if P >= 4 else P
    for t in range(5):
        for h in range(2):
            s = 2 * P + h; lo = XB + (P * 10 + 2 * t) * 1024
            out.append(LG(f"ds_read_b128 {act(s*5+t)}, v{V_XR0+h} offset:{(Pp*10+2*t)*1024}", ("RX", s, t), rd=(lo, lo + 2048)))
    return out
def patch(P):
    return [I(f"v_cndmask_b32 v{FB(s%6)+e}, v{FB(s%6)+e}, v{V_PATCH}, s[76:77]") for s in (2 * P, 2 * P + 1) for e in range(4)]
def xg(g, lastx): return [("X", n) for n in range(5 * g, min(5 * g + 5, lastx + 1))]

def cut(su, n):
    while su[n].text.startswith(("s_cselect", "v_c")) or su[n - 1].text.startswith(("s_cmp", "s_cselect", "v_c")): n += 1
    return n
def ab_pass(hasx22):
    lastx = 22 if hasx22 else 21
    o = []
    pf = lambda v, sr, off, tag: [VM(f"buffer_load_dword v{V_DUM}, v{v}, {sr}, 0 offen offset:{off}", tag)]
    Xr = lambda a, b: sum((xdma(n) for n in range(a, b)), [])
    TP = lambda n, vm=None: [WAIT(f'ab_x9{n}', vm=vm)] if cfg.trace else []
    if cfg.abv == 2:
        o += Xr(0, 5) + setup1() + setup1b() + abdma(0) + abdma(1)
        if cfg.pf1 & 1: o += pf(V_PFD, "s[20:23]", 0, "PFD")
        o += setup2()
        if cfg.pt & 1: o.append(VM(f"buffer_load_dword v{V_DUM}, v{V_ABFL}, s[16:19], 0 offen sc1", "PT0"))
        return o + ab_tail2(hasx22, Xr)
    o += TP(0) + Xr(0, 5) + setup1()
    if cfg.pf1 & 1: o += pf(V_PFD, "s[20:23]", 0, "PFD")
    o += Xr(5, 8) + TP(1) + setup1b() + setup2() + TP(2)
    if cfg.trace == 2: o += TP(3, [('X', 0)]) + TP(4, [('X', 4)]) + TP(5, [('X', 7)])
    if cfg.pf1 & 2: o += pf(V_PF1, "s[8:11]", 0, "PFA")
    if cfg.pt & 1: o.append(VM(f"buffer_load_dword v{V_DUM}, v{V_ABFL}, s[16:19], 0 offen sc1", "PT0"))
    if cfg.pt & 8:
        o += srd(24, 54, 2359296) + srd(28, 50, 5308416) + T(f"""
        s_lshl_b32 s68, s2, 7
        v_lshl_add_u32 v4, v0, 16, s68
        """) + [VM(f"buffer_load_dword v{V_DUM}, v4, s[24:27], 0 offen", "PT2"), VM(f"buffer_load_dword v{V_DUM}, v4, s[28:31], 0 offen", "PT3")]
    if cfg.pt & 2: o.append(VM(f"buffer_store_dword v{ABP+10}, v{V_ABFL}, s[16:19], 0 offen sc1", "PT1"))
    if cfg.pt & 4: o.append(VM(f"buffer_store_dwordx4 v[{ABP+10}:{ABP+13}], v{ABP+14}, s[16:19], s78 offen offset:2560 sc1", "WARMFL"))
    if cfg.abv == 1: return o + ab_tail1(hasx22, Xr)
    o += Xr(8, 17)
    o += [WAIT("ab_b0", vm=xg(0, lastx)), BAR()] + TS(1) + xreads(0) + Xr(17, 20) + xreads(1)
    o += xdma(20) + xdma(21) + [I("s_cmp_lt_u32 s3, 2"), I("s_cbranch_scc0 L_nox22")] + (xdma(22) if hasx22 else []) + [I("L_nox22:")]
    o += [WAIT("ab_x1", vm=xg(1, lastx)), BAR()] + abdma(0) + xreads(2) + abdma(1) + abdma(2) + xreads(3) + abdma(3) + abdma(4)
    o += [WAIT("ab_x4", vm=xg(4, lastx) + [("WAB", 0, 1)], lg=[("RX", 1, 0)]), BAR()] + wreads(0) + abdma(5)
    o.append(WAIT("ab_r0", lg=[("RAB", 1)])); o += patch(0); o.append(I("s_nop 1"))
    for g in range(9):
        ms = group_mfmas(0, (2 * g, 2 * g + 1), 17)
        side = []
        if g < 8:
            side.append((0, WAIT(f"ab_w{g}", vm=[("WAB", g + 1, 1)])))
            side += spread(wreads(g + 1), [0, 1])
            if g < 5: side += spread(xreads(g + 4), [1, 2, 3, 4, 5, 7, 8, 9])
        else:
            side.append((0, [WAIT("ab_b8", vm=cover(1, 0, 0, 6)), BAR()]))
            side += spread(trr(1, 0, 0) + trr(1, 0, 1) + trr(1, 0, 2), [1, 2, 3, 4, 5, 6])
        d = []
        if g == 0: d = [abdma(6)[:3], abdma(6)[3:], abdma(7)[:3], abdma(7)[3:]]
        if g == 1: d = [abdma(8)[:3], abdma(8)[3:]]
        sl = {0: (), 1: (0, 1), 2: (2, 3, 4), 3: (5, 6, 7), 4: (8, 9), 5: (10, 11), 6: (12, 13), 7: (14,), 8: ()}[g]
        for s in sl:
            pre, dm = wdma(1, 0, s); dm.wr = None
            d.append(pre + [dm])
        if d: side += spread(d, [2, 3, 4, 5])
        if g in (5, 6, 7): side += list(zip([1, 3, 5, 9, 9], ab_gaddr()[(g - 5) * 5:(g - 4) * 5]))
        if g < 8:
            side.append((6, WAIT(f"ab_rw{g}", lg=[("RAB", 2 * g + 3)])))
            side += spread(patch(g + 1), [6, 7, 8])
            side.append((9, I("s_nop 0")))
        else: side.append((9, WAIT(f"ab_r9", lg="all")))
        o += place(ms, side)
    return o

def ab_tail2(hasx22, Xr):
    lastx = 22 if hasx22 else 21
    x22 = [I("s_cmp_lt_u32 s3, 2"), I("s_cbranch_scc0 L_nox22")] + (xdma(22) if hasx22 else []) + [I("L_nox22:")]
    sp = lambda l: [l[:3], l[3:]]
    X = lambda a, b: [xdma(n) for n in range(a, b)]
    q = X(5, 10) + sp(abdma(2)) + sp(abdma(3)) + X(10, 15) + sp(abdma(4)) + sp(abdma(5)) + X(15, 20) + sp(abdma(6)) + sp(abdma(7)) + X(20, 22) + [x22] + sp(abdma(8))
    for s in range(15):
        pre, dm = wdma(1, 0, s); dm.wr = None
        q.append(pre + [dm])
    u0 = cfg.u0
    o = sum(q[:u0], [])
    o += [WAIT("ab_b0", vm=xg(0, lastx) + [("WAB", 0, 1)]), BAR()] + TS(1) + wreads(0) + xreads(0) + sum(q[u0:u0 + 4], [])
    o.append(WAIT("ab_r0", lg="all")); o += patch(0); o.append(I("s_nop 1"))
    rest = q[u0 + 4:]
    per = [len(rest) * (g + 1) // 8 for g in range(8)]
    for g in range(9):
        ms = group_mfmas(0, (2 * g, 2 * g + 1), 17)
        side = []
        if g < 8:
            need = [("WAB", g + 1, 1)]
            if g % 2: side.append((0, [WAIT(f"ab_x{g}", vm=need + xg((g + 1) // 2, lastx)), BAR()]))
            else: side.append((0, WAIT(f"ab_w{g}", vm=need)))
            side += spread(wreads(g + 1), [0, 0]) + spread(xreads(g + 1), [0, 1, 1, 2, 2, 3, 4])
            side += spread(rest[(per[g - 1] if g else 0):per[g]], [3, 4, 5, 6, 7, 8])
            side.append((6, WAIT(f"ab_rw{g}", lg=[("RAB", 2 * g + 3)])))
            side += spread(patch(g + 1), [6, 7, 8])
        else:
            side.append((0, [WAIT("ab_b8", vm=cover(1, 0, 0, 6)), BAR()]))
            side += spread(trr(1, 0, 0) + trr(1, 0, 1) + trr(1, 0, 2), [1, 2, 3, 4, 5, 6])
        if g in (6, 7, 8): side += list(zip([5, 5, 9, 9, 9] if g < 8 else [2, 4, 7, 8, 8], ab_gaddr()[(g - 6) * 5:(g - 5) * 5]))
        side.append((9, WAIT(f"ab_r{g+1}", lg="all")))
        o += place(ms, side)
    return o
def ab_tail1(hasx22, Xr):
    lastx = 22 if hasx22 else 21
    x22 = [I("s_cmp_lt_u32 s3, 2"), I("s_cbranch_scc0 L_nox22")] + (xdma(22) if hasx22 else []) + [I("L_nox22:")]
    o = Xr(8, 10) + abdma(0) + abdma(1) + Xr(10, 15)
    o += [WAIT("ab_b0", vm=xg(0, lastx)), BAR()] + TS(1) + xreads(0) + abdma(2) + abdma(3) + xreads(1) + Xr(15, 18)
    o += [WAIT("ab_x1", vm=xg(1, lastx) + [("WAB", 0, 1)], lg=[("RX", 1, 0)]), BAR()] + wreads(0) + Xr(18, 20)
    o.append(WAIT("ab_r0", lg=[("RAB", 1)])); o += patch(0); o.append(I("s_nop 1"))
    sp = lambda l: [l[:3], l[3:]]
    dl = {0: sp(abdma(4)) + sp(abdma(5)), 1: [xdma(20), xdma(21), x22] + sp(abdma(6)), 2: sp(abdma(7)) + sp(abdma(8))}
    sl = {3: (0, 1, 2, 3), 4: (4, 5, 6, 7), 5: (8, 9, 10), 6: (11, 12, 13), 7: (14,)}
    for g in range(9):
        ms = group_mfmas(0, (2 * g, 2 * g + 1), 17)
        side = []
        if g < 8:
            need = [("WAB", g + 1, 1)]
            if g in (2, 4, 6): side.append((0, [WAIT(f"ab_x{g}", vm=need + xg(g // 2 + 1, lastx)), BAR()]))
            else: side.append((0, WAIT(f"ab_w{g}", vm=need)))
            side += spread(wreads(g + 1), [0, 1])
            if g < 7: side += spread(xreads(g + 2), [1, 2, 3, 4, 5, 7, 8, 9])
        else:
            side.append((0, [WAIT("ab_b8", vm=cover(1, 0, 0, 6)), BAR()]))
            side += spread(trr(1, 0, 0) + trr(1, 0, 1) + trr(1, 0, 2), [1, 2, 3, 4, 5, 6])
        d = list(dl.get(g, []))
        for s in sl.get(g, ()):
            pre, dm = wdma(1, 0, s); dm.wr = None
            d.append(pre + [dm])
        if d: side += spread(d, [2, 3, 4, 5])
        if g in (6, 7, 8): side += list(zip([1, 3, 5, 9, 9] if g < 8 else [2, 4, 7, 8, 8], ab_gaddr()[(g - 6) * 5:(g - 5) * 5]))
        if g < 8:
            side.append((6, WAIT(f"ab_rw{g}", lg=[("RAB", 2 * g + 3)])))
            side += spread(patch(g + 1), [6, 7, 8])
            side.append((9, I("s_nop 0")))
        else: side.append((9, WAIT(f"ab_r9", lg="all")))
        o += place(ms, side)
    return o

ABP = 136
OUTL = 135168
ABL = 73728
V_ABR, V_ABG0, V_ABG1 = 100, 101, 102
def ab_epilogue():
    o = []
    for t in range(5):
        r = E0 + 4 * t
        sg = (V_SIG0T0, V_SIGT0) if t == 0 else (V_SIG0, V_SIG)
        for e in range(4): o.append(I(f"v_fmac_f32_dpp v{r+e}, v{r+e}, v{sg[0] if e == 0 else sg[1]} quad_perm:[3,2,1,0] row_mask:0xf bank_mask:0xf"))
        for e in range(4): o.append(I(f"v_fmac_f32_dpp v{r+e}, v{r+e}, v{V_TAU} quad_perm:[1,0,3,2] row_mask:0xf bank_mask:0xf"))
        if t == 0:
            o.append(I(f"v_mov_b32_dpp v{PK+10}, v{r} quad_perm:[0,1,2,1] row_mask:0xf bank_mask:0xf"))
            o.append(I(f"v_cndmask_b32 v{r}, v{r}, v{PK+10}, s[80:81]"))
        o.append(I(f"v_cvt_pk_bf16_f32 v{ABP+2*t}, v{r}, v{r+1}"))
        o.append(I(f"v_cvt_pk_bf16_f32 v{ABP+2*t+1}, v{r+2}, v{r+3}"))
    return o
def ab_gaddr():
    A = lambda x: T(x)
    return [A(f"s_lshr_b32 s68, s5, 1\ns_lshl_b32 s68, s68, 17\ns_lshr_b32 s70, s3, 1"),
            A(f"s_lshl_b32 s71, s70, 16\ns_add_u32 s68, s68, s71\ns_mul_i32 s71, s4, 320"),
            A(f"s_add_u32 s68, s68, s71\ns_and_b32 s71, s5, 1\ns_lshl_b32 s71, s71, 14"),
            A(f"s_add_u32 s68, s68, s71\ns_and_b32 s71, s3, 1\ns_lshl_b32 s69, s71, 13"),
            A(f"s_add_u32 s68, s68, s69\ns_add_u32 s68, s68, {WS_ABF}\ns_lshl_b32 s71, s71, 5"),
            A(f"s_lshl_b32 s69, s5, 6\ns_add_u32 s69, s69, s71\ns_lshl_b32 s70, s70, 10"),
            A(f"s_add_u32 s69, s69, s70\ns_add_u32 s69, s69, {WS_XS - 320}\nv_mul_u32_u24 v4, 13, v{V_L}"),
            A(f"v_lshrrev_b32 v4, 8, v4\nv_mul_u32_u24 v5, 20, v4\nv_sub_u32 v5, v{V_L}, v5"),
            A(f"v_and_b32 v6, 1, v4\nv_lshlrev_b32 v6, 15, v6\nv_lshrrev_b32 v7, 1, v4\nv_mul_u32_u24 v7, {5*131072}, v7"),
            A(f"v_lshl_add_u32 v6, v5, 4, v6\nv_add3_u32 v6, v6, v7, s68\ns_cmp_eq_u32 s4, 25\ns_cselect_b32 s70, 12, 20"),
            A(f"v_cmp_gt_u32 vcc, s70, v5\nv_mov_b32 v8, {OOB}\nv_lshlrev_b32 v7, 4, v{V_L}\nv_cndmask_b32 v6, v8, v6, vcc"),
            A(f"v_cmp_gt_u32 vcc, 60, v{V_L}\ns_add_u32 s68, s68, {5*131072 + 32768}\nv_add_u32 v9, s68, v7\nv_cndmask_b32 v{V_ABG0}, v8, v6, vcc"),
            A(f"v_cmp_gt_u32 vcc, s70, v{V_L}\nv_add_u32 v6, s69, v7\nv_lshrrev_b32 v5, 1, v{V_L}\nv_cndmask_b32 v9, v8, v9, vcc"),
            A(f"s_cmp_eq_u32 s4, 0\ns_cselect_b32 s70, 10, -1\nv_cmp_eq_u32 vcc, s70, v5\ns_mul_i32 s68, s3, 1792"),
            A(f"s_add_u32 s68, s68, {ABL}\nv_add_u32 v{V_ABR}, s68, v7\nv_cndmask_b32 v{V_ABG1}, v9, v6, vcc")]
def ab_once(which):
    if which == 2:
        return [LG(f"ds_write_b64 v{V_ABS0 if t == 0 else V_ABS}, v[{ABP+2*t}:{ABP+2*t+1}] offset:{64*t}", ("ABW", t)) for t in range(5)]
    if which == 3:
        return [LG(f"ds_read_b128 v[{PK}:{PK+3}], v{V_ABR}", ("ABR", 0)), LG(f"ds_read_b128 v[{PK+4}:{PK+7}], v{V_ABR} offset:960", ("ABR", 1))]
    if which == 0:
        o = [VM(f"buffer_store_dwordx4 v[{PK}:{PK+3}], v{V_ABG0}, s[16:19], 0 offen sc1", ("ABST", 0)),
             VM(f"buffer_store_dwordx4 v[{PK+4}:{PK+7}], v{V_ABG1}, s[16:19], 0 offen sc1", ("ABST", 4))]
        if cfg.warmfl:
            o += [VM(f"buffer_store_dwordx4 v[{ABP+10}:{ABP+13}], v{ABP+14}, s[16:19], s78 offen offset:2560 sc1", "WARMFL")]
        return o
    return [VM(f"buffer_store_dword v{V_TAG}, v{V_ABFL}, s[16:19], 0 offen sc1", "ABFL")]
def h_tile(p, t):
    r = E0 + 4 * t; d = PK + 2 * t
    lo = HB + p * 10240
    return ([I(f"v_cvt_pk_bf16_f32 v{d}, v{r}, v{r+1}"), I(f"v_cvt_pk_bf16_f32 v{d+1}, v{r+2}, v{r+3}")],
            [I(f"v_pk_max_i16 v{d}, v{d}, 0"), I(f"v_pk_max_i16 v{d+1}, v{d+1}, 0")],
            LG(f"ds_write_b64 v{V_HW}, v[{d}:{d+1}] offset:{1024*t}", ("HW", p, t), wr=(lo + (2048 if p < 0 else 0), lo + 10240)))
def p_parts(p):
    cv = [I(f"v_cvt_pk_bf16_f32 v{PK+i}, v{E0+2*i}, v{E0+2*i+1}") for i in range(10)]
    st = [VM(f"buffer_store_dwordx4 v[{PK}:{PK+3}], v{V_P16}, s[16:19], s78 offen sc1", ("PST", p, 0)),
          VM(f"buffer_store_dwordx4 v[{PK+4}:{PK+7}], v{V_P16}, s[16:19], s78 offen offset:1024 sc1", ("PST", p, 1)),
          VM(f"buffer_store_dwordx2 v[{PK+8}:{PK+9}], v{V_P8}, s[16:19], s78 offen offset:2048 sc1", ("PST", p, 2))]
    return [(cv[:4], st[0]), (cv[4:8], st[1]), (cv[8:], st[2])]
def hreads(s):
    o = []
    for t in range(5):
        off = (s * 5 + t) * 1024; vr = V_HR
        if off >= 40960: off -= 40960; vr = V_HR2
        lo = HB + (s * 5 + t) * 1024
        o.append(LG(f"ds_read_b128 {act(s*5+t)}, v{vr} offset:{off}", ("RH", s, t), rd=(lo, lo + 1024)))
    return o
def tags(items): return [it.tag for it in items if it.kind == "lg"]
def cyc_stamp(side, g, g0, gap, v):
    if cfg.ts == 2 and cfg.pp and g == g0: side.append((gap, [I("s_memtime s[90:91]")]))
    if cfg.ts == 2 and cfg.pp and g == g0 + 1: side.append((gap, [I("s_waitcnt lgkmcnt(0)"), I("v_cmp_eq_u32 vcc, s63, v1"), I("v_mov_b32 v9, s90"), I("s_nop 0"), I(f"v_cndmask_b32 v{v}, v{v}, v9, vcc")]))

def g1_group(p, g, dyn=False):
    kind = "a" if p == 0 else ("z" if p == 7 else "")
    ms = group_mfmas(1, range(3 * g, 3 * g + 3), 17)
    side = []
    nph, npp = (1, p + 1) if p < 7 else (2, 0)
    if g % 2 == 1:
        need = cover(1, p, 3 * g + 3, 3 * g + 9) if g < 5 else cover(nph, npp, 0, 6)
        if g == 1 and p == 1: need = need + [("ABST", 4)]
        side.append((0, [WAIT(f"g1_b{g}{kind}", vm=need), BAR()]))
    rd = []
    for s in range(3 * g + 3, 3 * g + 6):
        rd += trr(1, p, s) if s < 18 else trr(nph, npp, s - 18)
    side += list(zip([1, 2, 4, 5, 6, 7] if not cfg.rdp else [0, 1, 2, 4, 5, 6], rd))
    for k, s in enumerate(range(3 * g + 15, 3 * g + 18)):
        pre, dm = wdma(1, p, s) if s < 18 else wdma(nph, npp, s - 18)
        gp = [3, 8, 13][k]
        if pre: side.append((gp - 2, pre[0])); side.append((gp - 1, pre[1]))
        side.append((gp, dm))
    if g == 0:
        if p < 7:
            side.append((11, [I("s_add_u32 s73, s73, 128"), I("s_and_b32 s73, s73, 0x380")])); side.append((12, I("s_add_u32 s62, s73, s74")))
        else:
            side.append((11, I("s_mov_b32 s62, s72")))
    if kind == "z" and cfg.tag7:
        if g == 0: side += [(1, I(f"v_mov_b32 v{ABP}, -1")), (2, I(f"v_mov_b32 v{ABP+1}, -1")), (7, I(f"v_mov_b32 v{ABP+2}, -1")), (10, I(f"v_mov_b32 v{ABP+3}, -1")),
                            (12, I(f"s_add_u32 s34, s78, {7*SL}"))]
        if g == 1: side.append((0, [VM(f"buffer_store_dwordx4 v[{ABP}:{ABP+3}], v{V_P16}, s[16:19], s34 offen sc1", ("POI", 0)),
                                    VM(f"buffer_store_dwordx4 v[{ABP}:{ABP+3}], v{V_P16}, s[16:19], s34 offen offset:1024 sc1", ("POI", 1)),
                                    VM(f"buffer_store_dwordx2 v[{ABP}:{ABP+1}], v{V_P8}, s[16:19], s34 offen offset:2048 sc1", ("POI", 2))]))
        if g == 4: side += [(1, [I(f"v_lshlrev_b32 v4, 2, v{V_L}"), I(f"v_cmp_gt_u32 vcc, 32, v{V_L}")]), (3, I(f"v_mov_b32 v5, {OOB}")), (8, I(f"v_cndmask_b32 v{ABP+4}, v5, v4, vcc"))]
    hr = []
    if kind == "z" and g >= 1:
        hr = hreads(2 * g - 2) + hreads(2 * g - 1)
        side += list(zip([0 if g % 2 == 0 else 1, 2, 4, 5, 6, 7, 9, 9, 11, 12], hr))
    if kind == "a":
        ep = ab_epilogue(); st = ab_once(0); wr = ab_once(2); ag = ab_gaddr()
        if cfg.p0v:
            if g == 0: side += spread(ep[:12], [3, 4, 5, 6, 7]) + [(9, wr[0])] + spread(ep[12:22], [8, 9, 10, 11]) + [(12, wr[1])] + spread(ep[22:28], [12, 13, 14])
            if g == 1: side += spread(ep[28:42], [1, 2, 3, 4, 5, 6, 7, 8]) + [(9, wr[2]), (11, wr[3])] + spread(ep[42:], [10, 11, 12, 13, 14])
        else:
            if g == 0: side += spread(ep[:26], [3, 4, 5, 6, 7, 9, 9, 10, 10, 11, 12, 13, 14])
            if g == 1: side += spread(ep[26:], [1, 2, 3, 4, 5, 6, 7, 9, 11, 12, 13]) + [(9, wr[0]), (10, wr[1]), (12, wr[2]), (14, wr[3])]
        if g == 2:
            r2 = ab_once(3); rd = rd + r2
            side += [(0, wr[4]), (9, r2[0]), (10, r2[1])]
        if g == 3: side += list(zip([0, 1, 2], st))
        if g in (3, 4, 5):
            s3_ = setup3(); n3 = (len(s3_) + 2) // 3
            side += spread(s3_[(g - 3) * n3:(g - 2) * n3], [3, 4, 5, 6, 7, 9, 9, 10, 10, 11, 12, 14])
    if kind == "" and g == cfg.fgg:
        side.append((cfg.fg1, [I("s_cmp_eq_u32 s63, s33" if cfg.w0 else "s_cmp_eq_u32 s63, 6"), I("s_cbranch_scc1 L_once1")] + (ab_once(1) if (dyn and p == 1) else []) + [I("L_once1_ret:")]))
    if kind == "a": pass
    elif g < 5:
        cv, mx, w = h_tile(p - 1, g)
        if kind == "z" and g >= 1:
            side += [(3, cv[0]), (8, cv[1]), (10, mx), (13, w)]
        elif cfg.hw == 1:
            side += [(3, cv[0]), (4, cv[1]), (5, mx[0]), (6, mx[1]), (cfg.hg, w)]
        else:
            side += [(4, cv[0]), (5, cv[1]), (9, mx), (cfg.hg, w)]
    else:
        if cfg.krot and kind == "":
            side += [(4, [I("s_add_u32 s100, s100, 10240"), I("s_cmp_eq_u32 s100, 61440"), I("s_cselect_b32 s100, 0, s100")]),
                     (9, [I("s_cmp_eq_u32 s63, 1"), I("s_cselect_b32 s100, 61440, s100")]), (10, I(f"v_add_u32 v{V_HW}, s100, v{V_PF2}"))]
        else: side.append((10, I(f"v_add_u32 v{V_HW}, 10240, v{V_HW}")))
    if kind == "": cyc_stamp(side, g, 2, 12, 130)
    if g == 5 and kind == "": side.append((13, [I("s_sub_u32 s63, s63, 1"), I("s_cmp_lg_u32 s63, 0")]))
    side.append((14, WAIT(f"g1_r{g}{kind}", lg=tags(rd))))
    return place(ms, side)

def nextcol():
    return [[I("s_add_u32 s62, s62, 128"), I("s_cmp_eq_u32 s62, 1152"), I("s_cselect_b32 s62, 0, s62")],
            [I("s_cmp_eq_u32 s62, s72"), I(f"s_cselect_b32 s62, {OOB}, s62"), I("s_xor_b32 s60, s60, 0x10000")]]
def g2_pass0():
    o = []
    groups = [(0, 1, 2), (3, 4, 5), (6, 7), (8, 9, 10, 11), (12, 13, 14, 15)]
    cuts = [15, 19, 23, 26, 31, 36]
    hsteps = [(10,), (11, 12), (13,), (14, 15), ()]
    htl = [(0, 1), (2, 3), (4,), (), ()]
    if cfg.g20v:
        hsteps = [(10,), (11,), (), (12, 13), (14, 15)]
        htl = [(0,), (1, 2), (3,), (4,), ()]
    for gi, st in enumerate(groups):
        ms = group_mfmas(2, st, 15); n = len(ms); side = []
        hw7 = [("HW", 7, 4)]
        if gi == 1: side.append((0, [WAIT("g20_b1", vm=cover(2, 0, 6, 12)), BAR()]))
        if gi == 3: side.append((0, [WAIT("g20_b3", vm=cover(2, 0, 12, 16), lg=None if cfg.g20v else hw7), BAR()]))
        if gi == 4: side.append((0, [WAIT("g20_b4", vm=cover(2, 1, 0, 8), lg=hw7 if cfg.g20v else None), BAR(), I(f"v_xor_b32 v{V_TR}, 0x10000, v{V_TR}")]))
        dl = list(range(cuts[gi], cuts[gi + 1]))
        dg = [min(n - 1, 2 + (i * (n - 1)) // len(dl)) for i in range(len(dl))]
        for s, gp in zip(dl, dg):
            pre, dm = wdma(2, s // 16, s % 16)
            if s % 16 == 0:
                nc = nextcol(); side.append((gp - 2, nc[0] + nc[1]))
            if pre: side.append((gp - 1, pre))
            side.append((gp, dm))
        free = [x for x in range(1 if gi in (1, 3, 4) else 0, n - 3) if x not in dg]
        rd = []
        for s in (groups[gi + 1] if gi < 4 else range(16, 20)): rd += trr(2, s // 16, s % 16)
        if cfg.g20v and gi == 4:
            h14, h15 = hreads(14), hreads(15)
            side += spread(h14 + h15, [0, 1, 2, 3, 4]) + [(9, WAIT("g20_h14", lg=tags(h14))), (14, WAIT("g20_h15", lg=tags(h15)))]
            free = [x for x in free if x > 4]
        else:
            for s in hsteps[gi]: rd += hreads(s)
        side += spread(rd, free)
        for k, t in enumerate(htl[gi]):
            cv, mx, w = h_tile(7, t)
            b = 3 + 4 * k
            side += [(b, cv[0]), (b + 1, cv[1]), (b + 2, mx[0]), (b + 3, mx[1]), ((8 if (cfg.g20v and gi == 3) else n - 3 + k), w)]
        gp_ = g2_pre()
        k_ = 30 if cfg.inloop else 20
        if gi == 3: side += spread(gp_[:k_], list(range(1, n - 1)))
        if gi == 4: side += spread(gp_[k_:], list(range(1, n - 1)))
        side.append((n - 1, WAIT(f"g20_r{gi}", lg=tags(rd))))
        o += place(ms, side)
    return o
SUM, PBUF, PB2 = 216, 236, 76
V_SELA = 248
V_FLW = 254
V_FLG = 128
V_K0, V_K1 = 129, 130
YR, GR, SEL, OA, V_YA, V_YA0, V_GA = 100, 132, 110, 114, 120, 121, 122
def slot_loads(b, tag, so="s34", r="v"):
    return [VM(f"buffer_load_dwordx4 {r}[{b}:{b+3}], v{V_P16}, s[16:19], {so} offen sc1", (tag, 0)),
            VM(f"buffer_load_dwordx4 {r}[{b+4}:{b+7}], v{V_P16}, s[16:19], {so} offen offset:1024 sc1", (tag, 1)),
            VM(f"buffer_load_dwordx2 {r}[{b+8}:{b+9}], v{V_P8}, s[16:19], {so} offen offset:2048 sc1", (tag, 2))]
def slot_add(d, b, first=False, r="v"):
    o = []
    for t in range(5):
        a = V_SELA + (0 if t & 1 else 2); bb = b + 4 * (t >> 1); D = f"v[{d+4*t}:{d+4*t+3}]"
        o.append(mfma(D, f"v[{a}:{a+3}]", f"{r}[{bb}:{bb+3}]", "0" if first else D))
    return o
def slot_next():
    return [[I("s_cmp_eq_u32 s96, 0"), I(f"s_cselect_b32 s97, {72*SL}, 0"), I("s_add_u32 s95, s95, s97")],
            [I(f"s_sub_u32 s95, s95, {7*SL}"), I("s_sub_u32 s96, s96, 1")]]
def sample(tag, so=None):
    if so: return VM(f"buffer_load_dword v{V_FLG}, v{V_FL}, s[16:19], {so} offen offset:2560 sc1", tag)
    return VM(f"buffer_load_dword v{V_FLG}, v{V_POLL}, s[16:19], 0 offen sc1", tag)
def check(lab):
    return [I(f"v_cmp_eq_u32 vcc, s7, v{V_FLG}"), I("s_and_b32 s97, vcc_lo, s35"), I("s_cmp_eq_u32 s97, s35"), I(f"s_cbranch_scc0 {lab}"), I(f"{lab}_ret:")]
def spin(lab, so=None):
    return T(f"""
    {lab}:
    s_mov_b32 s98, {SPIN}
    {lab}_l:
    {sample(None, so).text}
    s_sub_u32 s98, s98, 1
    s_cmp_eq_u32 s98, 0
    s_cbranch_scc1 {lab}_ret
    s_waitcnt vmcnt(0)
    v_cmp_eq_u32 vcc, s7, v{V_FLG}
    s_and_b32 s97, vcc_lo, s35
    s_cmp_eq_u32 s97, s35
    s_cbranch_scc1 {lab}_ret
    {f"s_sleep {cfg.slp2}" if cfg.slp2 else "s_nop 0"}
    s_branch {lab}_l
    """)
def tagcheck():
    b = PB2
    return T(f"""
    v_max3_u32 v4, v{b}, v{b+1}, v{b+2}
    v_max3_u32 v5, v{b+3}, v{b+4}, v{b+5}
    v_max3_u32 v6, v{b+6}, v{b+7}, v{b+8}
    v_max3_u32 v4, v4, v{b+9}, v5
    v_max_u32 v4, v4, v6
    v_cmp_eq_u32 vcc, -1, v4
    s_nop 4
    """)
def spin_tag():
    return T(f"L_sp3:\ns_mov_b32 s98, {SPIN}\nL_sp3_l:") + slot_loads(PB2, None, "s95") + T("""
    s_sub_u32 s98, s98, 1
    s_waitcnt vmcnt(0)
    s_cmp_eq_u32 s98, 0
    s_cbranch_scc1 L_sp3_ret
    """) + tagcheck() + T("s_cbranch_vccnz L_sp3_l\ns_branch L_sp3_ret")
EB = 216
V_POLLE = 129
EB2 = 132
def ep_block(which, p=None):
    if cfg.ep2 == 2:
        if which == 0: return [sample(("EPS", p), "s79")]
        adr = (94, 96, 34, 100, 101, 101); buf = (EB, EB + 10, EB + 20, EB2, EB2 + 10)
        o = check("L_sp1")
        for j in range(5):
            body = slot_loads(buf[j], ("SL", j), "s79") + [I(f"s_mov_b32 s79, s{adr[j+1]}")]
            head = [I(f"s_cmp_lg_u32 s63, {5-j}"), I(f"s_cbranch_scc1 L_epn{j}")] if j < 4 else []
            if p is None: o += head + body + ([I("s_branch L_ep1_ret"), I(f"L_epn{j}:")] if j < 4 else [])
            elif p == 3 + j: return o + head + body
            else: o += head
        return o
    if which == 0: return [VM(f"buffer_load_dword v{V_FLG}, v{V_POLLE}, s[16:19], 0 offen sc1", ("EPS", p))]
    o = check("L_sp1")
    e1 = []; e2 = []
    for j in range(cfg.early): e1 += slot_loads(EB + 10 * j, ("SL", j), f"s{(94, 96, 34)[j]}")
    if not cfg.ep2: return o + e1
    e1.append(I("s_movk_i32 s35, 0x18"))
    for j in (3, 4): e2 += slot_loads(EB2 + 10 * (j - 3), ("SL", j), f"s{(100, 101)[j - 3]}")
    o += [I("s_cmp_eq_u32 s63, 1"), I("s_cbranch_scc1 L_ep2")]
    if p is None: return o + e1 + [I("s_branch L_ep1_ret"), I("L_ep2:")] + e2
    return o + (e2 if p == 7 else e1)
def fs_block():
    o = [I(x.text.replace("s67", "s33").replace("s68", "s73").replace("s69", "s74").replace("s70", "s79")) for x in fin_setup()]
    for j, d in ((5, 92), (6, 93), (7, 95)):
        o += [I(f"s_cmp_lt_u32 s6, {j}"), I(f"s_cselect_b32 s33, {72*SL}, 0"), I(f"s_add_u32 s33, s33, s95"), I(f"s_sub_u32 s{d}, s33, {7*j*SL}")]
    return o
def g2_group(p, g, ep=()):
    ms = group_mfmas(2, range(4 * g, 4 * g + 4), 15); side = []
    if g in (1, 3):
        need = cover(2, p, 8, 16) if g == 1 else cover(2, p + 1, 0, 8) + [("PST", p - 1, 2)] + (([("SMP", p)] + ([(("SL", p - 1), 2)] if p > 1 else [])) if cfg.inloop else [])
        if g == 3 and p in ep and cfg.early and not cfg.inloop: need = need + [("EPS", p)]
        side.append((0, [WAIT(f"g2_b{g}", vm=need), BAR()] + ([I(f"v_xor_b32 v{V_TR}, 0x10000, v{V_TR}")] if g == 3 else [])))
    rd = []
    for s in range(4 * g + 4, 4 * g + 8): rd += trr(2, p + s // 16, s % 16)
    side += list(zip([1, 2, 4, 5, 6, 7, 9, 10], rd))
    for k, s in enumerate(range(4 * g + 20, 4 * g + 24)):
        pre, dm = wdma(2, p + s // 16, s % 16)
        gp = [3, 8, 13, 18][k]
        if pre: side.append((gp - 2, pre[0])); side.append((gp - 1, pre[1]))
        side.append((gp, dm))
    if g == 0:
        pp = p_parts(p - 1)
        if cfg.inloop: side.append((0, sample(("SMP", p), "s34")))
        if cfg.g2t == 3:
            side = [(g_, it) for (g_, it) in side if not (isinstance(it, Item) and it in rd)]
            side += list(zip([1, 2, 4, 5, 7, 9, 11, 12], rd))
            side += list(zip([3, 4, 4, 5, 7, 8, 9, 9, 13, 14], pp[0][0] + pp[1][0] + pp[2][0]))
            side += [(6, pp[0][1]), (10, pp[1][1]), (15, pp[2][1])]
        elif cfg.g2t == 2:
            side += list(zip([3, 4, 5, 6, 7, 8, 9, 10, 12, 13], pp[0][0] + pp[1][0] + pp[2][0]))
            side += [(11, pp[0][1]), (14, pp[1][1]), (16, pp[2][1])]
        else:
            side += list(zip([4, 5, 6, 7, 9, 10, 11, 12, 14, 14], pp[0][0] + pp[1][0] + pp[2][0]))
            side += [(15, pp[0][1]), (16, pp[1][1]), (17, pp[2][1])]
    if g == 2:
        nc = nextcol()
        side += [(14, [nc[0][0], nc[1][2]]), (15, nc[0][1:]), (16, nc[1][:2])] if cfg.g2t else [(16, nc[0]), (17, nc[1])]
        if cfg.inloop: sn = slot_next(); side += [(14, sn[0]), (15, sn[1])]
    if cfg.early and not cfg.inloop and g in (0, 3):
        w = 0 if g == 0 else 1
        side.append((0 if g == 0 else cfg.epg, [I("s_bitcmp1_b32 s99, s63"), I(f"s_cbranch_scc1 L_ep{w}")] + (ep_block(w, p) if p in ep else []) + [I(f"L_ep{w}_ret:")]))
    if cfg.fse and g == 1:
        side.append((cfg.fse, [I("s_cmp_eq_u32 s63, 6"), I("s_cbranch_scc1 L_fs")] + (fs_block() if (ep and p == 2) else []) + [I("L_fs_ret:")]))
    if g == 3 and not cfg.inloop:
        side.append((cfg.flg, VM(f"buffer_store_dword v{V_TAG}, v{V_FLW}, s[16:19], s78 offen offset:2560 sc1", ("PFL", p - 1))))
        side.append((16, I(f"s_add_u32 s78, s78, {SL}")))
        side.append((17 if cfg.g2t else 19, [I("s_sub_u32 s63, s63, 1"), I("s_cmp_lg_u32 s63, 0")]))
    if g == 3 and cfg.inloop:
        ad = slot_add(SUM, PBUF); ld = slot_loads(PBUF, ("SL", p)); ck = check("L_sp1")
        side.append((0, [ad[0], VM(f"buffer_store_dword v{V_TAG}, v{V_FLW}, s[16:19], s78 offen offset:2560 sc1", ("PFL", p - 1)),
                         ad[1], ck[0], ad[2]] + ck[1:] + [ad[3], I(f"s_add_u32 s78, s78, {SL}"), ad[4]]))
        side += list(zip([14, 15, 16], ld))
        side.append((17, [I("s_cmp_gt_u32 s63, 6"), I(f"s_cselect_b32 s34, {OOB}, s95"), I("s_cselect_b32 s35, 0, 1")]))
        side.append((18, [I("s_sub_u32 s63, s63, 1"), I("s_cmp_lg_u32 s63, 0")]))
    cyc_stamp(side, g, 1, 19, 152-1 if False else 131)
    side.append((19, WAIT(f"g2_r{g}", lg=tags(rd))))
    return place(ms, side)

def g2_pre():
    o = T(f"""
    v_sub_u32 v5, s6, v{V_L}
    v_add_u32 v6, 9, v5
    v_min_u32 v5, v5, v6
    v_lshl_add_u32 v5, v5, 3, v{V_L}
    s_mul_i32 s95, s4, {72*SL}
    s_mul_i32 s96, s3, {WSL}
    s_add_u32 s95, s95, s96
    s_add_u32 s95, s95, {WS_PART}
    v_mul_u32_u24 v5, {SL}, v5
    s_add_u32 s97, s95, 2560
    v_add_u32 v5, s97, v5
    s_lshl_b32 s97, s4, 7
    s_add_u32 s97, s97, {WS_YFLAG - 32}
    v_lshl_add_u32 v6, v{V_L}, 2, s97
    v_cmp_gt_u32 vcc, 8, v{V_L}
    s_mov_b32 s82, {(0x20 if (cfg.inloop or cfg.ep2) else (1 << cfg.ne) - (1 << cfg.early)) | (0xfffff << 8)}
    s_mul_i32 s97, s6, {8*SL}
    v_cndmask_b32 v5, v6, v5, vcc
    s_mov_b32 s83, 0
    v_mov_b32 v6, {OOB}
    s_add_u32 s95, s95, s97
    v_cndmask_b32 v{V_POLL}, v6, v5, s[82:83]
    s_mov_b32 s82, {0xff & ~((1 << cfg.ne) - 1)}
    s_add_u32 s95, s95, {14*SL if cfg.inloop else 0}
    v_cndmask_b32 v255, v6, v5, s[82:83]
    s_mov_b32 s82, {0x1f if cfg.ep2 else (1 << cfg.early) - 1}
    s_nop 0
    v_cndmask_b32 v{V_POLLE}, v6, v5, s[82:83]
    s_add_u32 s96, s6, 2
    s_mov_b32 s63, 7
    s_mov_b32 s34, {OOB}
    s_mov_b32 s35, 0
    v_lshlrev_b32 v4, 2, v{V_L}
    v_cmp_gt_u32 vcc, 32, v{V_L}
    v_lshlrev_b32 v5, 2, v{V_Q}
    v_sub_u32 v5, v{V_C}, v5
    v_cndmask_b32 v{V_FLW}, v6, v4, vcc
    v_and_b32 v4, 1, v5
    v_lshlrev_b32 v4, 4, v4
    v_mov_b32 v6, 0x3f80
    v_lshlrev_b32 v4, v4, v6
    v_lshrrev_b32 v5, 1, v5
    v_cmp_eq_u32 vcc, 0, v5
    v_mov_b32 v{V_SELA}, 0
    v_mov_b32 v{V_SELA+1}, 0
    v_cndmask_b32 v{V_SELA+2}, 0, v4, vcc
    v_cmp_eq_u32 vcc, 1, v5
    v_mov_b32 v{V_SELA+4}, 0
    v_mov_b32 v{V_SELA+5}, 0
    v_cndmask_b32 v{V_SELA+3}, 0, v4, vcc
    """)
    if cfg.early and not cfg.inloop:
        o += T(f"""
        v_mov_b32 v{EB+30}, 0
        v_mov_b32 v{EB+31}, 0
        s_mov_b32 s35, {(1 << cfg.early) - 1}
        s_mul_i32 s99, s4, 21846
        s_lshr_b32 s99, s99, 16
        s_mul_i32 s99, s99, 3
        s_sub_u32 s99, s4, s99
        s_min_u32 s99, s99, {cfg.epm - 1}
        s_lshl_b32 s99, 2, s99
        s_mov_b32 s94, s95
        """)
        if cfg.ep2:
            o += T("s_and_b32 s99, s4, 1\ns_lshl_b32 s99, 4, s99\ns_or_b32 s99, s99, 2")
            if cfg.ep2 == 2: o += T("s_movk_i32 s99, 0x3e\ns_mov_b32 s35, 1\ns_mov_b32 s79, s95")
            for j in (3, 4): o.append([I(f"s_cmp_lt_u32 s6, {j}"), I(f"s_cselect_b32 s{97+j}, {72*SL}, 0"), I(f"s_add_u32 s{97+j}, s{97+j}, s95"), I(f"s_sub_u32 s{97+j}, s{97+j}, {7*j*SL}")])
        o.append([I("s_cmp_lt_u32 s6, 1"), I(f"s_cselect_b32 s96, {72*SL}, 0"), I("s_add_u32 s96, s96, s95"), I(f"s_sub_u32 s96, s96, {7*SL}")])
        o.append([I("s_cmp_lt_u32 s6, 2"), I(f"s_cselect_b32 s34, {72*SL}, 0"), I("s_add_u32 s34, s34, s95"), I(f"s_sub_u32 s34, s34, {14*SL}")])
    if cfg.inloop:
        for i in range(20): o.append(I(f"v_mov_b32 v{SUM+i}, 0"))
        for i in range(12): o.append(I(f"v_mov_b32 v{PBUF+i}, 0"))
    return o

def fin_setup():
    o = T(f"""
    s_lshl_b32 s68, s6, 6
    s_lshl_b32 s69, s3, 4
    s_add_u32 s68, s68, s69
    v_add_u32 v5, s68, v{V_C}
    v_sub_u32 v6, 576, v5
    v_cmp_lt_u32 s[76:77], v6, v5
    v_min_u32 v6, v5, v6
    s_mul_i32 s69, s4, 20
    v_add_u32 v7, s69, v{V_Q}
    s_movk_i32 s70, 2560
    v_lshlrev_b32 v6, 3, v6
    v_mad_u32_u24 v{V_YA}, v7, s70, v6
    v_add_u32 v{V_YA}, {WS_YT}, v{V_YA}
    v_cmp_eq_u32 s[80:81], 0, v7
    v_add_u32 v9, {512*2560}, v{V_YA}
    s_and_b64 s[82:83], s[80:81], s[76:77]
    v_lshlrev_b32 v{V_GA}, 4, v7
    v_add_u32 v{V_GA}, {WS_GT}, v{V_GA}
    v_cndmask_b32 v{V_YA0}, v{V_YA}, v9, s[82:83]
    """)
    for rho in range(4):
        d = 0x0c0c | ((2 * rho) << 16) | ((2 * rho + 1) << 24); m = 0x0c0c | ((6 - 2 * rho) << 16) | ((7 - 2 * rho) << 24)
        o += T(f"v_mov_b32 v8, {d}\nv_mov_b32 v9, {m}\nv_cndmask_b32 v{SEL+rho}, v8, v9, s[76:77]")
    o += T(f"""
    s_lshl_b32 s68, s3, 1
    v_lshrrev_b32 v5, 1, v{V_Q}
    v_add_u32 v5, s68, v5
    v_and_b32 v6, 7, v{V_C}
    v_xor_b32 v5, v5, v6
    v_lshlrev_b32 v5, 4, v5
    v_lshl_add_u32 v5, v{V_C}, 7, v5
    v_and_b32 v6, 1, v{V_Q}
    v_lshl_add_u32 v5, v6, 3, v5
    v_add_u32 v{OA}, {OUTL}, v5
    v_lshrrev_b32 v5, 3, v{V_L}
    v_and_b32 v6, 7, v{V_L}
    v_xor_b32 v7, v5, v6
    v_lshlrev_b32 v7, 4, v7
    v_lshl_add_u32 v7, v5, 7, v7
    s_lshl_b32 s70, s3, 10
    s_add_u32 s70, s70, {OUTL}
    v_add_u32 v{OA+1}, s70, v7
    s_lshl_b32 s70, s6, 7
    v_lshl_add_u32 v6, v6, 4, s70
    v_and_b32 v5, 3, v5
    v_lshrrev_b32 v7, 5, v{V_L}
    s_add_u32 s68, s68, s69
    v_add_u32 v7, s68, v7
    s_add_u32 s69, s69, 20
    s_min_u32 s69, s69, 512
    s_movk_i32 s67, 1152
    """)
    for k in range(3):
        o += rowcalc(7, 5, OA + 2 + k, 8) + T(f"""
        v_cmp_gt_u32 vcc, s69, v7
        v_mad_u32_u24 v{OA+2+k}, v{OA+2+k}, s67, v6
        v_mov_b32 v8, {OOB}
        v_cndmask_b32 v{OA+2+k}, v8, v{OA+2+k}, vcc
        v_add_u32 v7, 8, v7
        """)
    return o

V_P12, V_FLG2 = 99, 131
T7 = 56
Q7 = 100
def pos7(i): return i + i // 3
def loads7():
    l = [VM(f"buffer_load_dwordx4 v[{T7+4*k}:{T7+4*k+3}], v{V_P16}, s[16:19], s71 offen offset:{1024*k} sc1", (("SL", 7), 5 + k)) for k in range(3)]
    return l + [VM(f"buffer_load_dwordx2 v[{T7+12}:{T7+13}], v{V_P8}, s[16:19], s71 offen offset:3072 sc1", (("SL", 7), 2))]
def chk7():
    return T(f"""
    v_xor_b32 v4, s7, v{T7+3}
    v_xor_b32 v5, s7, v{T7+7}
    v_xor_b32 v6, s7, v{T7+11}
    v_xor_b32 v7, s7, v{T7+13}
    v_or3_b32 v4, v4, v5, v6
    v_or_b32 v4, v4, v7
    v_cmp_ne_u32 vcc, 0, v4
    s_nop 4
    """)
def spin7():
    return T(f"L_sp4:\ns_mov_b32 s98, {SPIN}\nL_sp4_l:") + loads7() + T("""
    s_sub_u32 s98, s98, 1
    s_waitcnt vmcnt(0)
    s_cmp_eq_u32 s98, 0
    s_cbranch_scc1 L_sp4_ret
    """) + chk7() + T("s_cbranch_vccnz L_sp4_l\ns_branch L_sp4_ret")
def g2_last2(fs, ad):
    o = []; p = 8; E = 5 if cfg.ep2 else cfg.early; F7 = cfg.chk7 == 2
    yg = []
    for t in range(5):
        yg.append([I(f"s_or_b32 s61, s75, {t*4*2560}" if t >= 3 else f"s_mov_b32 s61, {t*4*2560}"), VM(f"buffer_load_dwordx2 v[{YR+2*t}:{YR+2*t+1}], v{V_YA0 if t == 0 else V_YA}, s[16:19], s61 offen sc1", ("YL", t))])
        yg.append(VM(f"buffer_load_dwordx4 v[{GR+4*t}:{GR+4*t+3}], v{V_GA}, s[16:19], {'s75' if t >= 3 else '0'} offen offset:{64*t} sc1", ("GL", t)))
    ld = []
    for j in range(E, 6): ld += slot_loads(12 * j, ("SL", j), f"s{64+j}", "a")
    ld += yg
    for g in range(4):
        ms = group_mfmas(2, range(4 * g, 4 * g + 4), 15); side = []
        rd = []
        if g < 3:
            for s in range(4 * g + 4, 4 * g + 8): rd += trr(2, p, s)
            side += list(zip([1, 2, 4, 5, 6, 7, 9, 10] if g else [10, 11, 12, 13, 14, 15, 16, 17], rd))
        if g == 0:
            side.append((0, sample("S0")))
            if F7:
                pp = p_parts(7)
                side += list(zip([1, 1, 2, 2, 4, 4, 5, 5, 7, 7], pp[0][0] + pp[1][0] + pp[2][0]))
                side += [(3, pp[0][1]), (6, pp[1][1]), (8, pp[2][1])]
            else:
                cv = [I(f"v_cvt_pk_bf16_f32 v{Q7+pos7(i)}, v{E0+2*i}, v{E0+2*i+1}") for i in range(10)]
                st = [VM(f"buffer_store_dwordx4 v[{Q7+4*k}:{Q7+4*k+3}], v{V_P16}, s[16:19], s78 offen offset:{1024*k} sc1", ("PST", 7, k)) for k in range(3)]
                st.append(VM(f"buffer_store_dwordx2 v[{Q7+12}:{Q7+13}], v{V_P8}, s[16:19], s78 offen offset:3072 sc1", ("PST", 7, 3)))
                side += list(zip([1, 1, 2, 3, 4, 4, 5, 6, 6, 7], cv)) + list(zip([2, 4, 7, 8], st))
            side += spread(ad, list(range(10, 19)))
            side.append((19, I(f"s_mov_b32 s35, {((1 << 6) - (1 << E)) | (0xfffff << 8)}")))
        if g == 1:
            side.append((0, [WAIT("g2z_b1", vm=cover(2, p, 8, 16)), BAR()]))
            side += spread(fs[:24], list(range(1, 12)))
            side.append((12, [WAIT("g2z_s0", vm=["S0"])] + check("L_sp2") + [I("s_mov_b32 s35, 1"), sample("S1", "s70")]))
            pfl7 = [WAIT("g2z_st", vm=[("PST", 7, 2)]), VM(f"buffer_store_dword v{V_TAG}, v{V_FLW}, s[16:19], s78 offen offset:2560 sc1", ("PFL", 7))]
            if cfg.ep2:
                ld = ld[:3] + yg[0::2] + yg[1::2]
                side.append((19 if cfg.st1 else 14, slot_add(16, EB2) + slot_add(16, EB2 + 10)))
            if cfg.st1:
                side += list(zip([12, 12, 12, 14, 15, 16, 17], ld[:7])); side.append((cfg.st1, pfl7))
            else: side += list(zip(range(13, 20), ld[:7]))
        if g == 2:
            if F7 and not cfg.st1: side.append((0, pfl7))
            side += spread(ld[7:], list(range(0, 6 if cfg.ep2 else 16)))
            side += spread(fs[24:45], list(range(0, 20)))
        if g == 3:
            side += spread(fs[45:], [x for x in range(0, 20) if x < cfg.s6g - 1 or x > cfg.s6g])
            ck = [I(x.text.replace("vcc_lo", "s80").replace("vcc", "s[80:81]")) for x in check("L_sp3")]
            side.append((cfg.s6g, [WAIT("g2z_s1", vm=["S1"])] + ck + slot_loads(72, ("SL", 6), "s70", "a") + ([] if F7 else loads7())))
            if F7: side.append((cfg.s2g, sample("S2", "s71")))
        if g < 3: side.append((19, WAIT(f"g2z_r{g}", lg=tags(rd))))
        o += place(ms, side)
    o += TS(7)
    for j in range(cfg.early): o += slot_add(E0, EB + 10 * j)
    for j in range(E, 6):
        o.append(WAIT(f"fin_a{j}", vm=[(("SL", j), 2)])); o += slot_add(E0, 12 * j, r="a")
    YT_ = 56 if F7 else EB
    o.append(WAIT("fin_gl", vm=[("GL", 4)]))
    for t in range(5):
        for rho in range(4): o.append(I(f"v_perm_b32 v{YT_+4*t+rho}, v{YR+2*t+1}, v{YR+2*t}, v{SEL+rho}"))
    if F7:
        o.append(WAIT("fin_s2", vm=["S2"])); o += check("L_sp4") + slot_loads(84, ("SL", 7), "s71", "a")
    for i in range(20): o.append(I(f"v_mul_f32 v{YT_+i}, v{YT_+i}, v{GR+i}"))
    for i in range(20): o.append(I(f"v_sub_f32 v{GR+i}, 1.0, v{GR+i}"))
    o.append(WAIT("fin_6", vm=[(("SL", 6), 2)])); o += slot_add(E0, 72, r="a")
    o.append(WAIT("fin_7", vm=[(("SL", 7), 2)]))
    if F7: return o + slot_add(E0, 84, r="a") + [I("s_nop 3")] + fin_out()
    o += chk7() + T("s_cbranch_vccnz L_sp4\nL_sp4_ret:")
    for i in range(3, 10): o.append(I(f"v_mov_b32 v{T7+i}, v{T7+pos7(i)}"))
    o += T(f"v_mov_b32 v{T7+10}, 0\nv_mov_b32 v{T7+11}, 0")
    o += slot_add(E0, T7)
    o.append(I("s_nop 3"))
    return o + fin_out(YT_)
def g2_last0():
    o = []; p = 8
    fs = fin_setup()
    ad = []
    for j in range(8):
        ad.append([I(f"s_cmp_lt_u32 s6, {j}"), I(f"s_cselect_b32 s{64+j}, {72*SL}, 0"), I(f"s_add_u32 s{64+j}, s{64+j}, s95"), I(f"s_sub_u32 s95, s95, {7*SL}")])
    fs = [I(x.text.replace("s67", "s96").replace("s68", "s62").replace("s69", "s94").replace("s70", "s34")) for x in fs]
    if cfg.chk7 and cfg.fse:
        assert cfg.ep2 == 1 and cfg.chk7 == 2
        o = g2_last2([], [])
        for it in o:
            if it.text: it.text = it.text.replace("s69 offen", "s92 offen").replace("s70 offen", "s93 offen").replace("s71 offen", "s95 offen")
        return o
    if cfg.chk7: return g2_last2(fs, ad)
    NE = cfg.ne; E = cfg.early
    yg = []
    for t in range(5):
        yg.append([I(f"s_or_b32 s61, s75, {t*4*2560}" if t >= 3 else f"s_mov_b32 s61, {t*4*2560}"), VM(f"buffer_load_dwordx2 v[{YR+2*t}:{YR+2*t+1}], v{V_YA0 if t == 0 else V_YA}, s[16:19], s61 offen sc1", ("YL", t))])
        yg.append(VM(f"buffer_load_dwordx4 v[{GR+4*t}:{GR+4*t+3}], v{V_GA}, s[16:19], {'s75' if t >= 3 else '0'} offen offset:{64*t} sc1", ("GL", t)))
    ld = []
    for j in range(E, NE): ld += slot_loads(12 * j, ("SL", j), f"s{64+j}", "a")
    ld += yg
    for g in range(4):
        ms = group_mfmas(2, range(4 * g, 4 * g + 4), 15); side = []
        rd = []
        if g < 3:
            for s in range(4 * g + 4, 4 * g + 8): rd += trr(2, p, s)
            side += list(zip([1, 2, 4, 5, 6, 7, 9, 10] if g else [9, 10, 11, 12, 13, 14, 15, 16], rd))
        if g == 0:
            pp = p_parts(7)
            side.append((0, sample("S0")))
            side += list(zip([1, 1, 2, 2, 4, 4, 5, 5, 7, 7], pp[0][0] + pp[1][0] + pp[2][0]))
            side += [(3, pp[0][1]), (6, pp[1][1]), (8, pp[2][1])]
            side += spread(ad, list(range(9, 19)))
            side.append((19, I(f"s_mov_b32 s35, {((1 << NE) - (1 << E)) | (0xfffff << 8)}")))
        if g == 1:
            side.append((0, [WAIT("g2z_b1", vm=cover(2, p, 8, 16)), BAR()]))
            side += spread(fs[:24], list(range(1, 12)))
            side.append((12, [WAIT("g2z_s0", vm=["S0"])] + check("L_sp2")))
            side += list(zip(range(13, 20), ld[:7]))
        if g == 2:
            side.append((cfg.stg, [WAIT("g2z_st", vm=[("PST", 7, 2)]), VM(f"buffer_store_dword v{V_TAG}, v{V_FLW}, s[16:19], s78 offen offset:2560 sc1", ("PFL", 7))]))
            side += spread(ld[7:], list(range(cfg.stg + 1, 20)))
            side += spread(fs[24:45], list(range(0, 20)))
        if g == 3:
            side += spread(fs[45:], list(range(0, 19)))
            side.append((19, [I(f"s_mov_b32 s35, {0xff & ~((1 << NE) - 1)}"), I(f"v_mov_b32 v{V_POLL}, v255"), sample("S1")]))
        if g < 3: side.append((19, WAIT(f"g2z_r{g}", lg=tags(rd))))
        o += place(ms, side)
    o += TS(7)
    for j in range(E): o += slot_add(E0, EB + 10 * j)
    for j in range(E, NE):
        o.append(WAIT(f"fin_a{j}", vm=[(("SL", j), 2)])); o += slot_add(E0, 12 * j, r="a")
    o.append(WAIT("fin_s1", vm=["S1"])); o += check("L_sp3")
    for j in range(7, NE - 1, -1): o += slot_loads(12 * j, ("SL", j), f"s{64+j}", "a")
    for t in range(5):
        for rho in range(4): o.append(I(f"v_perm_b32 v{56+4*t+rho}, v{YR+2*t+1}, v{YR+2*t}, v{SEL+rho}"))
    for i in range(20): o.append(I(f"v_mul_f32 v{56+i}, v{56+i}, v{GR+i}"))
    for i in range(20): o.append(I(f"v_sub_f32 v{GR+i}, 1.0, v{GR+i}"))
    for j in range(7, NE - 1, -1):
        o.append(WAIT(f"fin_{j}", vm=[(("SL", j), 2)])); o += slot_add(E0, 12 * j, r="a")
    o.append(I("s_nop 3"))
    return o + fin_out()

def g2_last():
    if not cfg.inloop: return g2_last0()
    o = []; p = 8
    fs = fin_setup()
    yg = []
    for t in range(5):
        yg.append([I(f"s_or_b32 s61, s75, {t*4*2560}" if t >= 3 else f"s_mov_b32 s61, {t*4*2560}"), VM(f"buffer_load_dwordx2 v[{YR+2*t}:{YR+2*t+1}], v{V_YA0 if t == 0 else V_YA}, s[16:19], s61 offen sc1", ("YL", t))])
        yg.append(VM(f"buffer_load_dwordx4 v[{GR+4*t}:{GR+4*t+3}], v{V_GA}, s[16:19], {'s75' if t >= 3 else '0'} offen offset:{64*t} sc1", ("GL", t)))
    for g in range(4):
        ms = group_mfmas(2, range(4 * g, 4 * g + 4), 15); side = []
        if g == 0:
            for t, m in enumerate([m for m in ms if m.text.endswith(", 0")]): m.text = m.text[:-1] + f"v[{SUM+4*t}:{SUM+4*t+3}]"
        rd = []
        if g < 3:
            for s in range(4 * g + 4, 4 * g + 8): rd += trr(2, p, s)
            side += list(zip([1, 2, 4, 5, 6, 7, 9, 10] if g else [9, 10, 11, 12, 13, 14, 15, 16], rd))
        if g == 0:
            pp = p_parts(7)
            side.append((0, sample("S0")))
            side += list(zip([1, 1, 2, 2, 4, 4, 5, 5, 7, 7], pp[0][0] + pp[1][0] + pp[2][0]))
            side += [(3, pp[0][1]), (6, pp[1][1]), (8, pp[2][1])]
            side += spread(fs[:19], list(range(9, 19)))
            side.append((19, I(f"s_mov_b32 s35, {(1 << 5) | (0xfffff << 8)}")))
        if g == 1:
            side.append((0, [WAIT("g2z_b1", vm=cover(2, p, 8, 16)), BAR()]))
            side += spread(fs[19:40], list(range(1, 11)))
            side.append((11, [I(f"v_mov_b32 v{PK+10}, 0"), I(f"v_mov_b32 v{PK+11}, 0")]))
            side.append((12, [WAIT("g2z_s0", vm=["S0"])] + check("L_sp2")))
            side += list(zip([13, 14, 15], slot_loads(PK, "SL5", "s95"))) + list(zip([16, 17, 18, 19], yg[:4]))
        if g == 2:
            side += list(zip([0, 1, 2, 3, 4, 5], yg[4:]))
            side.append((cfg.stg, [WAIT("g2z_st", vm=[("PST", 7, 2)]), VM(f"buffer_store_dword v{V_TAG}, v{V_FLW}, s[16:19], s78 offen offset:2560 sc1", ("PFL", 7))]))
            side.append((11, slot_add(SUM, PBUF, True)))
            sn = slot_next(); side += [(12, sn[0]), (13, sn[1]), (14, I("s_mov_b32 s34, s95"))]
            sn = slot_next(); side += [(15, sn[0]), (16, sn[1]), (17, [I("s_movk_i32 s35, 0xc0"), I(f"v_mov_b32 v{V_POLL}, v255")])]
        if g == 3:
            side += spread(fs[40:], list(range(0, 20)))
            side.append((19, sample("S1")))
        if g < 3: side.append((19, WAIT(f"g2z_r{g}", lg=tags(rd))))
        o += place(ms, side)
    o += TS(7)
    o += T(f"v_mov_b32 v{PB2+10}, 0\nv_mov_b32 v{PB2+11}, 0")
    o.append(WAIT("fin_gl", vm=[("GL", 4)]))
    o += slot_add(SUM, PK)
    for t in range(5):
        for rho in range(4): o.append(I(f"v_perm_b32 v{56+4*t+rho}, v{YR+2*t+1}, v{YR+2*t}, v{SEL+rho}"))
    o.append(WAIT("fin_s1", vm=["S1"])); o += check("L_sp3")
    o += slot_loads(PB2, "SL7", "s95") + slot_loads(PBUF, "SL6", "s34")
    for i in range(20): o.append(I(f"v_add_f32 v{E0+i}, v{E0+i}, v{SUM+i}"))
    for i in range(20): o.append(I(f"v_mul_f32 v{56+i}, v{56+i}, v{GR+i}"))
    for i in range(20): o.append(I(f"v_sub_f32 v{GR+i}, 1.0, v{GR+i}"))
    o.append(WAIT("fin_7", vm=[("SL7", 2)])); o += slot_add(E0, PB2)
    o.append(WAIT("fin_6", vm=[("SL6", 2)])); o += slot_add(E0, PBUF)
    o.append(I("s_nop 3"))
    return o + fin_out()
def fin_out(Y=56):
    OF = ('', ' sc1', ' nt', ' sc0 sc1')[cfg.osc]
    o = []
    for t in range(5):
        for rho in range(4): o.append(I(f"v_fmac_f32 v{Y+4*t+rho}, v{E0+4*t+rho}, v{GR+4*t+rho}"))
        o += T(f"v_cvt_pk_bf16_f32 v{PK+2*t}, v{Y+4*t}, v{Y+4*t+1}\nv_cvt_pk_bf16_f32 v{PK+2*t+1}, v{Y+4*t+2}, v{Y+4*t+3}")
    o += T(f"v_mov_b32 v{PK+10}, 0\nv_mov_b32 v{PK+11}, 0")
    for t in range(5):
        a = V_SELA + (0 if t & 1 else 2); bb = PK + 4 * (t >> 1)
        o.append(mfma(ACC(t), f"v[{bb}:{bb+3}]", f"v[{a}:{a+3}]", "0"))
    o.append(I("s_nop 3"))
    for t in range(5):
        r = 16 + 4 * t
        o += T(f"v_cvt_pk_bf16_f32 v{56+2*t}, v{r}, v{r+1}\nv_cvt_pk_bf16_f32 v{57+2*t}, v{r+2}, v{r+3}")
        o.append(LG(f"ds_write_b64 v{OA}, v[{56+2*t}:{57+2*t}] offset:{2048*t}", ("OW", t), wr=(OUTL, OUTL + 10240)))
    o += [WAIT("out_w", lg="all"), BAR()]
    for k in range(3): o.append(LG(f"ds_read_b128 v[{68+4*k}:{71+4*k}], v{OA+1} offset:{4096*k}", ("OR", k), rd=(OUTL, OUTL + 10240)))
    for k in range(3):
        o += [WAIT(f"out_r{k}", lg=[("OR", k)]), I(f"buffer_store_dwordx4 v[{68+4*k}:{71+4*k}], v{OA+2+k}, s[24:27], 0 offen{OF}")]
    o += T(f"""
    s_or_b32 s68, s2, s3
    s_cmp_eq_u32 s68, 0
    s_cbranch_scc0 L_noepoch
    buffer_store_dword v{V_TAG}, v{V_FL}, s[16:19], 0 offen sc1
    L_noepoch:
    """)
    return o

def T(s): return [I(x.strip()) for x in s.strip().split("\n") if x.strip()]
def rowcalc(o, rho, d, tmp):
    return T(f"""
    v_cmp_eq_u32 vcc, 0, v{o}
    v_mov_b32 v{tmp}, 512
    v_add_u32 v{tmp+1}, 1, v{rho}
    v_cndmask_b32 v{tmp}, v{o}, v{tmp}, vcc
    v_cmp_lt_u32 vcc, 1, v{rho}
    v_sub_u32 v{tmp}, 0, v{tmp}
    v_lshrrev_b32 v{tmp+1}, 1, v{tmp+1}
    v_cndmask_b32 v{tmp}, v{o}, v{tmp}, vcc
    v_lshl_add_u32 v{d}, v{tmp+1}, 10, v{tmp}
    """)

def srd(b, p, n): return T(f"s_mov_b32 s{b}, s{p}\ns_mov_b32 s{b+1}, s{p+1}\ns_mov_b32 s{b+2}, {n}\ns_mov_b32 s{b+3}, 0x20000")

def code_pf(k):
    return T(f"""
    s_getpc_b64 s[68:69]
    L_pc{k}:
    s_sub_u32 s68, s68, L_pc{k}-{NAME}
    s_subb_u32 s69, s69, 0
    v_lshlrev_b32 v4, 7, v0
    v_min_u32 v4, L_end-{NAME}, v4
    v_mov_b32 v5, s69
    v_add_co_u32 v4, vcc, s68, v4
    s_nop 1
    v_addc_co_u32 v5, vcc, 0, v5, vcc
    global_load_dword v254, v[4:5], off
    """)
def prologue(dyn=False):
    o = T(f"""
    s_cmp_ge_u32 s2, 256
    s_cbranch_scc1 L_end
    s_load_dwordx16 s[36:51], s[0:1], 0
    s_load_dwordx8 s[52:59], s[0:1], 64
    """) + ((T("s_cmp_lt_u32 s2, 240\ns_cbranch_scc1 L_nopc") + ([] if dyn else code_pf("a")) + T("L_nopc:")) if cfg.pfc == 2 else []) + TS(0) + T(f"""
    v_lshrrev_b32 v4, 6, v0
    v_and_b32 v{V_L}, 63, v0
    v_readfirstlane_b32 s3, v4
    v_and_b32 v{V_C}, 15, v0
    v_bfe_u32 v{V_Q}, v0, 4, 2
    s_and_b32 s60, s2, 3
    s_bfe_u32 s61, s2, 0x10002
    s_lshr_b32 s62, s2, 3
    {"s_and_b32 s63, s2, 7" if cfg.bal else "s_nop 0"}
    {"s_cmp_ge_u32 s63, 6" if cfg.bal else "s_cmp_eq_u32 s60, 3"}
    s_cselect_b32 s63, 30, 29
    s_cmp_ge_u32 s62, s63
    s_cbranch_scc1 L_spare
    """)
    if cfg.map == 0:
        o += T("""
    s_mul_i32 s64, s60, 29
    s_add_u32 s64, s64, s62
    s_mul_i32 s5, s64, 5042
    s_lshr_b32 s5, s5, 16
    s_mul_i32 s65, s5, 13
    s_sub_u32 s64, s64, s65
    s_mul_i32 s4, s61, 13
    s_add_u32 s4, s4, s64
    """)
    elif cfg.map == 1:
        o += T("""
    s_mul_i32 s64, s61, 13
    s_mul_i32 s65, s60, 3
    s_add_u32 s64, s64, s65
    s_add_u32 s64, s64, s62
    s_sub_u32 s64, s64, 26
    s_and_b32 s65, s2, 7
    s_cmp_lt_u32 s62, 26
    s_cselect_b32 s4, s62, s64
    s_cselect_b32 s5, s65, 8
    """)
    else:
        o += T("""
    s_mul_i32 s65, s60, 3
    s_add_u32 s64, s65, s62
    s_sub_u32 s64, s64, 26
    s_lshl_b32 s5, s60, 1
    s_cmp_ge_u32 s62, 13
    s_cselect_b32 s65, 13, 0
    s_cselect_b32 s66, 1, 0
    s_add_u32 s5, s5, s66
    s_sub_u32 s4, s62, s65
    s_cmp_lt_u32 s62, 26
    s_cselect_b32 s4, s4, s64
    s_cselect_b32 s5, s5, 8
    s_mul_i32 s65, s61, 13
    s_add_u32 s4, s4, s65
    """)
        if cfg.bal: o += T("s_cmp_eq_u32 s2, 238\ns_cselect_b32 s4, 12, s4")
    o += T(f"""
    v_lshrrev_b32 v4, 3, v{V_L}
    v_bfe_u32 v5, v{V_L}, 4, 1
    v_lshrrev_b32 v6, 5, v{V_L}
    s_mul_i32 s65, s4, 20
    v_mul_u32_u24 v9, 511, v5
    v_add3_u32 v6, v6, v9, s65
    s_and_b32 s66, s3, 1
    s_lshl_b32 s66, s66, 2
    v_add_u32 v7, s66, v{V_Q}
    v_and_b32 v8, 7, v{V_L}
    v_xor_b32 v7, v7, v8
    v_lshlrev_b32 v7, 4, v7
    s_movk_i32 s67, 1152
    v_and_b32 v9, 3, v4
    v_add_u32 v9, 1, v9
    v_lshrrev_b32 v9, 1, v9
    v_lshlrev_b32 v9, 10, v9
    v_sub_u32 v9, v9, v5
    v_mad_u32_u24 v7, v9, s67, v7
    v_mul_u32_u24 v5, 2304, v5
    v_sub_u32 v5, 1152, v5
    s_bitcmp1_b32 s5, {0 if cfg.rev else 31}
    s_cselect_b32 s92, -1, 1
    s_cselect_b32 s79, 1024, 0
    s_cselect_b32 s34, {8*64*9216}, 0
    s_lshl_b32 s92, s92, 7
    s_lshl_b32 s93, s92, 1
    s_lshl_b32 s82, s3, 10
    s_add_u32 s82, s82, {XB}
    s_lshl_b32 s68, s3, 1
    """)
    for n in range(5):
        if n < 2: o += T(f"s_mov_b32 s{XH+n}, 0\ns_add_u32 s69, s68, {8*n}")
        elif n > 2: o += T(f"s_mov_b32 s{XH+n}, s92\ns_add_u32 s69, s68, {8*n-20}")
        else: o += T(f"s_cmp_ge_u32 s3, 2\ns_cselect_b32 s{XH+n}, s92, 0\ns_cselect_b32 s69, -4, 16\ns_add_u32 s69, s69, s68")
        o += T(f"""
        v_add_u32 v9, s69, v6
        v_and_b32 v9, 511, v9
        v_mad_i32_i24 v{V_XO+n}, v9, v5, v7
        """)
        if cfg.bal: o += T(f"s_add_u32 s69, s69, s65\ns_cmp_ge_u32 s69, 512\ns_cselect_b32 s69, {OOB}, 0\ns_add_u32 s{XH+n}, s{XH+n}, s69")
    o += T("s_waitcnt lgkmcnt(0)") + srd(12, 36, 2359296)
    return o
def setup1():
    return T(f"""
    s_load_dword s7, s[58:59], 0
    s_cmp_lt_u32 s3, 2
    s_cselect_b32 s20, s42, s44
    s_cselect_b32 s21, s43, s45
    s_mov_b32 s22, 663552
    s_mov_b32 s23, 0x20000
    s_and_b32 s68, s3, 1
    s_lshl_b32 s64, s62, 1
    s_add_u32 s64, s64, s68
    s_mul_i32 s64, s64, 15
    v_add_u32 v9, s64, v{V_L}
    s_mul_i32 s64, s60, {64*1152}
    v_lshlrev_b32 v5, 7, v9
    v_add_u32 v6, s64, v5
    v_add_u32 v5, {256*1152 - 576*128}, v5
    v_cmp_gt_u32 vcc, 576, v9
    v_mov_b32 v7, {OOB}
    s_mov_b32 s100, s60
    v_cndmask_b32 v5, v5, v6, vcc
    v_cmp_gt_u32 vcc, 15, v{V_L}
    s_mov_b32 s99, s62
    s_sub_u32 s83, s79, s92
    v_cndmask_b32 v{V_PFD}, v7, v5, vcc
    """)
def setup1b():
    return T(f"""
    s_mul_i32 s35, s92, {64*72}
    s_lshl_b32 s68, s5, 5
    s_lshl_b32 s69, s66, 2
    s_add_u32 s68, s68, s69
    v_add_u32 v9, s68, v4
    v_xor_b32 v7, v{V_Q}, v8
    v_lshlrev_b32 v7, 4, v7
    v_mad_u32_u24 v{V_ABA}, v9, s67, v7
    v_xor_b32 v7, 64, v7
    v_mad_u32_u24 v{V_ABB}, v9, s67, v7
    v_add_u32 v{V_ABB}, {8*1152-1024}, v{V_ABB}
    s_lshl_b32 s60, s3, 11
    """)

def setup2():
    o = srd(8, 48, 5308416) + (lambda x: x if cfg.pf1 & 2 else [])(T(f"""
    s_lshl_b32 s68, s99, 2
    s_add_u32 s68, s68, s3
    s_mul_i32 s68, s68, 5
    v_mul_u32_u24 v5, 43, v{V_L}
    v_lshrrev_b32 v5, 8, v5
    v_mul_u32_u24 v6, 6, v5
    v_sub_u32 v6, v{V_L}, v6
    v_add_u32 v5, s68, v5
    v_lshrrev_b32 v7, 1, v6
    v_and_b32 v6, 1, v6
    s_lshl_b32 s68, s100, 1
    v_cmp_eq_u32 vcc, 2, v7
    v_add_u32 v7, s68, v7
    v_mul_u32_u24 v5, 9216, v5
    v_cndmask_b32 v7, v7, 8, vcc
    v_lshl_add_u32 v5, v6, 7, v5
    v_cmp_gt_u32 vcc, 30, v{V_L}
    v_lshl_add_u32 v5, v7, 10, v5
    v_mov_b32 v6, {OOB}
    v_cndmask_b32 v{V_PF1}, v6, v5, vcc
    """)) + srd(16, 58, WS_SIZE)
    o += T(f"""
    v_lshrrev_b32 v4, 3, v{V_L}
    s_lshl_b32 s68, s3, 4
    v_add_u32 v4, s68, v4
    v_and_b32 v5, 1, v{V_Q}
    v_lshlrev_b32 v5, 1, v5
    v_and_b32 v8, 7, v{V_L}
    v_xor_b32 v5, v5, v8
    v_lshlrev_b32 v5, 4, v5
    v_xor_b32 v6, 64, v5
    s_movk_i32 s68, 9216
    v_mad_u32_u24 v{V_A}, v4, s68, v5
    v_mad_u32_u24 v{V_B}, v4, s68, v6
    v_add_u32 v{V_B}, {8*9216-1024}, v{V_B}
    v_mad_u32_u24 v{V_W2A}, v4, s67, v5
    v_mad_u32_u24 v{V_W2B}, v4, s67, v6
    v_bfe_u32 v4, v{V_L}, 2, 2
    v_and_b32 v5, 3, v{V_L}
    v_and_b32 v6, 1, v{V_Q}
    v_lshlrev_b32 v6, 1, v6
    v_lshrrev_b32 v7, 1, v4
    v_add_u32 v6, v6, v7
    v_xor_b32 v6, s3, v6
    v_lshlrev_b32 v6, 5, v6
    v_lshl_add_u32 v6, v{V_Q}, 10, v6
    v_lshl_add_u32 v6, v4, 7, v6
    v_lshl_add_u32 v{V_TR}, v5, 3, v6
    v_add_u32 v{V_TR2}, 0x10000, v{V_TR}
    v_lshrrev_b32 v4, 1, v{V_C}
    v_xor_b32 v4, v4, v{V_Q}
    v_lshlrev_b32 v4, 4, v4
    v_lshl_add_u32 v4, v{V_C}, 7, v4
    v_add_u32 v{V_XR0}, {XB}, v4
    v_xor_b32 v{V_XR1}, 64, v{V_XR0}
    v_add_u32 v{V_WR0}, s60, v4
    v_xor_b32 v{V_WR1}, 64, v{V_WR0}
    v_mov_b32 v{V_PATCH}, 0xbf803f80
    s_lshl_b32 s68, s5, 2
    s_or_b32 s68, s68, s3
    s_cmp_eq_u32 s68, 2
    s_cselect_b32 s76, 0x00010001, 0
    s_mov_b32 s77, s76
    s_cselect_b32 s69, 1, 0
    s_lshr_b32 s70, s3, 1
    """)
    o += T(f"""
    s_cmp_eq_u32 s70, 0
    s_cselect_b32 s71, 1.0, -1.0
    v_mov_b32 v{V_SIG}, s71
    s_cmp_eq_u32 s69, 1
    s_cselect_b32 s72, 16, 0
    v_cmp_gt_u32 vcc, s72, v{V_L}
    v_mov_b32 v4, 1.0
    v_and_b32 v5, 1, v{V_L}
    v_cndmask_b32 v{V_SIG0}, v{V_SIG}, v4, vcc
    s_cmp_eq_u32 s4, 0
    s_cselect_b32 s72, 4, 0
    v_cmp_gt_u32 vcc, s72, v{V_C}
    s_cselect_b32 s80, 8, 0
    v_lshlrev_b32 v5, 31, v5
    v_cndmask_b32 v{V_SIGT0}, v{V_SIG}, 0, vcc
    v_cndmask_b32 v{V_SIG0T0}, v{V_SIG0}, 0, vcc
    v_or_b32 v{V_TAU}, v4, v5
    s_cmp_eq_u32 s69, 1
    s_cselect_b32 s80, s80, 0
    s_mov_b32 s81, 0
    """)
    o += T(f"""
    v_lshrrev_b32 v4, 2, v{V_C}
    v_and_b32 v5, 3, v{V_C}
    s_mul_i32 s68, s3, 1792
    s_add_u32 s68, s68, {ABL}
    v_and_b32 v6, 1, v4
    v_mul_u32_u24 v6, 320, v6
    v_lshrrev_b32 v7, 1, v4
    v_lshl_add_u32 v6, v7, 5, v6
    v_lshl_add_u32 v9, v{V_Q}, 3, s68
    v_add_u32 v6, v6, v9
    v_add_u32 v7, 640, v6
    v_add_u32 v8, 1344, v9
    v_cmp_eq_u32 vcc, 1, v5
    v_add_u32 v9, 1280, v9
    s_lshl_b32 s71, s70, 1
    v_cndmask_b32 v{V_ABS}, v8, v7, vcc
    v_cmp_eq_u32 vcc, 0, v5
    s_add_u32 s71, s71, 1
    s_nop 0
    v_cndmask_b32 v{V_ABS}, v{V_ABS}, v6, vcc
    v_cndmask_b32 v8, v8, v6, vcc
    v_cmp_eq_u32 vcc, s71, v5
    s_nop 1
    v_cndmask_b32 v8, v8, v7, vcc
    v_cmp_eq_u32 vcc, 2, v5
    s_nop 1
    v_cndmask_b32 v8, v8, v9, vcc
    v_cmp_gt_u32 vcc, s72, v{V_C}
    s_cmp_eq_u32 s4, 25
    s_cselect_b32 s75, {OOB}, 0
    v_cndmask_b32 v{V_ABS0}, v{V_ABS}, v8, vcc
    s_mul_i32 s68, s5, 26
    s_add_u32 s68, s68, s4
    s_lshl_b32 s68, s68, 7
    s_add_u32 s68, s68, {WS_ABFLAG}
    v_cmp_gt_u32 vcc, 32, v0
    v_mov_b32 v8, {OOB}
    v_lshl_add_u32 v9, v0, 2, s68
    v_cndmask_b32 v{V_ABFL}, v8, v9, vcc
    v_cmp_eq_u32 vcc, 0, v{V_L}
    v_lshrrev_b32 v4, 3, v{V_L}
    v_mul_u32_u24 v4, {SL}, v4
    v_and_b32 v5, 7, v{V_L}
    v_lshl_add_u32 v{ABP+14}, v5, 4, v4
    v_cndmask_b32 v{V_FL}, v8, 0, vcc
    """)
    o += T(f"""
    s_mul_i32 s73, s4, {cfg.rot1}
    s_and_b32 s73, s73, {cfg.rmask}
    s_mov_b32 s101, s73
    s_lshl_b32 s73, s73, 7
    s_lshl_b32 s74, s5, 10
    s_add_u32 s74, s74, s34
    s_add_u32 s62, s73, s74
    s_mul_i32 s6, s4, {cfg.rot2}
    s_add_u32 s6, s6, s5
    s_mul_i32 s72, s6, 7282
    s_lshr_b32 s72, s72, 16
    s_mul_i32 s72, s72, 9
    s_sub_u32 s6, s6, s72
    s_add_u32 s72, s6, 1
    s_cmp_eq_u32 s72, 9
    s_cselect_b32 s72, 0, s72
    s_mul_i32 s63, s4, 9
    s_add_u32 s63, s63, s72
    s_lshl_b32 s72, s72, 7
    s_mul_i32 s78, s63, {8*SL}
    s_mul_i32 s63, s3, {WSL}
    s_add_u32 s78, s78, s63
    s_add_u32 s78, s78, {WS_PART}
    s_mov_b32 s63, 6
    s_waitcnt lgkmcnt(0)
    s_add_u32 s7, s7, 0x9e3779b9
    v_mov_b32 v{V_TAG}, s7
    v_not_b32 v{ABP+10}, s7
    v_not_b32 v{ABP+11}, s7
    v_not_b32 v{ABP+12}, s7
    v_not_b32 v{ABP+13}, s7
    """)
    return o

def setup3():
    o = srd(24, 54, 2359296) + srd(28, 50, 5308416) + T(f"""
    v_add_u32 v{V_W2B}, {8*1152-1024}, v{V_W2B}
    s_and_b32 s68, s3, 1
    s_lshl_b32 s68, s68, 9
    s_lshr_b32 s70, s3, 1
    s_mul_i32 s71, s70, 5120
    s_add_u32 s68, s68, s71
    s_add_u32 s68, s68, {HB}
    v_lshrrev_b32 v4, 1, v{V_Q}
    v_lshl_add_u32 v4, v4, 4, v{V_C}
    v_lshlrev_b32 v4, 4, v4
    v_and_b32 v5, 1, v{V_Q}
    v_lshl_add_u32 v4, v5, 3, v4
    v_add_u32 v{V_HW}, s68, v4
    v_lshlrev_b32 v{V_P16}, 4, v{V_L}
    v_lshlrev_b32 v{V_P8}, 3, v{V_L}
    v_add_u32 v{V_HR}, {HB}, v{V_P16}
    v_add_u32 v{V_HR2}, {HB+40960}, v{V_P16}
    """)
    o += T("s_lshl_b32 s99, s5, 3")
    if cfg.w0: o.append([I("s_cmp_eq_u32 s3, 0"), I("s_cselect_b32 s33, 6, -1")])
    if cfg.krot:
        o += T(f"""
        s_mul_i32 s94, s4, 43
        s_lshr_b32 s94, s94, 8
        s_mul_i32 s94, s94, 6
        s_sub_u32 s94, s4, s94
        s_mul_i32 s100, s94, 10240
        v_mov_b32 v{V_PF2}, v{V_HW}
        v_add_u32 v{V_HW}, s100, v{V_HW}
        s_sub_u32 s95, s101, s94
        """)
    for i in range(8):
        if cfg.krot and i < 6:
            o.append([I(f"s_cmp_gt_u32 s94, {i}"), I(f"s_cselect_b32 s{64+i}, {i+6}, {i}"), I(f"s_add_u32 s{64+i}, s{64+i}, s95")])
        else: o.append(I(f"s_add_u32 s{64+i}, s101, {i}"))
        o += T(f"""
        s_and_b32 s{64+i}, s{64+i}, 7
        s_add_u32 s{64+i}, s{64+i}, s99
        s_mul_i32 s{64+i}, s{64+i}, {64*1152}
        """)
    return o

def poll(lab, vaddr, nl):
    return T(f"""
    s_mov_b32 s63, {SPIN}
    v_cmp_le_u32 s[80:81], {nl}, v{V_L}
    {lab}:
    s_sleep {cfg.slp}
    buffer_load_dword v4, v{vaddr}, s[16:19], 0 offen sc1
    s_sub_u32 s63, s63, 1
    s_waitcnt vmcnt(0)
    v_cmp_eq_u32 vcc, s7, v4
    s_cmp_eq_u32 s63, 0
    s_cbranch_scc1 {lab}_out
    s_or_b64 vcc, vcc, s[80:81]
    s_cmp_eq_u64 vcc, -1
    s_cbranch_scc0 {lab}
    {lab}_out:
    """)

def ts_dump(fn=0):
    if not cfg.ts: return []
    if cfg.ts >= 100:
        if fn != (cfg.ts >= 200): return []
        return T("s_waitcnt vmcnt(0)") + TS(8) + (T(f"s_and_b32 s68, s2, 7\ns_cmp_lg_u32 s68, {cfg.hx}\ns_cbranch_scc1 L_end") if cfg.hx >= 0 else []) + T(f"""
        L_hold{fn}:
        s_memrealtime s[100:101]
        s_waitcnt lgkmcnt(0)
        s_sub_u32 s100, s100, s{tsr(cfg.ts % 100)}
        s_cmp_lt_u32 s100, 3000
        s_cbranch_scc1 L_hold{fn}
        """)
    if cfg.ts >= 10:
        return T(f"""
        L_hold{fn}:
        s_memrealtime s[100:101]
        s_waitcnt lgkmcnt(0)
        s_sub_u32 s100, s100, s84
        s_cmp_lt_u32 s100, {cfg.ts*100}
        s_cbranch_scc1 L_hold{fn}
        """)
    o = T("s_waitcnt vmcnt(0)") + TS(8) + T("s_waitcnt lgkmcnt(0)")
    for k in range(9): o.append(I(f"v_mov_b32 v{16+k}, s{tsr(k)}"))
    o += T(f"""
    s_getreg_b32 s68, hwreg(HW_REG_XCC_ID)
    v_mov_b32 v25, s68
    v_mov_b32 v26, 0
    v_mov_b32 v27, 0
    s_lshl_b32 s68, s2, 2
    s_add_u32 s68, s68, s3
    s_lshl_b32 s68, s68, 6
    s_add_u32 s68, s68, {WS_TS}
    v_cmp_eq_u32 vcc, 0, v{V_L}
    v_mov_b32 v4, {OOB}
    s_nop 0
    v_cndmask_b32 v4, v4, 0, vcc
    buffer_store_dwordx4 v[16:19], v4, s[16:19], s68 offen
    buffer_store_dwordx4 v[20:23], v4, s[16:19], s68 offen offset:16
    buffer_store_dwordx4 v[24:27], v4, s[16:19], s68 offen offset:32
    """)
    if cfg.ts == 2 and not fn:
        o += T(f"""
        v_lshlrev_b32 v5, 2, v{V_L}
        v_cmp_gt_u32 vcc, 16, v{V_L}
        v_mov_b32 v4, {OOB}
        s_lshl_b32 s69, s68, 2
        s_sub_u32 s69, s69, {4*WS_TS - WS_TS - 0x300000}
        buffer_store_dword v131, v5, s[16:19], s69 offen
        s_add_u32 s68, s68, 0x100000
        v_cndmask_b32 v4, v4, v5, vcc
        buffer_store_dword v130, v4, s[16:19], s68 offen
        s_add_u32 s68, s68, 0x100000
        buffer_store_dword v131, v4, s[16:19], s68 offen
        """)
    if cfg.ts != 3: return o
    o += T(f"""
    s_waitcnt vmcnt(0)
    v_not_b32 v16, v16
    v_cmp_eq_u32 vcc, 0, v0
    v_mov_b32 v4, {OOB}
    s_sleep 127
    s_sleep 127
    v_cndmask_b32 v4, v4, 0, vcc
    """) + srd(28, 56, 256)
    o.append(I("buffer_atomic_umax v16, v4, s[28:31], 0 offen"))
    for k in range(1, 9 if not fn else 8): o.append(I(f"buffer_atomic_umax v{16+k}, v4, s[28:31], 0 offen offset:{4*(k+8*fn)}"))
    return o

from fnet import fnet_code

def AL():
    if not cfg.al: return []
    return [I(f".p2alignl {(6, 6, 3, 5)[cfg.al - 1]}, 0xbf800000")] + ([I("s_nop 0")] if cfg.al == 2 else [])
def build():
    def dyn(hasx22, ep):
        d = prologue(True)
        d += ab_pass(hasx22)
        d += TS(2)
        for p in range(8):
            for g in range(6): d += g1_group(p, g, True)
        d += TS(4)
        d += g2_pass0()
        for p in range(1, 8):
            for g in range(4): d += g2_group(p, g, ep)
        d += g2_last()
        return d
    ds = [dyn(True, (3, 4, 5, 6, 7)), dyn(False, (3, 4, 5, 6, 7))] if cfg.ep2 == 2 else [dyn(True, (5, 7)), dyn(False, (6, 7))] if cfg.ep2 else [dyn(True, (5,)), dyn(False, (6,)), dyn(True, (7,))]
    rs = [resolve(d) for d in ds]
    mn = lambda l: None if all(x is None for x in l) else min(x for x in l if x is not None)
    res = {k: (mn([r[k][0] for r in rs]), mn([r[k][1] for r in rs])) for k in rs[0]}
    txt = lambda l: [wait_text(res, it.site) if it.kind == "wait" else it.text for it in l]
    for d in ds:
        check_lds(d, res); check_loads(txt(d)); check_hazards(txt(d)); check_scc(txt(d))
    st = prologue()
    st += ab_pass(True)
    st += TS(2)
    for g in range(6): st += g1_group(0, g)
    st += TS(3) + AL() + [I("L_g1:")]
    for g in range(6): st += g1_group(1, g)
    st.append(I("s_cbranch_scc1 L_g1"))
    for g in range(6): st += g1_group(7, g)
    st += TS(4)
    st += g2_pass0() + TS(5) + AL() + [I("L_g2:")]
    for g in range(4): st += g2_group(1, g)
    st.append(I("s_cbranch_scc1 L_g2"))
    st += TS(6)
    st += g2_last() + ts_dump() + [I("s_endpgm")] + (([I("L_fs:")] + fs_block() + [I("s_branch L_fs_ret")]) if cfg.fse else []) + [I("L_once1:")] + ab_once(1) + [I("s_branch L_once1_ret")] + (spin("L_sp1", "s34") if cfg.inloop else (([I("L_ep0:")] + ep_block(0) + [I("s_branch L_ep0_ret"), I("L_ep1:")] + ep_block(1) + [I("s_branch L_ep1_ret")] + [I(x.text.replace(f"v{V_POLL},", f"v{V_POLLE},")) for x in spin("L_sp1", "s79" if cfg.ep2 == 2 else None)]) if cfg.early else [])) + spin("L_sp2") + (([I(x.text.replace("vcc_lo", "s80").replace("vcc", "s[80:81]")) for x in spin("L_sp3", "s93" if cfg.fse else "s70")] + (spin("L_sp4", "s95" if cfg.fse else "s71") if cfg.chk7 == 2 else spin7())) if cfg.chk7 else spin("L_sp3"))
    fn, idle = fnet_code(sys.modules[__name__])
    check_loads([it.text for it in fn]); check_hazards([it.text for it in fn]); check_scc([it.text for it in fn])
    st += fn + ts_dump(1) + [I("L_end:"), I("s_endpgm")] + idle
    if cfg.trace:
        ns = []; k = 0
        for it in st:
            ns.append(it)
            if it.kind == "wait" and it.site and re.match(r"(ab_rw\d|ab_r\d|ab_x\d|ab_b0|g1_r\d[az]|g20_r\d|g2z_r\d|g2z_st|g2z_s0|fin_)", it.site):
                ns += [I("s_waitcnt lgkmcnt(0)"), I(f"v_writelane_b32 v131, s32, {k}"), I("s_memtime s[32:33]")]; k += 1
                print(k, it.site, file=sys.stderr, end="; ")
            if it.text == "L_noepoch:": ns += [I("s_waitcnt lgkmcnt(0)"), I(f"v_writelane_b32 v131, s32, {k}")]
        st = ns
    if cfg.strip:
        a = [i for i, it in enumerate(st) if it.text == "L_g1:"][0]; b = [i for i, it in enumerate(st) if it.text == "s_cbranch_scc1 L_g2"][0]
        def drop(it):
            t = it.text or ""
            if cfg.strip & 1 and t.endswith(" lds"): return True
            if cfg.strip & 2 and (t.startswith(("v_cvt_pk", "v_pk_max", "ds_write")) or "s78 offen" in t): return True
            if cfg.strip & 4 and t == "s_barrier": return True
            if cfg.strip & 8 and it.kind == "wait" and it.need_vm: return True
            if cfg.strip & 16 and t.startswith("ds_read_b64_tr"): return True
            if cfg.strip & 32 and (t.startswith("ds_write") or "s78 offen" in t): return True
            if cfg.strip & 64 and t.startswith(("v_cvt_pk", "v_pk_max")): return True
            if cfg.strip & 128 and t.startswith("buffer_store_dword "): return True
            if cfg.strip & 1024 and it.kind == "wait" and it.need_lg and it.site not in ("g1_r2", "g2_r1"): return True
            if cfg.strip & 256 and "s78 offen" in t: it.text = t.replace(" sc1", "")
            if cfg.strip & 512 and "s78 offen" in t: it.text = t.replace(" sc1", " sc1 nt")
            return False
        st = st[:a] + [it for it in st[a:b] if not drop(it)] + st[b:]
    head = open("gated_mix__spectral_fnet__dense_activation_relu__prompt.s.ref").read().split("; Override launch")[0]
    out = head + "; @launch grid=(256,1,1) block=(256,1,1) lds=163840\n"
    out += """;
;  * 234 FFN workgroups = 26 row tiles (80 rows = 20 mirror orbits {s, s+1024, 1024-s, 2048-s}) x 9 hidden chunks (512).
; Hand-offs: write-through stores, drained, then a flag holding a per-launch tag (d_ws[0] + constant); all waits are bounded.
"""
    out += f'.amdgcn_target "amdgcn-amd-amdhsa--gfx950"\n.text\n.globl {NAME}\n.p2align 8\n.type {NAME},@function\n{NAME}:\n'
    out += "\n".join(("" if (x.endswith(":") or x.startswith(".")) else "    ") + x for x in txt(st)) + "\n"
    out += f""".section .rodata,"a"
.p2align 6
.amdhsa_kernel {NAME}
  .amdhsa_next_free_vgpr 512
  .amdhsa_next_free_sgpr 102
  .amdhsa_accum_offset 256
  .amdhsa_group_segment_fixed_size 0
  .amdhsa_kernarg_size 96
  .amdhsa_user_sgpr_count 2
  .amdhsa_user_sgpr_kernarg_segment_ptr 1
  .amdhsa_system_sgpr_workgroup_id_x 1
.end_amdhsa_kernel
"""
    return out, res

if __name__ == "__main__":
    sys.modules["gen"] = sys.modules[__name__]
    outp = sys.argv[1]
    for a in sys.argv[2:]:
        k, v = a.split("="); setattr(cfg, k, int(v))
    WSL = cfg.wsl; SL = 4 * WSL
    out, res = build()
    open(outp, "w").write(out)
    print(res)
```
